```python
import torch

def _softmax(x, axis=-1):
    return torch.softmax(x, dim=axis)
def _gelu(x):
    return torch.nn.functional.gelu(x, approximate="tanh")
def _silu(x):
    return torch.nn.functional.silu(x)
def _sigmoid(x):
    return torch.sigmoid(x)
def _layernorm(x, axis=-1, eps=1e-5):
    m = x.mean(dim=axis, keepdim=True)
    v = x.var(dim=axis, keepdim=True, unbiased=False)
    return (x - m) / torch.sqrt(v + eps)
def _scatter_add(tgt, idx, src, axis=0):
    return tgt.clone().index_add_(axis, idx, src)
def _segment_sum(src, seg, n):
    out = torch.zeros((n,) + src.shape[1:], dtype=src.dtype)
    return out.index_add_(0, seg, src)
def _pad(x, pw):
    flat = tuple(v for pair in reversed(pw) for v in pair)
    return torch.nn.functional.pad(x, flat)

kernel_name = 'parallel_sum__mha_block__dense_activation_relu__prompt'

def setup_inputs():

    _w = (lambda a: (lambda t: t.to(torch.bfloat16) if t.is_floating_point() else t)(torch.as_tensor(a)))
    def _A_setup():
        B, S, D, H = 1, 2048, 448, 16
        return {
            "x": _w((lambda *s: torch.randn(*s, dtype=torch.bfloat16) * 0.05)(B, S, D)),
            "wqkv": _w((lambda *s: torch.randn(*s, dtype=torch.bfloat16) * 0.2)(D, 3 * D)),
            "wo": _w((lambda *s: torch.randn(*s, dtype=torch.bfloat16) * 0.1)(D, D)),
        }
    _A_in = _A_setup()

    def _B_setup():
        B, S, D, Dff = 1, 2048, 448, 1792
        return {
            "x": _w((lambda *s: torch.randn(*s, dtype=torch.bfloat16) * 0.05)(B, S, D)),
            "w1": _w((lambda *s: torch.randn(*s, dtype=torch.bfloat16) * 0.2)(D, Dff)),
            "w2": _w((lambda *s: torch.randn(*s, dtype=torch.bfloat16) * 0.2)(Dff, D)),
        }
    _B_in = _B_setup()

    return {
        "A_x": _A_in["x"],
        "A_wqkv": _A_in["wqkv"],
        "A_wo": _A_in["wo"],
        "B_x": _B_in["x"],
        "B_w1": _B_in["w1"],
        "B_w2": _B_in["w2"],
    }

def reference(A_x, A_wqkv, A_wo, B_x, B_w1, B_w2):
    def _A_ref(x, wqkv, wo):
        B, S, D = x.shape
        H = 16
        Dh = D // H
        qkv = (lambda x, *d: x.permute(*d))((x @ wqkv).reshape(B, S, 3, H, Dh), 2, 0, 3, 1, 4)
        q, k, v = qkv[0], qkv[1], qkv[2]
        scores = torch.einsum("bhqd,bhkd->bhqk", q, k) * (Dh ** -0.5)
        p = _softmax(scores, axis=-1)
        o = torch.einsum("bhqk,bhkd->bhqd", p, v)
        return (lambda x, *d: x.permute(*d))(o, 0, 2, 1, 3).reshape(B, S, D) @ wo

    def _B_ref(x, w1, w2):
        h = torch.einsum("bsd,df->bsf", x, w1)
        zero = torch.zeros_like(h)
        h = torch.maximum(h, zero)
        return torch.einsum("bsf,fd->bsd", h, w2)

    x = A_x
    xn = _layernorm(x, axis=-1)
    return x + _A_ref(xn, A_wqkv, A_wo) + _B_ref(xn, B_w1, B_w2)
```

```python
import re

REG_RE = re.compile(r"\b([vas])\[(\d+):(\d+)\]|\b([vas])(\d+)\b|\b(vcc|exec|m0|scc)\b")

TRANS = ("v_exp_", "v_log_", "v_rcp_", "v_rsq_", "v_sqrt_", "v_sin_", "v_cos_")


def regs_of(text):
    out = []
    for m in REG_RE.finditer(text):
        if m.group(1):
            out += [(m.group(1), i) for i in range(int(m.group(2)), int(m.group(3)) + 1)]
        elif m.group(4):
            out.append((m.group(4), int(m.group(5))))
        else:
            out.append((m.group(6), 0))
    return out


def split_ops(s):
    ops, depth, cur = [], 0, ""
    for ch in s:
        if ch == "[" or ch == "(":
            depth += 1
        if ch == "]" or ch == ")":
            depth -= 1
        if ch == "," and depth == 0:
            ops.append(cur.strip())
            cur = ""
        else:
            cur += ch
    if cur.strip():
        ops.append(cur.strip())
    return ops


class I:
    def __init__(self, text, tag=None, comment=None):
        self.text = text.strip()
        self.tag = tag
        self.comment = comment
        self.kind = "other"
        self.w = []
        self.r = []
        self.srcc = []
        self.cnt = None
        self.parse()

    def parse(self):
        t = self.text
        if t.endswith(":") or t.startswith(".") or t.startswith(";") or t == "":
            self.kind = "label" if t.endswith(":") else "dir"
            self.op = ""
            return
        parts = t.split(None, 1)
        op = parts[0]
        self.op = op
        rest = parts[1] if len(parts) > 1 else ""
        ops = split_ops(rest)
        R = [regs_of(o.split(" ")[0] if not o.startswith("v[") and not o.startswith("s[") and not o.startswith("a[") else o.split(" ")[0]) for o in ops]
        flat = lambda L: [x for l in L for x in l]
        if op.startswith("v_mfma"):
            self.kind = "mfma"
            self.w = R[0]
            self.r = R[1] + R[2] + R[3]
            self.srcab = R[1] + R[2]
            self.srcc = R[3]
            self.passes = 8 if "32x32x16" in op else 4
        elif op.startswith("v_cmp"):
            self.kind = "valu"
            self.w = R[0]
            self.r = flat(R[1:])
            if op.startswith("v_cmpx"):
                self.w = self.w + [("exec", 0)]
        elif op.startswith("v_permlane") and "swap" in op:
            self.kind = "valu"
            self.w = R[0] + R[1]
            self.r = R[0] + R[1]
        elif op.startswith("v_"):
            self.kind = "valu"
            self.w = R[0]
            self.r = flat(R[1:])
            if op.startswith("v_dot2c") or op.startswith("v_fmac") or op.startswith("v_pk_fmac"):
                self.r = self.r + R[0]
            if op.startswith("v_add_co") or op.startswith("v_addc_co") or op.startswith("v_sub_co"):
                self.w = R[0] + R[1]
                self.r = flat(R[2:])
            if op.startswith("v_writelane"):
                self.r = self.r + R[0]
        elif op.startswith("buffer_load") or op.startswith("global_load"):
            self.kind = "vmem"
            self.cnt = "vm"
            if " lds" in t or "_lds_" in op:
                self.r = flat(R) + [("m0", 0)]
                self.ldsdma = True
            else:
                self.w = R[0]
                self.r = flat(R[1:])
        elif op.startswith("buffer_store") or op.startswith("global_store") or op.startswith("buffer_atomic") or op.startswith("global_atomic"):
            self.kind = "vmem"
            self.cnt = "vm"
            self.r = flat(R)
            self.store = True
            self.sdata = R[0] if op.startswith("buffer") else R[1]
        elif op.startswith("ds_read") or op.startswith("ds_bpermute") or op.startswith("ds_swizzle") or op.startswith("ds_permute"):
            self.kind = "ds"
            self.cnt = "lgkm"
            self.w = R[0]
            self.r = flat(R[1:])
        elif op.startswith("ds_"):
            self.kind = "ds"
            self.cnt = "lgkm"
            self.r = flat(R)
        elif op.startswith("s_load") or op.startswith("s_memtime") or op.startswith("s_memrealtime") or op.startswith("s_buffer_load"):
            self.kind = "smem"
            self.cnt = "smem"
            self.w = R[0]
            self.r = flat(R[1:])
        elif op in ("s_waitcnt", "s_nop", "s_barrier", "s_endpgm", "s_setprio", "s_sleep") or op.startswith("s_cbranch") or op == "s_branch":
            self.kind = "ctl"
        elif op.startswith("s_cmp") or op.startswith("s_bitcmp"):
            self.kind = "salu"
            self.r = flat(R)
            self.w = [("scc", 0)]
        elif op.startswith("s_"):
            self.kind = "salu"
            self.w = R[0] if R else []
            self.r = flat(R[1:])
            if "saveexec" in op:
                self.w = self.w + [("exec", 0)]
        elif op.startswith("@"):
            self.kind = "pseudo"
        else:
            raise ValueError("unknown instruction: " + t)

    @property
    def states(self):
        if self.kind in ("label", "dir", "pseudo"):
            return 0
        if self.op == "s_nop":
            return int(self.text.split()[1], 0) + 1
        return 1

    def is_trans(self):
        return self.kind == "valu" and self.op.startswith(TRANS)

    def is_dot(self):
        return self.kind == "valu" and self.op.startswith("v_dot")

    def __str__(self):
        if self.kind == "label":
            return self.text
        s = "    " + self.text
        if self.comment:
            s += "    ; " + self.comment
        return s


def vg(regs):
    return set(x for x in regs if x[0] in "va")


def sg(regs):
    return set(x for x in regs if x[0] in ("s", "vcc"))


XDL_VALU = {4: 8, 8: 12}
XDL_AB = {4: 8, 8: 12}
XDL_COVL = {4: 6, 8: 10}
XDL_WARC = {4: 3, 8: 7}


def need(p, c):
    n = 0
    pw, pr, cw, cr = p.w, p.r, c.w, c.r
    if p.kind == "valu":
        vw = vg(pw)
        if c.kind == "mfma" and vw & vg(cr):
            n = max(n, 3 if p.is_dot() else 2)
        if c.kind == "valu":
            if p.is_trans() and not c.is_trans() and (vw & vg(cr)):
                n = max(n, 1)
            if c.op.startswith("v_permlane") and vw & vg(cr):
                n = max(n, 2)
            if (c.op.startswith("v_readfirstlane") or c.op.startswith("v_readlane")) and vw & vg(cr):
                n = max(n, 1)
            if "dpp" in c.text or "row_" in c.text or "quad_perm" in c.text:
                if vw & vg(cr):
                    n = max(n, 2)
            if sg(pw) & sg(cr):
                n = max(n, 4 if c.op.startswith("v_readlane") or c.op.startswith("v_writelane") else 2)
            if ("exec", 0) in pw:
                if c.op.startswith("v_readfirstlane") or c.op.startswith("v_readlane") or c.op.startswith("v_permlane"):
                    n = max(n, 4)
        if p.is_dot():
            if c.kind in ("valu", "vmem", "ds") and (vw & (vg(cr) | vg(cw))):
                same_c = c.op == p.op and c.kind == "valu"
                if same_c:
                    ops = split_ops(c.text.split(None, 1)[1])
                    ab = vg(regs_of(ops[1]) + regs_of(ops[2]))
                    if vw & ab:
                        n = max(n, 3)
                else:
                    n = max(n, 3)
        if c.kind == "vmem" and sg(pw) & sg(cr):
            n = max(n, 5)
        if c.kind == "salu" and sg(pw) & sg(cr):
            n = max(n, 2)
        if c.kind == "mfma" and ("exec", 0) in pw:
            n = max(n, 4)
    if p.kind == "mfma":
        d = vg(pw)
        ps = p.passes
        if c.kind == "mfma":
            if d & vg(c.srcab):
                n = max(n, XDL_AB[ps])
            cc = vg(c.srcc)
            if d & cc:
                if not (cc == d and c.passes == ps):
                    n = max(n, XDL_COVL[ps])
            elif d & vg(cw):
                n = max(n, XDL_VALU[ps])
        elif c.kind in ("valu", "vmem", "ds"):
            if d & (vg(cr) | vg(cw)):
                n = max(n, XDL_VALU[ps])
        if c.kind in ("valu", "vmem", "ds") and vg(p.srcc) & vg(cw):
            n = max(n, XDL_WARC[ps])
    if p.kind == "vmem" and getattr(p, "store", False) and len(p.sdata) >= 3:
        if vg(p.sdata) & vg(cw):
            n = max(n, 2)
    if p.kind == "salu" and ("m0", 0) in pw and ("m0", 0) in cr:
        n = max(n, 1)
    return n


MAXD = 21


def pad_hazards(seq, before=()):
    out = []
    hist = list(before)[-MAXD * 2:]
    for ins in seq:
        if ins.kind in ("label", "dir", "pseudo"):
            out.append(ins)
            hist.append(ins)
            continue
        dist = 0
        add = 0
        for p in reversed(hist):
            if dist >= MAXD:
                break
            if p.states:
                k = need(p, ins)
                if k > dist:
                    add = max(add, k - dist)
            dist += p.states
        while add > 0:
            k = min(add, 16)
            nop = I(f"s_nop {k-1}")
            out.append(nop)
            hist.append(nop)
            add -= k
        out.append(ins)
        hist.append(ins)
        if len(hist) > 4 * MAXD:
            hist = hist[-2 * MAXD:]
    return out


class Tracker:
    def __init__(self):
        self.vm = []
        self.lg = []

    def copy(self):
        t = Tracker()
        t.vm = list(self.vm)
        t.lg = list(self.lg)
        return t

    def needed(self, ins):
        nv = nl = None
        if ins.kind == "pseudo" and ins.op == "@wait":
            tags = ins.text.split()[1:]
            for q, name in ((self.vm, "v"), (self.lg, "l")):
                idx = [i for i, o in enumerate(q) if o.tag in tags]
                if idx:
                    n = len(q) - 1 - max(idx)
                    if name == "l" and any(o.cnt == "smem" for o in q):
                        n = 0
                    if name == "v":
                        nv = n
                    else:
                        nl = n
            return nv, nl
        touched = set(ins.r) | set(ins.w)
        if not touched:
            return None, None
        for q, name in ((self.vm, "v"), (self.lg, "l")):
            idx = [i for i, o in enumerate(q) if set(o.w) & touched]
            if idx:
                n = len(q) - 1 - max(idx)
                if name == "l" and any(o.cnt == "smem" for o in q):
                    n = 0
                if name == "v":
                    nv = n
                else:
                    nl = n
        return nv, nl

    def apply_wait(self, nv, nl):
        if nv is not None and len(self.vm) > nv:
            self.vm = self.vm[len(self.vm) - nv:] if nv else []
        if nl is not None and len(self.lg) > nl:
            self.lg = self.lg[len(self.lg) - nl:] if nl else []

    def issue(self, ins):
        if ins.kind == "ctl" and ins.op == "s_waitcnt":
            m = re.search(r"vmcnt\((\d+)\)", ins.text)
            nv = int(m.group(1)) if m else None
            m = re.search(r"lgkmcnt\((\d+)\)", ins.text)
            nl = int(m.group(1)) if m else None
            self.apply_wait(nv, nl)
        if ins.cnt == "vm":
            self.vm.append(ins)
        elif ins.cnt in ("lgkm", "smem"):
            self.lg.append(ins)


def mk_wait(nv, nl):
    s = "s_waitcnt"
    if nv is not None:
        s += f" vmcnt({min(nv,63)})"
    if nl is not None:
        s += f" lgkmcnt({min(nl,15)})"
    return I(s)


def mn(a, b):
    if a is None:
        return b
    if b is None:
        return a
    return min(a, b)


def add_waits(seq, tr, loop=False):
    if not loop:
        out = []
        for ins in seq:
            nv, nl = tr.needed(ins)
            if nv is not None or nl is not None:
                nv = None if nv is None else min(nv, 63)
                nl = None if nl is None else min(nl, 15)
                w = mk_wait(nv, nl)
                out.append(w)
                tr.apply_wait(nv, nl)
            if ins.kind != "pseudo":
                out.append(ins)
            tr.issue(ins)
        return out
    W = [(None, None)] * len(seq)
    for _ in range(6):
        changed = False
        t = tr.copy()
        for trip in range(4):
            for i, ins in enumerate(seq):
                nv, nl = t.needed(ins)
                nv = None if nv is None else min(nv, 63)
                nl = None if nl is None else min(nl, 15)
                new = (mn(W[i][0], nv), mn(W[i][1], nl))
                if new != W[i]:
                    W[i] = new
                    changed = True
                t.apply_wait(*W[i])
                t.issue(ins)
        if not changed:
            break
    else:
        raise RuntimeError("wait insertion did not converge")
    out = []
    for i, ins in enumerate(seq):
        if W[i] != (None, None):
            out.append(mk_wait(*W[i]))
        if ins.kind != "pseudo":
            out.append(ins)
    t1 = tr.copy()
    for ins in out:
        t1.issue(ins)
    t = t1.copy()
    for trip in range(3):
        for ins in out:
            t.issue(ins)
    tr.vm, tr.lg = t.vm, t.lg
    tr.one_trip = t1
    return out


class Prog:
    def __init__(self):
        self.out = []
        self.tr = Tracker()
        self.cur = []

    def __call__(self, text, tag=None, comment=None):
        for line in text.strip().split("\n"):
            line = line.split(";")[0].strip()
            if line:
                self.cur.append(I(line, tag=tag, comment=comment))

    def add(self, instrs):
        for x in instrs:
            self.cur.append(x if isinstance(x, I) else I(x))

    def flush(self):
        seq = add_waits(self.cur, self.tr)
        seq = pad_hazards(seq, self.out)
        self.out += seq
        self.cur = []

    def loop(self, body):
        self.flush()
        body = [x if isinstance(x, I) else I(x) for x in body]
        seq = add_waits(body, self.tr, loop=True)
        seq = pad_hazards(seq, self.out)
        seq2 = pad_hazards(seq, seq)
        self.out += seq2

    def fresh(self, drain=True):
        self.flush()
        self.tr = Tracker()
        self.out.append(I("s_nop 7") if False else I("; ---"))

    def text(self):
        self.flush()
        return "\n".join(str(i) for i in self.out)


def interleave(main, fill, start=0, end=None):
    end = len(main) if end is None else end
    n = end - start
    out = []
    k = 0
    for i, m in enumerate(main):
        out.append(m)
        if start <= i < end:
            tgt = (len(fill) * (i - start + 1)) // n
            while k < tgt:
                out.append(fill[k])
                k += 1
    out += fill[k:]
    return out
```

```python
import sys, struct
from asmgen import *

NAME = "parallel_sum__mha_block__dense_activation_relu__prompt"

QF = 0
KVF = 2 << 20
HF = 6 << 20
W2F = 13 << 20
WOF = 15 << 20
OF = 16 << 20
BP = 18 << 20
WS_BYTES = 26 << 20
OOB = 0x40000000

XB = 2048 * 448 * 2
WQKVB = 448 * 1344 * 2
WOB = 448 * 448 * 2
W1B = 448 * 1792 * 2
W2B = 1792 * 448 * 2

MF = "v_mfma_f32_32x32x16_bf16"


def f32bits(x):
    return struct.unpack("<I", struct.pack("<f", x))[0]


def vr(b, n):
    return f"v[{b}:{b+n-1}]"


def ar(b, n):
    return f"a[{b}:{b+n-1}]"


def srd(p, d, base, nbytes):
    p(f"""
    s_mov_b32 s{d}, s{base}
    s_and_b32 s{d+1}, s{base+1}, 0xffff
    s_mov_b32 s{d+2}, {nbytes}
    s_mov_b32 s{d+3}, 0x00020000
    """)


KD = """
.section .rodata,"a"
.p2align 6
.amdhsa_kernel {name}
  .amdhsa_next_free_vgpr {nv}
  .amdhsa_next_free_sgpr {ns}
  .amdhsa_accum_offset {acc}
  .amdhsa_group_segment_fixed_size 0
  .amdhsa_kernarg_size 72
  .amdhsa_user_sgpr_count 2
  .amdhsa_user_sgpr_kernarg_segment_ptr 1
  .amdhsa_system_sgpr_workgroup_id_x 1
.end_amdhsa_kernel
"""


def head(name):
    return f""".text
.globl {name}
.p2align 8
.type {name},@function
{name}:
"""


SLOT = 448 * 64
K1_LDS = 5 * SLOT + 1024


def gen_k1():
    p = Prog()
    sX, sWQ, sW1, sWS, sW = 4, 8, 12, 16, 20
    sWAVE, sMT, sT, sTEND, sTMP, sTMP2, sSLOT, sST, sTYPE, sPTYPE = 24, 25, 26, 27, 28, 29, 30, 31, 32, 33
    sSTRIDE, sOFF, sM0, sLOW, sTMP3, sNT = 34, 35, 36, 37, 38, 39
    sPTR = 40
    p(f"""
    s_cmp_ge_u32 s2, 254
    s_cbranch_scc1 K1_END
    s_load_dwordx4 s[40:43], s[0:1], 0
    s_load_dwordx2 s[44:45], s[0:1], 16
    s_load_dwordx4 s[48:51], s[0:1], 32
    s_load_dwordx2 s[52:53], s[0:1], 64
    v_lshrrev_b32 v1, 6, v0
    v_and_b32 v0, 63, v0
    v_readfirstlane_b32 s{sWAVE}, v1
    s_waitcnt lgkmcnt(0)
    """)
    srd(p, sWS, 52, WS_BYTES)
    p(f"""
    s_cmp_ge_u32 s2, 240
    s_cbranch_scc1 K1_TRANS
    """)
    srd(p, sX, 40, XB)
    srd(p, sWQ, 42, WQKVB)
    srd(p, sW1, 48, W1B)
    p(f"""
    s_and_b32 s{sTMP}, s2, 7
    s_lshr_b32 s{sTMP2}, s2, 3
    s_lshl_b32 s{sMT}, s{sTMP}, 1
    s_and_b32 s{sTMP}, s{sTMP2}, 1
    s_add_u32 s{sMT}, s{sMT}, s{sTMP}
    s_lshl_b32 s{sMT}, s{sMT}, 2
    s_lshr_b32 s{sTMP2}, s{sTMP2}, 1
    s_mul_i32 s{sT}, s{sTMP2}, 7
    s_add_u32 s{sTEND}, s{sT}, 7
    s_min_u32 s{sTEND}, s{sTEND}, 104
    s_cmp_ge_u32 s{sWAVE}, 4
    s_cbranch_scc1 K1_LOADER
    s_add_u32 s{sMT}, s{sMT}, s{sWAVE}
    """)
    X = 16
    ACC = [128, 144]
    WFN = 6
    WF = 160
    SC = 184
    RV = 200
    TMP = 216
    PK = 232
    vTR0, vTRA, vTRB, vL16, vMA, vOA, vM6, vO6, vO7, vRINV, vT0, vT1, vT2, vT3 = 1, 2, 3, 4, 5, 6, 7, 8, 9, 10, 11, 12, 13, 14
    p(f"""
    v_and_b32 v{vT0}, 31, v0
    v_mul_u32_u24 v{vT0}, 896, v{vT0}
    v_lshrrev_b32 v{vT1}, 5, v0
    v_lshl_add_u32 v{vT0}, v{vT1}, 4, v{vT0}
    s_mul_i32 s{sTMP}, s{sMT}, 28672
    """)
    for s in range(28):
        p(f"buffer_load_dwordx4 {vr(X+4*s,4)}, v{vT0}, s[{sX}:{sX+3}], s{sTMP} offen offset:{32*s}")
    p(f"""
    v_lshlrev_b32 v{vTR0}, 9, v{vT1}
    v_bfe_u32 v{vT2}, v0, 2, 2
    v_lshl_add_u32 v{vTR0}, v{vT2}, 6, v{vTR0}
    v_bfe_u32 v{vT2}, v0, 4, 1
    v_lshl_add_u32 v{vTR0}, v{vT2}, 5, v{vTR0}
    v_and_b32 v{vT2}, 3, v0
    v_lshl_add_u32 v{vTR0}, v{vT2}, 3, v{vTR0}
    v_lshlrev_b32 v{vL16}, 4, v0
    v_mov_b32 v{TMP}, 0
    v_mov_b32 v{TMP+1}, 0
    v_mov_b32 v{TMP+2}, 0
    v_mov_b32 v{TMP+3}, 0
    """)
    for s in range(28):
        for j in range(4):
            p(f"v_dot2c_f32_bf16 v{TMP+j}, 0x3f803f80, v{X+4*s+j}")
    p(f"""
    v_add_f32 v{TMP}, v{TMP}, v{TMP+1}
    v_add_f32 v{TMP+2}, v{TMP+2}, v{TMP+3}
    v_add_f32 v{TMP}, v{TMP}, v{TMP+2}
    v_mov_b32 v{TMP+1}, v{TMP}
    v_permlane32_swap_b32 v{TMP}, v{TMP+1}
    v_add_f32 v{TMP}, v{TMP}, v{TMP+1}
    v_mul_f32 v{TMP}, {f32bits(1.0/448.0):#x}, v{TMP}
    v_cvt_pk_bf16_f32 v{TMP+1}, v{TMP}, v{TMP}
    v_and_b32 v{TMP+1}, 0xffff0000, v{TMP+1}
    v_sub_f32 v{TMP+2}, v{TMP}, v{TMP+1}
    v_sub_f32 v{TMP+1}, 0, v{TMP+1}
    s_mov_b32 s{sTMP}, 0x00003f80
    s_mov_b32 s{sTMP2}, 0x3f800000
    v_mov_b32 v{TMP+4}, 0
    v_mov_b32 v{TMP+5}, 0
    v_mov_b32 v{TMP+6}, 0
    v_mov_b32 v{TMP+7}, 0
    """)
    for s in range(28):
        for j in range(4):
            x = X + 4 * s + j
            a, b = TMP + 8 + 2 * (j & 1), TMP + 9 + 2 * (j & 1)
            if j == 0:
                seq = []
            seq.append((x, TMP + 8 + 2 * j, TMP + 9 + 2 * j))
        for (x, a, b) in seq:
            p(f"v_dot2_f32_bf16 v{a}, v{x}, s{sTMP}, v{TMP+1}")
            p(f"v_dot2_f32_bf16 v{b}, v{x}, s{sTMP2}, v{TMP+1}")
        for (x, a, b) in seq:
            p(f"v_cvt_pk_bf16_f32 v{x}, v{a}, v{b}")
        for j, (x, a, b) in enumerate(seq):
            p(f"v_dot2c_f32_bf16 v{TMP+4+j}, v{x}, v{x}")
    p(f"""
    v_add_f32 v{TMP+4}, v{TMP+4}, v{TMP+5}
    v_add_f32 v{TMP+6}, v{TMP+6}, v{TMP+7}
    v_add_f32 v{TMP+4}, v{TMP+4}, v{TMP+6}
    v_mov_b32 v{TMP+5}, v{TMP+4}
    v_permlane32_swap_b32 v{TMP+4}, v{TMP+5}
    v_add_f32 v{TMP+4}, v{TMP+4}, v{TMP+5}
    v_mul_f32 v{TMP+4}, {f32bits(1.0/448.0):#x}, v{TMP+4}
    v_fma_f32 v{TMP+4}, -v{TMP+2}, v{TMP+2}, v{TMP+4}
    v_max_f32 v{TMP+4}, 0, v{TMP+4}
    v_cvt_pk_bf16_f32 v{TMP+4}, v{TMP+4}, v{TMP+4}
    v_and_b32 v{TMP+4}, 0xffff0000, v{TMP+4}
    v_add_f32 v{TMP+4}, {f32bits(1e-5):#x}, v{TMP+4}
    v_cvt_pk_bf16_f32 v{TMP+4}, v{TMP+4}, v{TMP+4}
    v_and_b32 v{TMP+4}, 0xffff0000, v{TMP+4}
    v_sqrt_f32 v{TMP+4}, v{TMP+4}
    v_cvt_pk_bf16_f32 v{TMP+4}, v{TMP+4}, v{TMP+4}
    v_and_b32 v{TMP+4}, 0xffff0000, v{TMP+4}
    v_rcp_f32 v{vRINV}, v{TMP+4}
    s_lshl_b32 s{sTMP}, s{sWAVE}, 8
    s_add_u32 s{sTMP}, s{sTMP}, {5*SLOT}
    v_lshl_add_u32 v{vT2}, v0, 2, s{sTMP}
    ds_write_b32 v{vT2}, v{vRINV}
    v_lshl_add_u32 v{vT2}, v{vT1}, 4, s{sTMP}
    s_waitcnt lgkmcnt(0)
    """)
    for q in range(4):
        p(f"ds_read_b128 {vr(RV+4*q,4)}, v{vT2} offset:{32*q}")
    p(f"""
    s_mov_b32 s{sST}, {OOB}
    s_mov_b32 s{sPTYPE}, 99
    s_mov_b32 s{sSLOT}, 0
    s_mov_b32 s{sLOW}, 0
    v_mov_b32 v{vMA}, 0
    v_mov_b32 v{vOA}, 0
    v_mov_b32 v{vM6}, 0
    v_mov_b32 v{vO6}, 0
    v_mov_b32 v{vO7}, 0
    v_mov_b32 v{vTRA}, v{vTR0}
    s_waitcnt lgkmcnt(0)
    s_barrier
    """)
    AHEAD = 4

    def rd(s, va):
        b = WF + 4 * (s % WFN)
        return [I(f"ds_read_b64_tr_b16 {vr(b,2)}, v{va} offset:{1024*s}"),
                I(f"ds_read_b64_tr_b16 {vr(b+2,2)}, v{va} offset:{1024*s+256}")]
    assert 28 % WFN != 0 or True

    def buf(s):
        return WF + 4 * (s % 7 if False else (s % 28) % 7 if False else (s % 28) % WFN5)
    WFN5 = 7
    WF = 160
    SC = 188
    RV2 = RV
    SC = 240

    def rd(s, va):
        b = WF + 4 * (s % 7)
        return [I(f"ds_read_b64_tr_b16 {vr(b,2)}, v{va} offset:{1024*s}"),
                I(f"ds_read_b64_tr_b16 {vr(b+2,2)}, v{va} offset:{1024*s+256}")]

    for s in range(AHEAD):
        p.add(rd(s, vTRA))
    p(f"""
    s_cmp_lt_u32 s{sT}, 32
    s_cbranch_scc1 K1_B00
    s_cmp_lt_u32 s{sT}, 48
    s_cbranch_scc1 K1_B01
    """)
    p.flush()
    entry_state = p.tr.copy()

    def epilogue(acc):
        e = []
        for i in range(8):
            e.append(I(f"v_pk_mul_f32 {vr(TMP+2*i,2)}, {vr(acc+2*i,2)}, {vr(SC+2*i,2)}"))
        for i in range(8):
            e.append(I(f"v_cvt_pk_bf16_f32 v{PK+i}, v{TMP+2*i}, v{TMP+2*i+1}"))
        for i in range(8):
            e.append(I(f"v_pk_max_i16 v{PK+i}, v{PK+i}, s{sLOW}"))
        for i in range(8):
            m, o = (vMA, vOA) if i < 6 else ((vM6, vO6) if i == 6 else (vM6, vO7))
            e.append(I(f"v_and_or_b32 v{PK+i}, v{PK+i}, v{m}, v{o}"))
        e.append(I(f"buffer_store_dwordx4 {vr(PK,4)}, v{vL16}, s[{sWS}:{sWS+3}], s{sST} offen"))
        e.append(I(f"buffer_store_dwordx4 {vr(PK+4,4)}, v{vL16}, s[{sWS}:{sWS+3}], s{sST} offen offset:1024"))
        return e

    def params():
        c = (28 ** -0.5) * 1.4426950408889634
        uid = params.n = getattr(params, "n", 0) + 1
        q = []
        q += [f"s_lshr_b32 s{sTYPE}, s{sT}, 4",
              f"s_min_u32 s{sTYPE}, s{sTYPE}, 3",
              f"s_and_b32 s{sTMP}, s{sT}, 15",
              f"s_lshl_b32 s{sTMP}, s{sTMP}, 6",
              f"s_add_u32 s{sTMP}, s{sTMP}, s{sMT}",
              f"s_lshl_b32 s{sST}, s{sTMP}, 11",
              f"s_lshl_b32 s{sTMP}, s{sTMP}, 12",
              f"s_add_u32 s{sTMP}, s{sTMP}, {KVF}",
              f"s_cmp_eq_u32 s{sTYPE}, 1",
              f"s_cselect_b32 s{sST}, s{sTMP}, s{sST}",
              f"s_add_u32 s{sTMP}, s{sTMP}, 2048",
              f"s_cmp_eq_u32 s{sTYPE}, 2",
              f"s_cselect_b32 s{sST}, s{sTMP}, s{sST}",
              f"s_mul_i32 s{sTMP}, s{sMT}, 114688",
              f"s_lshl_b32 s{sTMP2}, s{sT}, 11",
              f"s_add_u32 s{sTMP}, s{sTMP}, s{sTMP2}",
              f"s_add_u32 s{sTMP}, s{sTMP}, {HF - 48*2048}",
              f"s_cmp_eq_u32 s{sTYPE}, 3",
              f"s_cselect_b32 s{sST}, s{sTMP}, s{sST}",
              f"s_cmp_eq_u32 s{sTYPE}, s{sPTYPE}",
              f"s_cbranch_scc1 K1_PD{uid}",
              f"s_mov_b32 s{sPTYPE}, s{sTYPE}",
              f"s_cmp_eq_u32 s{sTYPE}, 2",
              f"s_cbranch_scc1 K1_PV{uid}",
              f"s_cmp_eq_u32 s{sTYPE}, 0",
              f"s_cselect_b32 s{sTMP}, {f32bits(c):#x}, 1.0",
              f"v_mul_f32 v{SC}, s{sTMP}, v{vRINV}"]
        q += [f"v_mov_b32 v{SC+i}, v{SC}" for i in range(1, 16)]
        q += [f"v_mov_b32 v{vMA}, -1",
              f"v_mov_b32 v{vOA}, 0",
              f"s_cmp_eq_u32 s{sTYPE}, 3",
              f"s_cselect_b32 s{sLOW}, 0, 0x80008000",
              f"s_cselect_b32 s{sTMP}, 64, 32",
              f"v_cmp_gt_u32 vcc, s{sTMP}, v0",
              f"v_cndmask_b32 v{vM6}, 0, -1, vcc",
              f"s_cmp_eq_u32 s{sTYPE}, 1",
              f"s_cselect_b32 s{sTMP}, 0x3f803f80, 0",
              f"s_cselect_b32 s{sTMP2}, 0x3f80, 0",
              f"v_mov_b32 v{vO6}, s{sTMP}",
              f"v_mov_b32 v{vO7}, s{sTMP2}",
              f"v_cndmask_b32 v{vO6}, v{vO6}, 0, vcc",
              f"v_cndmask_b32 v{vO7}, v{vO7}, 0, vcc",
              f"s_branch K1_PD{uid}",
              f"K1_PV{uid}:"]
        q += [f"v_mov_b32 v{SC+i}, v{RV+i}" for i in range(16)]
        q += [f"s_mov_b32 s{sLOW}, 0x80008000",
              f"v_and_b32 v{vT2}, 31, v0",
              f"v_cmp_gt_u32 vcc, 28, v{vT2}",
              f"v_cndmask_b32 v{vMA}, 0, -1, vcc",
              f"v_mov_b32 v{vM6}, v{vMA}",
              f"v_mov_b32 v{vT3}, 0x3f803f80",
              f"v_cmp_eq_u32 vcc, 28, v{vT2}",
              f"v_cndmask_b32 v{vOA}, 0, v{vT3}, vcc",
              f"v_mov_b32 v{vO6}, v{vOA}",
              f"v_mov_b32 v{vO7}, v{vOA}",
              f"K1_PD{uid}:"]
        return [I(x) for x in q]

    bodies = []
    for par in (0, 1):
        for order in (0, 1):
            acc = ACC[par]
            cur, nxt = (vTRA, vTRB) if par == 0 else (vTRB, vTRA)
            main = []
            for s in range(28):
                w = vr(WF + 4 * (s % 7), 4)
                x = vr(X + 4 * s, 4)
                a, b = (w, x) if order == 0 else (x, w)
                c = "0" if s == 0 else vr(acc, 16)
                grp = [I(f"{MF} {vr(acc,16)}, {a}, {b}, {c}")]
                if s + AHEAD < 28:
                    grp += rd(s + AHEAD, cur)
                else:
                    if s + AHEAD == 28:
                        grp += [I("s_barrier")]
                    grp += rd(s + AHEAD - 28, nxt)
                main.append(grp)
            ep = epilogue(ACC[1 - par])
            pre = [I(f"s_add_u32 s{sSLOT}, s{sSLOT}, {SLOT}"),
                   I(f"s_cmp_eq_u32 s{sSLOT}, {5*SLOT}"),
                   I(f"s_cselect_b32 s{sSLOT}, 0, s{sSLOT}"),
                   I(f"v_add_u32 v{nxt}, s{sSLOT}, v{vTR0}")]
            fill = pre + ep
            seq = [I(f"K1_B{par}{order}:")]
            k = 0
            for s, grp in enumerate(main):
                seq += grp
                if 2 <= s < 22:
                    tgt = (len(fill) * (s - 1)) // 20
                    while k < tgt:
                        seq.append(fill[k]); k += 1
            assert k == len(fill)
            bodies.append((par, order, seq))
    for (par, order, seq) in bodies:
        tr = entry_state.copy()
        s2 = add_waits(seq, tr, loop=True)
        tail = params() + [I(x) for x in [
            f"s_add_u32 s{sT}, s{sT}, 1",
            f"s_cmp_eq_u32 s{sT}, s{sTEND}",
            f"s_cbranch_scc1 K1_F{par}",
            f"s_cmp_lt_u32 s{sT}, 32",
            f"s_cbranch_scc1 K1_B{1-par}0",
            f"s_cmp_lt_u32 s{sT}, 48",
            f"s_cbranch_scc1 K1_B{1-par}1",
            f"s_branch K1_B{1-par}0"]]
        s3 = pad_hazards(s2 + tail, [I("s_nop 15"), I("s_nop 15")])
        if par == 0 and order == 0:
            s3 = pad_hazards(s3, p.out)
        p.out += s3
    for par in (0, 1):
        p.tr = Tracker()
        p(f"K1_F{par}:")
        p("s_nop 7")
        p.add(epilogue(ACC[par]))
        p("s_endpgm")
        p.flush()

    p.tr = Tracker()
    vR, vC, vOFF = 1, 2, 3
    p(f"""
    K1_LOADER:
    s_sub_u32 s{sWAVE}, s{sWAVE}, 4
    v_lshrrev_b32 v{vR}, 2, v0
    v_and_b32 v{vC}, 3, v0
    v_lshlrev_b32 v{vC}, 4, v{vC}
    s_mul_i32 s{sTMP3}, s{sWAVE}, 112
    s_sub_u32 s{sNT}, s{sTEND}, s{sT}
    s_mov_b32 s{sW+3}, 0x00020000
    """)

    def load_tile(t):
        slot = t % 5
        p(f"""
        s_cmp_lt_u32 s{sT}, 48
        s_cselect_b32 s{sW}, s{sWQ}, s{sW1}
        s_cselect_b32 s{sW+1}, s{sWQ+1}, s{sW1+1}
        s_cselect_b32 s{sW+2}, s{sWQ+2}, s{sW1+2}
        s_movk_i32 s{sTMP}, 3584
        s_cselect_b32 s{sSTRIDE}, 2688, s{sTMP}
        s_lshr_b32 s{sTMP}, s{sT}, 4
        s_mul_i32 s{sTMP}, s{sTMP}, 896
        s_and_b32 s{sTMP2}, s{sT}, 15
        s_mul_i32 s{sTMP2}, s{sTMP2}, 56
        s_add_u32 s{sTMP}, s{sTMP}, s{sTMP2}
        s_sub_u32 s{sTMP2}, s{sT}, 48
        s_lshl_b32 s{sTMP2}, s{sTMP2}, 6
        s_cmp_lt_u32 s{sT}, 48
        s_cselect_b32 s{sOFF}, s{sTMP}, s{sTMP2}
        s_mul_i32 s{sTMP}, s{sTMP3}, s{sSTRIDE}
        s_add_u32 s{sOFF}, s{sOFF}, s{sTMP}
        v_mad_u32_u24 v{vOFF}, v{vR}, s{sSTRIDE}, v{vC}
        s_lshl_b32 s{sM0}, s{sTMP3}, 6
        s_add_u32 s{sM0}, s{sM0}, {slot*SLOT}
        s_lshl_b32 s{sTMP}, s{sSTRIDE}, 4
        """)
        for d in range(7):
            p(f"s_add_u32 m0, s{sM0}, {1024*d}")
            p(f"buffer_load_dwordx4 v{vOFF}, s[{sW}:{sW+3}], s{sOFF} offen lds", tag=f"t{t}")
            if d < 6:
                p(f"s_add_u32 s{sOFF}, s{sOFF}, s{sTMP}")
        p(f"s_add_u32 s{sT}, s{sT}, 1")

    for t in range(5):
        load_tile(t)
    for k in range(8):
        if k < 7:
            p(f"@wait t{k}")
        if k == 7:
            p(f"""
            s_cmp_eq_u32 s{sNT}, 6
            s_cbranch_scc1 K1_END
            """)
        p("s_barrier")
        if k in (2, 3):
            load_tile(k + 3)
    p("s_endpgm")
    p.flush()

    p.tr = Tracker()
    sW2, sWO = 4, 8
    p("K1_TRANS:")
    srd(p, sW2, 50, W2B)
    srd(p, sWO, 44, WOB)
    vA, vB, vTW, vL = 1, 2, 3, 4
    p(f"""
    s_sub_u32 s{sNT}, s2, 240
    v_lshrrev_b32 v{vA}, 2, v0
    v_mul_u32_u24 v{vA}, 896, v{vA}
    v_and_b32 v{vB}, 3, v0
    v_lshl_add_u32 v{vA}, v{vB}, 4, v{vA}
    s_lshl_b32 s{sTMP}, s{sNT}, 6
    s_mul_i32 s{sOFF}, s{sWAVE}, {14*16*896}
    s_add_u32 s{sOFF}, s{sOFF}, s{sTMP}
    s_mul_i32 s{sM0}, s{sWAVE}, {14*1024}
    """)
    for d in range(14):
        p(f"s_add_u32 m0, s{sM0}, {1024*d}")
        p(f"buffer_load_dwordx4 v{vA}, s[{sW2}:{sW2+3}], s{sOFF} offen lds", tag="w")
        p(f"s_add_u32 s{sOFF}, s{sOFF}, {16*896}")
    p(f"""
    s_cmp_eq_u32 s{sWAVE}, 7
    s_cbranch_scc1 K1_TR2
    s_mul_i32 s{sOFF}, s{sWAVE}, {4*16*896}
    s_add_u32 s{sOFF}, s{sOFF}, s{sTMP}
    s_lshl_b32 s{sM0}, s{sWAVE}, 12
    s_add_u32 s{sM0}, s{sM0}, {112*1024}
    """)
    for d in range(4):
        p(f"s_add_u32 m0, s{sM0}, {1024*d}")
        p(f"buffer_load_dwordx4 v{vA}, s[{sWO}:{sWO+3}], s{sOFF} offen lds", tag="w")
        p(f"s_add_u32 s{sOFF}, s{sOFF}, {16*896}")
    p(f"""
    K1_TR2:
    v_lshrrev_b32 v{vB}, 5, v0
    v_lshlrev_b32 v{vTW}, 8, v{vB}
    v_bfe_u32 v{vB}, v0, 2, 2
    v_lshl_add_u32 v{vTW}, v{vB}, 6, v{vTW}
    v_bfe_u32 v{vB}, v0, 4, 1
    v_lshl_add_u32 v{vTW}, v{vB}, 5, v{vTW}
    v_and_b32 v{vB}, 3, v0
    v_lshl_add_u32 v{vTW}, v{vB}, 3, v{vTW}
    v_lshlrev_b32 v{vL}, 4, v0
    s_mul_i32 s{sTMP}, s{sWAVE}, {14*1024}
    v_add_u32 v{vA}, s{sTMP}, v{vTW}
    s_mul_i32 s{sOFF}, s{sNT}, {112*1024}
    s_add_u32 s{sOFF}, s{sOFF}, s{sTMP}
    s_add_u32 s{sOFF}, s{sOFF}, {W2F}
    s_waitcnt vmcnt(0)
    s_barrier
    """)
    F = 16
    for d in range(14):
        p(f"ds_read_b64_tr_b16 {vr(F+4*d,2)}, v{vA} offset:{1024*d}")
        p(f"ds_read_b64_tr_b16 {vr(F+4*d+2,2)}, v{vA} offset:{1024*d+512}")
    p(f"""
    s_mul_i32 s{sTMP}, s{sWAVE}, {56*64}
    s_add_u32 s{sTMP}, s{sTMP}, {112*1024}
    v_add_u32 v{vB}, s{sTMP}, v{vTW}
    """)
    G = F + 56
    for d in range(14):
        if d % 4 == 0 and d:
            p(f"s_add_u32 s{sOFF}, s{sOFF}, 4096")
        p(f"buffer_store_dwordx4 {vr(F+4*d,4)}, v{vL}, s[{sWS}:{sWS+3}], s{sOFF} offen offset:{1024*(d%4)}")
    for d in range(4):
        ro = (28 * (d >> 1) + 16 * (d & 1)) * 64
        p(f"ds_read_b64_tr_b16 {vr(G+4*d,2)}, v{vB} offset:{ro}")
        p(f"ds_read_b64_tr_b16 {vr(G+4*d+2,2)}, v{vB} offset:{ro+512}")
    p(f"""
    v_cmp_gt_u32 vcc, 32, v0
    s_lshl_b32 s{sOFF}, s{sNT}, 15
    s_lshl_b32 s{sTMP}, s{sWAVE}, 12
    s_add_u32 s{sOFF}, s{sOFF}, s{sTMP}
    s_add_u32 s{sOFF}, s{sOFF}, {WOF}
    """)
    for d in (1, 3):
        p(f"v_cndmask_b32 v{G+4*d+2}, 0, v{G+4*d+2}, vcc")
        p(f"v_cndmask_b32 v{G+4*d+3}, 0, v{G+4*d+3}, vcc")
    for d in range(4):
        p(f"buffer_store_dwordx4 {vr(G+4*d,4)}, v{vL}, s[{sWS}:{sWS+3}], s{sOFF} offen offset:{1024*d}")
    p("K1_END:")
    p("s_endpgm")
    return head("k1_kernel") + p.text() + KD.format(name="k1_kernel", nv=256, ns=64, acc=256)


K2_LDS = 48 * 1024 + 96 * 1024 + 1024


def gen_k2():
    p = Prog()
    sWS, sG = 4, 8
    sWAVE, sHEAD, sQB, sTMP, sTMP2, sKV, sKV2, sHO, sWO_, sCNT, sMB, sNP, sKH, sTMP3 = range(12, 26)
    sEX = 26
    Q = 8
    S = [40, 56]
    P = [72, 80]
    KV = [88, 104]
    G = [120, 144]
    O0 = 168
    GA0 = 184
    vL16, vH0, vH1, vH2, vH3, vW0, vW1 = 1, 2, 3, 4, 5, 6, 7
    vH = [vH0, vH1, vH2, vH3]
    vW = [vW0, vW1]
    T = 216

    def Oacc(u):
        return vr(O0, 16) if u == 0 else ar(16 * (u - 1), 16)

    def Gacc(mi, ni):
        return vr(GA0 + 16 * ni, 16) if mi == 0 else ar(48 + 32 * (mi - 1) + 16 * ni, 16)

    p(f"""
    s_cmp_ge_u32 s2, 256
    s_cbranch_scc1 K2_END
    s_load_dwordx2 s[28:29], s[0:1], 64
    v_lshrrev_b32 v1, 6, v0
    v_and_b32 v0, 63, v0
    v_readfirstlane_b32 s{sWAVE}, v1
    s_and_b32 s{sTMP}, s2, 7
    s_lshr_b32 s{sTMP2}, s2, 3
    s_lshl_b32 s{sHEAD}, s{sTMP}, 1
    s_and_b32 s{sTMP}, s{sTMP2}, 1
    s_add_u32 s{sHEAD}, s{sHEAD}, s{sTMP}
    s_mov_b32 s{sMB}, s{sHEAD}
    s_lshr_b32 s{sQB}, s{sTMP2}, 1
    s_cmp_ge_u32 s{sQB}, 7
    s_cselect_b32 s{sKH}, 1, 0
    s_mul_i32 s{sTMP}, s{sKH}, 7
    s_sub_u32 s{sNP}, s{sQB}, s{sTMP}
    v_lshlrev_b32 v{vL16}, 4, v0
    s_waitcnt lgkmcnt(0)
    """)
    srd(p, sWS, 28, WS_BYTES)
    srd(p, sG, 28, WS_BYTES)
    p(f"""
    s_cmp_ge_u32 s{sQB}, 14
    s_cselect_b32 s{sG+2}, 0, s{sG+2}
    s_lshl_b32 s{sTMP}, s{sHEAD}, 6
    s_lshl_b32 s{sTMP2}, s{sQB}, 2
    s_add_u32 s{sTMP}, s{sTMP}, s{sTMP2}
    """)
    for u in range(4):
        p(f"""
        s_xor_b32 s{sTMP2}, s{sWAVE}, {u}
        s_add_u32 s{sTMP2}, s{sTMP2}, s{sTMP}
        s_lshl_b32 s{sTMP2}, s{sTMP2}, 11
        buffer_load_dwordx4 {vr(Q+8*u,4)}, v{vL16}, s[{sWS}:{sWS+3}], s{sTMP2} offen
        buffer_load_dwordx4 {vr(Q+8*u+4,4)}, v{vL16}, s[{sWS}:{sWS+3}], s{sTMP2} offen offset:1024
        """)
    KR = KV[1] + 8
    p(f"""
    s_lshl_b32 s{sKV}, s{sHEAD}, 18
    s_add_u32 s{sKV}, s{sKV}, {KVF}
    buffer_load_dwordx4 {vr(KR,4)}, v{vL16}, s[{sWS}:{sWS+3}], s{sKV} offen
    buffer_load_dwordx4 {vr(KR+4,4)}, v{vL16}, s[{sWS}:{sWS+3}], s{sKV} offen offset:1024
    s_lshl_b32 s{sTMP}, s{sWAVE}, 16
    s_add_u32 s{sKV}, s{sKV}, s{sTMP}
    s_add_u32 s{sKV2}, s{sKV}, 4096
    """)
    for j in range(4):
        p(f"buffer_load_dwordx4 {vr(KV[0]+4*j,4)}, v{vL16}, s[{sWS}:{sWS+3}], s{sKV} offen offset:{1024*j}")
    for j in range(2):
        p(f"buffer_load_dwordx4 {vr(KV[1]+4*j,4)}, v{vL16}, s[{sWS}:{sWS+3}], s{sKV2} offen offset:{1024*j}")
    for mi in range(4):
        p(f"""
        s_xor_b32 s{sTMP}, s{sWAVE}, {mi}
        s_mul_i32 s{sTMP}, s{sTMP}, 114688
        v_add_u32 v{vH[mi]}, s{sTMP}, v{vL16}
        """)
    p(f"""
    v_mov_b32 v{vW0}, v{vL16}
    v_add_u32 v{vW1}, 114688, v{vL16}
    s_mul_i32 s{sTMP}, s{sKH}, 56
    s_mul_i32 s{sTMP2}, s{sWAVE}, 14
    s_add_u32 s{sTMP}, s{sTMP}, s{sTMP2}
    s_lshl_b32 s{sTMP}, s{sTMP}, 10
    s_mul_i32 s{sHO}, s{sMB}, {4*114688}
    s_add_u32 s{sHO}, s{sHO}, s{sTMP}
    s_add_u32 s{sHO}, s{sHO}, {HF}
    s_mul_i32 s{sWO_}, s{sNP}, {2*114688}
    s_add_u32 s{sWO_}, s{sWO_}, s{sTMP}
    s_add_u32 s{sWO_}, s{sWO_}, {W2F}
    """)

    def ldA(b, mi, off):
        return I(f"buffer_load_dwordx4 {vr(G[b]+4*mi,4)}, v{vH[mi]}, s[{sG}:{sG+3}], s{sHO} offen offset:{off}")

    def ldB(b, ni, off):
        return I(f"buffer_load_dwordx4 {vr(G[b]+16+4*ni,4)}, v{vW[ni]}, s[{sG}:{sG+3}], s{sWO_} offen offset:{off}")

    for b in range(2):
        for ni in range(2):
            p.add([ldB(b, ni, 1024 * b)])
        for mi in range(4):
            p.add([ldA(b, mi, 1024 * b)])
    for i in range(48 + 96):
        p(f"v_accvgpr_write_b32 a{i}, 0")
    for i in range(48):
        p(f"v_mov_b32 v{O0+i}, 0")
    for i in range(8):
        p(f"v_mov_b32 v{P[1]+i}, 0")
    for u in range(4):
        d = T + 0 if False else (S[0] if u % 2 == 0 else S[1])
        p(f"{MF} {vr(d,16)}, {vr(KR,4)}, {vr(Q+8*u,4)}, 0")
        p(f"{MF} {vr(d,16)}, {vr(KR+4,4)}, {vr(Q+8*u+4,4)}, {vr(d,16)}")
        if u % 2 == 1:
            for uu in (u - 1, u):
                d = S[uu % 2]
                m = T + uu
                p(f"v_max3_f32 v{m}, v{d}, v{d+1}, v{d+2}")
                for r in range(3, 15, 2):
                    p(f"v_max3_f32 v{m}, v{m}, v{d+r}, v{d+r+1}")
                p(f"v_max_f32 v{m}, v{m}, v{d+15}")
    for u in range(4):
        m, m2 = T + u, T + 4 + u
        p(f"""
        v_mov_b32 v{m2}, v{m}
        v_permlane32_swap_b32 v{m}, v{m2}
        v_max_f32 v{m}, v{m}, v{m2}
        v_add_f32 v{m}, 64.0, v{m}
        """.replace("64.0", "0x42800000"))
    p("K2_RESTART:")
    for u in range(4):
        m, a, b, c = T + u, T + 8 + 4 * u, T + 9 + 4 * u, T + 10 + 4 * u
        p(f"""
        v_sub_f32 v{a}, 0, v{m}
        v_and_b32 v{b}, 0xffff0000, v{a}
        v_sub_f32 v{a}, v{a}, v{b}
        v_and_b32 v{c}, 0xffff0000, v{a}
        v_sub_f32 v{a}, v{a}, v{c}
        v_lshrrev_b32 v{b}, 16, v{b}
        v_or_b32 v{b}, v{b}, v{c}
        v_lshrrev_b32 v{a}, 16, v{a}
        """)
    p(f"""
    s_mov_b32 exec_lo, 0
    """)
    for u in range(4):
        a, b = T + 8 + 4 * u, T + 9 + 4 * u
        p(f"v_mov_b32 v{Q+8*u+6}, v{b}")
        p(f"v_mov_b32 v{Q+8*u+7}, v{a}")
    p("s_mov_b32 exec_lo, -1")
    for i in range(8):
        p(f"v_mov_b32 v{KR+i}, 0")
    p(f"s_mov_b32 s{sCNT}, 7")

    def qk(n_u, kb, sbuf):
        k = KV[kb]
        return [I(f"{MF} {vr(S[sbuf],16)}, {vr(k,4)}, {vr(Q+8*n_u,4)}, 0"),
                I(f"{MF} {vr(S[sbuf],16)}, {vr(k+4,4)}, {vr(Q+8*n_u+4,4)}, {vr(S[sbuf],16)}")]

    def pv(u, vb, pbuf):
        v = KV[vb] + 8
        return [I(f"{MF} {Oacc(u)}, {vr(v,4)}, {vr(P[pbuf],4)}, {Oacc(u)}"),
                I(f"{MF} {Oacc(u)}, {vr(v+4,4)}, {vr(P[pbuf]+4,4)}, {Oacc(u)}")]

    def gm(mi, gb):
        return [I(f"{MF} {Gacc(mi,ni)}, {vr(G[gb]+16+4*ni,4)}, {vr(G[gb]+4*mi,4)}, {Gacc(mi,ni)}") for ni in range(2)]

    def softmax(sb):
        s, pp = S[sb], P[sb]
        v = []
        for i in range(8):
            v.append(I(f"v_exp_f32 v{s+2*i}, v{s+2*i}"))
            v.append(I(f"v_exp_f32 v{s+2*i+1}, v{s+2*i+1}"))
            if i >= 1:
                v.append(I(f"v_cvt_pk_bf16_f32 v{pp+i-1}, v{s+2*i-2}, v{s+2*i-1}"))
        v.append(I(f"v_cvt_pk_bf16_f32 v{pp+7}, v{s+14}, v{s+15}"))
        return v

    def cost(i):
        return 8 if i.is_trans() else 4

    def slot(tb, u, gemm=True, last=False, kvload=True, extra=None):
        mf = []
        if not last:
            nu = (u + 1) & 3
            mf += qk(nu, tb if u < 3 else 1 - tb, (u + 1) & 1)
        pu = (u - 1) & 3
        mf += pv(pu, tb if u > 0 else 1 - tb, (u - 1) & 1)
        post = {}
        if gemm:
            mf += gm(u, tb)
        ld = []
        if u == 0 and kvload in (True, "v"):
            so = sKV2 if tb == 0 else sKV
            ld += [I(f"buffer_load_dwordx4 {vr(KV[1-tb]+8+4*j,4)}, v{vL16}, s[{sWS}:{sWS+3}], s{so} offen offset:{2048+1024*j}") for j in range(2)]
        if u == 2 and kvload is True:
            so = sKV if tb == 0 else sKV2
            ld += [I(f"buffer_load_dwordx4 {vr(KV[tb]+4*j,4)}, v{vL16}, s[{sWS}:{sWS+3}], s{so} offen offset:{1024*j}") for j in range(2)]
        if gemm:
            ld += [ldA(tb, u, 2048 + 1024 * tb)]
            if u == 3:
                ld += [ldB(tb, ni, 2048 + 1024 * tb) for ni in range(2)]
        va = softmax(u & 1)
        if extra:
            va = interleave(va, extra)
        total = sum(cost(i) for i in va)
        out = []
        k = 0
        acc = 0
        for j, m in enumerate(mf):
            out.append(m)
            tgt = total * (j + 1) / len(mf)
            while k < len(va) and acc + cost(va[k]) / 2 <= tgt:
                out.append(va[k]); acc += cost(va[k]); k += 1
        out += va[k:]
        idx = max(i for i, x in enumerate(out) if x.kind == "mfma")
        out = out[:idx + 1] + interleave(out[idx + 1:] or [I("s_nop 0")], ld) if ld else out
        return out

    p.add(qk(0, 0, 0))
    body = [I("K2_LOOP:")]
    for tb in range(2):
        for u in range(4):
            if u == 1:
                so = sKV if tb == 0 else sKV2
                body.append(I(f"s_add_u32 s{so}, s{so}, 8192"))
            body += slot(tb, u)
    body += [I(f"s_add_u32 s{sHO}, s{sHO}, 2048"),
             I(f"s_add_u32 s{sWO_}, s{sWO_}, 2048"),
             I(f"s_sub_u32 s{sCNT}, s{sCNT}, 1"),
             I(f"s_cmp_lg_u32 s{sCNT}, 0"),
             I("s_cbranch_scc1 K2_LOOP")]
    p.loop(body)
    vA1, vA2, vA3, vB1, vB2, vB3, vRA, vRB = T + 24, T + 25, T + 26, T + 27, T + 28, T + 29, T + 30, T + 31
    vAs, vBs = [None, vA1, vA2, vA3], [None, vB1, vB2, vB3]
    setup = []
    for u in range(1, 4):
        setup += [I(f"s_xor_b32 s{sTMP}, s{sWAVE}, {u}"),
                  I(f"s_mul_i32 s{sTMP}, s{sTMP}, 3"),
                  I(f"s_add_u32 s{sTMP}, s{sTMP}, {u-1}"),
                  I(f"s_lshl_b32 s{sTMP2}, s{sTMP}, 12"),
                  I(f"v_add_u32 v{vAs[u]}, s{sTMP2}, v{vL16}"),
                  I(f"s_lshl_b32 s{sTMP2}, s{sTMP}, 13"),
                  I(f"s_add_u32 s{sTMP2}, s{sTMP2}, {48*1024}"),
                  I(f"v_add_u32 v{vBs[u]}, s{sTMP2}, v{vL16}")]
    setup += [I(f"s_mul_i32 s{sTMP}, s{sWAVE}, {3*4096}"),
              I(f"v_add_u32 v{vRA}, s{sTMP}, v{vL16}"),
              I(f"s_mul_i32 s{sTMP}, s{sWAVE}, {3*8192}"),
              I(f"s_add_u32 s{sTMP}, s{sTMP}, {48*1024}"),
              I(f"v_add_u32 v{vRB}, s{sTMP}, v{vL16}")]
    p.add(setup)
    gw = []
    for mi in range(1, 4):
        for ni in range(2):
            for q in range(4):
                a = 48 + 32 * (mi - 1) + 16 * ni + 4 * q
                gw.append(I(f"ds_write_b128 v{vBs[mi]}, {ar(a,4)} offset:{4096*ni+1024*q}"))
    for tb in range(2):
        for u in range(4):
            n = tb * 4 + u
            ex = gw[4 * (n - 1):4 * n] if 1 <= n <= 6 else None
            p.add(slot(tb, u, gemm=False, last=(n == 7), kvload=("v" if tb == 0 else False), extra=ex))
    p.add(pv(3, 1, 1))
    for u in range(1, 4):
        for q in range(4):
            p(f"ds_write_b128 v{vAs[u]}, {ar(16*(u-1)+4*q,4)} offset:{1024*q}")
    p("s_waitcnt lgkmcnt(0)")
    p("s_barrier")
    R = 8
    R = 40
    for i in range(3):
        for q in range(4):
            p(f"ds_read_b128 {vr(R+16*i+4*q,4)}, v{vRA} offset:{4096*i+1024*q}")
    R2 = R + 48
    for i in range(2):
        for q in range(8):
            p(f"ds_read_b128 {vr(R2+32*i+4*q,4)}, v{vRB} offset:{8192*i+1024*q}")
    for i in range(3):
        for r in range(0, 16, 2):
            p(f"v_pk_add_f32 {vr(O0+r,2)}, {vr(O0+r,2)}, {vr(R+16*i+r,2)}")
    for q in range(8):
        p(f"ds_read_b128 {vr(R+4*q,4)}, v{vRB} offset:{8192*2+1024*q}")
    l, l2, ri = T + 32, T + 33, T + 34
    p(f"""
    v_mov_b32 v{l}, v{O0+12}
    v_mov_b32 v{l2}, v{O0+12}
    v_permlane32_swap_b32 v{l}, v{l2}
    v_rcp_f32 v{ri}, v{l2}
    v_mov_b32 v{ri+1}, v{ri}
    """)
    for r in range(0, 16, 2):
        p(f"v_pk_mul_f32 {vr(O0+r,2)}, {vr(O0+r,2)}, {vr(ri,2)}")
    for i in range(8):
        p(f"v_cvt_pk_bf16_f32 v{O0+i}, v{O0+2*i}, v{O0+2*i+1}")
    p(f"""
    s_lshl_b32 s{sTMP}, s{sQB}, 2
    s_add_u32 s{sTMP}, s{sTMP}, s{sWAVE}
    s_lshl_b32 s{sTMP}, s{sTMP}, 15
    s_lshl_b32 s{sTMP2}, s{sHEAD}, 11
    s_add_u32 s{sTMP}, s{sTMP}, s{sTMP2}
    s_add_u32 s{sTMP}, s{sTMP}, {OF}
    buffer_store_dwordx4 {vr(O0,4)}, v{vL16}, s[{sWS}:{sWS+3}], s{sTMP} offen
    buffer_store_dwordx4 {vr(O0+4,4)}, v{vL16}, s[{sWS}:{sWS+3}], s{sTMP} offen offset:1024
    """)
    for src in (R2, R2 + 32, R):
        for r in range(0, 32, 2):
            p(f"v_pk_add_f32 {vr(GA0+r,2)}, {vr(GA0+r,2)}, {vr(src+r,2)}")
    p(f"""
    s_lshl_b32 s{sTMP}, s{sKH}, 6
    s_lshl_b32 s{sTMP2}, s{sMB}, 2
    s_add_u32 s{sTMP}, s{sTMP}, s{sTMP2}
    s_add_u32 s{sTMP}, s{sTMP}, s{sWAVE}
    s_mul_i32 s{sTMP}, s{sTMP}, 14
    s_lshl_b32 s{sTMP2}, s{sNP}, 1
    s_add_u32 s{sTMP}, s{sTMP}, s{sTMP2}
    s_lshl_b32 s{sTMP}, s{sTMP}, 12
    s_add_u32 s{sTMP}, s{sTMP}, {BP}
    s_add_u32 s{sTMP2}, s{sTMP}, 4096
    """)
    for ni in range(2):
        for q in range(4):
            so = sTMP if ni == 0 else sTMP2
            p(f"buffer_store_dwordx4 {vr(GA0+16*ni+4*q,4)}, v{vL16}, s[{sG}:{sG+3}], s{so} offen offset:{1024*q}")
    p("K2_END:")
    p("s_endpgm")
    return head("k2_kernel") + p.text() + KD.format(name="k2_kernel", nv=256 + 144, ns=40, acc=256)


K3_LDS = 48 * 1024


def gen_k3():
    p = Prog()
    sWS, sX, sOUT = 4, 8, 12
    sWAVE, sMP, sNP, sTMP, sTMP2, sA0, sA1, sB0, sB1, sMT, sNT = range(16, 27)
    F = 16
    ACC = 144
    BPv = 208
    XR = 240
    vL16, vXO, vT0, vT1, vA1, vA2, vA3, vRA = 1, 2, 3, 4, 5, 6, 7, 8
    p(f"""
    s_cmp_ge_u32 s2, 224
    s_cbranch_scc1 K3_END
    s_load_dwordx2 s[28:29], s[0:1], 0
    s_load_dwordx2 s[30:31], s[0:1], 48
    s_load_dwordx2 s[32:33], s[0:1], 64
    v_lshrrev_b32 v1, 6, v0
    v_and_b32 v0, 63, v0
    v_readfirstlane_b32 s{sWAVE}, v1
    s_and_b32 s{sTMP}, s2, 7
    s_lshr_b32 s{sTMP2}, s2, 3
    s_lshl_b32 s{sMP}, s{sTMP}, 2
    s_and_b32 s{sTMP}, s{sTMP2}, 3
    s_add_u32 s{sMP}, s{sMP}, s{sTMP}
    s_lshr_b32 s{sNP}, s{sTMP2}, 2
    v_lshlrev_b32 v{vL16}, 4, v0
    s_lshr_b32 s{sTMP}, s{sWAVE}, 1
    s_lshl_b32 s{sMT}, s{sMP}, 1
    s_add_u32 s{sMT}, s{sMT}, s{sTMP}
    s_and_b32 s{sTMP}, s{sWAVE}, 1
    s_lshl_b32 s{sNT}, s{sNP}, 1
    s_add_u32 s{sNT}, s{sNT}, s{sTMP}
    s_lshl_b32 s{sTMP}, s{sWAVE}, 13
    s_lshl_b32 s{sA0}, s{sNT}, 15
    s_add_u32 s{sA0}, s{sA0}, s{sTMP}
    s_add_u32 s{sA0}, s{sA0}, {WOF}
    s_xor_b32 s{sA1}, s{sA0}, 0x8000
    s_lshl_b32 s{sB0}, s{sMT}, 15
    s_add_u32 s{sB0}, s{sB0}, s{sTMP}
    s_add_u32 s{sB0}, s{sB0}, {OF}
    s_xor_b32 s{sB1}, s{sB0}, 0x8000
    s_waitcnt lgkmcnt(0)
    """)
    srd(p, sWS, 32, WS_BYTES)
    srd(p, sX, 28, XB)
    srd(p, sOUT, 30, XB)
    so = [sA0, sA1, sB0, sB1]
    for s in range(8):
        if s == 4:
            for r in so:
                p(f"s_add_u32 s{r}, s{r}, 4096")
        for j in range(4):
            p(f"buffer_load_dwordx4 {vr(F+16*s+4*j,4)}, v{vL16}, s[{sWS}:{sWS+3}], s{so[j]} offen offset:{1024*(s%4)}")
    p(f"""
    s_mul_i32 s{sTMP}, s{sMT}, 14
    s_add_u32 s{sTMP}, s{sTMP}, s{sNT}
    s_lshl_b32 s{sTMP}, s{sTMP}, 12
    s_add_u32 s{sTMP}, s{sTMP}, {BP}
    s_add_u32 s{sTMP2}, s{sTMP}, {64*14*4096}
    """)
    for h in range(2):
        for q in range(4):
            p(f"buffer_load_dwordx4 {vr(BPv+16*h+4*q,4)}, v{vL16}, s[{sWS}:{sWS+3}], s{sTMP if h==0 else sTMP2} offen offset:{1024*q}")
    p(f"""
    v_and_b32 v{vT0}, 31, v0
    v_mul_u32_u24 v{vT0}, 896, v{vT0}
    v_lshrrev_b32 v{vT1}, 5, v0
    v_lshl_add_u32 v{vXO}, v{vT1}, 3, v{vT0}
    s_mul_i32 s{sTMP}, s{sMT}, 28672
    s_lshl_b32 s{sTMP2}, s{sNT}, 6
    s_add_u32 s{sTMP}, s{sTMP}, s{sTMP2}
    """)
    for q in range(4):
        p(f"buffer_load_dwordx2 {vr(XR+2*q,2)}, v{vXO}, s[{sX}:{sX+3}], s{sTMP} offen offset:{16*q}")
    p(f"v_lshl_add_u32 v{vXO}, v{vT1}, 4, v{vT0}")
    vAs = [None, vA1, vA2, vA3]
    for u in range(1, 4):
        p(f"""
        s_xor_b32 s{sTMP2}, s{sWAVE}, {u}
        s_mul_i32 s{sTMP2}, s{sTMP2}, 3
        s_add_u32 s{sTMP2}, s{sTMP2}, {u-1}
        s_lshl_b32 s{sTMP2}, s{sTMP2}, 12
        v_add_u32 v{vAs[u]}, s{sTMP2}, v{vL16}
        """)
    p(f"""
    s_mul_i32 s{sTMP2}, s{sWAVE}, {3*4096}
    v_add_u32 v{vRA}, s{sTMP2}, v{vL16}
    """)
    for s in range(8):
        for u in (1, 2, 3, 0):
            a, b = u & 1, u >> 1
            acc = vr(ACC + 16 * u, 16)
            p(f"{MF} {acc}, {vr(F+16*s+4*a,4)}, {vr(F+16*s+8+4*b,4)}, {'0' if s == 0 else acc}")
    for u in range(1, 4):
        for q in range(4):
            p(f"ds_write_b128 v{vAs[u]}, {vr(ACC+16*u+4*q,4)} offset:{1024*q}")
    for r in range(0, 16, 2):
        p(f"v_pk_add_f32 {vr(BPv+r,2)}, {vr(BPv+r,2)}, {vr(BPv+16+r,2)}")
    for i in range(8):
        p(f"v_lshlrev_b32 v{BPv+16+2*i}, 16, v{XR+i}")
        p(f"v_and_b32 v{BPv+17+2*i}, 0xffff0000, v{XR+i}")
    for r in range(0, 16, 2):
        p(f"v_pk_add_f32 {vr(BPv+r,2)}, {vr(BPv+r,2)}, {vr(BPv+16+r,2)}")
    for r in range(0, 16, 2):
        p(f"v_pk_add_f32 {vr(ACC+r,2)}, {vr(ACC+r,2)}, {vr(BPv+r,2)}")
    p("s_waitcnt lgkmcnt(0)")
    p("s_barrier")
    R = F
    for i in range(3):
        for q in range(4):
            p(f"ds_read_b128 {vr(R+16*i+4*q,4)}, v{vRA} offset:{4096*i+1024*q}")
    for i in range(3):
        for r in range(0, 16, 2):
            p(f"v_pk_add_f32 {vr(ACC+r,2)}, {vr(ACC+r,2)}, {vr(R+16*i+r,2)}")
    PK = BPv
    for i in range(8):
        p(f"v_cvt_pk_bf16_f32 v{PK+i}, v{ACC+2*i}, v{ACC+2*i+1}")
    for qq in range(2):
        p(f"v_permlane32_swap_b32 v{PK+4*qq}, v{PK+4*qq+2}")
        p(f"v_permlane32_swap_b32 v{PK+4*qq+1}, v{PK+4*qq+3}")
    for qq in range(2):
        p(f"buffer_store_dwordx4 {vr(PK+4*qq,4)}, v{vXO}, s[{sOUT}:{sOUT+3}], s{sTMP} offen offset:{32*qq}")
    p("K3_END:")
    p("s_endpgm")
    return head("k3_kernel") + p.text() + KD.format(name="k3_kernel", nv=248, ns=40, acc=248)


HEADER = f"""; Kernarg layout for this problem (72 bytes, ptrs only, base s[0:1]):
; @launch kernel=k1_kernel grid=(254,1,1) block=(512,1,1) lds={K1_LDS}
; @launch kernel=k2_kernel grid=(256,1,1) block=(256,1,1) lds={K2_LDS}
; @launch kernel=k3_kernel grid=(224,1,1) block=(256,1,1) lds={K3_LDS}
.amdgcn_target "amdgcn-amd-amdhsa--gfx950"
"""


def main():
    txt = HEADER + gen_k1() + gen_k2() + gen_k3()
    out = sys.argv[1] if len(sys.argv) > 1 else f"cdna_kernels/{NAME}.s"
    open(out, "w").write(txt)
    print("wrote", out, len(txt), "bytes")


if __name__ == "__main__":
    main()
```

```python
import sys, struct, os
from asmgen import *

NAME = "parallel_sum__mha_block__dense_activation_relu__prompt"

QF = 0
KVF = 2 << 20
HF = 6 << 20
W2F = 13 << 20
WOF = 15 << 20
OF = 16 << 20
BP = 18 << 20
WS_BYTES = 26 << 20
OOB = 0x40000000

XB = 2048 * 448 * 2
WQKVB = 448 * 1344 * 2
WOB = 448 * 448 * 2
W1B = 448 * 1792 * 2
W2B = 1792 * 448 * 2

MF = "v_mfma_f32_32x32x16_bf16"


def f32bits(x):
    return struct.unpack("<I", struct.pack("<f", x))[0]


def vr(b, n):
    return f"v[{b}:{b+n-1}]"


def ar(b, n):
    return f"a[{b}:{b+n-1}]"


def srd(p, d, base, nbytes):
    p(f"""
    s_mov_b32 s{d}, s{base}
    s_and_b32 s{d+1}, s{base+1}, 0xffff
    s_mov_b32 s{d+2}, {nbytes}
    s_mov_b32 s{d+3}, 0x00020000
    """)


STAMP = False
STAMP_BASE = 32 << 20


def stamp(p, i):
    if STAMP:
        p(f"s_memrealtime s[{64+4*i}:{65+4*i}]")
        p(f"s_memtime s[{66+4*i}:{67+4*i}]")
        p("s_waitcnt lgkmcnt(0)")


def stamp_if(p, i, sreg, val):
    if STAMP:
        uid = stamp_if.n = getattr(stamp_if, "n", 0) + 1
        p(f"s_cmp_lg_u32 s{sreg}, {val}")
        p(f"s_cbranch_scc1 STI{uid}")
        stamp(p, i)
        p(f"STI{uid}:")


def stamp_out(p, n, kidx, sWS, sWAVE, vtmp=1, vtmp2=2, wave_add=0):
    if not STAMP:
        return
    p("s_waitcnt vmcnt(0) lgkmcnt(0)")
    stamp(p, n)
    p(f"v_mov_b32 v{vtmp}, 0")
    for i in range(n + 1):
        p(f"v_writelane_b32 v{vtmp}, s{64+4*i}, {i}")
        p(f"v_writelane_b32 v{vtmp}, s{66+4*i}, {16+i}")
    p(f"""
    s_getreg_b32 s60, hwreg(HW_REG_HW_ID)
    s_getreg_b32 s61, hwreg(HW_REG_XCC_ID)
    v_writelane_b32 v{vtmp}, s60, 32
    v_writelane_b32 v{vtmp}, s61, 33
    s_lshl_b32 s60, s2, 3
    s_add_u32 s60, s60, s{sWAVE}
    s_add_u32 s60, s60, {wave_add}
    s_lshl_b32 s60, s60, 8
    s_add_u32 s60, s60, {STAMP_BASE + (kidx << 20)}
    v_lshlrev_b32 v{vtmp2}, 2, v0
    s_mov_b32 s{sWS+2}, {64 << 20}
    buffer_store_dword v{vtmp}, v{vtmp2}, s[{sWS}:{sWS+3}], s60 offen
    """)


KD = """
.section .rodata,"a"
.p2align 6
.amdhsa_kernel {name}
  .amdhsa_next_free_vgpr {nv}
  .amdhsa_next_free_sgpr {ns}
  .amdhsa_accum_offset {acc}
  .amdhsa_group_segment_fixed_size 0
  .amdhsa_kernarg_size 72
  .amdhsa_user_sgpr_count 2
  .amdhsa_user_sgpr_kernarg_segment_ptr 1
  .amdhsa_system_sgpr_workgroup_id_x 1
.end_amdhsa_kernel
"""


def head(name):
    return f""".text
.globl {name}
.p2align 8
.type {name},@function
{name}:
"""


WST = 64 * 448
STG = WST + 4 * 4096
CSA = 3 * STG
STA = CSA + 1024
K1_LDS = max(STA + 1024, 128 * 896 + 32 * 896)


def gen_k1():
    p = Prog()
    sX, sW, sWS = 4, 8, 16
    sWAVE, sMT, sT0, sG, sTMP, sTMP2, sTMP3, sST, sTYPE, sDELTA, sSTRIDE, sOFF, sM0, sK, sNL, sLS, sTS, sXO, sCNT, sCUR, sT = range(20, 41)
    p(f"""
    s_cmp_ge_u32 s2, 256
    s_cbranch_scc1 K1_END
    s_load_dwordx4 s[44:47], s[0:1], 0
    s_load_dwordx2 s[48:49], s[0:1], 16
    s_load_dwordx4 s[52:55], s[0:1], 32
    s_load_dwordx2 s[56:57], s[0:1], 64
    v_lshrrev_b32 v1, 6, v0
    v_and_b32 v0, 63, v0
    v_readfirstlane_b32 s{sWAVE}, v1
    s_and_b32 s{sTMP}, s2, 7
    s_lshr_b32 s{sTMP2}, s2, 3
    s_lshr_b32 s{sMT}, s{sTMP}, 1
    s_lshl_b32 s{sMT}, s{sMT}, 2
    s_and_b32 s{sTMP3}, s{sTMP2}, 3
    s_add_u32 s{sMT}, s{sMT}, s{sTMP3}
    s_lshr_b32 s{sG}, s{sTMP2}, 2
    s_and_b32 s{sTYPE}, s{sTMP}, 1
    s_mul_i32 s{sT0}, s{sG}, 7
    s_cmp_eq_u32 s{sTYPE}, 1
    s_cselect_b32 s{sTS}, 56, 64
    s_movk_i32 s{sTMP}, 3584
    s_cselect_b32 s{sSTRIDE}, 2688, s{sTMP}
    s_waitcnt lgkmcnt(0)
    """)
    stamp(p, 0)
    srd(p, sWS, 56, WS_BYTES)
    p(f"""
    s_lshl_b32 s{sTMP}, s{sTYPE}, 3
    s_add_u32 s{sTMP}, s{sTMP}, s{sG}
    s_cmp_eq_u32 s{sTMP}, 15
    s_cbranch_scc1 K1_TRANS
    s_lshl_b32 s{sMT}, s{sMT}, 2
    v_lshrrev_b32 v2, 5, v0
    v_lshlrev_b32 v3, 3, v2
    v_bfe_u32 v4, v0, 2, 2
    v_add_u32 v3, v3, v4
    v_mul_u32_u24 v3, 448, v3
    v_bfe_u32 v4, v0, 4, 1
    v_lshl_add_u32 v3, v4, 5, v3
    v_and_b32 v4, 3, v0
    v_lshl_add_u32 v3, v4, 3, v3
    s_cmp_ge_u32 s{sWAVE}, 4
    s_cbranch_scc1 K1_LOADER
    s_add_u32 s{sMT}, s{sMT}, s{sWAVE}
    s_setprio {os.environ.get("K1CP", "1")}
    """)
    ACC = 8
    NW = 7
    WF = 120
    XF = 148
    vT = 156
    vXA = 163
    vH, vL16, vTK, vUA, vSA = 2, 4, 5, 6, 7
    U = [120, 136]
    vA, vB, vRINV, vO6, vO7, vVW, vVR, vMA, vOA, T = 152, 154, 156, 157, 158, 159, 160, 161, 162, 163
    for j in range(7):
        p(f"s_mul_i32 s{sTMP}, s{sTS}, {j}")
        p(f"v_add_u32 v{vT+j}, s{sTMP}, v3")
    p(f"""
    v_and_b32 v{vTK}, 31, v0
    v_bfe_u32 v1, v0, 1, 3
    v_xor_b32 v1, v{vH}, v1
    s_lshl_b32 s{sTMP}, s{sWAVE}, 12
    s_add_u32 s{sTMP}, s{sTMP}, {WST}
    v_lshl_add_u32 v3, v{vTK}, 7, s{sTMP}
    v_lshlrev_b32 v{vL16}, 4, v0
    """)
    for sp in range(4):
        p(f"v_xor_b32 v{vXA+sp}, {2*sp}, v1")
        p(f"v_lshl_add_u32 v{vXA+sp}, v{vXA+sp}, 4, v3")
    for i in range(112):
        p(f"v_mov_b32 v{ACC+i}, 0")
    p(f"""
    s_lshl_b32 s{sTMP}, s{sWAVE}, 8
    s_add_u32 s{sTMP}, s{sTMP}, {STA}
    v_lshl_add_u32 v{vSA}, v{vTK}, 3, s{sTMP}
    s_mov_b32 s{sCNT}, 7
    s_mov_b32 s{sCUR}, 0
    v_lshlrev_b32 v{vUA}, 4, v{vH}
    v_add_u32 v{vUA}, {CSA}, v{vUA}
    v_cmp_gt_u32 s[60:61], 32, v0
    s_mul_i32 s{sST}, s{sMT}, 114688
    s_lshl_b32 s{sTMP}, s{sT0}, 11
    s_add_u32 s{sST}, s{sST}, s{sTMP}
    s_add_u32 s{sST}, s{sST}, {HF}
    """)
    stamp(p, 1)
    p("s_barrier")
    stamp(p, 2)
    AH = 6

    def rdw(n):
        s, j = divmod(n % 28, 7)
        b = WF + 4 * (n % NW)
        o = [I(f"ds_read_b64_tr_b16 {vr(b,2)}, v{vT+j} offset:{16*448*s}"),
             I(f"ds_read_b64_tr_b16 {vr(b+2,2)}, v{vT+j} offset:{16*448*s+4*448}")]
        if s == 3:
            o.append(I(f"v_add_u32 v{vT+j}, s{sDELTA}, v{vT+j}"))
        return o

    def rdx(s):
        s %= 4
        return [I(f"ds_read_b128 {vr(XF+4*(s&1),4)}, v{vXA+s}"),
                I(f"v_add_u32 v{vXA+s}, s{sDELTA}, v{vXA+s}")]

    def delta():
        return [I(f"s_add_u32 s{sCUR}, s{sCUR}, 1"),
                I(f"s_cmp_eq_u32 s{sCUR}, 3"),
                I(f"s_cselect_b32 s{sCUR}, 0, s{sCUR}"),
                I(f"s_mov_b32 s{sTMP}, {STG}"),
                I(f"s_cselect_b32 s{sDELTA}, {(-2*STG) & 0xffffffff:#x}, s{sTMP}")]

    p.add(delta())
    p.add(rdx(0))
    for n in range(AH):
        p.add(rdw(n))
    body = [I(".p2align 6"), I("K1_LOOP:")]
    for n in range(28):
        s, j = divmod(n, 7)
        acc = vr(ACC + 16 * j, 16)
        body.append(I(f"{MF} {acc}, {vr(WF+4*(n%NW),4)}, {vr(XF+4*(s&1),4)}, {acc}"))
        m = n + AH
        if m < 28:
            body += rdw(m)
        if n == 22:
            body += delta()
        if n == 23:
            body += [I("s_waitcnt lgkmcnt(0)"), I("s_barrier")] + rdx(0) + rdw(28)
        if n >= 24:
            k = {24: [29], 25: [30, 31], 26: [32], 27: [33]}[n]
            for m in k:
                body += rdw(m)
        if j == 0 and s < 3:
            body += rdx(s + 1)
        if n == 26:
            body += [I(f"s_sub_u32 s{sCNT}, s{sCNT}, 1"), I(f"s_cmp_lg_u32 s{sCNT}, 0")]
    body += [I("s_cbranch_scc1 K1_LOOP")]
    p.loop(body)
    stamp(p, 3)

    def rdu(j):
        return [I(f"ds_read_b128 {vr(U[j&1]+4*q,4)}, v{vUA} offset:{128*j+32*q}") for q in range(4)]

    p(f"""
    s_nop 1
    ds_read_b64 {vr(vB,2)}, v{vSA}
    """)
    p.add(rdu(0))
    p(f"""
    v_mov_b32 v{vRINV}, v{vB+1}
    v_mov_b32 v{vA}, v{vB+1}
    s_cmp_eq_u32 s{sTYPE}, 1
    s_cbranch_scc1 K1_EQ
    """)
    p.flush()
    st_e = p.tr.copy()

    def common(j):
        u = U[j & 1]
        acc = ACC + 16 * j
        o = rdu(j + 1) if j < 6 else []
        for i in range(8):
            o.append(I(f"v_pk_fma_f32 {vr(u+2*i,2)}, {vr(u+2*i,2)}, {vr(vB,2)}, {vr(acc+2*i,2)} op_sel_hi:[1,0,1]"))
        for i in range(8):
            o.append(I(f"v_pk_mul_f32 {vr(u+2*i,2)}, {vr(u+2*i,2)}, {vr(vA,2)} op_sel_hi:[1,0]"))
        pk = ACC + 16 * j
        for i in range(8):
            o.append(I(f"v_cvt_pk_bf16_f32 v{pk+i}, v{u+2*i}, v{u+2*i+1}"))
        return o, pk

    def store(pk, off=0):
        return [I(f"buffer_store_dwordx4 {vr(pk,4)}, v{vL16}, s[{sWS}:{sWS+3}], s{sST} offen offset:{off} sc1"),
                I(f"buffer_store_dwordx4 {vr(pk+4,4)}, v{vL16}, s[{sWS}:{sWS+3}], s{sST} offen offset:{off+1024} sc1")]

    for j in range(7):
        o, pk = common(j)
        p.add(o)
        for i in range(8):
            p(f"v_pk_max_i16 v{pk+i}, v{pk+i}, 0")
        p.add(store(pk, 2048 * (j & 1)))
        if j & 1:
            p(f"s_add_u32 s{sST}, s{sST}, 4096")
    stamp_out(p, 4, 0, sWS, sWAVE, 2, 3)
    p("s_endpgm")
    p.flush()
    p.tr = st_e
    c = (28 ** -0.5) * 1.4426950408889634
    p(f"""
    K1_EQ:
    s_lshl_b32 s{sTMP}, s{sWAVE}, 11
    v_lshl_add_u32 v{vVW}, v{vH}, 3, s{sTMP}
    v_lshl_add_u32 v{vVW}, v{vTK}, 6, v{vVW}
    v_lshl_add_u32 v{vVR}, v{vH}, 8, s{sTMP}
    v_bfe_u32 v{T}, v0, 2, 2
    v_lshl_add_u32 v{vVR}, v{T}, 6, v{vVR}
    v_bfe_u32 v{T}, v0, 4, 1
    v_lshl_add_u32 v{vVR}, v{T}, 5, v{vVR}
    v_and_b32 v{T}, 3, v0
    v_lshl_add_u32 v{vVR}, v{T}, 3, v{vVR}
    v_cmp_gt_u32 vcc, 28, v{vTK}
    v_cndmask_b32 v{vMA}, 0, -1, vcc
    v_mov_b32 v{T}, 0x3f803f80
    v_cmp_eq_u32 vcc, 28, v{vTK}
    v_cndmask_b32 v{vOA}, 0, v{T}, vcc
    s_mov_b32 s{sT}, s{sT0}
    """)
    for j in range(7):
        if j == 6:
            p(f"""
            s_cmp_eq_u32 s{sT}, 48
            s_cbranch_scc1 K1_EX
            """)
        p(f"""
        s_lshr_b32 s{sTYPE}, s{sT}, 4
        s_and_b32 s{sTMP}, s{sT}, 15
        s_lshl_b32 s{sTMP}, s{sTMP}, 6
        s_add_u32 s{sTMP}, s{sTMP}, s{sMT}
        s_lshl_b32 s{sST}, s{sTMP}, 11
        s_lshl_b32 s{sTMP}, s{sTMP}, 12
        s_add_u32 s{sTMP}, s{sTMP}, {KVF}
        s_cmp_eq_u32 s{sTYPE}, 0
        s_cselect_b32 s{sST}, s{sST}, s{sTMP}
        s_cselect_b32 s{sTMP}, {f32bits(c):#x}, 1.0
        v_mul_f32 v{vA}, s{sTMP}, v{vRINV}
        s_cselect_b32 s{sTMP}, 0, 0x3f803f80
        s_cselect_b32 s{sTMP2}, 0, 0x3f80
        v_mov_b32 v{vO6}, s{sTMP}
        v_mov_b32 v{vO7}, s{sTMP2}
        s_add_u32 s{sT}, s{sT}, 1
        """)
        o, pk = common(j)
        p.add(o)
        p(f"""
        s_cmp_eq_u32 s{sTYPE}, 2
        s_cbranch_scc1 K1_EV{j}
        v_cndmask_b32 v{pk+6}, v{vO6}, v{pk+6}, s[60:61]
        v_cndmask_b32 v{pk+7}, v{vO7}, v{pk+7}, s[60:61]
        """)
        p.add(store(pk))
        p(f"s_branch K1_EN{j}")
        p.flush()
        keep = p.tr.copy()
        p(f"K1_EV{j}:")
        for q in range(4):
            p(f"ds_write_b64 v{vVW}, {vr(pk+2*q,2)} offset:{16*q}")
        pv = pk + 8
        for i in range(2):
            p(f"ds_read_b64_tr_b16 {vr(pv+4*i,2)}, v{vVR} offset:{1024*i}")
            p(f"ds_read_b64_tr_b16 {vr(pv+4*i+2,2)}, v{vVR} offset:{1024*i+512}")
        for i in range(8):
            p(f"v_and_or_b32 v{pv+i}, v{pv+i}, v{vMA}, v{vOA}")
        p.add(store(pv, 2048))
        p(f"K1_EN{j}:")
        p.flush()
        p.tr = keep
    p("K1_EX:")
    stamp_out(p, 4, 0, sWS, sWAVE, 2, 3)
    p("s_endpgm")
    p.flush()

    p.tr = Tracker()
    vO, vX = 8, 16
    p(f"""
    K1_LOADER:
    s_cmp_ge_u32 s{sWAVE}, 8
    s_cbranch_scc1 K1_STATS
    """)
    srd(p, sX, 44, XB)
    p(f"""
    s_sub_u32 s{sWAVE}, s{sWAVE}, 4
    s_add_u32 s{sXO}, s{sMT}, s{sWAVE}
    s_mul_i32 s{sXO}, s{sXO}, 28672
    v_lshrrev_b32 v4, 3, v0
    v_mul_u32_u24 v4, 896, v4
    v_lshrrev_b32 v5, 4, v0
    v_and_b32 v6, 7, v0
    v_xor_b32 v6, v5, v6
    v_lshl_add_u32 v{vX}, v6, 4, v4
    v_xor_b32 v6, 4, v6
    v_lshl_add_u32 v{vX+1}, v6, 4, v4
    s_cmp_eq_u32 s{sTYPE}, 1
    s_cselect_b32 s{sW}, s46, s52
    s_cselect_b32 s{sW+1}, s47, s53
    s_mov_b32 s{sTMP}, {W1B}
    s_cselect_b32 s{sW+2}, {WQKVB}, s{sTMP}
    s_and_b32 s{sW+1}, s{sW+1}, 0xffff
    s_mov_b32 s{sW+3}, 0x00020000
    s_mul_i32 s{sOFF}, s{sT0}, s{sTS}
    s_lshl_b32 s{sTMP}, s{sWAVE}, 4
    s_mul_i32 s{sTMP}, s{sTMP}, s{sSTRIDE}
    s_add_u32 s{sOFF}, s{sOFF}, s{sTMP}
    """)
    for d in range(7):
        p(f"""
        v_add_u32 v4, {64*d}, v0
        v_mul_u32_u24 v5, 2341, v4
        v_lshrrev_b32 v5, 16, v5
        v_mul_u32_u24 v6, 28, v5
        v_sub_u32 v4, v4, v6
        v_lshlrev_b32 v4, 4, v4
        v_mad_u32_u24 v{vO+d}, v5, s{sSTRIDE}, v4
        """)
    p(f"""
    s_mov_b32 s{sLS}, 0
    s_mov_b32 s{sK}, -2
    s_lshl_b32 s{sTMP3}, s{sSTRIDE}, 6
    K1_LT:
    s_lshl_b32 s{sM0}, s{sWAVE}, 12
    s_add_u32 s{sM0}, s{sM0}, s{sLS}
    """)
    for g in range(4):
        p(f"s_add_u32 m0, s{sM0}, {WST+1024*g}")
        p(f"s_add_u32 s{sTMP}, s{sXO}, {8*896*g}")
        p(f"buffer_load_dwordx4 v{vX+(g&1)}, s[{sX}:{sX+3}], s{sTMP} offen lds")
    p(f"""
    s_mul_i32 s{sM0}, s{sWAVE}, 7168
    s_add_u32 s{sM0}, s{sM0}, s{sLS}
    """)
    for d in range(7):
        p(f"s_add_u32 m0, s{sM0}, {1024*d}")
        p(f"buffer_load_dwordx4 v{vO+d}, s[{sW}:{sW+3}], s{sOFF} offen lds")
    p(f"""
    s_add_u32 s{sOFF}, s{sOFF}, s{sTMP3}
    s_add_u32 s{sXO}, s{sXO}, 128
    s_add_u32 s{sLS}, s{sLS}, {STG}
    s_cmp_eq_u32 s{sLS}, {3*STG}
    s_cselect_b32 s{sLS}, 0, s{sLS}
    s_add_u32 s{sK}, s{sK}, 1
    s_cmp_lt_i32 s{sK}, 0
    s_cbranch_scc1 K1_LT
    """)
    if os.environ.get("K1PF", "0") != "0":
        p(f"""
        s_cmp_lg_u32 s{sK}, 0
        s_cbranch_scc1 K1_LP
        s_lshr_b32 s{sTMP}, s{sMT}, 2
        s_and_b32 s{sTMP}, s{sTMP}, 3
        s_lshl_b32 s{sTMP}, s{sTMP}, 6
        s_add_u32 s{sTMP}, s{sTMP}, 64
        s_mul_i32 s{sTMP}, s{sTMP}, s{sSTRIDE}
        s_add_u32 s{sTMP}, s{sTMP}, s{sOFF}
        v_lshrrev_b32 v4, 3, v0
        v_and_b32 v5, 7, v0
        v_lshlrev_b32 v5, 6, v5
        v_mad_u32_u24 v6, v4, s{sSTRIDE}, v5
        s_lshl_b32 s{sTMP2}, s{sSTRIDE}, 3
        s_add_u32 s{sTMP2}, s{sTMP2}, s{sTMP}
        s_mov_b32 exec_lo, 0xd5d5d5d5
        s_mov_b32 exec_hi, 0xd5d5d5d5
        buffer_load_dword v20, v6, s[{sW}:{sW+3}], s{sTMP} offen
        buffer_load_dword v21, v6, s[{sW}:{sW+3}], s{sTMP2} offen
        s_mov_b64 exec, -1
        s_lshl_b32 s{sTMP}, s{sG}, 4
        s_lshl_b32 s{sTMP2}, s{sWAVE}, 2
        s_add_u32 s{sTMP}, s{sTMP}, s{sTMP2}
        s_lshl_b32 s{sTMP2}, s{sMT}, 5
        s_add_u32 s{sTMP}, s{sTMP}, s{sTMP2}
        s_mul_i32 s{sTMP}, s{sTMP}, 896
        v_lshrrev_b32 v4, 4, v0
        v_mul_u32_u24 v4, 896, v4
        v_and_b32 v5, 15, v0
        v_lshl_add_u32 v6, v5, 7, v4
        s_mov_b32 exec_lo, 0x00780078
        s_mov_b32 exec_hi, 0x00780078
        buffer_load_dword v22, v6, s[{sX}:{sX+3}], s{sTMP} offen
        s_mov_b64 exec, -1
        K1_LP:
        s_cmp_lt_u32 s{sK}, 2
        s_cbranch_scc1 K1_LQ
        """)
    stamp_if(p, 2, sK, 4)
    p("s_waitcnt vmcnt(11)")
    p("K1_LQ:")
    p("s_waitcnt vmcnt(14)")
    stamp_if(p, 3, sK, 4)
    p("s_barrier")
    stamp_if(p, 4, sK, 4)
    stamp_if(p, 1, sK, 3)
    p(f"""
    s_cmp_lt_u32 s{sK}, 5
    s_cbranch_scc1 K1_LT
    s_waitcnt vmcnt(0)
    s_barrier
    """)
    stamp_out(p, 5, 0, sWS, sWAVE, 5, 6, wave_add=4)
    p("s_endpgm")
    p.flush()

    p.tr = Tracker()
    vTL, vS, F, E2, vXR, ONE, CS, XD = 18, 20, 32, 64, 72, 76, 80, 88
    T = E2
    p(f"""
    K1_STATS:
    s_setprio {os.environ.get("K1SP", "3")}
    s_sub_u32 s{sWAVE}, s{sWAVE}, 8
    s_mul_i32 s{sTMP}, s{sWAVE}, s{sTS}
    v_add_u32 v{vTL}, s{sTMP}, v3
    s_lshl_b32 s{sTMP}, s{sTS}, 2
    v_add_u32 v{vTL+1}, s{sTMP}, v{vTL}
    s_mov_b32 s{sCUR}, 0
    s_mov_b32 s{sCNT}, 7
    """)
    for i in range(4):
        p(f"v_mov_b32 v{vS+i}, 0")
    for i in range(8):
        p(f"v_mov_b32 v{CS+i}, 0")
    p(f"""
    v_and_b32 v4, 31, v0
    v_bfe_u32 v5, v0, 1, 3
    v_xor_b32 v5, v2, v5
    s_lshl_b32 s{sTMP}, s{sWAVE}, 12
    s_add_u32 s{sTMP}, s{sTMP}, {WST}
    v_lshl_add_u32 v6, v4, 7, s{sTMP}
    """)
    for sp in range(4):
        p(f"v_xor_b32 v{vXR+sp}, {2*sp}, v5")
        p(f"v_lshl_add_u32 v{vXR+sp}, v{vXR+sp}, 4, v6")
    p(f"""
    v_and_b32 v4, 15, v0
    v_bfe_u32 v5, v0, 4, 1
    v_mov_b32 v6, 0x3f803f80
    v_cmp_eq_u32 vcc, v4, v5
    v_cndmask_b32 v{ONE}, 0, v6, vcc
    v_mov_b32 v{ONE+1}, v{ONE}
    v_mov_b32 v{ONE+2}, v{ONE}
    v_mov_b32 v{ONE+3}, v{ONE}
    """)
    body = ["K1_SL:", "s_barrier",
            f"v_add_u32 v4, s{sCUR}, v{vTL}", f"v_add_u32 v5, s{sCUR}, v{vTL+1}"]
    for sp in range(4):
        body += [f"v_add_u32 v6, s{sCUR}, v{vXR+sp}", f"ds_read_b128 {vr(XD+4*sp,4)}, v6"]
    rds = []
    for s in range(4):
        for t in range(2):
            b = F + 16 * t + 4 * s
            rds.append([f"ds_read_b64_tr_b16 {vr(b,2)}, v{4+t} offset:{16*448*s}",
                        f"ds_read_b64_tr_b16 {vr(b+2,2)}, v{4+t} offset:{16*448*s+4*448}"])
    body += rds[0] + rds[1] + rds[2] + rds[3]
    for d in range(16):
        e = E2 + 2 * (d % 4)
        body += [f"v_lshlrev_b32 v{e}, 16, v{XD+d}",
                 f"v_and_b32 v{e+1}, 0xffff0000, v{XD+d}",
                 f"v_add_f32 v{vS}, v{vS}, v{e}",
                 f"v_add_f32 v{vS+1}, v{vS+1}, v{e+1}",
                 f"v_fmac_f32 v{vS+2}, v{e}, v{e}",
                 f"v_fmac_f32 v{vS+3}, v{e+1}, v{e+1}"]
        if d < 4:
            body += rds[4 + d]
        if d & 1:
            n = d >> 1
            t = n & 1
            body.append(f"v_mfma_f32_16x16x32_bf16 {vr(CS+4*t,4)}, {vr(ONE,4)}, {vr(F+16*t+4*(n>>1),4)}, {vr(CS+4*t,4)}")
    body += [f"s_add_u32 s{sCUR}, s{sCUR}, {STG}",
             f"s_cmp_eq_u32 s{sCUR}, {3*STG}",
             f"s_cselect_b32 s{sCUR}, 0, s{sCUR}",
             f"s_sub_u32 s{sCNT}, s{sCNT}, 1",
             f"s_cmp_lg_u32 s{sCNT}, 0",
             "s_cbranch_scc1 K1_SL"]
    p.loop(body)
    p(f"""
    v_add_f32 v{T}, v{vS}, v{vS+1}
    v_add_f32 v{T+4}, v{vS+2}, v{vS+3}
    v_mov_b32 v{T+1}, v{T}
    v_mov_b32 v{T+5}, v{T+4}
    s_lshl_b32 s{sTMP}, s{sWAVE}, 7
    s_add_u32 s{sTMP}, s{sTMP}, {CSA}
    v_permlane32_swap_b32 v{T}, v{T+1}
    v_permlane32_swap_b32 v{T+4}, v{T+5}
    v_add_f32 v{T}, v{T}, v{T+1}
    v_add_f32 v{T+4}, v{T+4}, v{T+5}
    v_mul_f32 v{T}, {f32bits(1.0/448.0):#x}, v{T}
    v_mul_f32 v{T+4}, {f32bits(1.0/448.0):#x}, v{T+4}
    v_fma_f32 v{T+4}, -v{T}, v{T}, v{T+4}
    v_cvt_pk_bf16_f32 v{T+1}, v{T}, v{T}
    v_max_f32 v{T+4}, 0, v{T+4}
    v_and_b32 v{T+1}, 0xffff0000, v{T+1}
    v_cvt_pk_bf16_f32 v{T+4}, v{T+4}, v{T+4}
    v_sub_f32 v{T+2}, 0, v{T+1}
    v_and_b32 v{T+4}, 0xffff0000, v{T+4}
    v_add_f32 v{T+4}, {f32bits(1e-5):#x}, v{T+4}
    v_cvt_pk_bf16_f32 v{T+4}, v{T+4}, v{T+4}
    v_and_b32 v{T+4}, 0xffff0000, v{T+4}
    v_sqrt_f32 v{T+4}, v{T+4}
    v_lshl_add_u32 v4, v0, 2, s{sTMP}
    v_cvt_pk_bf16_f32 v{T+4}, v{T+4}, v{T+4}
    v_and_b32 v{T+4}, 0xffff0000, v{T+4}
    v_rcp_f32 v{T+3}, v{T+4}
    s_lshl_b32 s{sTMP}, s{sWAVE}, 8
    s_add_u32 s{sTMP}, s{sTMP}, {STA}
    v_and_b32 v5, 31, v0
    v_lshl_add_u32 v5, v5, 3, s{sTMP}
    ds_write_b64 v5, {vr(T+2,2)}
    s_mov_b64 exec, 0xffff
    ds_write_b32 v4, v{CS}
    ds_write_b32 v4, v{CS+1} offset:64
    ds_write_b32 v4, v{CS+4} offset:512
    ds_write_b32 v4, v{CS+5} offset:576
    s_mov_b64 exec, -1
    s_waitcnt lgkmcnt(0)
    s_barrier
    s_endpgm
    """)
    p.flush()

    p.tr = Tracker()
    sW2, sWO, sC = 4, 8, sMT
    WOA = 128 * 896
    p(f"""
    K1_TRANS:
    s_cmp_ge_u32 s{sWAVE}, 8
    s_cbranch_scc1 K1_END
    """)
    srd(p, sW2, 54, W2B)
    srd(p, sWO, 48, WOB)
    vL, vB2, vTW, vTO = 1, 2, 3, 4
    p(f"""
    v_lshlrev_b32 v{vL}, 4, v0
    s_mul_i32 s{sOFF}, s{sC}, {28*896}
    s_lshl_b32 s{sM0}, s{sWAVE}, 12
    s_add_u32 s{sOFF}, s{sOFF}, s{sM0}
    s_add_u32 m0, s{sM0}, {WOA}
    s_cmp_eq_u32 s{sWAVE}, 7
    s_cbranch_scc1 K1_TR1
    """)
    for d in range(4):
        p(f"buffer_load_dwordx4 v{vL}, s[{sWO}:{sWO+3}], s{sOFF} offen offset:{1024*d} lds")
    p(f"""
    K1_TR1:
    s_mul_i32 s{sOFF}, s{sC}, {128*896}
    s_mul_i32 s{sM0}, s{sWAVE}, {14*1024}
    s_add_u32 s{sOFF}, s{sOFF}, s{sM0}
    """)
    for d in range(14):
        if d % 4 == 0:
            p(f"s_add_u32 m0, s{sM0}, {1024*d}")
            p(f"s_add_u32 s{sTMP}, s{sOFF}, {1024*d}")
        p(f"buffer_load_dwordx4 v{vL}, s[{sW2}:{sW2+3}], s{sTMP} offen offset:{1024*(d%4)} lds")
    p(f"""
    v_lshrrev_b32 v{vB2}, 5, v0
    v_lshlrev_b32 v{vTW}, 2, v{vB2}
    v_bfe_u32 v{vB2}, v0, 2, 2
    v_add_u32 v{vTW}, v{vTW}, v{vB2}
    v_mul_u32_u24 v{vTW}, 896, v{vTW}
    v_bfe_u32 v{vB2}, v0, 4, 1
    v_lshl_add_u32 v{vTW}, v{vB2}, 5, v{vTW}
    v_and_b32 v{vB2}, 3, v0
    v_lshl_add_u32 v{vTW}, v{vB2}, 3, v{vTW}
    s_lshl_b32 s{sTMP}, s{sWAVE}, 7
    s_add_u32 s{sTMP}, s{sTMP}, {WOA}
    v_add_u32 v{vTO}, s{sTMP}, v{vTW}
    s_mul_i32 s{sTMP}, s{sWAVE}, {16*896}
    v_add_u32 v{vTW}, s{sTMP}, v{vTW}
    v_cmp_gt_u32 vcc, 32, v0
    s_waitcnt vmcnt(0)
    s_barrier
    s_cmp_eq_u32 s{sWAVE}, 7
    s_cbranch_scc1 K1_TR2
    """)
    G = 16
    for t in range(2):
        for i in range(2):
            b = G + 8 * t + 4 * i
            p(f"ds_read_b64_tr_b16 {vr(b,2)}, v{vTO} offset:{64*t+16*896*i}")
            p(f"ds_read_b64_tr_b16 {vr(b+2,2)}, v{vTO} offset:{64*t+16*896*i+8*896}")
    p(f"""
    s_lshl_b32 s{sOFF}, s{sWAVE}, 16
    s_lshl_b32 s{sTMP}, s{sC}, 11
    s_add_u32 s{sOFF}, s{sOFF}, s{sTMP}
    s_add_u32 s{sOFF}, s{sOFF}, {WOF}
    s_add_u32 s{sTMP}, s{sOFF}, 32768
    """)
    for t in range(2):
        p(f"v_cndmask_b32 v{G+8*t+6}, 0, v{G+8*t+6}, vcc")
        p(f"v_cndmask_b32 v{G+8*t+7}, 0, v{G+8*t+7}, vcc")
    for t in range(2):
        for i in range(2):
            p(f"buffer_store_dwordx4 {vr(G+8*t+4*i,4)}, v{vL}, s[{sWS}:{sWS+3}], s{sOFF if t == 0 else sTMP} offen offset:{1024*i} sc1")
    p.flush()
    p.tr = Tracker()
    p(f"""
    K1_TR2:
    s_cmp_ge_u32 s{sC}, 14
    s_cbranch_scc1 K1_TR3
    s_lshl_b32 s{sOFF}, s{sC}, 3
    s_add_u32 s{sOFF}, s{sOFF}, s{sWAVE}
    s_lshl_b32 s{sOFF}, s{sOFF}, 10
    s_add_u32 s{sOFF}, s{sOFF}, {W2F}
    """)
    F = 32
    for t in range(14):
        p(f"ds_read_b64_tr_b16 {vr(F+4*t,2)}, v{vTW} offset:{64*t}")
        p(f"ds_read_b64_tr_b16 {vr(F+4*t+2,2)}, v{vTW} offset:{64*t+8*896}")
    for t in range(14):
        p(f"buffer_store_dwordx4 {vr(F+4*t,4)}, v{vL}, s[{sWS}:{sWS+3}], s{sOFF} offen sc1")
        if t < 13:
            p(f"s_add_u32 s{sOFF}, s{sOFF}, 114688")
    p("K1_TR3:")
    stamp_out(p, 1, 0, sWS, sWAVE, 5, 6)
    p("K1_END:")
    p("s_endpgm")
    return head("k1_kernel") + p.text() + KD.format(name="k1_kernel", nv=168, ns=(100 if STAMP else 64), acc=168)


K2_LDS = 48 * 1024 + 96 * 1024
K2_ACC = 112
REF_OFF = 90.0
L_LIMIT = 2.0 ** 50


def gen_k2():
    p = Prog()
    sWS, sG, sX = 4, 8, 32
    sWAVE, sHEAD, sQB, sTMP, sTMP2, sKV, sKV2, sHO, sWO_, sCNT, sMB, sNP, sKH, sTMP3 = range(12, 26)
    vL16 = 1
    p(f"""
    s_cmp_ge_u32 s2, 256
    s_cbranch_scc1 K2_END
    s_load_dwordx2 s[28:29], s[0:1], 64
    s_load_dwordx2 s[30:31], s[0:1], 0
    v_lshrrev_b32 v1, 6, v0
    v_and_b32 v0, 63, v0
    v_readfirstlane_b32 s{sWAVE}, v1
    s_and_b32 s{sTMP}, s2, 7
    s_lshr_b32 s{sTMP2}, s2, 3
    v_lshlrev_b32 v{vL16}, 4, v0
    s_cmp_ge_u32 s{sWAVE}, 4
    s_cbranch_scc1 K2_GEMM
    s_setprio 2
    s_lshl_b32 s{sHEAD}, s{sTMP}, 1
    s_and_b32 s{sTMP}, s{sTMP2}, 1
    s_add_u32 s{sHEAD}, s{sHEAD}, s{sTMP}
    s_lshr_b32 s{sQB}, s{sTMP2}, 1
    s_lshl_b32 s{sTMP}, s{sHEAD}, 6
    s_lshl_b32 s{sTMP2}, s{sQB}, 2
    s_add_u32 s{sTMP}, s{sTMP}, s{sTMP2}
    s_lshl_b32 s{sKV}, s{sHEAD}, 18
    s_add_u32 s{sKV}, s{sKV}, {KVF}
    s_mov_b32 s{sTMP3}, s{sKV}
    s_waitcnt lgkmcnt(0)
    """)
    stamp(p, 0)
    srd(p, sWS, 28, WS_BYTES)
    S = [8, 24]
    P = [40, 48]
    O0 = 56
    T = 72
    Q = 0
    OA = 32
    KV = [80, 96]

    def Oacc(u):
        return vr(O0, 16) if u == 0 else ar(OA + 16 * (u - 1), 16)

    KR = T + 24
    p(f"""
    buffer_load_dwordx4 {vr(KR,4)}, v{vL16}, s[{sWS}:{sWS+3}], s{sKV} offen
    buffer_load_dwordx4 {vr(KR+4,4)}, v{vL16}, s[{sWS}:{sWS+3}], s{sKV} offen offset:1024
    """)
    for u in range(4):
        p(f"""
        s_xor_b32 s{sTMP2}, s{sWAVE}, {u}
        s_add_u32 s{sTMP2}, s{sTMP2}, s{sTMP}
        s_lshl_b32 s{sTMP2}, s{sTMP2}, 11
        buffer_load_dwordx4 {ar(Q+8*u,4)}, v{vL16}, s[{sWS}:{sWS+3}], s{sTMP2} offen
        buffer_load_dwordx4 {ar(Q+8*u+4,4)}, v{vL16}, s[{sWS}:{sWS+3}], s{sTMP2} offen offset:1024
        """)
    p(f"""
    s_lshl_b32 s{sTMP}, s{sWAVE}, 16
    s_add_u32 s{sKV}, s{sKV}, s{sTMP}
    s_add_u32 s{sKV2}, s{sKV}, 4096
    """)
    for j in range(4):
        p(f"buffer_load_dwordx4 {ar(KV[0]+4*j,4)}, v{vL16}, s[{sWS}:{sWS+3}], s{sKV} offen offset:{1024*j}")
    for j in range(2):
        p(f"buffer_load_dwordx4 {ar(KV[1]+4*j,4)}, v{vL16}, s[{sWS}:{sWS+3}], s{sKV2} offen offset:{1024*j}")
    for i in range(48):
        p(f"v_accvgpr_write_b32 a{OA+i}, 0")
    for i in range(8):
        p(f"v_accvgpr_write_b32 a{KV[1]+8+i}, 0")
    for i in range(16):
        p(f"v_mov_b32 v{O0+i}, 0")
    for i in range(8):
        p(f"v_mov_b32 v{P[1]+i}, 0")
    vA1, vA2, vA3, vRA = 2, 3, 4, 5
    vAs = [None, vA1, vA2, vA3]
    for u in range(1, 4):
        p(f"""
        s_xor_b32 s{sTMP}, s{sWAVE}, {u}
        s_mul_i32 s{sTMP}, s{sTMP}, 3
        s_add_u32 s{sTMP}, s{sTMP}, {u-1}
        s_lshl_b32 s{sTMP}, s{sTMP}, 12
        v_add_u32 v{vAs[u]}, s{sTMP}, v{vL16}
        """)
    p(f"""
    s_mul_i32 s{sTMP}, s{sWAVE}, {3*4096}
    v_add_u32 v{vRA}, s{sTMP}, v{vL16}
    s_mov_b32 s{sCNT}, 8
    """)
    stamp(p, 1)

    def rowmax(m, d, first=True):
        if first:
            p(f"v_max3_f32 v{m}, v{d}, v{d+1}, v{d+2}")
            for r in range(3, 15, 2):
                p(f"v_max3_f32 v{m}, v{m}, v{d+r}, v{d+r+1}")
            p(f"v_max_f32 v{m}, v{m}, v{d+15}")
        else:
            for r in range(0, 16, 2):
                p(f"v_max3_f32 v{m}, v{m}, v{d+r}, v{d+r+1}")

    def put_ref(units, add):
        for u in units:
            m, m2 = T + u, T + 4 + u
            p(f"v_mov_b32 v{m2}, v{m}")
        for u in units:
            m, m2 = T + u, T + 4 + u
            p(f"v_permlane32_swap_b32 v{m}, v{m2}")
        for u in units:
            m, m2 = T + u, T + 4 + u
            a, b, c = T + 8 + 4 * u, T + 9 + 4 * u, T + 10 + 4 * u
            p(f"""
            v_max_f32 v{m}, v{m}, v{m2}
            v_sub_f32 v{a}, {f32bits(-add):#x}, v{m}
            v_and_b32 v{b}, 0xffff0000, v{a}
            v_sub_f32 v{a}, v{a}, v{b}
            v_and_b32 v{c}, 0xffff0000, v{a}
            v_sub_f32 v{a}, v{a}, v{c}
            v_lshrrev_b32 v{b}, 16, v{b}
            v_or_b32 v{b}, v{b}, v{c}
            v_lshrrev_b32 v{a}, 16, v{a}
            """)
        p("s_mov_b32 exec_lo, 0")
        for u in units:
            a, b = T + 8 + 4 * u, T + 9 + 4 * u
            p(f"v_accvgpr_write_b32 a{Q+8*u+6}, v{b}")
            p(f"v_accvgpr_write_b32 a{Q+8*u+7}, v{a}")
        p("s_mov_b32 exec_lo, -1")

    for u in range(4):
        d = S[u % 2]
        p(f"{MF} {vr(d,16)}, {vr(KR,4)}, {ar(Q+8*u,4)}, 0")
        p(f"{MF} {vr(d,16)}, {vr(KR+4,4)}, {ar(Q+8*u+4,4)}, {vr(d,16)}")
        if u % 2 == 1:
            for uu in (u - 1, u):
                rowmax(T + uu, S[uu % 2])
    put_ref(range(4), REF_OFF)

    def qk(n_u, kb, sbuf):
        k = KV[kb]
        return [I(f"{MF} {vr(S[sbuf],16)}, {ar(k,4)}, {ar(Q+8*n_u,4)}, 0"),
                I(f"{MF} {vr(S[sbuf],16)}, {ar(k+4,4)}, {ar(Q+8*n_u+4,4)}, {vr(S[sbuf],16)}")]

    def pv(u, vb, pbuf):
        v = KV[vb] + 8
        return [I(f"{MF} {Oacc(u)}, {ar(v,4)}, {vr(P[pbuf],4)}, {Oacc(u)}"),
                I(f"{MF} {Oacc(u)}, {ar(v+4,4)}, {vr(P[pbuf]+4,4)}, {Oacc(u)}")]

    def softmax(sb):
        s, pp = S[sb], P[sb]
        v = []
        for i in range(8):
            v.append(I(f"v_exp_f32 v{s+2*i}, v{s+2*i}"))
            v.append(I(f"v_exp_f32 v{s+2*i+1}, v{s+2*i+1}"))
            if i >= 1:
                v.append(I(f"v_cvt_pk_bf16_f32 v{pp+i-1}, v{s+2*i-2}, v{s+2*i-1}"))
        v.append(I(f"v_cvt_pk_bf16_f32 v{pp+7}, v{s+14}, v{s+15}"))
        return v

    def cost(i):
        return 8 if i.is_trans() else 4

    def slot(tb, u):
        nu = (u + 1) & 3
        pu = (u - 1) & 3
        mf = qk(nu, tb if u < 3 else 1 - tb, (u + 1) & 1) + pv(pu, tb if u > 0 else 1 - tb, (u - 1) & 1)
        ld = []
        if u == 0:
            so = sKV2 if tb == 0 else sKV
            ld += [I(f"buffer_load_dwordx4 {ar(KV[1-tb]+8+4*j,4)}, v{vL16}, s[{sWS}:{sWS+3}], s{so} offen offset:{2048+1024*j}") for j in range(2)]
        if u == 2:
            so = sKV if tb == 0 else sKV2
            ld += [I(f"buffer_load_dwordx4 {ar(KV[tb]+4*j,4)}, v{vL16}, s[{sWS}:{sWS+3}], s{so} offen offset:{1024*j}") for j in range(2)]
        va = softmax(u & 1)
        total = sum(cost(i) for i in va)
        out = []
        k = 0
        acc = 0
        for j, m in enumerate(mf):
            out.append(m)
            tgt = total * (j + 1) / len(mf)
            while k < len(va) and acc + cost(va[k]) / 2 <= tgt:
                out.append(va[k]); acc += cost(va[k]); k += 1
        out += va[k:]
        idx = max(i for i, x in enumerate(out) if x.kind == "mfma")
        if ld:
            out = out[:idx + 1] + interleave(out[idx + 1:], ld)
        return out

    stamp(p, 2)
    p.add(qk(0, 0, 0))
    body = [I(".p2align 6"), I("K2_LOOP:")]
    for tb in range(2):
        for u in range(4):
            if u == 1:
                so = sKV if tb == 0 else sKV2
                body.append(I(f"s_add_u32 s{so}, s{so}, 8192"))
            if tb == 1 and u == 3:
                body.append(I(f"s_sub_u32 s{sCNT}, s{sCNT}, 1"))
                body.append(I(f"s_cmp_lg_u32 s{sCNT}, 0"))
            body += slot(tb, u)
    body += [I("s_cbranch_scc1 K2_LOOP")]
    p.loop(body)
    stamp(p, 3)
    p.add(pv(3, 1, 1))
    for u in range(1, 4):
        for q in range(4):
            p(f"ds_write_b128 v{vAs[u]}, {ar(OA+16*(u-1)+4*q,4)} offset:{1024*q}")
    p(f"""
    s_lshl_b32 s{sTMP}, s{sQB}, 2
    s_add_u32 s{sTMP}, s{sTMP}, s{sWAVE}
    s_lshl_b32 s{sTMP}, s{sTMP}, 15
    s_lshl_b32 s{sTMP2}, s{sHEAD}, 11
    s_add_u32 s{sTMP}, s{sTMP}, s{sTMP2}
    s_add_u32 s{sTMP}, s{sTMP}, {OF}
    s_waitcnt lgkmcnt(0)
    """)
    stamp(p, 4)
    p("s_barrier")
    stamp(p, 5)
    R = 8
    for i in range(3):
        for q in range(4):
            p(f"ds_read_b128 {vr(R+16*i+4*q,4)}, v{vRA} offset:{4096*i+1024*q}")
    for i in range(3):
        for r in range(0, 16, 2):
            p(f"v_pk_add_f32 {vr(O0+r,2)}, {vr(O0+r,2)}, {vr(R+16*i+r,2)}")
    p("K2_NORM:")
    l, l2, ri, mx = T + 32, T + 33, T + 34, T + 36
    p(f"""
    v_mov_b32 v{l}, v{O0+12}
    v_mov_b32 v{l2}, v{O0+12}
    v_permlane32_swap_b32 v{l}, v{l2}
    v_rcp_f32 v{ri}, v{l2}
    """)
    for r in range(0, 16, 2):
        p(f"v_pk_mul_f32 {vr(O0+r,2)}, {vr(O0+r,2)}, {vr(ri,2)} op_sel_hi:[1,0]")
    for i in range(8):
        p(f"v_cvt_pk_bf16_f32 v{R+i}, v{O0+2*i}, v{O0+2*i+1}")
    p(f"""
    buffer_store_dwordx4 {vr(R,4)}, v{vL16}, s[{sWS}:{sWS+3}], s{sTMP} offen sc1
    buffer_store_dwordx4 {vr(R+4,4)}, v{vL16}, s[{sWS}:{sWS+3}], s{sTMP} offen offset:1024 sc1
    """)
    for r in range(0, 16, 2):
        p(f"v_pk_add_f32 {vr(O0+r,2)}, {vr(O0+r,2)}, {vr(O0+r,2)} neg_lo:[0,1] neg_hi:[0,1]")
    for r in (8, 4, 2):
        for k in range(0, r, 2):
            p(f"v_pk_add_f32 {vr(O0+k,2)}, {vr(O0+k,2)}, {vr(O0+r+k,2)}")
    p(f"""
    v_add_f32 v{mx}, v{O0}, v{O0+1}
    v_add_f32 v{mx}, v{mx}, v{l2}
    v_cmp_nlt_f32 vcc, v{mx}, v{mx+1}
    """.replace(f"v_cmp_nlt_f32 vcc, v{mx}, v{mx+1}", f"v_cmp_ngt_f32 vcc, {f32bits(L_LIMIT):#x}, v{mx}"))
    p(f"""
    s_cmp_eq_u32 s{sCNT}, 0
    s_cselect_b64 vcc, vcc, 0
    s_cbranch_vccnz K2_SLOW
    """)
    stamp_out(p, 6, 1, sWS, sWAVE, 2, 3)
    p("s_endpgm")
    p.flush()
    p.tr = Tracker()
    p(f"""
    K2_SLOW:
    s_waitcnt vmcnt(0) lgkmcnt(0)
    s_mov_b32 exec_lo, 0
    v_accvgpr_write_b32 a{Q+6}, 0
    v_accvgpr_write_b32 a{Q+7}, 0
    s_mov_b32 exec_lo, -1
    v_mov_b32 v{T}, 0xff800000
    s_mov_b32 s{sKV}, s{sTMP3}
    s_mov_b32 s{sCNT}, 64
    """)
    body = [I("K2_S1:")]
    body += [I(f"buffer_load_dwordx4 {ar(KV[0]+4*j,4)}, v{vL16}, s[{sWS}:{sWS+3}], s{sKV} offen offset:{1024*j}") for j in range(2)]
    body += qk(0, 0, 0)
    body += [I(f"v_max3_f32 v{T}, v{T}, v{S[0]+r}, v{S[0]+r+1}") for r in range(0, 16, 2)]
    body += [I(f"s_add_u32 s{sKV}, s{sKV}, 4096"), I(f"s_sub_u32 s{sCNT}, s{sCNT}, 1"), I(f"s_cmp_lg_u32 s{sCNT}, 0"), I("s_cbranch_scc1 K2_S1")]
    p.loop(body)
    put_ref([0], 0.0)
    for i in range(16):
        p(f"v_mov_b32 v{O0+i}, 0")
    p(f"""
    s_mov_b32 s{sKV}, s{sTMP3}
    s_mov_b32 s{sCNT}, 64
    """)
    body = [I("K2_S2:")]
    body += [I(f"buffer_load_dwordx4 {ar(KV[0]+4*j,4)}, v{vL16}, s[{sWS}:{sWS+3}], s{sKV} offen offset:{1024*j}") for j in range(4)]
    body += qk(0, 0, 0) + softmax(0) + pv(0, 0, 0)
    body += [I(f"s_add_u32 s{sKV}, s{sKV}, 4096"), I(f"s_sub_u32 s{sCNT}, s{sCNT}, 1"), I(f"s_cmp_lg_u32 s{sCNT}, 0"), I("s_cbranch_scc1 K2_S2")]
    p.loop(body)
    p(f"""
    s_mov_b32 s{sCNT}, 1
    s_nop 7
    s_nop 7
    s_branch K2_NORM
    """)
    p.flush()

    p.tr = Tracker()
    GA0 = 8
    Gv = [40, 64, 88]
    Ga = [96, 120]
    NBUF = 4

    def Gbuf(b, off, n):
        return vr(Gv[b] + off, n) if b < 3 else ar(Ga[b - 3] + off, n)

    def Gacc(mi, ni):
        return vr(GA0 + 16 * ni, 16) if mi == 0 else ar(32 * (mi - 1) + 16 * ni, 16)

    vH = [2, 3, 4, 5]
    vW1 = 6
    vW = [vL16, vW1]
    p(f"""
    K2_GEMM:
    s_sub_u32 s{sWAVE}, s{sWAVE}, 4
    s_and_b32 s{sKH}, s{sTMP}, 1
    s_lshr_b32 s{sMB}, s{sTMP}, 1
    s_lshl_b32 s{sMB}, s{sMB}, 2
    s_and_b32 s{sTMP}, s{sTMP2}, 3
    s_add_u32 s{sMB}, s{sMB}, s{sTMP}
    s_lshr_b32 s{sNP}, s{sTMP2}, 2
    s_cmp_ge_u32 s{sNP}, 7
    s_cbranch_scc1 K2_END
    """)
    for mi in range(4):
        p(f"""
        s_xor_b32 s{sTMP}, s{sWAVE}, {mi}
        s_mul_i32 s{sTMP}, s{sTMP}, 114688
        v_add_u32 v{vH[mi]}, s{sTMP}, v{vL16}
        """)
    p(f"""
    v_add_u32 v{vW1}, 114688, v{vL16}
    s_mul_i32 s{sTMP}, s{sKH}, 56
    s_mul_i32 s{sTMP2}, s{sWAVE}, 14
    s_add_u32 s{sTMP}, s{sTMP}, s{sTMP2}
    s_lshl_b32 s{sTMP}, s{sTMP}, 10
    s_mul_i32 s{sHO}, s{sMB}, {4*114688}
    s_add_u32 s{sHO}, s{sHO}, s{sTMP}
    s_add_u32 s{sHO}, s{sHO}, {HF}
    s_mul_i32 s{sWO_}, s{sNP}, {2*114688}
    s_add_u32 s{sWO_}, s{sWO_}, s{sTMP}
    s_add_u32 s{sWO_}, s{sWO_}, {W2F}
    s_waitcnt lgkmcnt(0)
    """)
    stamp(p, 0)
    srd(p, sWS, 28, WS_BYTES)

    def gload(k):
        b = k % NBUF
        o = []
        if k % 4 == 0 and k:
            o += [I(f"s_add_u32 s{sHO}, s{sHO}, 4096"), I(f"s_add_u32 s{sWO_}, s{sWO_}, 4096")]
        for ni in range(2):
            o.append(I(f"buffer_load_dwordx4 {Gbuf(b,16+4*ni,4)}, v{vW[ni]}, s[{sWS}:{sWS+3}], s{sWO_} offen offset:{1024*(k%4)}"))
        for mi in range(4):
            o.append(I(f"buffer_load_dwordx4 {Gbuf(b,4*mi,4)}, v{vH[mi]}, s[{sWS}:{sWS+3}], s{sHO} offen offset:{1024*(k%4)}"))
        return o

    for k in range(NBUF):
        p.add(gload(k))
    for k in range(14):
        b = k % NBUF
        for mi in range(4):
            for ni in range(2):
                c = "0" if k == 0 else Gacc(mi, ni)
                p(f"{MF} {Gacc(mi,ni)}, {Gbuf(b,16+4*ni,4)}, {Gbuf(b,4*mi,4)}, {c}")
        if k + NBUF < 14:
            p.add(gload(k + NBUF))
    stamp(p, 1)
    srd(p, sX, 30, XB)
    XR = Gv[2]
    vB1, vB2, vB3, vRB, vXO = 2, 3, 4, 5, 6
    vBs = [None, vB1, vB2, vB3]
    p(f"""
    s_cmp_eq_u32 s{sKH}, 0
    s_cselect_b32 s{sX+2}, s{sX+2}, 0
    v_and_b32 v{vXO}, 31, v0
    v_mul_u32_u24 v{vXO}, 896, v{vXO}
    v_lshrrev_b32 v7, 5, v0
    v_lshl_add_u32 v{vXO}, v7, 3, v{vXO}
    s_lshl_b32 s{sMB}, s{sMB}, 2
    s_add_u32 s{sMB}, s{sMB}, s{sWAVE}
    s_mul_i32 s{sTMP}, s{sMB}, 28672
    s_lshl_b32 s{sTMP2}, s{sNP}, 7
    s_add_u32 s{sTMP}, s{sTMP}, s{sTMP2}
    """)
    for q in range(8):
        p(f"buffer_load_dwordx2 {vr(XR+2*q,2)}, v{vXO}, s[{sX}:{sX+3}], s{sTMP} offen offset:{16*q}")
    for u in range(1, 4):
        p(f"""
        s_xor_b32 s{sTMP}, s{sWAVE}, {u}
        s_mul_i32 s{sTMP}, s{sTMP}, 3
        s_add_u32 s{sTMP}, s{sTMP}, {u-1}
        s_lshl_b32 s{sTMP}, s{sTMP}, 13
        s_add_u32 s{sTMP}, s{sTMP}, {48*1024}
        v_add_u32 v{vBs[u]}, s{sTMP}, v{vL16}
        """)
    p(f"""
    s_mul_i32 s{sTMP}, s{sWAVE}, {3*8192}
    s_add_u32 s{sTMP}, s{sTMP}, {48*1024}
    v_add_u32 v{vRB}, s{sTMP}, v{vL16}
    """)
    for mi in range(1, 4):
        for ni in range(2):
            for q in range(4):
                a = 32 * (mi - 1) + 16 * ni + 4 * q
                p(f"ds_write_b128 v{vBs[mi]}, {ar(a,4)} offset:{4096*ni+1024*q}")
    XU = Gv[0]
    for i in range(16):
        p(f"v_lshlrev_b32 v{XU+2*i}, 16, v{XR+i}")
        p(f"v_and_b32 v{XU+2*i+1}, 0xffff0000, v{XR+i}")
    for r in range(0, 32, 2):
        p(f"v_pk_add_f32 {vr(GA0+r,2)}, {vr(GA0+r,2)}, {vr(XU+r,2)}")
    p(f"""
    s_lshl_b32 s{sTMP}, s{sKH}, 6
    s_add_u32 s{sTMP}, s{sTMP}, s{sMB}
    s_mul_i32 s{sTMP}, s{sTMP}, 14
    s_lshl_b32 s{sTMP2}, s{sNP}, 1
    s_add_u32 s{sTMP}, s{sTMP}, s{sTMP2}
    s_lshl_b32 s{sTMP}, s{sTMP}, 11
    s_add_u32 s{sTMP}, s{sTMP}, {BP}
    s_waitcnt lgkmcnt(0)
    """)
    stamp(p, 2)
    p("s_barrier")
    stamp(p, 3)
    R = 40
    for i in range(2):
        for q in range(8):
            p(f"ds_read_b128 {vr(R+32*i+4*q,4)}, v{vRB} offset:{8192*i+1024*q}")
    for r in range(0, 32, 2):
        p(f"v_pk_add_f32 {vr(GA0+r,2)}, {vr(GA0+r,2)}, {vr(R+r,2)}")
    for q in range(8):
        p(f"ds_read_b128 {vr(R+4*q,4)}, v{vRB} offset:{8192*2+1024*q}")
    for r in range(0, 32, 2):
        p(f"v_pk_add_f32 {vr(GA0+r,2)}, {vr(GA0+r,2)}, {vr(R+32+r,2)}")
    for r in range(0, 32, 2):
        p(f"v_pk_add_f32 {vr(GA0+r,2)}, {vr(GA0+r,2)}, {vr(R+r,2)}")
    for i in range(16):
        p(f"v_cvt_pk_bf16_f32 v{R+32+i}, v{GA0+2*i}, v{GA0+2*i+1}")
    for q in range(4):
        p(f"buffer_store_dwordx4 {vr(R+32+4*q,4)}, v{vL16}, s[{sWS}:{sWS+3}], s{sTMP} offen offset:{1024*q} sc1")
    stamp_out(p, 4, 1, sWS, sWAVE, 2, 3, wave_add=4)
    p("K2_END:")
    p("s_endpgm")
    return head("k2_kernel") + p.text() + KD.format(name="k2_kernel", nv=256, ns=(100 if STAMP else 40), acc=K2_ACC)


K3_LDS = 48 * 1024


def gen_k3():
    p = Prog()
    sWS, sOUT = 4, 12
    sWAVE, sMP, sNP, sTMP, sTMP2, sA0, sA1, sB0, sB1, sMT, sNT = range(16, 27)
    F = 16
    ACC = 144
    BPv = 208
    UN = 224
    vL16, vXO, vT0, vT1, vA1, vA2, vA3, vRA = 1, 2, 3, 4, 5, 6, 7, 8
    p(f"""
    s_cmp_ge_u32 s2, 224
    s_cbranch_scc1 K3_END
    s_load_dwordx2 s[30:31], s[0:1], 48
    s_load_dwordx2 s[32:33], s[0:1], 64
    v_lshrrev_b32 v1, 6, v0
    v_and_b32 v0, 63, v0
    v_readfirstlane_b32 s{sWAVE}, v1
    s_and_b32 s{sTMP}, s2, 7
    s_lshr_b32 s{sTMP2}, s2, 3
    s_lshl_b32 s{sMP}, s{sTMP}, 2
    s_and_b32 s{sTMP}, s{sTMP2}, 3
    s_add_u32 s{sMP}, s{sMP}, s{sTMP}
    s_lshr_b32 s{sNP}, s{sTMP2}, 2
    v_lshlrev_b32 v{vL16}, 4, v0
    s_lshr_b32 s{sTMP}, s{sWAVE}, 1
    s_lshl_b32 s{sMT}, s{sMP}, 1
    s_add_u32 s{sMT}, s{sMT}, s{sTMP}
    s_and_b32 s{sTMP}, s{sWAVE}, 1
    s_lshl_b32 s{sNT}, s{sNP}, 1
    s_add_u32 s{sNT}, s{sNT}, s{sTMP}
    s_lshl_b32 s{sTMP}, s{sWAVE}, 13
    s_lshl_b32 s{sA0}, s{sNT}, 15
    s_add_u32 s{sA0}, s{sA0}, s{sTMP}
    s_add_u32 s{sA0}, s{sA0}, {WOF}
    s_xor_b32 s{sA1}, s{sA0}, 0x8000
    s_lshl_b32 s{sB0}, s{sMT}, 15
    s_add_u32 s{sB0}, s{sB0}, s{sTMP}
    s_add_u32 s{sB0}, s{sB0}, {OF}
    s_xor_b32 s{sB1}, s{sB0}, 0x8000
    s_mul_i32 s{sTMP}, s{sMT}, 14
    s_add_u32 s{sTMP}, s{sTMP}, s{sNT}
    s_lshl_b32 s{sTMP}, s{sTMP}, 11
    s_add_u32 s{sTMP}, s{sTMP}, {BP}
    s_add_u32 s{sTMP2}, s{sTMP}, {64*14*2048}
    s_waitcnt lgkmcnt(0)
    """)
    stamp(p, 0)
    srd(p, sWS, 32, WS_BYTES)
    so = [sA0, sA1, sB0, sB1]
    for s in range(8):
        if s == 4:
            for r in so:
                p(f"s_add_u32 s{r}, s{r}, 4096")
        for j in range(4):
            p(f"buffer_load_dwordx4 {vr(F+16*s+4*j,4)}, v{vL16}, s[{sWS}:{sWS+3}], s{so[j]} offen offset:{1024*(s%4)}")
    for h in range(2):
        for q in range(2):
            p(f"buffer_load_dwordx4 {vr(BPv+8*h+4*q,4)}, v{vL16}, s[{sWS}:{sWS+3}], s{sTMP if h==0 else sTMP2} offen offset:{1024*q}")
    srd(p, sOUT, 30, XB)
    p(f"""
    v_and_b32 v{vT0}, 31, v0
    v_mul_u32_u24 v{vT0}, 896, v{vT0}
    v_lshrrev_b32 v{vT1}, 5, v0
    v_lshl_add_u32 v{vXO}, v{vT1}, 4, v{vT0}
    s_mul_i32 s{sTMP}, s{sMT}, 28672
    s_lshl_b32 s{sTMP2}, s{sNT}, 6
    s_add_u32 s{sTMP}, s{sTMP}, s{sTMP2}
    """)
    vAs = [None, vA1, vA2, vA3]
    for u in range(1, 4):
        p(f"""
        s_xor_b32 s{sTMP2}, s{sWAVE}, {u}
        s_mul_i32 s{sTMP2}, s{sTMP2}, 3
        s_add_u32 s{sTMP2}, s{sTMP2}, {u-1}
        s_lshl_b32 s{sTMP2}, s{sTMP2}, 12
        v_add_u32 v{vAs[u]}, s{sTMP2}, v{vL16}
        """)
    p(f"""
    s_mul_i32 s{sTMP2}, s{sWAVE}, {3*4096}
    v_add_u32 v{vRA}, s{sTMP2}, v{vL16}
    """)
    stamp(p, 1)
    for s in range(8):
        for u in (1, 2, 3, 0):
            a, b = u & 1, u >> 1
            acc = vr(ACC + 16 * u, 16)
            p(f"{MF} {acc}, {vr(F+16*s+4*a,4)}, {vr(F+16*s+8+4*b,4)}, {'0' if s == 0 else acc}")
    stamp(p, 2)
    for u in range(1, 4):
        for q in range(4):
            p(f"ds_write_b128 v{vAs[u]}, {vr(ACC+16*u+4*q,4)} offset:{1024*q}")
    for i in range(16):
        p(f"v_lshlrev_b32 v{UN+2*i}, 16, v{BPv+i}")
        p(f"v_and_b32 v{UN+2*i+1}, 0xffff0000, v{BPv+i}")
    for r in range(0, 16, 2):
        p(f"v_pk_add_f32 {vr(UN+r,2)}, {vr(UN+r,2)}, {vr(UN+16+r,2)}")
    for r in range(0, 16, 2):
        p(f"v_pk_add_f32 {vr(ACC+r,2)}, {vr(ACC+r,2)}, {vr(UN+r,2)}")
    p("s_waitcnt lgkmcnt(0)")
    p("s_barrier")
    stamp(p, 3)
    R = F
    for i in range(3):
        for q in range(4):
            p(f"ds_read_b128 {vr(R+16*i+4*q,4)}, v{vRA} offset:{4096*i+1024*q}")
    for i in range(3):
        for r in range(0, 16, 2):
            p(f"v_pk_add_f32 {vr(ACC+r,2)}, {vr(ACC+r,2)}, {vr(R+16*i+r,2)}")
    PK = BPv
    for i in range(8):
        p(f"v_cvt_pk_bf16_f32 v{PK+i}, v{ACC+2*i}, v{ACC+2*i+1}")
    for qq in range(2):
        p(f"v_permlane32_swap_b32 v{PK+4*qq}, v{PK+4*qq+2}")
        p(f"v_permlane32_swap_b32 v{PK+4*qq+1}, v{PK+4*qq+3}")
    for qq in range(2):
        p(f"buffer_store_dwordx4 {vr(PK+4*qq,4)}, v{vXO}, s[{sOUT}:{sOUT+3}], s{sTMP} offen offset:{32*qq}")
    stamp_out(p, 4, 2, sWS, sWAVE, 3, 4)
    p("K3_END:")
    p("s_endpgm")
    return head("k3_kernel") + p.text() + KD.format(name="k3_kernel", nv=256, ns=(100 if STAMP else 40), acc=256)


HEADER = f"""; Kernarg layout for this problem (72 bytes, ptrs only, base s[0:1]):
; @launch kernel=k1_kernel grid=(256,1,1) block=(768,1,1) lds={K1_LDS}
; @launch kernel=k2_kernel grid=(256,1,1) block=(512,1,1) lds={K2_LDS}
; @launch kernel=k3_kernel grid=(224,1,1) block=(256,1,1) lds={K3_LDS}
.amdgcn_target "amdgcn-amd-amdhsa--gfx950"
"""


def post(txt):
    fl = os.environ.get("STFLAG", "")
    if fl:
        out = []
        for line in txt.split("\n"):
            if "buffer_store_dwordx4" in line:
                line = line + " " + fl
            out.append(line)
        txt = "\n".join(out)
    return txt


def main():
    global STAMP
    STAMP = len(sys.argv) > 2 and sys.argv[2] == "stamp"
    txt = HEADER + gen_k1() + gen_k2() + gen_k3()
    txt = post(txt)
    out = sys.argv[1] if len(sys.argv) > 1 else f"cdna_kernels/{NAME}.s"
    open(out, "w").write(txt)
    print("wrote", out, len(txt), "bytes")


if __name__ == "__main__":
    main()
```

```python
import sys, struct, os
from asmgen import *

NAME = "parallel_sum__mha_block__dense_activation_relu__prompt"

QF = 0
KVF = 2 << 20
HF = 6 << 20
W2F = 13 << 20
WOF = 15 << 20
OF = 16 << 20
BP = 18 << 20
WS_BYTES = 26 << 20
OOB = 0x40000000

XB = 2048 * 448 * 2
WQKVB = 448 * 1344 * 2
WOB = 448 * 448 * 2
W1B = 448 * 1792 * 2
W2B = 1792 * 448 * 2

MF = "v_mfma_f32_32x32x16_bf16"


def f32bits(x):
    return struct.unpack("<I", struct.pack("<f", x))[0]


def vr(b, n):
    return f"v[{b}:{b+n-1}]"


def ar(b, n):
    return f"a[{b}:{b+n-1}]"


def srd(p, d, base, nbytes):
    p(f"""
    s_mov_b32 s{d}, s{base}
    s_and_b32 s{d+1}, s{base+1}, 0xffff
    s_mov_b32 s{d+2}, {nbytes}
    s_mov_b32 s{d+3}, 0x00020000
    """)


STAMP = False
STAMP_BASE = 32 << 20


def stamp(p, i):
    if STAMP:
        p(f"s_memrealtime s[{64+4*i}:{65+4*i}]")
        p(f"s_memtime s[{66+4*i}:{67+4*i}]")
        p("s_waitcnt lgkmcnt(0)")


def stamp_if(p, i, sreg, val):
    if STAMP:
        uid = stamp_if.n = getattr(stamp_if, "n", 0) + 1
        p(f"s_cmp_lg_u32 s{sreg}, {val}")
        p(f"s_cbranch_scc1 STI{uid}")
        stamp(p, i)
        p(f"STI{uid}:")


def stamp_out(p, n, kidx, sWS, sWAVE, vtmp=1, vtmp2=2, wave_add=0):
    if not STAMP:
        return
    p("s_waitcnt vmcnt(0) lgkmcnt(0)")
    stamp(p, n)
    p(f"v_mov_b32 v{vtmp}, 0")
    for i in range(n + 1):
        p(f"v_writelane_b32 v{vtmp}, s{64+4*i}, {i}")
        p(f"v_writelane_b32 v{vtmp}, s{66+4*i}, {16+i}")
    p(f"""
    s_getreg_b32 s60, hwreg(HW_REG_HW_ID)
    s_getreg_b32 s61, hwreg(HW_REG_XCC_ID)
    v_writelane_b32 v{vtmp}, s60, 32
    v_writelane_b32 v{vtmp}, s61, 33
    s_lshl_b32 s60, s2, 3
    s_add_u32 s60, s60, s{sWAVE}
    s_add_u32 s60, s60, {wave_add}
    s_lshl_b32 s60, s60, 8
    s_add_u32 s60, s60, {STAMP_BASE + (kidx << 20)}
    v_lshlrev_b32 v{vtmp2}, 2, v0
    s_mov_b32 s{sWS+2}, {64 << 20}
    buffer_store_dword v{vtmp}, v{vtmp2}, s[{sWS}:{sWS+3}], s60 offen
    """)


KD = """
.section .rodata,"a"
.p2align 6
KD_{name}:
.amdhsa_kernel {name}
  .amdhsa_next_free_vgpr {nv}
  .amdhsa_next_free_sgpr {ns}
  .amdhsa_accum_offset {acc}
  .amdhsa_group_segment_fixed_size 0
  .amdhsa_kernarg_size 72
  .amdhsa_user_sgpr_count 2
  .amdhsa_user_sgpr_kernarg_segment_ptr 1
  .amdhsa_system_sgpr_workgroup_id_x 1
.end_amdhsa_kernel
"""


def head(name):
    return f""".text
.globl {name}
.p2align 8
.type {name},@function
{name}:
"""


WST = 64 * 448
STG = WST + 4 * 4096
CSA = 3 * STG
STA = CSA + 1024
K1_LDS = max(STA + 1024, 128 * 896 + 32 * 896)


def gen_k1():
    p = Prog()
    sX, sW, sWS = 4, 8, 16
    sWAVE, sMT, sT0, sG, sTMP, sTMP2, sTMP3, sST, sTYPE, sDELTA, sSTRIDE, sOFF, sM0, sK, sNL, sLS, sTS, sXO, sCNT, sCUR, sT = range(20, 41)
    p(f"""
    s_cmp_ge_u32 s2, 256
    s_cbranch_scc1 K1_END
    s_load_dwordx4 s[44:47], s[0:1], 0
    s_load_dwordx2 s[48:49], s[0:1], 16
    s_load_dwordx4 s[52:55], s[0:1], 32
    s_load_dwordx2 s[56:57], s[0:1], 64
    v_lshrrev_b32 v1, 6, v0
    v_and_b32 v0, 63, v0
    v_readfirstlane_b32 s{sWAVE}, v1
    s_and_b32 s{sTMP}, s2, 7
    s_lshr_b32 s{sTMP2}, s2, 3
    s_lshr_b32 s{sMT}, s{sTMP}, 1
    s_lshl_b32 s{sMT}, s{sMT}, 2
    s_and_b32 s{sTMP3}, s{sTMP2}, 3
    s_add_u32 s{sMT}, s{sMT}, s{sTMP3}
    s_lshr_b32 s{sG}, s{sTMP2}, 2
    s_and_b32 s{sTYPE}, s{sTMP}, 1
    s_mul_i32 s{sT0}, s{sG}, 7
    s_cmp_eq_u32 s{sTYPE}, 1
    s_cselect_b32 s{sTS}, 56, 64
    s_movk_i32 s{sTMP}, 3584
    s_cselect_b32 s{sSTRIDE}, 2688, s{sTMP}
    s_waitcnt lgkmcnt(0)
    """)
    stamp(p, 0)
    srd(p, sWS, 56, WS_BYTES)
    p(f"""
    s_lshl_b32 s{sTMP}, s{sTYPE}, 3
    s_add_u32 s{sTMP}, s{sTMP}, s{sG}
    s_cmp_eq_u32 s{sTMP}, 15
    s_cbranch_scc1 K1_TRANS
    s_lshl_b32 s{sMT}, s{sMT}, 2
    v_lshrrev_b32 v2, 5, v0
    v_lshlrev_b32 v3, 3, v2
    v_bfe_u32 v4, v0, 2, 2
    v_add_u32 v3, v3, v4
    v_mul_u32_u24 v3, 448, v3
    v_bfe_u32 v4, v0, 4, 1
    v_lshl_add_u32 v3, v4, 5, v3
    v_and_b32 v4, 3, v0
    v_lshl_add_u32 v3, v4, 3, v3
    s_cmp_ge_u32 s{sWAVE}, 4
    s_cbranch_scc1 K1_LOADER
    s_add_u32 s{sMT}, s{sMT}, s{sWAVE}
    s_setprio {os.environ.get("K1CP", "1")}
    """)
    ACC = 8
    NW = 7
    WF = 120
    XF = 148
    vT = 156
    vXA = 163
    vH, vL16, vTK, vUA, vSA = 2, 4, 5, 6, 7
    U = [120, 136]
    vA, vB, vRINV, vO6, vO7, vVW, vVR, vMA, vOA, T = 152, 154, 156, 157, 158, 159, 160, 161, 162, 163
    for j in range(7):
        p(f"s_mul_i32 s{sTMP}, s{sTS}, {j}")
        p(f"v_add_u32 v{vT+j}, s{sTMP}, v3")
    p(f"""
    v_and_b32 v{vTK}, 31, v0
    v_bfe_u32 v1, v0, 1, 3
    v_xor_b32 v1, v{vH}, v1
    s_lshl_b32 s{sTMP}, s{sWAVE}, 12
    s_add_u32 s{sTMP}, s{sTMP}, {WST}
    v_lshl_add_u32 v3, v{vTK}, 7, s{sTMP}
    v_lshlrev_b32 v{vL16}, 4, v0
    """)
    for sp in range(4):
        p(f"v_xor_b32 v{vXA+sp}, {2*sp}, v1")
        p(f"v_lshl_add_u32 v{vXA+sp}, v{vXA+sp}, 4, v3")
    for i in range(112):
        p(f"v_mov_b32 v{ACC+i}, 0")
    p(f"""
    s_lshl_b32 s{sTMP}, s{sWAVE}, 8
    s_add_u32 s{sTMP}, s{sTMP}, {STA}
    v_lshl_add_u32 v{vSA}, v{vTK}, 3, s{sTMP}
    s_mov_b32 s{sCNT}, 7
    s_mov_b32 s{sCUR}, 0
    v_lshlrev_b32 v{vUA}, 4, v{vH}
    v_add_u32 v{vUA}, {CSA}, v{vUA}
    v_cmp_gt_u32 s[60:61], 32, v0
    s_mul_i32 s{sST}, s{sMT}, 114688
    s_lshl_b32 s{sTMP}, s{sT0}, 11
    s_add_u32 s{sST}, s{sST}, s{sTMP}
    s_add_u32 s{sST}, s{sST}, {HF}
    """)
    stamp(p, 1)
    p("s_barrier")
    stamp(p, 2)
    AH = 6

    def rdw(n):
        s, j = divmod(n % 28, 7)
        b = WF + 4 * (n % NW)
        o = [I(f"ds_read_b64_tr_b16 {vr(b,2)}, v{vT+j} offset:{16*448*s}"),
             I(f"ds_read_b64_tr_b16 {vr(b+2,2)}, v{vT+j} offset:{16*448*s+4*448}")]
        if s == 3:
            o.append(I(f"v_add_u32 v{vT+j}, s{sDELTA}, v{vT+j}"))
        return o

    def rdx(s):
        s %= 4
        return [I(f"ds_read_b128 {vr(XF+4*(s&1),4)}, v{vXA+s}"),
                I(f"v_add_u32 v{vXA+s}, s{sDELTA}, v{vXA+s}")]

    def delta():
        return [I(f"s_add_u32 s{sCUR}, s{sCUR}, 1"),
                I(f"s_cmp_eq_u32 s{sCUR}, 3"),
                I(f"s_cselect_b32 s{sCUR}, 0, s{sCUR}"),
                I(f"s_mov_b32 s{sTMP}, {STG}"),
                I(f"s_cselect_b32 s{sDELTA}, {(-2*STG) & 0xffffffff:#x}, s{sTMP}")]

    p.add(delta())
    p.add(rdx(0))
    for n in range(AH):
        p.add(rdw(n))
    body = [I(".p2align 6"), I("K1_LOOP:")]
    for n in range(28):
        s, j = divmod(n, 7)
        acc = vr(ACC + 16 * j, 16)
        body.append(I(f"{MF} {acc}, {vr(WF+4*(n%NW),4)}, {vr(XF+4*(s&1),4)}, {acc}"))
        m = n + AH
        if m < 28:
            body += rdw(m)
        if n == 22:
            body += delta()
        if n == 23:
            body += [I("s_waitcnt lgkmcnt(0)"), I("s_barrier")] + rdx(0) + rdw(28)
        if n >= 24:
            k = {24: [29], 25: [30, 31], 26: [32], 27: [33]}[n]
            for m in k:
                body += rdw(m)
        if j == 0 and s < 3:
            body += rdx(s + 1)
        if n == 26:
            body += [I(f"s_sub_u32 s{sCNT}, s{sCNT}, 1"), I(f"s_cmp_lg_u32 s{sCNT}, 0")]
    body += [I("s_cbranch_scc1 K1_LOOP")]
    p.loop(body)
    stamp(p, 3)

    def rdu(j):
        return [I(f"ds_read_b128 {vr(U[j&1]+4*q,4)}, v{vUA} offset:{128*j+32*q}") for q in range(4)]

    p(f"""
    s_nop 1
    ds_read_b64 {vr(vB,2)}, v{vSA}
    """)
    p.add(rdu(0))
    p(f"""
    v_mov_b32 v{vRINV}, v{vB+1}
    v_mov_b32 v{vA}, v{vB+1}
    s_cmp_eq_u32 s{sTYPE}, 1
    s_cbranch_scc1 K1_EQ
    """)
    p.flush()
    st_e = p.tr.copy()

    def common(j):
        u = U[j & 1]
        acc = ACC + 16 * j
        o = rdu(j + 1) if j < 6 else []
        for i in range(8):
            o.append(I(f"v_pk_fma_f32 {vr(u+2*i,2)}, {vr(u+2*i,2)}, {vr(vB,2)}, {vr(acc+2*i,2)} op_sel_hi:[1,0,1]"))
        for i in range(8):
            o.append(I(f"v_pk_mul_f32 {vr(u+2*i,2)}, {vr(u+2*i,2)}, {vr(vA,2)} op_sel_hi:[1,0]"))
        pk = ACC + 16 * j
        for i in range(8):
            o.append(I(f"v_cvt_pk_bf16_f32 v{pk+i}, v{u+2*i}, v{u+2*i+1}"))
        return o, pk

    def store(pk, off=0):
        return [I(f"buffer_store_dwordx4 {vr(pk,4)}, v{vL16}, s[{sWS}:{sWS+3}], s{sST} offen offset:{off} sc1"),
                I(f"buffer_store_dwordx4 {vr(pk+4,4)}, v{vL16}, s[{sWS}:{sWS+3}], s{sST} offen offset:{off+1024} sc1")]

    for j in range(7):
        o, pk = common(j)
        p.add(o)
        for i in range(8):
            p(f"v_pk_max_i16 v{pk+i}, v{pk+i}, 0")
        p.add(store(pk, 2048 * (j & 1)))
        if j & 1:
            p(f"s_add_u32 s{sST}, s{sST}, 4096")
    stamp_out(p, 4, 0, sWS, sWAVE, 2, 3)
    p("s_endpgm")
    p.flush()
    p.tr = st_e
    c = (28 ** -0.5) * 1.4426950408889634
    p(f"""
    K1_EQ:
    s_lshl_b32 s{sTMP}, s{sWAVE}, 11
    v_lshl_add_u32 v{vVW}, v{vH}, 3, s{sTMP}
    v_lshl_add_u32 v{vVW}, v{vTK}, 6, v{vVW}
    v_lshl_add_u32 v{vVR}, v{vH}, 8, s{sTMP}
    v_bfe_u32 v{T}, v0, 2, 2
    v_lshl_add_u32 v{vVR}, v{T}, 6, v{vVR}
    v_bfe_u32 v{T}, v0, 4, 1
    v_lshl_add_u32 v{vVR}, v{T}, 5, v{vVR}
    v_and_b32 v{T}, 3, v0
    v_lshl_add_u32 v{vVR}, v{T}, 3, v{vVR}
    v_cmp_gt_u32 vcc, 28, v{vTK}
    v_cndmask_b32 v{vMA}, 0, -1, vcc
    v_mov_b32 v{T}, 0x3f803f80
    v_cmp_eq_u32 vcc, 28, v{vTK}
    v_cndmask_b32 v{vOA}, 0, v{T}, vcc
    s_mov_b32 s{sT}, s{sT0}
    """)
    for j in range(7):
        if j == 6:
            p(f"""
            s_cmp_eq_u32 s{sT}, 48
            s_cbranch_scc1 K1_EX
            """)
        p(f"""
        s_lshr_b32 s{sTYPE}, s{sT}, 4
        s_and_b32 s{sTMP}, s{sT}, 15
        s_lshl_b32 s{sTMP}, s{sTMP}, 6
        s_add_u32 s{sTMP}, s{sTMP}, s{sMT}
        s_lshl_b32 s{sST}, s{sTMP}, 11
        s_lshl_b32 s{sTMP}, s{sTMP}, 12
        s_add_u32 s{sTMP}, s{sTMP}, {KVF}
        s_cmp_eq_u32 s{sTYPE}, 0
        s_cselect_b32 s{sST}, s{sST}, s{sTMP}
        s_cselect_b32 s{sTMP}, {f32bits(c):#x}, 1.0
        v_mul_f32 v{vA}, s{sTMP}, v{vRINV}
        s_cselect_b32 s{sTMP}, 0, 0x3f803f80
        s_cselect_b32 s{sTMP2}, 0, 0x3f80
        v_mov_b32 v{vO6}, s{sTMP}
        v_mov_b32 v{vO7}, s{sTMP2}
        s_add_u32 s{sT}, s{sT}, 1
        """)
        o, pk = common(j)
        p.add(o)
        p(f"""
        s_cmp_eq_u32 s{sTYPE}, 2
        s_cbranch_scc1 K1_EV{j}
        v_cndmask_b32 v{pk+6}, v{vO6}, v{pk+6}, s[60:61]
        v_cndmask_b32 v{pk+7}, v{vO7}, v{pk+7}, s[60:61]
        """)
        p.add(store(pk))
        p(f"s_branch K1_EN{j}")
        p.flush()
        keep = p.tr.copy()
        p(f"K1_EV{j}:")
        for q in range(4):
            p(f"ds_write_b64 v{vVW}, {vr(pk+2*q,2)} offset:{16*q}")
        pv = pk + 8
        for i in range(2):
            p(f"ds_read_b64_tr_b16 {vr(pv+4*i,2)}, v{vVR} offset:{1024*i}")
            p(f"ds_read_b64_tr_b16 {vr(pv+4*i+2,2)}, v{vVR} offset:{1024*i+512}")
        for i in range(8):
            p(f"v_and_or_b32 v{pv+i}, v{pv+i}, v{vMA}, v{vOA}")
        p.add(store(pv, 2048))
        p(f"K1_EN{j}:")
        p.flush()
        p.tr = keep
    p("K1_EX:")
    stamp_out(p, 4, 0, sWS, sWAVE, 2, 3)
    p("s_endpgm")
    p.flush()

    p.tr = Tracker()
    vO, vX = 8, 16
    p(f"""
    K1_LOADER:
    s_cmp_ge_u32 s{sWAVE}, 8
    s_cbranch_scc1 K1_STATS
    """)
    srd(p, sX, 44, XB)
    p(f"""
    s_sub_u32 s{sWAVE}, s{sWAVE}, 4
    s_add_u32 s{sXO}, s{sMT}, s{sWAVE}
    s_mul_i32 s{sXO}, s{sXO}, 28672
    v_lshrrev_b32 v4, 3, v0
    v_mul_u32_u24 v4, 896, v4
    v_lshrrev_b32 v5, 4, v0
    v_and_b32 v6, 7, v0
    v_xor_b32 v6, v5, v6
    v_lshl_add_u32 v{vX}, v6, 4, v4
    v_xor_b32 v6, 4, v6
    v_lshl_add_u32 v{vX+1}, v6, 4, v4
    s_cmp_eq_u32 s{sTYPE}, 1
    s_cselect_b32 s{sW}, s46, s52
    s_cselect_b32 s{sW+1}, s47, s53
    s_mov_b32 s{sTMP}, {W1B}
    s_cselect_b32 s{sW+2}, {WQKVB}, s{sTMP}
    s_and_b32 s{sW+1}, s{sW+1}, 0xffff
    s_mov_b32 s{sW+3}, 0x00020000
    s_mul_i32 s{sOFF}, s{sT0}, s{sTS}
    s_lshl_b32 s{sTMP}, s{sWAVE}, 4
    s_mul_i32 s{sTMP}, s{sTMP}, s{sSTRIDE}
    s_add_u32 s{sOFF}, s{sOFF}, s{sTMP}
    """)
    for d in range(7):
        p(f"""
        v_add_u32 v4, {64*d}, v0
        v_mul_u32_u24 v5, 2341, v4
        v_lshrrev_b32 v5, 16, v5
        v_mul_u32_u24 v6, 28, v5
        v_sub_u32 v4, v4, v6
        v_lshlrev_b32 v4, 4, v4
        v_mad_u32_u24 v{vO+d}, v5, s{sSTRIDE}, v4
        """)
    p(f"""
    s_mov_b32 s{sLS}, 0
    s_mov_b32 s{sK}, -2
    s_lshl_b32 s{sTMP3}, s{sSTRIDE}, 6
    K1_LT:
    s_lshl_b32 s{sM0}, s{sWAVE}, 12
    s_add_u32 s{sM0}, s{sM0}, s{sLS}
    """)
    for g in range(4):
        p(f"s_add_u32 m0, s{sM0}, {WST+1024*g}")
        p(f"s_add_u32 s{sTMP}, s{sXO}, {8*896*g}")
        p(f"buffer_load_dwordx4 v{vX+(g&1)}, s[{sX}:{sX+3}], s{sTMP} offen lds")
    p(f"""
    s_mul_i32 s{sM0}, s{sWAVE}, 7168
    s_add_u32 s{sM0}, s{sM0}, s{sLS}
    """)
    for d in range(7):
        p(f"s_add_u32 m0, s{sM0}, {1024*d}")
        p(f"buffer_load_dwordx4 v{vO+d}, s[{sW}:{sW+3}], s{sOFF} offen lds")
    p(f"""
    s_add_u32 s{sOFF}, s{sOFF}, s{sTMP3}
    s_add_u32 s{sXO}, s{sXO}, 128
    s_add_u32 s{sLS}, s{sLS}, {STG}
    s_cmp_eq_u32 s{sLS}, {3*STG}
    s_cselect_b32 s{sLS}, 0, s{sLS}
    s_add_u32 s{sK}, s{sK}, 1
    s_cmp_lt_i32 s{sK}, 0
    s_cbranch_scc1 K1_LT
    """)
    if os.environ.get("K1PF", "0") != "0":
        p(f"""
        s_cmp_lg_u32 s{sK}, 0
        s_cbranch_scc1 K1_LP
        s_lshr_b32 s{sTMP}, s{sMT}, 2
        s_and_b32 s{sTMP}, s{sTMP}, 3
        s_lshl_b32 s{sTMP}, s{sTMP}, 6
        s_add_u32 s{sTMP}, s{sTMP}, 64
        s_mul_i32 s{sTMP}, s{sTMP}, s{sSTRIDE}
        s_add_u32 s{sTMP}, s{sTMP}, s{sOFF}
        v_lshrrev_b32 v4, 3, v0
        v_and_b32 v5, 7, v0
        v_lshlrev_b32 v5, 6, v5
        v_mad_u32_u24 v6, v4, s{sSTRIDE}, v5
        s_lshl_b32 s{sTMP2}, s{sSTRIDE}, 3
        s_add_u32 s{sTMP2}, s{sTMP2}, s{sTMP}
        s_mov_b32 exec_lo, 0xd5d5d5d5
        s_mov_b32 exec_hi, 0xd5d5d5d5
        buffer_load_dword v20, v6, s[{sW}:{sW+3}], s{sTMP} offen
        buffer_load_dword v21, v6, s[{sW}:{sW+3}], s{sTMP2} offen
        s_mov_b64 exec, -1
        s_lshl_b32 s{sTMP}, s{sG}, 4
        s_lshl_b32 s{sTMP2}, s{sWAVE}, 2
        s_add_u32 s{sTMP}, s{sTMP}, s{sTMP2}
        s_lshl_b32 s{sTMP2}, s{sMT}, 5
        s_add_u32 s{sTMP}, s{sTMP}, s{sTMP2}
        s_mul_i32 s{sTMP}, s{sTMP}, 896
        v_lshrrev_b32 v4, 4, v0
        v_mul_u32_u24 v4, 896, v4
        v_and_b32 v5, 15, v0
        v_lshl_add_u32 v6, v5, 7, v4
        s_mov_b32 exec_lo, 0x00780078
        s_mov_b32 exec_hi, 0x00780078
        buffer_load_dword v22, v6, s[{sX}:{sX+3}], s{sTMP} offen
        s_mov_b64 exec, -1
        K1_LP:
        s_cmp_lt_u32 s{sK}, 2
        s_cbranch_scc1 K1_LQ
        """)
    stamp_if(p, 2, sK, 4)
    p("s_waitcnt vmcnt(11)")
    p("K1_LQ:")
    p("s_waitcnt vmcnt(14)")
    stamp_if(p, 3, sK, 4)
    p("s_barrier")
    stamp_if(p, 4, sK, 4)
    stamp_if(p, 1, sK, 3)
    p(f"""
    s_cmp_lt_u32 s{sK}, 5
    s_cbranch_scc1 K1_LT
    s_waitcnt vmcnt(0)
    s_barrier
    """)
    if os.environ.get("CPF", "1") != "0":
        p(f"""
        s_getpc_b64 s[4:5]
        K1_PC:
        s_add_u32 s4, s4, k2_kernel-K1_PC
        s_addc_u32 s5, s5, 0
        s_getpc_b64 s[8:9]
        s_add_u32 s8, s8, KD_k2_kernel@rel32@lo+4
        s_addc_u32 s9, s9, KD_k2_kernel@rel32@hi+12
        s_lshl_b32 s{sTMP}, s{sWAVE}, 12
        v_lshl_add_u32 v4, v0, 6, s{sTMP}
        v_min_u32 v4, K3_END-k2_kernel, v4
        v_and_b32 v5, 1, v0
        v_lshlrev_b32 v5, 6, v5
        global_load_dword v6, v4, s[4:5]
        global_load_dword v7, v5, s[8:9]
        """)
    stamp_out(p, 5, 0, sWS, sWAVE, 5, 6, wave_add=4)
    p("s_endpgm")
    p.flush()

    p.tr = Tracker()
    vTL, vS, F, E2, vXR, ONE, CS, XD = 18, 20, 32, 64, 72, 76, 80, 88
    T = E2
    p(f"""
    K1_STATS:
    s_setprio {os.environ.get("K1SP", "3")}
    s_sub_u32 s{sWAVE}, s{sWAVE}, 8
    s_mul_i32 s{sTMP}, s{sWAVE}, s{sTS}
    v_add_u32 v{vTL}, s{sTMP}, v3
    s_lshl_b32 s{sTMP}, s{sTS}, 2
    v_add_u32 v{vTL+1}, s{sTMP}, v{vTL}
    s_mov_b32 s{sCUR}, 0
    s_mov_b32 s{sCNT}, 7
    """)
    for i in range(4):
        p(f"v_mov_b32 v{vS+i}, 0")
    for i in range(8):
        p(f"v_mov_b32 v{CS+i}, 0")
    p(f"""
    v_and_b32 v4, 31, v0
    v_bfe_u32 v5, v0, 1, 3
    v_xor_b32 v5, v2, v5
    s_lshl_b32 s{sTMP}, s{sWAVE}, 12
    s_add_u32 s{sTMP}, s{sTMP}, {WST}
    v_lshl_add_u32 v6, v4, 7, s{sTMP}
    """)
    for sp in range(4):
        p(f"v_xor_b32 v{vXR+sp}, {2*sp}, v5")
        p(f"v_lshl_add_u32 v{vXR+sp}, v{vXR+sp}, 4, v6")
    p(f"""
    v_and_b32 v4, 15, v0
    v_bfe_u32 v5, v0, 4, 1
    v_mov_b32 v6, 0x3f803f80
    v_cmp_eq_u32 vcc, v4, v5
    v_cndmask_b32 v{ONE}, 0, v6, vcc
    v_mov_b32 v{ONE+1}, v{ONE}
    v_mov_b32 v{ONE+2}, v{ONE}
    v_mov_b32 v{ONE+3}, v{ONE}
    """)
    body = ["K1_SL:", "s_barrier",
            f"v_add_u32 v4, s{sCUR}, v{vTL}", f"v_add_u32 v5, s{sCUR}, v{vTL+1}"]
    for sp in range(4):
        body += [f"v_add_u32 v6, s{sCUR}, v{vXR+sp}", f"ds_read_b128 {vr(XD+4*sp,4)}, v6"]
    rds = []
    for s in range(4):
        for t in range(2):
            b = F + 16 * t + 4 * s
            rds.append([f"ds_read_b64_tr_b16 {vr(b,2)}, v{4+t} offset:{16*448*s}",
                        f"ds_read_b64_tr_b16 {vr(b+2,2)}, v{4+t} offset:{16*448*s+4*448}"])
    body += rds[0] + rds[1] + rds[2] + rds[3]
    for d in range(16):
        e = E2 + 2 * (d % 4)
        body += [f"v_lshlrev_b32 v{e}, 16, v{XD+d}",
                 f"v_and_b32 v{e+1}, 0xffff0000, v{XD+d}",
                 f"v_add_f32 v{vS}, v{vS}, v{e}",
                 f"v_add_f32 v{vS+1}, v{vS+1}, v{e+1}",
                 f"v_fmac_f32 v{vS+2}, v{e}, v{e}",
                 f"v_fmac_f32 v{vS+3}, v{e+1}, v{e+1}"]
        if d < 4:
            body += rds[4 + d]
        if d & 1:
            n = d >> 1
            t = n & 1
            body.append(f"v_mfma_f32_16x16x32_bf16 {vr(CS+4*t,4)}, {vr(ONE,4)}, {vr(F+16*t+4*(n>>1),4)}, {vr(CS+4*t,4)}")
    body += [f"s_add_u32 s{sCUR}, s{sCUR}, {STG}",
             f"s_cmp_eq_u32 s{sCUR}, {3*STG}",
             f"s_cselect_b32 s{sCUR}, 0, s{sCUR}",
             f"s_sub_u32 s{sCNT}, s{sCNT}, 1",
             f"s_cmp_lg_u32 s{sCNT}, 0",
             "s_cbranch_scc1 K1_SL"]
    p.loop(body)
    p(f"""
    v_add_f32 v{T}, v{vS}, v{vS+1}
    v_add_f32 v{T+4}, v{vS+2}, v{vS+3}
    v_mov_b32 v{T+1}, v{T}
    v_mov_b32 v{T+5}, v{T+4}
    s_lshl_b32 s{sTMP}, s{sWAVE}, 7
    s_add_u32 s{sTMP}, s{sTMP}, {CSA}
    v_permlane32_swap_b32 v{T}, v{T+1}
    v_permlane32_swap_b32 v{T+4}, v{T+5}
    v_add_f32 v{T}, v{T}, v{T+1}
    v_add_f32 v{T+4}, v{T+4}, v{T+5}
    v_mul_f32 v{T}, {f32bits(1.0/448.0):#x}, v{T}
    v_mul_f32 v{T+4}, {f32bits(1.0/448.0):#x}, v{T+4}
    v_fma_f32 v{T+4}, -v{T}, v{T}, v{T+4}
    v_cvt_pk_bf16_f32 v{T+1}, v{T}, v{T}
    v_max_f32 v{T+4}, 0, v{T+4}
    v_and_b32 v{T+1}, 0xffff0000, v{T+1}
    v_cvt_pk_bf16_f32 v{T+4}, v{T+4}, v{T+4}
    v_sub_f32 v{T+2}, 0, v{T+1}
    v_and_b32 v{T+4}, 0xffff0000, v{T+4}
    v_add_f32 v{T+4}, {f32bits(1e-5):#x}, v{T+4}
    v_cvt_pk_bf16_f32 v{T+4}, v{T+4}, v{T+4}
    v_and_b32 v{T+4}, 0xffff0000, v{T+4}
    v_sqrt_f32 v{T+4}, v{T+4}
    v_lshl_add_u32 v4, v0, 2, s{sTMP}
    v_cvt_pk_bf16_f32 v{T+4}, v{T+4}, v{T+4}
    v_and_b32 v{T+4}, 0xffff0000, v{T+4}
    v_rcp_f32 v{T+3}, v{T+4}
    s_lshl_b32 s{sTMP}, s{sWAVE}, 8
    s_add_u32 s{sTMP}, s{sTMP}, {STA}
    v_and_b32 v5, 31, v0
    v_lshl_add_u32 v5, v5, 3, s{sTMP}
    ds_write_b64 v5, {vr(T+2,2)}
    s_mov_b64 exec, 0xffff
    ds_write_b32 v4, v{CS}
    ds_write_b32 v4, v{CS+1} offset:64
    ds_write_b32 v4, v{CS+4} offset:512
    ds_write_b32 v4, v{CS+5} offset:576
    s_mov_b64 exec, -1
    s_waitcnt lgkmcnt(0)
    s_barrier
    s_endpgm
    """)
    p.flush()

    p.tr = Tracker()
    sW2, sWO, sC = 4, 8, sMT
    WOA = 128 * 896
    p(f"""
    K1_TRANS:
    s_cmp_ge_u32 s{sWAVE}, 8
    s_cbranch_scc1 K1_END
    """)
    srd(p, sW2, 54, W2B)
    srd(p, sWO, 48, WOB)
    vL, vB2, vTW, vTO = 1, 2, 3, 4
    p(f"""
    v_lshlrev_b32 v{vL}, 4, v0
    s_mul_i32 s{sOFF}, s{sC}, {28*896}
    s_lshl_b32 s{sM0}, s{sWAVE}, 12
    s_add_u32 s{sOFF}, s{sOFF}, s{sM0}
    s_add_u32 m0, s{sM0}, {WOA}
    s_cmp_eq_u32 s{sWAVE}, 7
    s_cbranch_scc1 K1_TR1
    """)
    for d in range(4):
        p(f"buffer_load_dwordx4 v{vL}, s[{sWO}:{sWO+3}], s{sOFF} offen offset:{1024*d} lds")
    p(f"""
    K1_TR1:
    s_mul_i32 s{sOFF}, s{sC}, {128*896}
    s_mul_i32 s{sM0}, s{sWAVE}, {14*1024}
    s_add_u32 s{sOFF}, s{sOFF}, s{sM0}
    """)
    for d in range(14):
        if d % 4 == 0:
            p(f"s_add_u32 m0, s{sM0}, {1024*d}")
            p(f"s_add_u32 s{sTMP}, s{sOFF}, {1024*d}")
        p(f"buffer_load_dwordx4 v{vL}, s[{sW2}:{sW2+3}], s{sTMP} offen offset:{1024*(d%4)} lds")
    p(f"""
    v_lshrrev_b32 v{vB2}, 5, v0
    v_lshlrev_b32 v{vTW}, 2, v{vB2}
    v_bfe_u32 v{vB2}, v0, 2, 2
    v_add_u32 v{vTW}, v{vTW}, v{vB2}
    v_mul_u32_u24 v{vTW}, 896, v{vTW}
    v_bfe_u32 v{vB2}, v0, 4, 1
    v_lshl_add_u32 v{vTW}, v{vB2}, 5, v{vTW}
    v_and_b32 v{vB2}, 3, v0
    v_lshl_add_u32 v{vTW}, v{vB2}, 3, v{vTW}
    s_lshl_b32 s{sTMP}, s{sWAVE}, 7
    s_add_u32 s{sTMP}, s{sTMP}, {WOA}
    v_add_u32 v{vTO}, s{sTMP}, v{vTW}
    s_mul_i32 s{sTMP}, s{sWAVE}, {16*896}
    v_add_u32 v{vTW}, s{sTMP}, v{vTW}
    v_cmp_gt_u32 vcc, 32, v0
    s_waitcnt vmcnt(0)
    s_barrier
    s_cmp_eq_u32 s{sWAVE}, 7
    s_cbranch_scc1 K1_TR2
    """)
    G = 16
    for t in range(2):
        for i in range(2):
            b = G + 8 * t + 4 * i
            p(f"ds_read_b64_tr_b16 {vr(b,2)}, v{vTO} offset:{64*t+16*896*i}")
            p(f"ds_read_b64_tr_b16 {vr(b+2,2)}, v{vTO} offset:{64*t+16*896*i+8*896}")
    p(f"""
    s_lshl_b32 s{sOFF}, s{sWAVE}, 16
    s_lshl_b32 s{sTMP}, s{sC}, 11
    s_add_u32 s{sOFF}, s{sOFF}, s{sTMP}
    s_add_u32 s{sOFF}, s{sOFF}, {WOF}
    s_add_u32 s{sTMP}, s{sOFF}, 32768
    """)
    for t in range(2):
        p(f"v_cndmask_b32 v{G+8*t+6}, 0, v{G+8*t+6}, vcc")
        p(f"v_cndmask_b32 v{G+8*t+7}, 0, v{G+8*t+7}, vcc")
    for t in range(2):
        for i in range(2):
            p(f"buffer_store_dwordx4 {vr(G+8*t+4*i,4)}, v{vL}, s[{sWS}:{sWS+3}], s{sOFF if t == 0 else sTMP} offen offset:{1024*i} sc1")
    p.flush()
    p.tr = Tracker()
    p(f"""
    K1_TR2:
    s_cmp_ge_u32 s{sC}, 14
    s_cbranch_scc1 K1_TR3
    s_lshl_b32 s{sOFF}, s{sC}, 3
    s_add_u32 s{sOFF}, s{sOFF}, s{sWAVE}
    s_lshl_b32 s{sOFF}, s{sOFF}, 10
    s_add_u32 s{sOFF}, s{sOFF}, {W2F}
    """)
    F = 32
    for t in range(14):
        p(f"ds_read_b64_tr_b16 {vr(F+4*t,2)}, v{vTW} offset:{64*t}")
        p(f"ds_read_b64_tr_b16 {vr(F+4*t+2,2)}, v{vTW} offset:{64*t+8*896}")
    for t in range(14):
        p(f"buffer_store_dwordx4 {vr(F+4*t,4)}, v{vL}, s[{sWS}:{sWS+3}], s{sOFF} offen sc1")
        if t < 13:
            p(f"s_add_u32 s{sOFF}, s{sOFF}, 114688")
    p("K1_TR3:")
    stamp_out(p, 1, 0, sWS, sWAVE, 5, 6)
    p("K1_END:")
    p("s_endpgm")
    return head("k1_kernel") + p.text() + KD.format(name="k1_kernel", nv=168, ns=(100 if STAMP else 64), acc=168)


K2_LDS = 48 * 1024 + 96 * 1024
K2_ACC = 112
REF_OFF = 90.0
L_LIMIT = 2.0 ** 50


def gen_k2():
    p = Prog()
    sWS, sG, sX = 4, 8, 32
    sWAVE, sHEAD, sQB, sTMP, sTMP2, sKV, sKV2, sHO, sWO_, sCNT, sMB, sNP, sKH, sTMP3 = range(12, 26)
    vL16 = 1
    p(f"""
    s_cmp_ge_u32 s2, 256
    s_cbranch_scc1 K2_END
    s_load_dwordx2 s[28:29], s[0:1], 64
    s_load_dwordx2 s[30:31], s[0:1], 0
    v_lshrrev_b32 v1, 6, v0
    v_and_b32 v0, 63, v0
    v_readfirstlane_b32 s{sWAVE}, v1
    s_and_b32 s{sTMP}, s2, 7
    s_lshr_b32 s{sTMP2}, s2, 3
    v_lshlrev_b32 v{vL16}, 4, v0
    s_cmp_ge_u32 s{sWAVE}, 4
    s_cbranch_scc1 K2_GEMM
    s_setprio 2
    s_lshl_b32 s{sHEAD}, s{sTMP}, 1
    s_and_b32 s{sTMP}, s{sTMP2}, 1
    s_add_u32 s{sHEAD}, s{sHEAD}, s{sTMP}
    s_lshr_b32 s{sQB}, s{sTMP2}, 1
    s_lshl_b32 s{sTMP}, s{sHEAD}, 6
    s_lshl_b32 s{sTMP2}, s{sQB}, 2
    s_add_u32 s{sTMP}, s{sTMP}, s{sTMP2}
    s_lshl_b32 s{sKV}, s{sHEAD}, 18
    s_add_u32 s{sKV}, s{sKV}, {KVF}
    s_mov_b32 s{sTMP3}, s{sKV}
    s_waitcnt lgkmcnt(0)
    """)
    stamp(p, 0)
    srd(p, sWS, 28, WS_BYTES)
    S = [8, 24]
    P = [40, 48]
    O0 = 56
    T = 72
    Q = 0
    OA = 32
    KV = [80, 96]

    def Oacc(u):
        return vr(O0, 16) if u == 0 else ar(OA + 16 * (u - 1), 16)

    KR = T + 24
    p(f"""
    buffer_load_dwordx4 {vr(KR,4)}, v{vL16}, s[{sWS}:{sWS+3}], s{sKV} offen
    buffer_load_dwordx4 {vr(KR+4,4)}, v{vL16}, s[{sWS}:{sWS+3}], s{sKV} offen offset:1024
    """)
    for u in range(4):
        p(f"""
        s_xor_b32 s{sTMP2}, s{sWAVE}, {u}
        s_add_u32 s{sTMP2}, s{sTMP2}, s{sTMP}
        s_lshl_b32 s{sTMP2}, s{sTMP2}, 11
        buffer_load_dwordx4 {ar(Q+8*u,4)}, v{vL16}, s[{sWS}:{sWS+3}], s{sTMP2} offen
        buffer_load_dwordx4 {ar(Q+8*u+4,4)}, v{vL16}, s[{sWS}:{sWS+3}], s{sTMP2} offen offset:1024
        """)
    p(f"""
    s_lshl_b32 s{sTMP}, s{sWAVE}, 16
    s_add_u32 s{sKV}, s{sKV}, s{sTMP}
    s_add_u32 s{sKV2}, s{sKV}, 4096
    """)
    for j in range(4):
        p(f"buffer_load_dwordx4 {ar(KV[0]+4*j,4)}, v{vL16}, s[{sWS}:{sWS+3}], s{sKV} offen offset:{1024*j}")
    for j in range(2):
        p(f"buffer_load_dwordx4 {ar(KV[1]+4*j,4)}, v{vL16}, s[{sWS}:{sWS+3}], s{sKV2} offen offset:{1024*j}")
    for i in range(48):
        p(f"v_accvgpr_write_b32 a{OA+i}, 0")
    for i in range(8):
        p(f"v_accvgpr_write_b32 a{KV[1]+8+i}, 0")
    for i in range(16):
        p(f"v_mov_b32 v{O0+i}, 0")
    for i in range(8):
        p(f"v_mov_b32 v{P[1]+i}, 0")
    vA1, vA2, vA3, vRA = 2, 3, 4, 5
    vAs = [None, vA1, vA2, vA3]
    for u in range(1, 4):
        p(f"""
        s_xor_b32 s{sTMP}, s{sWAVE}, {u}
        s_mul_i32 s{sTMP}, s{sTMP}, 3
        s_add_u32 s{sTMP}, s{sTMP}, {u-1}
        s_lshl_b32 s{sTMP}, s{sTMP}, 12
        v_add_u32 v{vAs[u]}, s{sTMP}, v{vL16}
        """)
    p(f"""
    s_mul_i32 s{sTMP}, s{sWAVE}, {3*4096}
    v_add_u32 v{vRA}, s{sTMP}, v{vL16}
    s_mov_b32 s{sCNT}, 8
    """)
    stamp(p, 1)

    def rowmax(m, d, first=True):
        if first:
            p(f"v_max3_f32 v{m}, v{d}, v{d+1}, v{d+2}")
            for r in range(3, 15, 2):
                p(f"v_max3_f32 v{m}, v{m}, v{d+r}, v{d+r+1}")
            p(f"v_max_f32 v{m}, v{m}, v{d+15}")
        else:
            for r in range(0, 16, 2):
                p(f"v_max3_f32 v{m}, v{m}, v{d+r}, v{d+r+1}")

    def put_ref(units, add):
        for u in units:
            m, m2 = T + u, T + 4 + u
            p(f"v_mov_b32 v{m2}, v{m}")
        for u in units:
            m, m2 = T + u, T + 4 + u
            p(f"v_permlane32_swap_b32 v{m}, v{m2}")
        for u in units:
            m, m2 = T + u, T + 4 + u
            a, b, c = T + 8 + 4 * u, T + 9 + 4 * u, T + 10 + 4 * u
            p(f"""
            v_max_f32 v{m}, v{m}, v{m2}
            v_sub_f32 v{a}, {f32bits(-add):#x}, v{m}
            v_and_b32 v{b}, 0xffff0000, v{a}
            v_sub_f32 v{a}, v{a}, v{b}
            v_and_b32 v{c}, 0xffff0000, v{a}
            v_sub_f32 v{a}, v{a}, v{c}
            v_lshrrev_b32 v{b}, 16, v{b}
            v_or_b32 v{b}, v{b}, v{c}
            v_lshrrev_b32 v{a}, 16, v{a}
            """)
        p("s_mov_b32 exec_lo, 0")
        for u in units:
            a, b = T + 8 + 4 * u, T + 9 + 4 * u
            p(f"v_accvgpr_write_b32 a{Q+8*u+6}, v{b}")
            p(f"v_accvgpr_write_b32 a{Q+8*u+7}, v{a}")
        p("s_mov_b32 exec_lo, -1")

    for u in range(4):
        d = S[u % 2]
        p(f"{MF} {vr(d,16)}, {vr(KR,4)}, {ar(Q+8*u,4)}, 0")
        p(f"{MF} {vr(d,16)}, {vr(KR+4,4)}, {ar(Q+8*u+4,4)}, {vr(d,16)}")
        if u % 2 == 1:
            for uu in (u - 1, u):
                rowmax(T + uu, S[uu % 2])
    put_ref(range(4), REF_OFF)

    def qk(n_u, kb, sbuf):
        k = KV[kb]
        return [I(f"{MF} {vr(S[sbuf],16)}, {ar(k,4)}, {ar(Q+8*n_u,4)}, 0"),
                I(f"{MF} {vr(S[sbuf],16)}, {ar(k+4,4)}, {ar(Q+8*n_u+4,4)}, {vr(S[sbuf],16)}")]

    def pv(u, vb, pbuf):
        v = KV[vb] + 8
        return [I(f"{MF} {Oacc(u)}, {ar(v,4)}, {vr(P[pbuf],4)}, {Oacc(u)}"),
                I(f"{MF} {Oacc(u)}, {ar(v+4,4)}, {vr(P[pbuf]+4,4)}, {Oacc(u)}")]

    def softmax(sb):
        s, pp = S[sb], P[sb]
        v = []
        for i in range(8):
            v.append(I(f"v_exp_f32 v{s+2*i}, v{s+2*i}"))
            v.append(I(f"v_exp_f32 v{s+2*i+1}, v{s+2*i+1}"))
            if i >= 1:
                v.append(I(f"v_cvt_pk_bf16_f32 v{pp+i-1}, v{s+2*i-2}, v{s+2*i-1}"))
        v.append(I(f"v_cvt_pk_bf16_f32 v{pp+7}, v{s+14}, v{s+15}"))
        return v

    def cost(i):
        return 8 if i.is_trans() else 4

    def slot(tb, u):
        nu = (u + 1) & 3
        pu = (u - 1) & 3
        mf = qk(nu, tb if u < 3 else 1 - tb, (u + 1) & 1) + pv(pu, tb if u > 0 else 1 - tb, (u - 1) & 1)
        ld = []
        if u == 0:
            so = sKV2 if tb == 0 else sKV
            ld += [I(f"buffer_load_dwordx4 {ar(KV[1-tb]+8+4*j,4)}, v{vL16}, s[{sWS}:{sWS+3}], s{so} offen offset:{2048+1024*j}") for j in range(2)]
        if u == 2:
            so = sKV if tb == 0 else sKV2
            ld += [I(f"buffer_load_dwordx4 {ar(KV[tb]+4*j,4)}, v{vL16}, s[{sWS}:{sWS+3}], s{so} offen offset:{1024*j}") for j in range(2)]
        va = softmax(u & 1)
        total = sum(cost(i) for i in va)
        out = []
        k = 0
        acc = 0
        for j, m in enumerate(mf):
            out.append(m)
            tgt = total * (j + 1) / len(mf)
            while k < len(va) and acc + cost(va[k]) / 2 <= tgt:
                out.append(va[k]); acc += cost(va[k]); k += 1
        out += va[k:]
        idx = max(i for i, x in enumerate(out) if x.kind == "mfma")
        if ld:
            out = out[:idx + 1] + interleave(out[idx + 1:], ld)
        return out

    stamp(p, 2)
    p.add(qk(0, 0, 0))
    body = [I(".p2align 6"), I("K2_LOOP:")]
    for tb in range(2):
        for u in range(4):
            if u == 1:
                so = sKV if tb == 0 else sKV2
                body.append(I(f"s_add_u32 s{so}, s{so}, 8192"))
            if tb == 1 and u == 3:
                body.append(I(f"s_sub_u32 s{sCNT}, s{sCNT}, 1"))
                body.append(I(f"s_cmp_lg_u32 s{sCNT}, 0"))
            body += slot(tb, u)
    body += [I("s_cbranch_scc1 K2_LOOP")]
    p.loop(body)
    stamp(p, 3)
    p.add(pv(3, 1, 1))
    for u in range(1, 4):
        for q in range(4):
            p(f"ds_write_b128 v{vAs[u]}, {ar(OA+16*(u-1)+4*q,4)} offset:{1024*q}")
    p(f"""
    s_lshl_b32 s{sTMP}, s{sQB}, 2
    s_add_u32 s{sTMP}, s{sTMP}, s{sWAVE}
    s_lshl_b32 s{sTMP}, s{sTMP}, 15
    s_lshl_b32 s{sTMP2}, s{sHEAD}, 11
    s_add_u32 s{sTMP}, s{sTMP}, s{sTMP2}
    s_add_u32 s{sTMP}, s{sTMP}, {OF}
    s_waitcnt lgkmcnt(0)
    """)
    stamp(p, 4)
    p("s_barrier")
    stamp(p, 5)
    R = 8
    for i in range(3):
        for q in range(4):
            p(f"ds_read_b128 {vr(R+16*i+4*q,4)}, v{vRA} offset:{4096*i+1024*q}")
    for i in range(3):
        for r in range(0, 16, 2):
            p(f"v_pk_add_f32 {vr(O0+r,2)}, {vr(O0+r,2)}, {vr(R+16*i+r,2)}")
    p("K2_NORM:")
    l, l2, ri, mx = T + 32, T + 33, T + 34, T + 36
    p(f"""
    v_mov_b32 v{l}, v{O0+12}
    v_mov_b32 v{l2}, v{O0+12}
    v_permlane32_swap_b32 v{l}, v{l2}
    v_rcp_f32 v{ri}, v{l2}
    """)
    for r in range(0, 16, 2):
        p(f"v_pk_mul_f32 {vr(O0+r,2)}, {vr(O0+r,2)}, {vr(ri,2)} op_sel_hi:[1,0]")
    for i in range(8):
        p(f"v_cvt_pk_bf16_f32 v{R+i}, v{O0+2*i}, v{O0+2*i+1}")
    p(f"""
    buffer_store_dwordx4 {vr(R,4)}, v{vL16}, s[{sWS}:{sWS+3}], s{sTMP} offen sc1
    buffer_store_dwordx4 {vr(R+4,4)}, v{vL16}, s[{sWS}:{sWS+3}], s{sTMP} offen offset:1024 sc1
    """)
    for r in range(0, 16, 2):
        p(f"v_pk_add_f32 {vr(O0+r,2)}, {vr(O0+r,2)}, {vr(O0+r,2)} neg_lo:[0,1] neg_hi:[0,1]")
    for r in (8, 4, 2):
        for k in range(0, r, 2):
            p(f"v_pk_add_f32 {vr(O0+k,2)}, {vr(O0+k,2)}, {vr(O0+r+k,2)}")
    p(f"""
    v_add_f32 v{mx}, v{O0}, v{O0+1}
    v_add_f32 v{mx}, v{mx}, v{l2}
    v_cmp_nlt_f32 vcc, v{mx}, v{mx+1}
    """.replace(f"v_cmp_nlt_f32 vcc, v{mx}, v{mx+1}", f"v_cmp_ngt_f32 vcc, {f32bits(L_LIMIT):#x}, v{mx}"))
    p(f"""
    s_cmp_eq_u32 s{sCNT}, 0
    s_cselect_b64 vcc, vcc, 0
    s_cbranch_vccnz K2_SLOW
    """)
    stamp_out(p, 6, 1, sWS, sWAVE, 2, 3)
    p("s_endpgm")
    p.flush()
    p.tr = Tracker()
    p(f"""
    K2_SLOW:
    s_waitcnt vmcnt(0) lgkmcnt(0)
    s_mov_b32 exec_lo, 0
    v_accvgpr_write_b32 a{Q+6}, 0
    v_accvgpr_write_b32 a{Q+7}, 0
    s_mov_b32 exec_lo, -1
    v_mov_b32 v{T}, 0xff800000
    s_mov_b32 s{sKV}, s{sTMP3}
    s_mov_b32 s{sCNT}, 64
    """)
    body = [I("K2_S1:")]
    body += [I(f"buffer_load_dwordx4 {ar(KV[0]+4*j,4)}, v{vL16}, s[{sWS}:{sWS+3}], s{sKV} offen offset:{1024*j}") for j in range(2)]
    body += qk(0, 0, 0)
    body += [I(f"v_max3_f32 v{T}, v{T}, v{S[0]+r}, v{S[0]+r+1}") for r in range(0, 16, 2)]
    body += [I(f"s_add_u32 s{sKV}, s{sKV}, 4096"), I(f"s_sub_u32 s{sCNT}, s{sCNT}, 1"), I(f"s_cmp_lg_u32 s{sCNT}, 0"), I("s_cbranch_scc1 K2_S1")]
    p.loop(body)
    put_ref([0], 0.0)
    for i in range(16):
        p(f"v_mov_b32 v{O0+i}, 0")
    p(f"""
    s_mov_b32 s{sKV}, s{sTMP3}
    s_mov_b32 s{sCNT}, 64
    """)
    body = [I("K2_S2:")]
    body += [I(f"buffer_load_dwordx4 {ar(KV[0]+4*j,4)}, v{vL16}, s[{sWS}:{sWS+3}], s{sKV} offen offset:{1024*j}") for j in range(4)]
    body += qk(0, 0, 0) + softmax(0) + pv(0, 0, 0)
    body += [I(f"s_add_u32 s{sKV}, s{sKV}, 4096"), I(f"s_sub_u32 s{sCNT}, s{sCNT}, 1"), I(f"s_cmp_lg_u32 s{sCNT}, 0"), I("s_cbranch_scc1 K2_S2")]
    p.loop(body)
    p(f"""
    s_mov_b32 s{sCNT}, 1
    s_nop 7
    s_nop 7
    s_branch K2_NORM
    """)
    p.flush()

    p.tr = Tracker()
    GA0 = 8
    Gv = [40, 64, 88]
    Ga = [96, 120]
    NBUF = 4

    def Gbuf(b, off, n):
        return vr(Gv[b] + off, n) if b < 3 else ar(Ga[b - 3] + off, n)

    def Gacc(mi, ni):
        return vr(GA0 + 16 * ni, 16) if mi == 0 else ar(32 * (mi - 1) + 16 * ni, 16)

    vH = [2, 3, 4, 5]
    vW1 = 6
    vW = [vL16, vW1]
    p(f"""
    K2_GEMM:
    s_sub_u32 s{sWAVE}, s{sWAVE}, 4
    s_and_b32 s{sKH}, s{sTMP}, 1
    s_lshr_b32 s{sMB}, s{sTMP}, 1
    s_lshl_b32 s{sMB}, s{sMB}, 2
    s_and_b32 s{sTMP}, s{sTMP2}, 3
    s_add_u32 s{sMB}, s{sMB}, s{sTMP}
    s_lshr_b32 s{sNP}, s{sTMP2}, 2
    s_cmp_ge_u32 s{sNP}, 7
    s_cbranch_scc1 K2_END
    """)
    for mi in range(4):
        p(f"""
        s_xor_b32 s{sTMP}, s{sWAVE}, {mi}
        s_mul_i32 s{sTMP}, s{sTMP}, 114688
        v_add_u32 v{vH[mi]}, s{sTMP}, v{vL16}
        """)
    p(f"""
    v_add_u32 v{vW1}, 114688, v{vL16}
    s_mul_i32 s{sTMP}, s{sKH}, 56
    s_mul_i32 s{sTMP2}, s{sWAVE}, 14
    s_add_u32 s{sTMP}, s{sTMP}, s{sTMP2}
    s_lshl_b32 s{sTMP}, s{sTMP}, 10
    s_mul_i32 s{sHO}, s{sMB}, {4*114688}
    s_add_u32 s{sHO}, s{sHO}, s{sTMP}
    s_add_u32 s{sHO}, s{sHO}, {HF}
    s_mul_i32 s{sWO_}, s{sNP}, {2*114688}
    s_add_u32 s{sWO_}, s{sWO_}, s{sTMP}
    s_add_u32 s{sWO_}, s{sWO_}, {W2F}
    s_waitcnt lgkmcnt(0)
    """)
    stamp(p, 0)
    srd(p, sWS, 28, WS_BYTES)

    def gload(k):
        b = k % NBUF
        o = []
        if k % 4 == 0 and k:
            o += [I(f"s_add_u32 s{sHO}, s{sHO}, 4096"), I(f"s_add_u32 s{sWO_}, s{sWO_}, 4096")]
        for ni in range(2):
            o.append(I(f"buffer_load_dwordx4 {Gbuf(b,16+4*ni,4)}, v{vW[ni]}, s[{sWS}:{sWS+3}], s{sWO_} offen offset:{1024*(k%4)}"))
        for mi in range(4):
            o.append(I(f"buffer_load_dwordx4 {Gbuf(b,4*mi,4)}, v{vH[mi]}, s[{sWS}:{sWS+3}], s{sHO} offen offset:{1024*(k%4)}"))
        return o

    for k in range(NBUF):
        p.add(gload(k))
    for k in range(14):
        b = k % NBUF
        for mi in range(4):
            for ni in range(2):
                c = "0" if k == 0 else Gacc(mi, ni)
                p(f"{MF} {Gacc(mi,ni)}, {Gbuf(b,16+4*ni,4)}, {Gbuf(b,4*mi,4)}, {c}")
        if k + NBUF < 14:
            p.add(gload(k + NBUF))
    stamp(p, 1)
    srd(p, sX, 30, XB)
    XR = Gv[2]
    vB1, vB2, vB3, vRB, vXO = 2, 3, 4, 5, 6
    vBs = [None, vB1, vB2, vB3]
    p(f"""
    s_cmp_eq_u32 s{sKH}, 0
    s_cselect_b32 s{sX+2}, s{sX+2}, 0
    v_and_b32 v{vXO}, 31, v0
    v_mul_u32_u24 v{vXO}, 896, v{vXO}
    v_lshrrev_b32 v7, 5, v0
    v_lshl_add_u32 v{vXO}, v7, 3, v{vXO}
    s_lshl_b32 s{sMB}, s{sMB}, 2
    s_add_u32 s{sMB}, s{sMB}, s{sWAVE}
    s_mul_i32 s{sTMP}, s{sMB}, 28672
    s_lshl_b32 s{sTMP2}, s{sNP}, 7
    s_add_u32 s{sTMP}, s{sTMP}, s{sTMP2}
    """)
    for q in range(8):
        p(f"buffer_load_dwordx2 {vr(XR+2*q,2)}, v{vXO}, s[{sX}:{sX+3}], s{sTMP} offen offset:{16*q}")
    for u in range(1, 4):
        p(f"""
        s_xor_b32 s{sTMP}, s{sWAVE}, {u}
        s_mul_i32 s{sTMP}, s{sTMP}, 3
        s_add_u32 s{sTMP}, s{sTMP}, {u-1}
        s_lshl_b32 s{sTMP}, s{sTMP}, 13
        s_add_u32 s{sTMP}, s{sTMP}, {48*1024}
        v_add_u32 v{vBs[u]}, s{sTMP}, v{vL16}
        """)
    p(f"""
    s_mul_i32 s{sTMP}, s{sWAVE}, {3*8192}
    s_add_u32 s{sTMP}, s{sTMP}, {48*1024}
    v_add_u32 v{vRB}, s{sTMP}, v{vL16}
    """)
    for mi in range(1, 4):
        for ni in range(2):
            for q in range(4):
                a = 32 * (mi - 1) + 16 * ni + 4 * q
                p(f"ds_write_b128 v{vBs[mi]}, {ar(a,4)} offset:{4096*ni+1024*q}")
    XU = Gv[0]
    for i in range(16):
        p(f"v_lshlrev_b32 v{XU+2*i}, 16, v{XR+i}")
        p(f"v_and_b32 v{XU+2*i+1}, 0xffff0000, v{XR+i}")
    for r in range(0, 32, 2):
        p(f"v_pk_add_f32 {vr(GA0+r,2)}, {vr(GA0+r,2)}, {vr(XU+r,2)}")
    p(f"""
    s_lshl_b32 s{sTMP}, s{sKH}, 6
    s_add_u32 s{sTMP}, s{sTMP}, s{sMB}
    s_mul_i32 s{sTMP}, s{sTMP}, 14
    s_lshl_b32 s{sTMP2}, s{sNP}, 1
    s_add_u32 s{sTMP}, s{sTMP}, s{sTMP2}
    s_lshl_b32 s{sTMP}, s{sTMP}, 11
    s_add_u32 s{sTMP}, s{sTMP}, {BP}
    s_waitcnt lgkmcnt(0)
    """)
    stamp(p, 2)
    p("s_barrier")
    stamp(p, 3)
    R = 40
    for i in range(2):
        for q in range(8):
            p(f"ds_read_b128 {vr(R+32*i+4*q,4)}, v{vRB} offset:{8192*i+1024*q}")
    for r in range(0, 32, 2):
        p(f"v_pk_add_f32 {vr(GA0+r,2)}, {vr(GA0+r,2)}, {vr(R+r,2)}")
    for q in range(8):
        p(f"ds_read_b128 {vr(R+4*q,4)}, v{vRB} offset:{8192*2+1024*q}")
    for r in range(0, 32, 2):
        p(f"v_pk_add_f32 {vr(GA0+r,2)}, {vr(GA0+r,2)}, {vr(R+32+r,2)}")
    for r in range(0, 32, 2):
        p(f"v_pk_add_f32 {vr(GA0+r,2)}, {vr(GA0+r,2)}, {vr(R+r,2)}")
    for i in range(16):
        p(f"v_cvt_pk_bf16_f32 v{R+32+i}, v{GA0+2*i}, v{GA0+2*i+1}")
    for q in range(4):
        p(f"buffer_store_dwordx4 {vr(R+32+4*q,4)}, v{vL16}, s[{sWS}:{sWS+3}], s{sTMP} offen offset:{1024*q} sc1")
    stamp_out(p, 4, 1, sWS, sWAVE, 2, 3, wave_add=4)
    p("K2_END:")
    p("s_endpgm")
    return head("k2_kernel") + p.text() + KD.format(name="k2_kernel", nv=256, ns=(100 if STAMP else 40), acc=K2_ACC)


K3_LDS = 48 * 1024


def gen_k3():
    p = Prog()
    sWS, sOUT = 4, 12
    sWAVE, sMP, sNP, sTMP, sTMP2, sA0, sA1, sB0, sB1, sMT, sNT = range(16, 27)
    F = 16
    ACC = 144
    BPv = 208
    UN = 224
    vL16, vXO, vT0, vT1, vA1, vA2, vA3, vRA = 1, 2, 3, 4, 5, 6, 7, 8
    p(f"""
    s_cmp_ge_u32 s2, 224
    s_cbranch_scc1 K3_END
    s_load_dwordx2 s[30:31], s[0:1], 48
    s_load_dwordx2 s[32:33], s[0:1], 64
    v_lshrrev_b32 v1, 6, v0
    v_and_b32 v0, 63, v0
    v_readfirstlane_b32 s{sWAVE}, v1
    s_and_b32 s{sTMP}, s2, 7
    s_lshr_b32 s{sTMP2}, s2, 3
    s_lshl_b32 s{sMP}, s{sTMP}, 2
    s_and_b32 s{sTMP}, s{sTMP2}, 3
    s_add_u32 s{sMP}, s{sMP}, s{sTMP}
    s_lshr_b32 s{sNP}, s{sTMP2}, 2
    v_lshlrev_b32 v{vL16}, 4, v0
    s_lshr_b32 s{sTMP}, s{sWAVE}, 1
    s_lshl_b32 s{sMT}, s{sMP}, 1
    s_add_u32 s{sMT}, s{sMT}, s{sTMP}
    s_and_b32 s{sTMP}, s{sWAVE}, 1
    s_lshl_b32 s{sNT}, s{sNP}, 1
    s_add_u32 s{sNT}, s{sNT}, s{sTMP}
    s_lshl_b32 s{sTMP}, s{sWAVE}, 13
    s_lshl_b32 s{sA0}, s{sNT}, 15
    s_add_u32 s{sA0}, s{sA0}, s{sTMP}
    s_add_u32 s{sA0}, s{sA0}, {WOF}
    s_xor_b32 s{sA1}, s{sA0}, 0x8000
    s_lshl_b32 s{sB0}, s{sMT}, 15
    s_add_u32 s{sB0}, s{sB0}, s{sTMP}
    s_add_u32 s{sB0}, s{sB0}, {OF}
    s_xor_b32 s{sB1}, s{sB0}, 0x8000
    s_mul_i32 s{sTMP}, s{sMT}, 14
    s_add_u32 s{sTMP}, s{sTMP}, s{sNT}
    s_lshl_b32 s{sTMP}, s{sTMP}, 11
    s_add_u32 s{sTMP}, s{sTMP}, {BP}
    s_add_u32 s{sTMP2}, s{sTMP}, {64*14*2048}
    s_waitcnt lgkmcnt(0)
    """)
    stamp(p, 0)
    srd(p, sWS, 32, WS_BYTES)
    so = [sA0, sA1, sB0, sB1]
    for s in range(8):
        if s == 4:
            for r in so:
                p(f"s_add_u32 s{r}, s{r}, 4096")
        for j in range(4):
            p(f"buffer_load_dwordx4 {vr(F+16*s+4*j,4)}, v{vL16}, s[{sWS}:{sWS+3}], s{so[j]} offen offset:{1024*(s%4)}")
    for h in range(2):
        for q in range(2):
            p(f"buffer_load_dwordx4 {vr(BPv+8*h+4*q,4)}, v{vL16}, s[{sWS}:{sWS+3}], s{sTMP if h==0 else sTMP2} offen offset:{1024*q}")
    srd(p, sOUT, 30, XB)
    p(f"""
    v_and_b32 v{vT0}, 31, v0
    v_mul_u32_u24 v{vT0}, 896, v{vT0}
    v_lshrrev_b32 v{vT1}, 5, v0
    v_lshl_add_u32 v{vXO}, v{vT1}, 4, v{vT0}
    s_mul_i32 s{sTMP}, s{sMT}, 28672
    s_lshl_b32 s{sTMP2}, s{sNT}, 6
    s_add_u32 s{sTMP}, s{sTMP}, s{sTMP2}
    """)
    vAs = [None, vA1, vA2, vA3]
    for u in range(1, 4):
        p(f"""
        s_xor_b32 s{sTMP2}, s{sWAVE}, {u}
        s_mul_i32 s{sTMP2}, s{sTMP2}, 3
        s_add_u32 s{sTMP2}, s{sTMP2}, {u-1}
        s_lshl_b32 s{sTMP2}, s{sTMP2}, 12
        v_add_u32 v{vAs[u]}, s{sTMP2}, v{vL16}
        """)
    p(f"""
    s_mul_i32 s{sTMP2}, s{sWAVE}, {3*4096}
    v_add_u32 v{vRA}, s{sTMP2}, v{vL16}
    """)
    stamp(p, 1)
    for s in range(8):
        for u in (1, 2, 3, 0):
            a, b = u & 1, u >> 1
            acc = vr(ACC + 16 * u, 16)
            p(f"{MF} {acc}, {vr(F+16*s+4*a,4)}, {vr(F+16*s+8+4*b,4)}, {'0' if s == 0 else acc}")
    stamp(p, 2)
    for u in range(1, 4):
        for q in range(4):
            p(f"ds_write_b128 v{vAs[u]}, {vr(ACC+16*u+4*q,4)} offset:{1024*q}")
    for i in range(16):
        p(f"v_lshlrev_b32 v{UN+2*i}, 16, v{BPv+i}")
        p(f"v_and_b32 v{UN+2*i+1}, 0xffff0000, v{BPv+i}")
    for r in range(0, 16, 2):
        p(f"v_pk_add_f32 {vr(UN+r,2)}, {vr(UN+r,2)}, {vr(UN+16+r,2)}")
    for r in range(0, 16, 2):
        p(f"v_pk_add_f32 {vr(ACC+r,2)}, {vr(ACC+r,2)}, {vr(UN+r,2)}")
    p("s_waitcnt lgkmcnt(0)")
    p("s_barrier")
    stamp(p, 3)
    R = F
    for i in range(3):
        for q in range(4):
            p(f"ds_read_b128 {vr(R+16*i+4*q,4)}, v{vRA} offset:{4096*i+1024*q}")
    for i in range(3):
        for r in range(0, 16, 2):
            p(f"v_pk_add_f32 {vr(ACC+r,2)}, {vr(ACC+r,2)}, {vr(R+16*i+r,2)}")
    PK = BPv
    for i in range(8):
        p(f"v_cvt_pk_bf16_f32 v{PK+i}, v{ACC+2*i}, v{ACC+2*i+1}")
    for qq in range(2):
        p(f"v_permlane32_swap_b32 v{PK+4*qq}, v{PK+4*qq+2}")
        p(f"v_permlane32_swap_b32 v{PK+4*qq+1}, v{PK+4*qq+3}")
    for qq in range(2):
        p(f"buffer_store_dwordx4 {vr(PK+4*qq,4)}, v{vXO}, s[{sOUT}:{sOUT+3}], s{sTMP} offen offset:{32*qq}")
    stamp_out(p, 4, 2, sWS, sWAVE, 3, 4)
    p("K3_END:")
    p("s_endpgm")
    return head("k3_kernel") + p.text() + KD.format(name="k3_kernel", nv=256, ns=(100 if STAMP else 40), acc=256)


HEADER = f"""; Kernarg layout for this problem (72 bytes, ptrs only, base s[0:1]):
; @launch kernel=k1_kernel grid=(256,1,1) block=(768,1,1) lds={K1_LDS}
; @launch kernel=k2_kernel grid=(256,1,1) block=(512,1,1) lds={K2_LDS}
; @launch kernel=k3_kernel grid=(224,1,1) block=(256,1,1) lds={K3_LDS}
.amdgcn_target "amdgcn-amd-amdhsa--gfx950"
"""


def post(txt):
    fl = os.environ.get("STFLAG", "")
    if fl:
        out = []
        for line in txt.split("\n"):
            if "buffer_store_dwordx4" in line:
                line = line + " " + fl
            out.append(line)
        txt = "\n".join(out)
    return txt


def main():
    global STAMP
    STAMP = len(sys.argv) > 2 and sys.argv[2] == "stamp"
    txt = HEADER + gen_k1() + gen_k2() + gen_k3()
    txt = post(txt)
    out = sys.argv[1] if len(sys.argv) > 1 else f"cdna_kernels/{NAME}.s"
    open(out, "w").write(txt)
    print("wrote", out, len(txt), "bytes")


if __name__ == "__main__":
    main()
```

```python
import sys, struct, os
from asmgen import *

NAME = "parallel_sum__mha_block__dense_activation_relu__prompt"

QF = 0
KVF = 2 << 20
HF = 6 << 20
W2F = 13 << 20
WOF = 15 << 20
OF = 16 << 20
BP = 18 << 20
WS_BYTES = 26 << 20
OOB = 0x40000000

XB = 2048 * 448 * 2
WQKVB = 448 * 1344 * 2
WOB = 448 * 448 * 2
W1B = 448 * 1792 * 2
W2B = 1792 * 448 * 2

MF = "v_mfma_f32_32x32x16_bf16"


def f32bits(x):
    return struct.unpack("<I", struct.pack("<f", x))[0]


def vr(b, n):
    return f"v[{b}:{b+n-1}]"


def ar(b, n):
    return f"a[{b}:{b+n-1}]"


def srd(p, d, base, nbytes):
    p(f"""
    s_mov_b32 s{d}, s{base}
    s_and_b32 s{d+1}, s{base+1}, 0xffff
    s_mov_b32 s{d+2}, {nbytes}
    s_mov_b32 s{d+3}, 0x00020000
    """)


STAMP = False
STAMP_BASE = 32 << 20


DBG = False


def dbg_mark(p, kidx, slot, vt=1):
    if not DBG:
        return
    p(f"""
    s_load_dwordx2 s[64:65], s[0:1], 56
    s_memrealtime s[66:67]
    s_waitcnt vmcnt(0) lgkmcnt(0)
    s_sub_u32 s64, s64, {512*kidx}
    s_subb_u32 s65, s65, 0
    s_mov_b64 s[68:69], exec
    s_mov_b64 exec, 1
    v_mov_b32 v{vt}, 0
    v_mov_b32 v{vt+1}, s66
    global_atomic_umax v{vt}, v{vt+1}, s[64:65] offset:{4*slot}
    v_not_b32 v{vt+1}, v{vt+1}
    global_atomic_umax v{vt}, v{vt+1}, s[64:65] offset:{4*slot+32}
    s_mov_b64 exec, s[68:69]
    """)


def stamp(p, i):
    if DBG and i == 0:
        dbg_mark(p, stamp.k, 2 * stamp.k, 100)
    if STAMP:
        p(f"s_memrealtime s[{64+4*i}:{65+4*i}]")
        p(f"s_memtime s[{66+4*i}:{67+4*i}]")
        p("s_waitcnt lgkmcnt(0)")


def stamp_if(p, i, sreg, val):
    if STAMP:
        uid = stamp_if.n = getattr(stamp_if, "n", 0) + 1
        p(f"s_cmp_lg_u32 s{sreg}, {val}")
        p(f"s_cbranch_scc1 STI{uid}")
        stamp(p, i)
        p(f"STI{uid}:")


def stamp_out(p, n, kidx, sWS, sWAVE, vtmp=1, vtmp2=2, wave_add=0):
    dbg_mark(p, kidx, 2 * kidx + 1, 100)
    if not STAMP:
        return
    p("s_waitcnt vmcnt(0) lgkmcnt(0)")
    stamp(p, n)
    p(f"v_mov_b32 v{vtmp}, 0")
    for i in range(n + 1):
        p(f"v_writelane_b32 v{vtmp}, s{64+4*i}, {i}")
        p(f"v_writelane_b32 v{vtmp}, s{66+4*i}, {16+i}")
    p(f"""
    s_getreg_b32 s60, hwreg(HW_REG_HW_ID)
    s_getreg_b32 s61, hwreg(HW_REG_XCC_ID)
    v_writelane_b32 v{vtmp}, s60, 32
    v_writelane_b32 v{vtmp}, s61, 33
    s_lshl_b32 s60, s2, 3
    s_add_u32 s60, s60, s{sWAVE}
    s_add_u32 s60, s60, {wave_add}
    s_lshl_b32 s60, s60, 8
    s_add_u32 s60, s60, {STAMP_BASE + (kidx << 20)}
    v_lshlrev_b32 v{vtmp2}, 2, v0
    s_mov_b32 s{sWS+2}, {64 << 20}
    buffer_store_dword v{vtmp}, v{vtmp2}, s[{sWS}:{sWS+3}], s60 offen
    """)


KD = """
.section .rodata,"a"
.p2align 6
KD_{name}:
.amdhsa_kernel {name}
  .amdhsa_next_free_vgpr {nv}
  .amdhsa_next_free_sgpr {ns}
  .amdhsa_accum_offset {acc}
  .amdhsa_group_segment_fixed_size 0
  .amdhsa_kernarg_size 72
  .amdhsa_user_sgpr_count 2
  .amdhsa_user_sgpr_kernarg_segment_ptr 1
  .amdhsa_system_sgpr_workgroup_id_x 1
.end_amdhsa_kernel
"""


def head(name):
    return f""".text
.globl {name}
.p2align 8
.type {name},@function
{name}:
"""


WST = 64 * 448
STG = WST + 4 * 4096
CSA = 3 * STG
STA = CSA + 1024
K1_LDS = max(STA + 1024, 128 * 896 + 32 * 896)


def gen_k1():
    p = Prog()
    stamp.k = 0
    sX, sW, sWS = 4, 8, 16
    sWAVE, sMT, sT0, sG, sTMP, sTMP2, sTMP3, sST, sTYPE, sDELTA, sSTRIDE, sOFF, sM0, sK, sNL, sLS, sTS, sXO, sCNT, sCUR, sT = range(20, 41)
    p(f"""
    s_cmp_ge_u32 s2, 256
    s_cbranch_scc1 K1_END
    s_load_dwordx4 s[44:47], s[0:1], 0
    s_load_dwordx2 s[48:49], s[0:1], 16
    s_load_dwordx4 s[52:55], s[0:1], 32
    s_load_dwordx2 s[56:57], s[0:1], 64
    v_lshrrev_b32 v1, 6, v0
    v_and_b32 v0, 63, v0
    v_readfirstlane_b32 s{sWAVE}, v1
    s_and_b32 s{sTMP}, s2, 7
    s_lshr_b32 s{sTMP2}, s2, 3
    s_lshr_b32 s{sMT}, s{sTMP}, 1
    s_lshl_b32 s{sMT}, s{sMT}, 2
    s_and_b32 s{sTMP3}, s{sTMP2}, 3
    s_add_u32 s{sMT}, s{sMT}, s{sTMP3}
    s_lshr_b32 s{sG}, s{sTMP2}, 2
    s_and_b32 s{sTYPE}, s{sTMP}, 1
    s_mul_i32 s{sT0}, s{sG}, 7
    s_cmp_eq_u32 s{sTYPE}, 1
    s_cselect_b32 s{sTS}, 56, 64
    s_movk_i32 s{sTMP}, 3584
    s_cselect_b32 s{sSTRIDE}, 2688, s{sTMP}
    s_waitcnt lgkmcnt(0)
    """)
    stamp(p, 0)
    srd(p, sWS, 56, WS_BYTES)
    p(f"""
    s_lshl_b32 s{sTMP}, s{sTYPE}, 3
    s_add_u32 s{sTMP}, s{sTMP}, s{sG}
    s_cmp_eq_u32 s{sTMP}, 15
    s_cbranch_scc1 K1_TRANS
    s_lshl_b32 s{sMT}, s{sMT}, 2
    v_lshrrev_b32 v2, 5, v0
    v_lshlrev_b32 v3, 3, v2
    v_bfe_u32 v4, v0, 2, 2
    v_add_u32 v3, v3, v4
    v_mul_u32_u24 v3, 448, v3
    v_bfe_u32 v4, v0, 4, 1
    v_lshl_add_u32 v3, v4, 5, v3
    v_and_b32 v4, 3, v0
    v_lshl_add_u32 v3, v4, 3, v3
    s_cmp_ge_u32 s{sWAVE}, 4
    s_cbranch_scc1 K1_LOADER
    s_add_u32 s{sMT}, s{sMT}, s{sWAVE}
    s_setprio {os.environ.get("K1CP", "1")}
    """)
    ACC = 8
    NW = 7
    WF = 120
    XF = 148
    vT = 156
    vXA = 163
    vH, vL16, vTK, vUA, vSA = 2, 4, 5, 6, 7
    U = [120, 136]
    vA, vB, vRINV, vO6, vO7, vVW, vVR, vMA, vOA, T = 152, 154, 156, 157, 158, 159, 160, 161, 162, 163
    for j in range(7):
        p(f"s_mul_i32 s{sTMP}, s{sTS}, {j}")
        p(f"v_add_u32 v{vT+j}, s{sTMP}, v3")
    p(f"""
    v_and_b32 v{vTK}, 31, v0
    v_bfe_u32 v1, v0, 1, 3
    v_xor_b32 v1, v{vH}, v1
    s_lshl_b32 s{sTMP}, s{sWAVE}, 12
    s_add_u32 s{sTMP}, s{sTMP}, {WST}
    v_lshl_add_u32 v3, v{vTK}, 7, s{sTMP}
    v_lshlrev_b32 v{vL16}, 4, v0
    """)
    for sp in range(4):
        p(f"v_xor_b32 v{vXA+sp}, {2*sp}, v1")
        p(f"v_lshl_add_u32 v{vXA+sp}, v{vXA+sp}, 4, v3")
    for i in range(112):
        p(f"v_mov_b32 v{ACC+i}, 0")
    p(f"""
    s_lshl_b32 s{sTMP}, s{sWAVE}, 8
    s_add_u32 s{sTMP}, s{sTMP}, {STA}
    v_lshl_add_u32 v{vSA}, v{vTK}, 3, s{sTMP}
    s_mov_b32 s{sCNT}, 7
    s_mov_b32 s{sCUR}, 0
    v_lshlrev_b32 v{vUA}, 4, v{vH}
    v_add_u32 v{vUA}, {CSA}, v{vUA}
    v_cmp_gt_u32 s[60:61], 32, v0
    s_mul_i32 s{sST}, s{sMT}, 114688
    s_lshl_b32 s{sTMP}, s{sT0}, 11
    s_add_u32 s{sST}, s{sST}, s{sTMP}
    s_add_u32 s{sST}, s{sST}, {HF}
    """)
    stamp(p, 1)
    p("s_barrier")
    stamp(p, 2)
    AH = 6

    def rdw(n):
        s, j = divmod(n % 28, 7)
        b = WF + 4 * (n % NW)
        o = [I(f"ds_read_b64_tr_b16 {vr(b,2)}, v{vT+j} offset:{16*448*s}"),
             I(f"ds_read_b64_tr_b16 {vr(b+2,2)}, v{vT+j} offset:{16*448*s+4*448}")]
        if s == 3:
            o.append(I(f"v_add_u32 v{vT+j}, s{sDELTA}, v{vT+j}"))
        return o

    def rdx(s):
        s %= 4
        return [I(f"ds_read_b128 {vr(XF+4*(s&1),4)}, v{vXA+s}"),
                I(f"v_add_u32 v{vXA+s}, s{sDELTA}, v{vXA+s}")]

    def delta():
        return [I(f"s_add_u32 s{sCUR}, s{sCUR}, 1"),
                I(f"s_cmp_eq_u32 s{sCUR}, 3"),
                I(f"s_cselect_b32 s{sCUR}, 0, s{sCUR}"),
                I(f"s_mov_b32 s{sTMP}, {STG}"),
                I(f"s_cselect_b32 s{sDELTA}, {(-2*STG) & 0xffffffff:#x}, s{sTMP}")]

    p.add(delta())
    p.add(rdx(0))
    for n in range(AH):
        p.add(rdw(n))
    body = [I(".p2align 6"), I("K1_LOOP:")]
    for n in range(28):
        s, j = divmod(n, 7)
        acc = vr(ACC + 16 * j, 16)
        body.append(I(f"{MF} {acc}, {vr(WF+4*(n%NW),4)}, {vr(XF+4*(s&1),4)}, {acc}"))
        m = n + AH
        if m < 28:
            body += rdw(m)
        if n == 22:
            body += delta()
        if n == 23:
            body += [I("s_waitcnt lgkmcnt(0)"), I("s_barrier")] + rdx(0) + rdw(28)
        if n >= 24:
            k = {24: [29], 25: [30, 31], 26: [32], 27: [33]}[n]
            for m in k:
                body += rdw(m)
        if j == 0 and s < 3:
            body += rdx(s + 1)
        if n == 26:
            body += [I(f"s_sub_u32 s{sCNT}, s{sCNT}, 1"), I(f"s_cmp_lg_u32 s{sCNT}, 0")]
    body += [I("s_cbranch_scc1 K1_LOOP")]
    p.loop(body)
    stamp(p, 3)

    def rdu(j):
        return [I(f"ds_read_b128 {vr(U[j&1]+4*q,4)}, v{vUA} offset:{128*j+32*q}") for q in range(4)]

    p(f"""
    s_nop 1
    ds_read_b64 {vr(vB,2)}, v{vSA}
    """)
    p.add(rdu(0))
    p(f"""
    v_mov_b32 v{vRINV}, v{vB+1}
    v_mov_b32 v{vA}, v{vB+1}
    s_cmp_eq_u32 s{sTYPE}, 1
    s_cbranch_scc1 K1_EQ
    """)
    p.flush()
    st_e = p.tr.copy()

    def common(j):
        u = U[j & 1]
        acc = ACC + 16 * j
        o = rdu(j + 1) if j < 6 else []
        for i in range(8):
            o.append(I(f"v_pk_fma_f32 {vr(u+2*i,2)}, {vr(u+2*i,2)}, {vr(vB,2)}, {vr(acc+2*i,2)} op_sel_hi:[1,0,1]"))
        for i in range(8):
            o.append(I(f"v_pk_mul_f32 {vr(u+2*i,2)}, {vr(u+2*i,2)}, {vr(vA,2)} op_sel_hi:[1,0]"))
        pk = ACC + 16 * j
        for i in range(8):
            o.append(I(f"v_cvt_pk_bf16_f32 v{pk+i}, v{u+2*i}, v{u+2*i+1}"))
        return o, pk

    def store(pk, off=0):
        return [I(f"buffer_store_dwordx4 {vr(pk,4)}, v{vL16}, s[{sWS}:{sWS+3}], s{sST} offen offset:{off} sc1"),
                I(f"buffer_store_dwordx4 {vr(pk+4,4)}, v{vL16}, s[{sWS}:{sWS+3}], s{sST} offen offset:{off+1024} sc1")]

    for j in range(7):
        o, pk = common(j)
        p.add(o)
        for i in range(8):
            p(f"v_pk_max_i16 v{pk+i}, v{pk+i}, 0")
        p.add(store(pk, 2048 * (j & 1)))
        if j & 1:
            p(f"s_add_u32 s{sST}, s{sST}, 4096")
    stamp_out(p, 4, 0, sWS, sWAVE, 2, 3)
    p("s_endpgm")
    p.flush()
    p.tr = st_e
    c = (28 ** -0.5) * 1.4426950408889634
    p(f"""
    K1_EQ:
    s_lshl_b32 s{sTMP}, s{sWAVE}, 11
    v_lshl_add_u32 v{vVW}, v{vH}, 3, s{sTMP}
    v_lshl_add_u32 v{vVW}, v{vTK}, 6, v{vVW}
    v_lshl_add_u32 v{vVR}, v{vH}, 8, s{sTMP}
    v_bfe_u32 v{T}, v0, 2, 2
    v_lshl_add_u32 v{vVR}, v{T}, 6, v{vVR}
    v_bfe_u32 v{T}, v0, 4, 1
    v_lshl_add_u32 v{vVR}, v{T}, 5, v{vVR}
    v_and_b32 v{T}, 3, v0
    v_lshl_add_u32 v{vVR}, v{T}, 3, v{vVR}
    v_cmp_gt_u32 vcc, 28, v{vTK}
    v_cndmask_b32 v{vMA}, 0, -1, vcc
    v_mov_b32 v{T}, 0x3f803f80
    v_cmp_eq_u32 vcc, 28, v{vTK}
    v_cndmask_b32 v{vOA}, 0, v{T}, vcc
    s_mov_b32 s{sT}, s{sT0}
    """)
    for j in range(7):
        if j == 6:
            p(f"""
            s_cmp_eq_u32 s{sT}, 48
            s_cbranch_scc1 K1_EX
            """)
        p(f"""
        s_lshr_b32 s{sTYPE}, s{sT}, 4
        s_and_b32 s{sTMP}, s{sT}, 15
        s_lshl_b32 s{sTMP}, s{sTMP}, 6
        s_add_u32 s{sTMP}, s{sTMP}, s{sMT}
        s_lshl_b32 s{sST}, s{sTMP}, 11
        s_lshl_b32 s{sTMP}, s{sTMP}, 12
        s_add_u32 s{sTMP}, s{sTMP}, {KVF}
        s_cmp_eq_u32 s{sTYPE}, 0
        s_cselect_b32 s{sST}, s{sST}, s{sTMP}
        s_cselect_b32 s{sTMP}, {f32bits(c):#x}, 1.0
        v_mul_f32 v{vA}, s{sTMP}, v{vRINV}
        s_cselect_b32 s{sTMP}, 0, 0x3f803f80
        s_cselect_b32 s{sTMP2}, 0, 0x3f80
        v_mov_b32 v{vO6}, s{sTMP}
        v_mov_b32 v{vO7}, s{sTMP2}
        s_add_u32 s{sT}, s{sT}, 1
        """)
        o, pk = common(j)
        p.add(o)
        p(f"""
        s_cmp_eq_u32 s{sTYPE}, 2
        s_cbranch_scc1 K1_EV{j}
        v_cndmask_b32 v{pk+6}, v{vO6}, v{pk+6}, s[60:61]
        v_cndmask_b32 v{pk+7}, v{vO7}, v{pk+7}, s[60:61]
        """)
        p.add(store(pk))
        p(f"s_branch K1_EN{j}")
        p.flush()
        keep = p.tr.copy()
        p(f"K1_EV{j}:")
        for q in range(4):
            p(f"ds_write_b64 v{vVW}, {vr(pk+2*q,2)} offset:{16*q}")
        pv = pk + 8
        for i in range(2):
            p(f"ds_read_b64_tr_b16 {vr(pv+4*i,2)}, v{vVR} offset:{1024*i}")
            p(f"ds_read_b64_tr_b16 {vr(pv+4*i+2,2)}, v{vVR} offset:{1024*i+512}")
        for i in range(8):
            p(f"v_and_or_b32 v{pv+i}, v{pv+i}, v{vMA}, v{vOA}")
        p.add(store(pv, 2048))
        p(f"K1_EN{j}:")
        p.flush()
        p.tr = keep
    p("K1_EX:")
    stamp_out(p, 4, 0, sWS, sWAVE, 2, 3)
    p("s_endpgm")
    p.flush()

    p.tr = Tracker()
    vO, vX = 8, 16
    p(f"""
    K1_LOADER:
    s_cmp_ge_u32 s{sWAVE}, 8
    s_cbranch_scc1 K1_STATS
    """)
    srd(p, sX, 44, XB)
    p(f"""
    s_sub_u32 s{sWAVE}, s{sWAVE}, 4
    s_add_u32 s{sXO}, s{sMT}, s{sWAVE}
    s_mul_i32 s{sXO}, s{sXO}, 28672
    v_lshrrev_b32 v4, 3, v0
    v_mul_u32_u24 v4, 896, v4
    v_lshrrev_b32 v5, 4, v0
    v_and_b32 v6, 7, v0
    v_xor_b32 v6, v5, v6
    v_lshl_add_u32 v{vX}, v6, 4, v4
    v_xor_b32 v6, 4, v6
    v_lshl_add_u32 v{vX+1}, v6, 4, v4
    s_cmp_eq_u32 s{sTYPE}, 1
    s_cselect_b32 s{sW}, s46, s52
    s_cselect_b32 s{sW+1}, s47, s53
    s_mov_b32 s{sTMP}, {W1B}
    s_cselect_b32 s{sW+2}, {WQKVB}, s{sTMP}
    s_and_b32 s{sW+1}, s{sW+1}, 0xffff
    s_mov_b32 s{sW+3}, 0x00020000
    s_mul_i32 s{sOFF}, s{sT0}, s{sTS}
    s_lshl_b32 s{sTMP}, s{sWAVE}, 4
    s_mul_i32 s{sTMP}, s{sTMP}, s{sSTRIDE}
    s_add_u32 s{sOFF}, s{sOFF}, s{sTMP}
    """)
    for d in range(7):
        p(f"""
        v_add_u32 v4, {64*d}, v0
        v_mul_u32_u24 v5, 2341, v4
        v_lshrrev_b32 v5, 16, v5
        v_mul_u32_u24 v6, 28, v5
        v_sub_u32 v4, v4, v6
        v_lshlrev_b32 v4, 4, v4
        v_mad_u32_u24 v{vO+d}, v5, s{sSTRIDE}, v4
        """)
    p(f"""
    s_mov_b32 s{sLS}, 0
    s_mov_b32 s{sK}, -2
    s_lshl_b32 s{sTMP3}, s{sSTRIDE}, 6
    K1_LT:
    s_lshl_b32 s{sM0}, s{sWAVE}, 12
    s_add_u32 s{sM0}, s{sM0}, s{sLS}
    """)
    for g in range(4):
        p(f"s_add_u32 m0, s{sM0}, {WST+1024*g}")
        p(f"s_add_u32 s{sTMP}, s{sXO}, {8*896*g}")
        p(f"buffer_load_dwordx4 v{vX+(g&1)}, s[{sX}:{sX+3}], s{sTMP} offen lds")
    p(f"""
    s_mul_i32 s{sM0}, s{sWAVE}, 7168
    s_add_u32 s{sM0}, s{sM0}, s{sLS}
    """)
    for d in range(7):
        p(f"s_add_u32 m0, s{sM0}, {1024*d}")
        p(f"buffer_load_dwordx4 v{vO+d}, s[{sW}:{sW+3}], s{sOFF} offen lds")
    p(f"""
    s_add_u32 s{sOFF}, s{sOFF}, s{sTMP3}
    s_add_u32 s{sXO}, s{sXO}, 128
    s_add_u32 s{sLS}, s{sLS}, {STG}
    s_cmp_eq_u32 s{sLS}, {3*STG}
    s_cselect_b32 s{sLS}, 0, s{sLS}
    s_add_u32 s{sK}, s{sK}, 1
    s_cmp_lt_i32 s{sK}, 0
    s_cbranch_scc1 K1_LT
    """)
    if os.environ.get("K1PF", "0") != "0":
        p(f"""
        s_cmp_lg_u32 s{sK}, 0
        s_cbranch_scc1 K1_LP
        s_lshr_b32 s{sTMP}, s{sMT}, 2
        s_and_b32 s{sTMP}, s{sTMP}, 3
        s_lshl_b32 s{sTMP}, s{sTMP}, 6
        s_add_u32 s{sTMP}, s{sTMP}, 64
        s_mul_i32 s{sTMP}, s{sTMP}, s{sSTRIDE}
        s_add_u32 s{sTMP}, s{sTMP}, s{sOFF}
        v_lshrrev_b32 v4, 3, v0
        v_and_b32 v5, 7, v0
        v_lshlrev_b32 v5, 6, v5
        v_mad_u32_u24 v6, v4, s{sSTRIDE}, v5
        s_lshl_b32 s{sTMP2}, s{sSTRIDE}, 3
        s_add_u32 s{sTMP2}, s{sTMP2}, s{sTMP}
        s_mov_b32 exec_lo, 0xd5d5d5d5
        s_mov_b32 exec_hi, 0xd5d5d5d5
        buffer_load_dword v20, v6, s[{sW}:{sW+3}], s{sTMP} offen
        buffer_load_dword v21, v6, s[{sW}:{sW+3}], s{sTMP2} offen
        s_mov_b64 exec, -1
        s_lshl_b32 s{sTMP}, s{sG}, 4
        s_lshl_b32 s{sTMP2}, s{sWAVE}, 2
        s_add_u32 s{sTMP}, s{sTMP}, s{sTMP2}
        s_lshl_b32 s{sTMP2}, s{sMT}, 5
        s_add_u32 s{sTMP}, s{sTMP}, s{sTMP2}
        s_mul_i32 s{sTMP}, s{sTMP}, 896
        v_lshrrev_b32 v4, 4, v0
        v_mul_u32_u24 v4, 896, v4
        v_and_b32 v5, 15, v0
        v_lshl_add_u32 v6, v5, 7, v4
        s_mov_b32 exec_lo, 0x00780078
        s_mov_b32 exec_hi, 0x00780078
        buffer_load_dword v22, v6, s[{sX}:{sX+3}], s{sTMP} offen
        s_mov_b64 exec, -1
        K1_LP:
        s_cmp_lt_u32 s{sK}, 2
        s_cbranch_scc1 K1_LQ
        """)
    stamp_if(p, 2, sK, 4)
    p("s_waitcnt vmcnt(11)")
    p("K1_LQ:")
    p("s_waitcnt vmcnt(14)")
    stamp_if(p, 3, sK, 4)
    p("s_barrier")
    stamp_if(p, 4, sK, 4)
    stamp_if(p, 1, sK, 3)
    p(f"""
    s_cmp_lt_u32 s{sK}, 5
    s_cbranch_scc1 K1_LT
    s_waitcnt vmcnt(0)
    s_barrier
    """)
    if os.environ.get("CPF", "1") != "0":
        p(f"""
        s_getpc_b64 s[4:5]
        K1_PC:
        s_add_u32 s4, s4, k2_kernel-K1_PC
        s_addc_u32 s5, s5, 0
        s_getpc_b64 s[8:9]
        s_add_u32 s8, s8, KD_k2_kernel@rel32@lo+4
        s_addc_u32 s9, s9, KD_k2_kernel@rel32@hi+12
        s_lshl_b32 s{sTMP}, s{sWAVE}, 12
        v_lshl_add_u32 v4, v0, 6, s{sTMP}
        v_min_u32 v4, K3_END-k2_kernel, v4
        v_and_b32 v5, 1, v0
        v_lshlrev_b32 v5, 6, v5
        global_load_dword v6, v4, s[4:5]
        global_load_dword v7, v5, s[8:9]
        """)
    stamp_out(p, 5, 0, sWS, sWAVE, 5, 6, wave_add=4)
    p("s_endpgm")
    p.flush()

    p.tr = Tracker()
    vTL, vS, F, E2, vXR, ONE, CS, XD = 18, 20, 32, 64, 72, 76, 80, 88
    T = E2
    p(f"""
    K1_STATS:
    s_setprio {os.environ.get("K1SP", "3")}
    s_sub_u32 s{sWAVE}, s{sWAVE}, 8
    s_mul_i32 s{sTMP}, s{sWAVE}, s{sTS}
    v_add_u32 v{vTL}, s{sTMP}, v3
    s_lshl_b32 s{sTMP}, s{sTS}, 2
    v_add_u32 v{vTL+1}, s{sTMP}, v{vTL}
    s_mov_b32 s{sCUR}, 0
    s_mov_b32 s{sCNT}, 7
    """)
    for i in range(4):
        p(f"v_mov_b32 v{vS+i}, 0")
    for i in range(8):
        p(f"v_mov_b32 v{CS+i}, 0")
    p(f"""
    v_and_b32 v4, 31, v0
    v_bfe_u32 v5, v0, 1, 3
    v_xor_b32 v5, v2, v5
    s_lshl_b32 s{sTMP}, s{sWAVE}, 12
    s_add_u32 s{sTMP}, s{sTMP}, {WST}
    v_lshl_add_u32 v6, v4, 7, s{sTMP}
    """)
    for sp in range(4):
        p(f"v_xor_b32 v{vXR+sp}, {2*sp}, v5")
        p(f"v_lshl_add_u32 v{vXR+sp}, v{vXR+sp}, 4, v6")
    p(f"""
    v_and_b32 v4, 15, v0
    v_bfe_u32 v5, v0, 4, 1
    v_mov_b32 v6, 0x3f803f80
    v_cmp_eq_u32 vcc, v4, v5
    v_cndmask_b32 v{ONE}, 0, v6, vcc
    v_mov_b32 v{ONE+1}, v{ONE}
    v_mov_b32 v{ONE+2}, v{ONE}
    v_mov_b32 v{ONE+3}, v{ONE}
    """)
    body = ["K1_SL:", "s_barrier",
            f"v_add_u32 v4, s{sCUR}, v{vTL}", f"v_add_u32 v5, s{sCUR}, v{vTL+1}"]
    for sp in range(4):
        body += [f"v_add_u32 v6, s{sCUR}, v{vXR+sp}", f"ds_read_b128 {vr(XD+4*sp,4)}, v6"]
    rds = []
    for s in range(4):
        for t in range(2):
            b = F + 16 * t + 4 * s
            rds.append([f"ds_read_b64_tr_b16 {vr(b,2)}, v{4+t} offset:{16*448*s}",
                        f"ds_read_b64_tr_b16 {vr(b+2,2)}, v{4+t} offset:{16*448*s+4*448}"])
    body += rds[0] + rds[1] + rds[2] + rds[3]
    for d in range(16):
        e = E2 + 2 * (d % 4)
        body += [f"v_lshlrev_b32 v{e}, 16, v{XD+d}",
                 f"v_and_b32 v{e+1}, 0xffff0000, v{XD+d}",
                 f"v_add_f32 v{vS}, v{vS}, v{e}",
                 f"v_add_f32 v{vS+1}, v{vS+1}, v{e+1}",
                 f"v_fmac_f32 v{vS+2}, v{e}, v{e}",
                 f"v_fmac_f32 v{vS+3}, v{e+1}, v{e+1}"]
        if d < 4:
            body += rds[4 + d]
        if d & 1:
            n = d >> 1
            t = n & 1
            body.append(f"v_mfma_f32_16x16x32_bf16 {vr(CS+4*t,4)}, {vr(ONE,4)}, {vr(F+16*t+4*(n>>1),4)}, {vr(CS+4*t,4)}")
    body += [f"s_add_u32 s{sCUR}, s{sCUR}, {STG}",
             f"s_cmp_eq_u32 s{sCUR}, {3*STG}",
             f"s_cselect_b32 s{sCUR}, 0, s{sCUR}",
             f"s_sub_u32 s{sCNT}, s{sCNT}, 1",
             f"s_cmp_lg_u32 s{sCNT}, 0",
             "s_cbranch_scc1 K1_SL"]
    p.loop(body)
    p(f"""
    v_add_f32 v{T}, v{vS}, v{vS+1}
    v_add_f32 v{T+4}, v{vS+2}, v{vS+3}
    v_mov_b32 v{T+1}, v{T}
    v_mov_b32 v{T+5}, v{T+4}
    s_lshl_b32 s{sTMP}, s{sWAVE}, 7
    s_add_u32 s{sTMP}, s{sTMP}, {CSA}
    v_permlane32_swap_b32 v{T}, v{T+1}
    v_permlane32_swap_b32 v{T+4}, v{T+5}
    v_add_f32 v{T}, v{T}, v{T+1}
    v_add_f32 v{T+4}, v{T+4}, v{T+5}
    v_mul_f32 v{T}, {f32bits(1.0/448.0):#x}, v{T}
    v_mul_f32 v{T+4}, {f32bits(1.0/448.0):#x}, v{T+4}
    v_fma_f32 v{T+4}, -v{T}, v{T}, v{T+4}
    v_cvt_pk_bf16_f32 v{T+1}, v{T}, v{T}
    v_max_f32 v{T+4}, 0, v{T+4}
    v_and_b32 v{T+1}, 0xffff0000, v{T+1}
    v_cvt_pk_bf16_f32 v{T+4}, v{T+4}, v{T+4}
    v_sub_f32 v{T+2}, 0, v{T+1}
    v_and_b32 v{T+4}, 0xffff0000, v{T+4}
    v_add_f32 v{T+4}, {f32bits(1e-5):#x}, v{T+4}
    v_cvt_pk_bf16_f32 v{T+4}, v{T+4}, v{T+4}
    v_and_b32 v{T+4}, 0xffff0000, v{T+4}
    v_sqrt_f32 v{T+4}, v{T+4}
    v_lshl_add_u32 v4, v0, 2, s{sTMP}
    v_cvt_pk_bf16_f32 v{T+4}, v{T+4}, v{T+4}
    v_and_b32 v{T+4}, 0xffff0000, v{T+4}
    v_rcp_f32 v{T+3}, v{T+4}
    s_lshl_b32 s{sTMP}, s{sWAVE}, 8
    s_add_u32 s{sTMP}, s{sTMP}, {STA}
    v_and_b32 v5, 31, v0
    v_lshl_add_u32 v5, v5, 3, s{sTMP}
    ds_write_b64 v5, {vr(T+2,2)}
    s_mov_b64 exec, 0xffff
    ds_write_b32 v4, v{CS}
    ds_write_b32 v4, v{CS+1} offset:64
    ds_write_b32 v4, v{CS+4} offset:512
    ds_write_b32 v4, v{CS+5} offset:576
    s_mov_b64 exec, -1
    s_waitcnt lgkmcnt(0)
    s_barrier
    s_endpgm
    """)
    p.flush()

    p.tr = Tracker()
    sW2, sWO, sC = 4, 8, sMT
    WOA = 128 * 896
    p(f"""
    K1_TRANS:
    s_cmp_ge_u32 s{sWAVE}, 8
    s_cbranch_scc1 K1_END
    """)
    srd(p, sW2, 54, W2B)
    srd(p, sWO, 48, WOB)
    vL, vB2, vTW, vTO = 1, 2, 3, 4
    p(f"""
    v_lshlrev_b32 v{vL}, 4, v0
    s_mul_i32 s{sOFF}, s{sC}, {28*896}
    s_lshl_b32 s{sM0}, s{sWAVE}, 12
    s_add_u32 s{sOFF}, s{sOFF}, s{sM0}
    s_add_u32 m0, s{sM0}, {WOA}
    s_cmp_eq_u32 s{sWAVE}, 7
    s_cbranch_scc1 K1_TR1
    """)
    for d in range(4):
        p(f"buffer_load_dwordx4 v{vL}, s[{sWO}:{sWO+3}], s{sOFF} offen offset:{1024*d} lds")
    p(f"""
    K1_TR1:
    s_mul_i32 s{sOFF}, s{sC}, {128*896}
    s_mul_i32 s{sM0}, s{sWAVE}, {14*1024}
    s_add_u32 s{sOFF}, s{sOFF}, s{sM0}
    """)
    for d in range(14):
        if d % 4 == 0:
            p(f"s_add_u32 m0, s{sM0}, {1024*d}")
            p(f"s_add_u32 s{sTMP}, s{sOFF}, {1024*d}")
        p(f"buffer_load_dwordx4 v{vL}, s[{sW2}:{sW2+3}], s{sTMP} offen offset:{1024*(d%4)} lds")
    p(f"""
    v_lshrrev_b32 v{vB2}, 5, v0
    v_lshlrev_b32 v{vTW}, 2, v{vB2}
    v_bfe_u32 v{vB2}, v0, 2, 2
    v_add_u32 v{vTW}, v{vTW}, v{vB2}
    v_mul_u32_u24 v{vTW}, 896, v{vTW}
    v_bfe_u32 v{vB2}, v0, 4, 1
    v_lshl_add_u32 v{vTW}, v{vB2}, 5, v{vTW}
    v_and_b32 v{vB2}, 3, v0
    v_lshl_add_u32 v{vTW}, v{vB2}, 3, v{vTW}
    s_lshl_b32 s{sTMP}, s{sWAVE}, 7
    s_add_u32 s{sTMP}, s{sTMP}, {WOA}
    v_add_u32 v{vTO}, s{sTMP}, v{vTW}
    s_mul_i32 s{sTMP}, s{sWAVE}, {16*896}
    v_add_u32 v{vTW}, s{sTMP}, v{vTW}
    v_cmp_gt_u32 vcc, 32, v0
    s_waitcnt vmcnt(0)
    s_barrier
    s_cmp_eq_u32 s{sWAVE}, 7
    s_cbranch_scc1 K1_TR2
    """)
    G = 16
    for t in range(2):
        for i in range(2):
            b = G + 8 * t + 4 * i
            p(f"ds_read_b64_tr_b16 {vr(b,2)}, v{vTO} offset:{64*t+16*896*i}")
            p(f"ds_read_b64_tr_b16 {vr(b+2,2)}, v{vTO} offset:{64*t+16*896*i+8*896}")
    p(f"""
    s_lshl_b32 s{sOFF}, s{sWAVE}, 16
    s_lshl_b32 s{sTMP}, s{sC}, 11
    s_add_u32 s{sOFF}, s{sOFF}, s{sTMP}
    s_add_u32 s{sOFF}, s{sOFF}, {WOF}
    s_add_u32 s{sTMP}, s{sOFF}, 32768
    """)
    for t in range(2):
        p(f"v_cndmask_b32 v{G+8*t+6}, 0, v{G+8*t+6}, vcc")
        p(f"v_cndmask_b32 v{G+8*t+7}, 0, v{G+8*t+7}, vcc")
    for t in range(2):
        for i in range(2):
            p(f"buffer_store_dwordx4 {vr(G+8*t+4*i,4)}, v{vL}, s[{sWS}:{sWS+3}], s{sOFF if t == 0 else sTMP} offen offset:{1024*i} sc1")
    p.flush()
    p.tr = Tracker()
    p(f"""
    K1_TR2:
    s_cmp_ge_u32 s{sC}, 14
    s_cbranch_scc1 K1_TR3
    s_lshl_b32 s{sOFF}, s{sC}, 3
    s_add_u32 s{sOFF}, s{sOFF}, s{sWAVE}
    s_lshl_b32 s{sOFF}, s{sOFF}, 10
    s_add_u32 s{sOFF}, s{sOFF}, {W2F}
    """)
    F = 32
    for t in range(14):
        p(f"ds_read_b64_tr_b16 {vr(F+4*t,2)}, v{vTW} offset:{64*t}")
        p(f"ds_read_b64_tr_b16 {vr(F+4*t+2,2)}, v{vTW} offset:{64*t+8*896}")
    for t in range(14):
        p(f"buffer_store_dwordx4 {vr(F+4*t,4)}, v{vL}, s[{sWS}:{sWS+3}], s{sOFF} offen sc1")
        if t < 13:
            p(f"s_add_u32 s{sOFF}, s{sOFF}, 114688")
    p("K1_TR3:")
    stamp_out(p, 1, 0, sWS, sWAVE, 5, 6)
    p("K1_END:")
    p("s_endpgm")
    return head("k1_kernel") + p.text() + KD.format(name="k1_kernel", nv=168, ns=(100 if STAMP or DBG else 64), acc=168)


K2_LDS = 48 * 1024 + 96 * 1024
K2_ACC = 112
REF_OFF = 90.0
L_LIMIT = 2.0 ** 50


def gen_k2():
    p = Prog()
    stamp.k = 1
    sWS, sG, sX = 4, 8, 32
    sWAVE, sHEAD, sQB, sTMP, sTMP2, sKV, sKV2, sHO, sWO_, sCNT, sMB, sNP, sKH, sTMP3 = range(12, 26)
    vL16 = 1
    p(f"""
    s_cmp_ge_u32 s2, 256
    s_cbranch_scc1 K2_END
    s_load_dwordx2 s[28:29], s[0:1], 64
    s_load_dwordx2 s[30:31], s[0:1], 0
    v_lshrrev_b32 v1, 6, v0
    v_and_b32 v0, 63, v0
    v_readfirstlane_b32 s{sWAVE}, v1
    s_and_b32 s{sTMP}, s2, 7
    s_lshr_b32 s{sTMP2}, s2, 3
    v_lshlrev_b32 v{vL16}, 4, v0
    s_cmp_ge_u32 s{sWAVE}, 4
    s_cbranch_scc1 K2_GEMM
    s_setprio 2
    s_lshl_b32 s{sHEAD}, s{sTMP}, 1
    s_and_b32 s{sTMP}, s{sTMP2}, 1
    s_add_u32 s{sHEAD}, s{sHEAD}, s{sTMP}
    s_lshr_b32 s{sQB}, s{sTMP2}, 1
    s_lshl_b32 s{sTMP}, s{sHEAD}, 6
    s_lshl_b32 s{sTMP2}, s{sQB}, 2
    s_add_u32 s{sTMP}, s{sTMP}, s{sTMP2}
    s_lshl_b32 s{sKV}, s{sHEAD}, 18
    s_add_u32 s{sKV}, s{sKV}, {KVF}
    s_mov_b32 s{sTMP3}, s{sKV}
    s_waitcnt lgkmcnt(0)
    """)
    stamp(p, 0)
    srd(p, sWS, 28, WS_BYTES)
    S = [8, 24]
    P = [40, 48]
    O0 = 56
    T = 72
    Q = 0
    OA = 32
    KV = [80, 96]

    def Oacc(u):
        return vr(O0, 16) if u == 0 else ar(OA + 16 * (u - 1), 16)

    KR = T + 24
    p(f"""
    buffer_load_dwordx4 {vr(KR,4)}, v{vL16}, s[{sWS}:{sWS+3}], s{sKV} offen
    buffer_load_dwordx4 {vr(KR+4,4)}, v{vL16}, s[{sWS}:{sWS+3}], s{sKV} offen offset:1024
    """)
    for u in range(4):
        p(f"""
        s_xor_b32 s{sTMP2}, s{sWAVE}, {u}
        s_add_u32 s{sTMP2}, s{sTMP2}, s{sTMP}
        s_lshl_b32 s{sTMP2}, s{sTMP2}, 11
        buffer_load_dwordx4 {ar(Q+8*u,4)}, v{vL16}, s[{sWS}:{sWS+3}], s{sTMP2} offen
        buffer_load_dwordx4 {ar(Q+8*u+4,4)}, v{vL16}, s[{sWS}:{sWS+3}], s{sTMP2} offen offset:1024
        """)
    p(f"""
    s_lshl_b32 s{sTMP}, s{sWAVE}, 16
    s_add_u32 s{sKV}, s{sKV}, s{sTMP}
    s_add_u32 s{sKV2}, s{sKV}, 4096
    """)
    for j in range(4):
        p(f"buffer_load_dwordx4 {ar(KV[0]+4*j,4)}, v{vL16}, s[{sWS}:{sWS+3}], s{sKV} offen offset:{1024*j}")
    for j in range(2):
        p(f"buffer_load_dwordx4 {ar(KV[1]+4*j,4)}, v{vL16}, s[{sWS}:{sWS+3}], s{sKV2} offen offset:{1024*j}")
    for i in range(48):
        p(f"v_accvgpr_write_b32 a{OA+i}, 0")
    for i in range(8):
        p(f"v_accvgpr_write_b32 a{KV[1]+8+i}, 0")
    for i in range(16):
        p(f"v_mov_b32 v{O0+i}, 0")
    for i in range(8):
        p(f"v_mov_b32 v{P[1]+i}, 0")
    vA1, vA2, vA3, vRA = 2, 3, 4, 5
    vAs = [None, vA1, vA2, vA3]
    for u in range(1, 4):
        p(f"""
        s_xor_b32 s{sTMP}, s{sWAVE}, {u}
        s_mul_i32 s{sTMP}, s{sTMP}, 3
        s_add_u32 s{sTMP}, s{sTMP}, {u-1}
        s_lshl_b32 s{sTMP}, s{sTMP}, 12
        v_add_u32 v{vAs[u]}, s{sTMP}, v{vL16}
        """)
    p(f"""
    s_mul_i32 s{sTMP}, s{sWAVE}, {3*4096}
    v_add_u32 v{vRA}, s{sTMP}, v{vL16}
    s_mov_b32 s{sCNT}, 8
    """)
    stamp(p, 1)

    def rowmax(m, d, first=True):
        if first:
            p(f"v_max3_f32 v{m}, v{d}, v{d+1}, v{d+2}")
            for r in range(3, 15, 2):
                p(f"v_max3_f32 v{m}, v{m}, v{d+r}, v{d+r+1}")
            p(f"v_max_f32 v{m}, v{m}, v{d+15}")
        else:
            for r in range(0, 16, 2):
                p(f"v_max3_f32 v{m}, v{m}, v{d+r}, v{d+r+1}")

    def put_ref(units, add):
        for u in units:
            m, m2 = T + u, T + 4 + u
            p(f"v_mov_b32 v{m2}, v{m}")
        for u in units:
            m, m2 = T + u, T + 4 + u
            p(f"v_permlane32_swap_b32 v{m}, v{m2}")
        for u in units:
            m, m2 = T + u, T + 4 + u
            a, b, c = T + 8 + 4 * u, T + 9 + 4 * u, T + 10 + 4 * u
            p(f"""
            v_max_f32 v{m}, v{m}, v{m2}
            v_sub_f32 v{a}, {f32bits(-add):#x}, v{m}
            v_and_b32 v{b}, 0xffff0000, v{a}
            v_sub_f32 v{a}, v{a}, v{b}
            v_and_b32 v{c}, 0xffff0000, v{a}
            v_sub_f32 v{a}, v{a}, v{c}
            v_lshrrev_b32 v{b}, 16, v{b}
            v_or_b32 v{b}, v{b}, v{c}
            v_lshrrev_b32 v{a}, 16, v{a}
            """)
        p("s_mov_b32 exec_lo, 0")
        for u in units:
            a, b = T + 8 + 4 * u, T + 9 + 4 * u
            p(f"v_accvgpr_write_b32 a{Q+8*u+6}, v{b}")
            p(f"v_accvgpr_write_b32 a{Q+8*u+7}, v{a}")
        p("s_mov_b32 exec_lo, -1")

    for u in range(4):
        d = S[u % 2]
        p(f"{MF} {vr(d,16)}, {vr(KR,4)}, {ar(Q+8*u,4)}, 0")
        p(f"{MF} {vr(d,16)}, {vr(KR+4,4)}, {ar(Q+8*u+4,4)}, {vr(d,16)}")
        if u % 2 == 1:
            for uu in (u - 1, u):
                rowmax(T + uu, S[uu % 2])
    put_ref(range(4), REF_OFF)

    def qk(n_u, kb, sbuf):
        k = KV[kb]
        return [I(f"{MF} {vr(S[sbuf],16)}, {ar(k,4)}, {ar(Q+8*n_u,4)}, 0"),
                I(f"{MF} {vr(S[sbuf],16)}, {ar(k+4,4)}, {ar(Q+8*n_u+4,4)}, {vr(S[sbuf],16)}")]

    def pv(u, vb, pbuf):
        v = KV[vb] + 8
        return [I(f"{MF} {Oacc(u)}, {ar(v,4)}, {vr(P[pbuf],4)}, {Oacc(u)}"),
                I(f"{MF} {Oacc(u)}, {ar(v+4,4)}, {vr(P[pbuf]+4,4)}, {Oacc(u)}")]

    def softmax(sb):
        s, pp = S[sb], P[sb]
        v = []
        for i in range(8):
            v.append(I(f"v_exp_f32 v{s+2*i}, v{s+2*i}"))
            v.append(I(f"v_exp_f32 v{s+2*i+1}, v{s+2*i+1}"))
            if i >= 1:
                v.append(I(f"v_cvt_pk_bf16_f32 v{pp+i-1}, v{s+2*i-2}, v{s+2*i-1}"))
        v.append(I(f"v_cvt_pk_bf16_f32 v{pp+7}, v{s+14}, v{s+15}"))
        return v

    def cost(i):
        return 8 if i.is_trans() else 4

    def slot(tb, u):
        nu = (u + 1) & 3
        pu = (u - 1) & 3
        mf = qk(nu, tb if u < 3 else 1 - tb, (u + 1) & 1) + pv(pu, tb if u > 0 else 1 - tb, (u - 1) & 1)
        ld = []
        if u == 0:
            so = sKV2 if tb == 0 else sKV
            ld += [I(f"buffer_load_dwordx4 {ar(KV[1-tb]+8+4*j,4)}, v{vL16}, s[{sWS}:{sWS+3}], s{so} offen offset:{2048+1024*j}") for j in range(2)]
        if u == 2:
            so = sKV if tb == 0 else sKV2
            ld += [I(f"buffer_load_dwordx4 {ar(KV[tb]+4*j,4)}, v{vL16}, s[{sWS}:{sWS+3}], s{so} offen offset:{1024*j}") for j in range(2)]
        va = softmax(u & 1)
        total = sum(cost(i) for i in va)
        out = []
        k = 0
        acc = 0
        for j, m in enumerate(mf):
            out.append(m)
            tgt = total * (j + 1) / len(mf)
            while k < len(va) and acc + cost(va[k]) / 2 <= tgt:
                out.append(va[k]); acc += cost(va[k]); k += 1
        out += va[k:]
        idx = max(i for i, x in enumerate(out) if x.kind == "mfma")
        if ld:
            out = out[:idx + 1] + interleave(out[idx + 1:], ld)
        return out

    stamp(p, 2)
    p.add(qk(0, 0, 0))
    body = [I(".p2align 6"), I("K2_LOOP:")]
    for tb in range(2):
        for u in range(4):
            if u == 1:
                so = sKV if tb == 0 else sKV2
                body.append(I(f"s_add_u32 s{so}, s{so}, 8192"))
            if tb == 1 and u == 3:
                body.append(I(f"s_sub_u32 s{sCNT}, s{sCNT}, 1"))
                body.append(I(f"s_cmp_lg_u32 s{sCNT}, 0"))
            body += slot(tb, u)
    body += [I("s_cbranch_scc1 K2_LOOP")]
    p.loop(body)
    stamp(p, 3)
    p.add(pv(3, 1, 1))
    for u in range(1, 4):
        for q in range(4):
            p(f"ds_write_b128 v{vAs[u]}, {ar(OA+16*(u-1)+4*q,4)} offset:{1024*q}")
    p(f"""
    s_lshl_b32 s{sTMP}, s{sQB}, 2
    s_add_u32 s{sTMP}, s{sTMP}, s{sWAVE}
    s_lshl_b32 s{sTMP}, s{sTMP}, 15
    s_lshl_b32 s{sTMP2}, s{sHEAD}, 11
    s_add_u32 s{sTMP}, s{sTMP}, s{sTMP2}
    s_add_u32 s{sTMP}, s{sTMP}, {OF}
    s_waitcnt lgkmcnt(0)
    """)
    stamp(p, 4)
    p("s_barrier")
    stamp(p, 5)
    R = 8
    for i in range(3):
        for q in range(4):
            p(f"ds_read_b128 {vr(R+16*i+4*q,4)}, v{vRA} offset:{4096*i+1024*q}")
    for i in range(3):
        for r in range(0, 16, 2):
            p(f"v_pk_add_f32 {vr(O0+r,2)}, {vr(O0+r,2)}, {vr(R+16*i+r,2)}")
    p("K2_NORM:")
    l, l2, ri, mx = T + 32, T + 33, T + 34, T + 36
    p(f"""
    v_mov_b32 v{l}, v{O0+12}
    v_mov_b32 v{l2}, v{O0+12}
    v_permlane32_swap_b32 v{l}, v{l2}
    v_rcp_f32 v{ri}, v{l2}
    """)
    for r in range(0, 16, 2):
        p(f"v_pk_mul_f32 {vr(O0+r,2)}, {vr(O0+r,2)}, {vr(ri,2)} op_sel_hi:[1,0]")
    for i in range(8):
        p(f"v_cvt_pk_bf16_f32 v{R+i}, v{O0+2*i}, v{O0+2*i+1}")
    p(f"""
    buffer_store_dwordx4 {vr(R,4)}, v{vL16}, s[{sWS}:{sWS+3}], s{sTMP} offen sc1
    buffer_store_dwordx4 {vr(R+4,4)}, v{vL16}, s[{sWS}:{sWS+3}], s{sTMP} offen offset:1024 sc1
    """)
    for r in range(0, 16, 2):
        p(f"v_pk_add_f32 {vr(O0+r,2)}, {vr(O0+r,2)}, {vr(O0+r,2)} neg_lo:[0,1] neg_hi:[0,1]")
    for r in (8, 4, 2):
        for k in range(0, r, 2):
            p(f"v_pk_add_f32 {vr(O0+k,2)}, {vr(O0+k,2)}, {vr(O0+r+k,2)}")
    p(f"""
    v_add_f32 v{mx}, v{O0}, v{O0+1}
    v_add_f32 v{mx}, v{mx}, v{l2}
    v_cmp_nlt_f32 vcc, v{mx}, v{mx+1}
    """.replace(f"v_cmp_nlt_f32 vcc, v{mx}, v{mx+1}", f"v_cmp_ngt_f32 vcc, {f32bits(L_LIMIT):#x}, v{mx}"))
    p(f"""
    s_cmp_eq_u32 s{sCNT}, 0
    s_cselect_b64 vcc, vcc, 0
    s_cbranch_vccnz K2_SLOW
    """)
    stamp_out(p, 6, 1, sWS, sWAVE, 2, 3)
    p("s_endpgm")
    p.flush()
    p.tr = Tracker()
    p(f"""
    K2_SLOW:
    s_waitcnt vmcnt(0) lgkmcnt(0)
    s_mov_b32 exec_lo, 0
    v_accvgpr_write_b32 a{Q+6}, 0
    v_accvgpr_write_b32 a{Q+7}, 0
    s_mov_b32 exec_lo, -1
    v_mov_b32 v{T}, 0xff800000
    s_mov_b32 s{sKV}, s{sTMP3}
    s_mov_b32 s{sCNT}, 64
    """)
    body = [I("K2_S1:")]
    body += [I(f"buffer_load_dwordx4 {ar(KV[0]+4*j,4)}, v{vL16}, s[{sWS}:{sWS+3}], s{sKV} offen offset:{1024*j}") for j in range(2)]
    body += qk(0, 0, 0)
    body += [I(f"v_max3_f32 v{T}, v{T}, v{S[0]+r}, v{S[0]+r+1}") for r in range(0, 16, 2)]
    body += [I(f"s_add_u32 s{sKV}, s{sKV}, 4096"), I(f"s_sub_u32 s{sCNT}, s{sCNT}, 1"), I(f"s_cmp_lg_u32 s{sCNT}, 0"), I("s_cbranch_scc1 K2_S1")]
    p.loop(body)
    put_ref([0], 0.0)
    for i in range(16):
        p(f"v_mov_b32 v{O0+i}, 0")
    p(f"""
    s_mov_b32 s{sKV}, s{sTMP3}
    s_mov_b32 s{sCNT}, 64
    """)
    body = [I("K2_S2:")]
    body += [I(f"buffer_load_dwordx4 {ar(KV[0]+4*j,4)}, v{vL16}, s[{sWS}:{sWS+3}], s{sKV} offen offset:{1024*j}") for j in range(4)]
    body += qk(0, 0, 0) + softmax(0) + pv(0, 0, 0)
    body += [I(f"s_add_u32 s{sKV}, s{sKV}, 4096"), I(f"s_sub_u32 s{sCNT}, s{sCNT}, 1"), I(f"s_cmp_lg_u32 s{sCNT}, 0"), I("s_cbranch_scc1 K2_S2")]
    p.loop(body)
    p(f"""
    s_mov_b32 s{sCNT}, 1
    s_nop 7
    s_nop 7
    s_branch K2_NORM
    """)
    p.flush()

    p.tr = Tracker()
    GA0 = 8
    Gv = [40, 64, 88]
    Ga = [96, 120]
    NBUF = 4

    def Gbuf(b, off, n):
        return vr(Gv[b] + off, n) if b < 3 else ar(Ga[b - 3] + off, n)

    def Gacc(mi, ni):
        return vr(GA0 + 16 * ni, 16) if mi == 0 else ar(32 * (mi - 1) + 16 * ni, 16)

    vH = [2, 3, 4, 5]
    vW1 = 6
    vW = [vL16, vW1]
    p(f"""
    K2_GEMM:
    s_sub_u32 s{sWAVE}, s{sWAVE}, 4
    s_and_b32 s{sKH}, s{sTMP}, 1
    s_lshr_b32 s{sMB}, s{sTMP}, 1
    s_lshl_b32 s{sMB}, s{sMB}, 2
    s_and_b32 s{sTMP}, s{sTMP2}, 3
    s_add_u32 s{sMB}, s{sMB}, s{sTMP}
    s_lshr_b32 s{sNP}, s{sTMP2}, 2
    s_cmp_ge_u32 s{sNP}, 7
    s_cbranch_scc1 K2_END
    """)
    for mi in range(4):
        p(f"""
        s_xor_b32 s{sTMP}, s{sWAVE}, {mi}
        s_mul_i32 s{sTMP}, s{sTMP}, 114688
        v_add_u32 v{vH[mi]}, s{sTMP}, v{vL16}
        """)
    p(f"""
    v_add_u32 v{vW1}, 114688, v{vL16}
    s_mul_i32 s{sTMP}, s{sKH}, 56
    s_mul_i32 s{sTMP2}, s{sWAVE}, 14
    s_add_u32 s{sTMP}, s{sTMP}, s{sTMP2}
    s_lshl_b32 s{sTMP}, s{sTMP}, 10
    s_mul_i32 s{sHO}, s{sMB}, {4*114688}
    s_add_u32 s{sHO}, s{sHO}, s{sTMP}
    s_add_u32 s{sHO}, s{sHO}, {HF}
    s_mul_i32 s{sWO_}, s{sNP}, {2*114688}
    s_add_u32 s{sWO_}, s{sWO_}, s{sTMP}
    s_add_u32 s{sWO_}, s{sWO_}, {W2F}
    s_waitcnt lgkmcnt(0)
    """)
    stamp(p, 0)
    srd(p, sWS, 28, WS_BYTES)

    def gload(k):
        b = k % NBUF
        o = []
        if k % 4 == 0 and k:
            o += [I(f"s_add_u32 s{sHO}, s{sHO}, 4096"), I(f"s_add_u32 s{sWO_}, s{sWO_}, 4096")]
        for ni in range(2):
            o.append(I(f"buffer_load_dwordx4 {Gbuf(b,16+4*ni,4)}, v{vW[ni]}, s[{sWS}:{sWS+3}], s{sWO_} offen offset:{1024*(k%4)}"))
        for mi in range(4):
            o.append(I(f"buffer_load_dwordx4 {Gbuf(b,4*mi,4)}, v{vH[mi]}, s[{sWS}:{sWS+3}], s{sHO} offen offset:{1024*(k%4)}"))
        return o

    for k in range(NBUF):
        p.add(gload(k))
    for k in range(14):
        b = k % NBUF
        for mi in range(4):
            for ni in range(2):
                c = "0" if k == 0 else Gacc(mi, ni)
                p(f"{MF} {Gacc(mi,ni)}, {Gbuf(b,16+4*ni,4)}, {Gbuf(b,4*mi,4)}, {c}")
        if k + NBUF < 14:
            p.add(gload(k + NBUF))
    stamp(p, 1)
    srd(p, sX, 30, XB)
    XR = Gv[2]
    vB1, vB2, vB3, vRB, vXO = 2, 3, 4, 5, 6
    vBs = [None, vB1, vB2, vB3]
    p(f"""
    s_cmp_eq_u32 s{sKH}, 0
    s_cselect_b32 s{sX+2}, s{sX+2}, 0
    v_and_b32 v{vXO}, 31, v0
    v_mul_u32_u24 v{vXO}, 896, v{vXO}
    v_lshrrev_b32 v7, 5, v0
    v_lshl_add_u32 v{vXO}, v7, 3, v{vXO}
    s_lshl_b32 s{sMB}, s{sMB}, 2
    s_add_u32 s{sMB}, s{sMB}, s{sWAVE}
    s_mul_i32 s{sTMP}, s{sMB}, 28672
    s_lshl_b32 s{sTMP2}, s{sNP}, 7
    s_add_u32 s{sTMP}, s{sTMP}, s{sTMP2}
    """)
    for q in range(8):
        p(f"buffer_load_dwordx2 {vr(XR+2*q,2)}, v{vXO}, s[{sX}:{sX+3}], s{sTMP} offen offset:{16*q}")
    for u in range(1, 4):
        p(f"""
        s_xor_b32 s{sTMP}, s{sWAVE}, {u}
        s_mul_i32 s{sTMP}, s{sTMP}, 3
        s_add_u32 s{sTMP}, s{sTMP}, {u-1}
        s_lshl_b32 s{sTMP}, s{sTMP}, 13
        s_add_u32 s{sTMP}, s{sTMP}, {48*1024}
        v_add_u32 v{vBs[u]}, s{sTMP}, v{vL16}
        """)
    p(f"""
    s_mul_i32 s{sTMP}, s{sWAVE}, {3*8192}
    s_add_u32 s{sTMP}, s{sTMP}, {48*1024}
    v_add_u32 v{vRB}, s{sTMP}, v{vL16}
    """)
    for mi in range(1, 4):
        for ni in range(2):
            for q in range(4):
                a = 32 * (mi - 1) + 16 * ni + 4 * q
                p(f"ds_write_b128 v{vBs[mi]}, {ar(a,4)} offset:{4096*ni+1024*q}")
    XU = Gv[0]
    for i in range(16):
        p(f"v_lshlrev_b32 v{XU+2*i}, 16, v{XR+i}")
        p(f"v_and_b32 v{XU+2*i+1}, 0xffff0000, v{XR+i}")
    for r in range(0, 32, 2):
        p(f"v_pk_add_f32 {vr(GA0+r,2)}, {vr(GA0+r,2)}, {vr(XU+r,2)}")
    p(f"""
    s_lshl_b32 s{sTMP}, s{sKH}, 6
    s_add_u32 s{sTMP}, s{sTMP}, s{sMB}
    s_mul_i32 s{sTMP}, s{sTMP}, 14
    s_lshl_b32 s{sTMP2}, s{sNP}, 1
    s_add_u32 s{sTMP}, s{sTMP}, s{sTMP2}
    s_lshl_b32 s{sTMP}, s{sTMP}, 11
    s_add_u32 s{sTMP}, s{sTMP}, {BP}
    s_waitcnt lgkmcnt(0)
    """)
    stamp(p, 2)
    p("s_barrier")
    stamp(p, 3)
    R = 40
    for i in range(2):
        for q in range(8):
            p(f"ds_read_b128 {vr(R+32*i+4*q,4)}, v{vRB} offset:{8192*i+1024*q}")
    for r in range(0, 32, 2):
        p(f"v_pk_add_f32 {vr(GA0+r,2)}, {vr(GA0+r,2)}, {vr(R+r,2)}")
    for q in range(8):
        p(f"ds_read_b128 {vr(R+4*q,4)}, v{vRB} offset:{8192*2+1024*q}")
    for r in range(0, 32, 2):
        p(f"v_pk_add_f32 {vr(GA0+r,2)}, {vr(GA0+r,2)}, {vr(R+32+r,2)}")
    for r in range(0, 32, 2):
        p(f"v_pk_add_f32 {vr(GA0+r,2)}, {vr(GA0+r,2)}, {vr(R+r,2)}")
    for i in range(16):
        p(f"v_cvt_pk_bf16_f32 v{R+32+i}, v{GA0+2*i}, v{GA0+2*i+1}")
    for q in range(4):
        p(f"buffer_store_dwordx4 {vr(R+32+4*q,4)}, v{vL16}, s[{sWS}:{sWS+3}], s{sTMP} offen offset:{1024*q} sc1")
    stamp_out(p, 4, 1, sWS, sWAVE, 2, 3, wave_add=4)
    p("K2_END:")
    p("s_endpgm")
    return head("k2_kernel") + p.text() + KD.format(name="k2_kernel", nv=256, ns=(100 if STAMP or DBG else 40), acc=K2_ACC)


K3_LDS = 48 * 1024


def gen_k3():
    p = Prog()
    stamp.k = 2
    sWS, sOUT = 4, 12
    sWAVE, sMP, sNP, sTMP, sTMP2, sA0, sA1, sB0, sB1, sMT, sNT = range(16, 27)
    F = 16
    ACC = 144
    BPv = 208
    UN = 224
    vL16, vXO, vT0, vT1, vA1, vA2, vA3, vRA = 1, 2, 3, 4, 5, 6, 7, 8
    p(f"""
    s_cmp_ge_u32 s2, 224
    s_cbranch_scc1 K3_END
    s_load_dwordx2 s[30:31], s[0:1], 48
    s_load_dwordx2 s[32:33], s[0:1], 64
    v_lshrrev_b32 v1, 6, v0
    v_and_b32 v0, 63, v0
    v_readfirstlane_b32 s{sWAVE}, v1
    s_and_b32 s{sTMP}, s2, 7
    s_lshr_b32 s{sTMP2}, s2, 3
    s_lshl_b32 s{sMP}, s{sTMP}, 2
    s_and_b32 s{sTMP}, s{sTMP2}, 3
    s_add_u32 s{sMP}, s{sMP}, s{sTMP}
    s_lshr_b32 s{sNP}, s{sTMP2}, 2
    v_lshlrev_b32 v{vL16}, 4, v0
    s_lshr_b32 s{sTMP}, s{sWAVE}, 1
    s_lshl_b32 s{sMT}, s{sMP}, 1
    s_add_u32 s{sMT}, s{sMT}, s{sTMP}
    s_and_b32 s{sTMP}, s{sWAVE}, 1
    s_lshl_b32 s{sNT}, s{sNP}, 1
    s_add_u32 s{sNT}, s{sNT}, s{sTMP}
    s_lshl_b32 s{sTMP}, s{sWAVE}, 13
    s_lshl_b32 s{sA0}, s{sNT}, 15
    s_add_u32 s{sA0}, s{sA0}, s{sTMP}
    s_add_u32 s{sA0}, s{sA0}, {WOF}
    s_xor_b32 s{sA1}, s{sA0}, 0x8000
    s_lshl_b32 s{sB0}, s{sMT}, 15
    s_add_u32 s{sB0}, s{sB0}, s{sTMP}
    s_add_u32 s{sB0}, s{sB0}, {OF}
    s_xor_b32 s{sB1}, s{sB0}, 0x8000
    s_mul_i32 s{sTMP}, s{sMT}, 14
    s_add_u32 s{sTMP}, s{sTMP}, s{sNT}
    s_lshl_b32 s{sTMP}, s{sTMP}, 11
    s_add_u32 s{sTMP}, s{sTMP}, {BP}
    s_add_u32 s{sTMP2}, s{sTMP}, {64*14*2048}
    s_waitcnt lgkmcnt(0)
    """)
    stamp(p, 0)
    srd(p, sWS, 32, WS_BYTES)
    so = [sA0, sA1, sB0, sB1]
    for s in range(8):
        if s == 4:
            for r in so:
                p(f"s_add_u32 s{r}, s{r}, 4096")
        for j in range(4):
            p(f"buffer_load_dwordx4 {vr(F+16*s+4*j,4)}, v{vL16}, s[{sWS}:{sWS+3}], s{so[j]} offen offset:{1024*(s%4)}")
    for h in range(2):
        for q in range(2):
            p(f"buffer_load_dwordx4 {vr(BPv+8*h+4*q,4)}, v{vL16}, s[{sWS}:{sWS+3}], s{sTMP if h==0 else sTMP2} offen offset:{1024*q}")
    srd(p, sOUT, 30, XB)
    p(f"""
    v_and_b32 v{vT0}, 31, v0
    v_mul_u32_u24 v{vT0}, 896, v{vT0}
    v_lshrrev_b32 v{vT1}, 5, v0
    v_lshl_add_u32 v{vXO}, v{vT1}, 4, v{vT0}
    s_mul_i32 s{sTMP}, s{sMT}, 28672
    s_lshl_b32 s{sTMP2}, s{sNT}, 6
    s_add_u32 s{sTMP}, s{sTMP}, s{sTMP2}
    """)
    vAs = [None, vA1, vA2, vA3]
    for u in range(1, 4):
        p(f"""
        s_xor_b32 s{sTMP2}, s{sWAVE}, {u}
        s_mul_i32 s{sTMP2}, s{sTMP2}, 3
        s_add_u32 s{sTMP2}, s{sTMP2}, {u-1}
        s_lshl_b32 s{sTMP2}, s{sTMP2}, 12
        v_add_u32 v{vAs[u]}, s{sTMP2}, v{vL16}
        """)
    p(f"""
    s_mul_i32 s{sTMP2}, s{sWAVE}, {3*4096}
    v_add_u32 v{vRA}, s{sTMP2}, v{vL16}
    """)
    stamp(p, 1)
    for s in range(8):
        for u in (1, 2, 3, 0):
            a, b = u & 1, u >> 1
            acc = vr(ACC + 16 * u, 16)
            p(f"{MF} {acc}, {vr(F+16*s+4*a,4)}, {vr(F+16*s+8+4*b,4)}, {'0' if s == 0 else acc}")
    stamp(p, 2)
    for u in range(1, 4):
        for q in range(4):
            p(f"ds_write_b128 v{vAs[u]}, {vr(ACC+16*u+4*q,4)} offset:{1024*q}")
    for i in range(16):
        p(f"v_lshlrev_b32 v{UN+2*i}, 16, v{BPv+i}")
        p(f"v_and_b32 v{UN+2*i+1}, 0xffff0000, v{BPv+i}")
    for r in range(0, 16, 2):
        p(f"v_pk_add_f32 {vr(UN+r,2)}, {vr(UN+r,2)}, {vr(UN+16+r,2)}")
    for r in range(0, 16, 2):
        p(f"v_pk_add_f32 {vr(ACC+r,2)}, {vr(ACC+r,2)}, {vr(UN+r,2)}")
    p("s_waitcnt lgkmcnt(0)")
    p("s_barrier")
    stamp(p, 3)
    R = F
    for i in range(3):
        for q in range(4):
            p(f"ds_read_b128 {vr(R+16*i+4*q,4)}, v{vRA} offset:{4096*i+1024*q}")
    for i in range(3):
        for r in range(0, 16, 2):
            p(f"v_pk_add_f32 {vr(ACC+r,2)}, {vr(ACC+r,2)}, {vr(R+16*i+r,2)}")
    PK = BPv
    for i in range(8):
        p(f"v_cvt_pk_bf16_f32 v{PK+i}, v{ACC+2*i}, v{ACC+2*i+1}")
    for qq in range(2):
        p(f"v_permlane32_swap_b32 v{PK+4*qq}, v{PK+4*qq+2}")
        p(f"v_permlane32_swap_b32 v{PK+4*qq+1}, v{PK+4*qq+3}")
    for qq in range(2):
        p(f"buffer_store_dwordx4 {vr(PK+4*qq,4)}, v{vXO}, s[{sOUT}:{sOUT+3}], s{sTMP} offen offset:{32*qq}")
    stamp_out(p, 4, 2, sWS, sWAVE, 3, 4)
    p("K3_END:")
    p("s_endpgm")
    return head("k3_kernel") + p.text() + KD.format(name="k3_kernel", nv=256, ns=(100 if STAMP or DBG else 40), acc=256)


HEADER = f"""; Kernarg layout for this problem (72 bytes, ptrs only, base s[0:1]):
; @launch kernel=k1_kernel grid=(256,1,1) block=(768,1,1) lds={K1_LDS}
; @launch kernel=k2_kernel grid=(256,1,1) block=(512,1,1) lds={K2_LDS}
; @launch kernel=k3_kernel grid=(224,1,1) block=(256,1,1) lds={K3_LDS}
.amdgcn_target "amdgcn-amd-amdhsa--gfx950"
"""


def post(txt):
    fl = os.environ.get("STFLAG", "")
    if fl:
        out = []
        for line in txt.split("\n"):
            if "buffer_store_dwordx4" in line:
                line = line + " " + fl
            out.append(line)
        txt = "\n".join(out)
    return txt


def main():
    global STAMP, DBG
    DBG = len(sys.argv) > 2 and sys.argv[2] == "dbg"
    STAMP = len(sys.argv) > 2 and sys.argv[2] == "stamp"
    txt = HEADER + gen_k1() + gen_k2() + gen_k3()
    txt = post(txt)
    out = sys.argv[1] if len(sys.argv) > 1 else f"cdna_kernels/{NAME}.s"
    open(out, "w").write(txt)
    print("wrote", out, len(txt), "bytes")


if __name__ == "__main__":
    main()
```

```python
import sys, struct, os
from asmgen import *

NAME = "parallel_sum__mha_block__dense_activation_relu__prompt"

QF = 0
KVF = 2 << 20
HF = 6 << 20
W2F = 13 << 20
WOF = 15 << 20
OF = 16 << 20
BP = 18 << 20
WS_BYTES = 26 << 20
OOB = 0x40000000

XB = 2048 * 448 * 2
WQKVB = 448 * 1344 * 2
WOB = 448 * 448 * 2
W1B = 448 * 1792 * 2
W2B = 1792 * 448 * 2

MF = "v_mfma_f32_32x32x16_bf16"


def f32bits(x):
    return struct.unpack("<I", struct.pack("<f", x))[0]


def vr(b, n):
    return f"v[{b}:{b+n-1}]"


def ar(b, n):
    return f"a[{b}:{b+n-1}]"


def srd(p, d, base, nbytes):
    p(f"""
    s_mov_b32 s{d}, s{base}
    s_and_b32 s{d+1}, s{base+1}, 0xffff
    s_mov_b32 s{d+2}, {nbytes}
    s_mov_b32 s{d+3}, 0x00020000
    """)


STAMP = False
STAMP_BASE = 32 << 20


DBG = False


def dbg_mark(p, kidx, slot, vt=1):
    if not DBG:
        return
    uid = dbg_mark.n = getattr(dbg_mark, "n", 0) + 1
    p(f"""
    s_cmp_eq_u32 s2, 0
    s_cselect_b32 s70, 0, 32
    s_cbranch_scc1 DBGA{uid}
    s_cmp_lg_u32 s2, 200
    s_cbranch_scc1 DBGB{uid}
    DBGA{uid}:
    s_load_dwordx2 s[64:65], s[0:1], 64
    s_load_dwordx2 s[72:73], s[0:1], 56
    s_waitcnt vmcnt(0)
    s_memrealtime s[66:67]
    s_waitcnt lgkmcnt(0)
    s_add_u32 s64, s64, {30 << 20}
    s_addc_u32 s65, s65, 0
    s_mov_b64 s[68:69], exec
    s_mov_b64 exec, 1
    v_mov_b32 v{vt}, s70
    v_mov_b32 v{vt+1}, s66
    global_store_dword v{vt}, v{vt+1}, s[64:65] offset:{4*slot} sc0 sc1
    s_mov_b64 exec, s[68:69]
    """)
    if slot == 5:
        p(f"""
        s_waitcnt vmcnt(0)
        s_mov_b64 exec, 0xffff
        v_lshlrev_b32 v{vt}, 2, v0
        global_load_dword v{vt+1}, v{vt}, s[64:65] sc0 sc1
        s_waitcnt vmcnt(0)
        global_store_dword v{vt}, v{vt+1}, s[72:73]
        s_sub_u32 s72, s72, 1024
        s_subb_u32 s73, s73, 0
        global_store_dword v{vt}, v{vt+1}, s[72:73]
        s_mov_b64 exec, s[68:69]
        """)
    p(f"DBGB{uid}:")


def stamp(p, i):
    if DBG and i == 0:
        dbg_mark(p, stamp.k, 2 * stamp.k, 100)
    if STAMP:
        p(f"s_memrealtime s[{64+4*i}:{65+4*i}]")
        p(f"s_memtime s[{66+4*i}:{67+4*i}]")
        p("s_waitcnt lgkmcnt(0)")


def stamp_if(p, i, sreg, val):
    if STAMP:
        uid = stamp_if.n = getattr(stamp_if, "n", 0) + 1
        p(f"s_cmp_lg_u32 s{sreg}, {val}")
        p(f"s_cbranch_scc1 STI{uid}")
        stamp(p, i)
        p(f"STI{uid}:")


def stamp_out(p, n, kidx, sWS, sWAVE, vtmp=1, vtmp2=2, wave_add=0):
    dbg_mark(p, kidx, 2 * kidx + 1, 100)
    if not STAMP:
        return
    p("s_waitcnt vmcnt(0) lgkmcnt(0)")
    stamp(p, n)
    p(f"v_mov_b32 v{vtmp}, 0")
    for i in range(n + 1):
        p(f"v_writelane_b32 v{vtmp}, s{64+4*i}, {i}")
        p(f"v_writelane_b32 v{vtmp}, s{66+4*i}, {16+i}")
    p(f"""
    s_getreg_b32 s60, hwreg(HW_REG_HW_ID)
    s_getreg_b32 s61, hwreg(HW_REG_XCC_ID)
    v_writelane_b32 v{vtmp}, s60, 32
    v_writelane_b32 v{vtmp}, s61, 33
    s_lshl_b32 s60, s2, 3
    s_add_u32 s60, s60, s{sWAVE}
    s_add_u32 s60, s60, {wave_add}
    s_lshl_b32 s60, s60, 8
    s_add_u32 s60, s60, {STAMP_BASE + (kidx << 20)}
    v_lshlrev_b32 v{vtmp2}, 2, v0
    s_mov_b32 s{sWS+2}, {64 << 20}
    buffer_store_dword v{vtmp}, v{vtmp2}, s[{sWS}:{sWS+3}], s60 offen
    """)


KD = """
.section .rodata,"a"
.p2align 6
KD_{name}:
.amdhsa_kernel {name}
  .amdhsa_next_free_vgpr {nv}
  .amdhsa_next_free_sgpr {ns}
  .amdhsa_accum_offset {acc}
  .amdhsa_group_segment_fixed_size 0
  .amdhsa_kernarg_size 72
  .amdhsa_user_sgpr_count 2
  .amdhsa_user_sgpr_kernarg_segment_ptr 1
  .amdhsa_system_sgpr_workgroup_id_x 1
.end_amdhsa_kernel
"""


def head(name):
    return f""".text
.globl {name}
.p2align 8
.type {name},@function
{name}:
"""


WST = 64 * 448
STG = WST + 4 * 4096
CSA = 3 * STG
STA = CSA + 1024
K1_LDS = max(STA + 1024, 128 * 896 + 32 * 896)


def gen_k1():
    p = Prog()
    stamp.k = 0
    sX, sW, sWS = 4, 8, 16
    sWAVE, sMT, sT0, sG, sTMP, sTMP2, sTMP3, sST, sTYPE, sDELTA, sSTRIDE, sOFF, sM0, sK, sNL, sLS, sTS, sXO, sCNT, sCUR, sT = range(20, 41)
    p(f"""
    s_cmp_ge_u32 s2, 256
    s_cbranch_scc1 K1_END
    s_load_dwordx4 s[44:47], s[0:1], 0
    s_load_dwordx2 s[48:49], s[0:1], 16
    s_load_dwordx4 s[52:55], s[0:1], 32
    s_load_dwordx2 s[56:57], s[0:1], 64
    v_lshrrev_b32 v1, 6, v0
    v_and_b32 v0, 63, v0
    v_readfirstlane_b32 s{sWAVE}, v1
    s_and_b32 s{sTMP}, s2, 7
    s_lshr_b32 s{sTMP2}, s2, 3
    s_lshr_b32 s{sMT}, s{sTMP}, 1
    s_lshl_b32 s{sMT}, s{sMT}, 2
    s_and_b32 s{sTMP3}, s{sTMP2}, 3
    s_add_u32 s{sMT}, s{sMT}, s{sTMP3}
    s_lshr_b32 s{sG}, s{sTMP2}, 2
    s_and_b32 s{sTYPE}, s{sTMP}, 1
    s_mul_i32 s{sT0}, s{sG}, 7
    s_cmp_eq_u32 s{sTYPE}, 1
    s_cselect_b32 s{sTS}, 56, 64
    s_movk_i32 s{sTMP}, 3584
    s_cselect_b32 s{sSTRIDE}, 2688, s{sTMP}
    s_waitcnt lgkmcnt(0)
    """)
    stamp(p, 0)
    srd(p, sWS, 56, WS_BYTES)
    p(f"""
    s_lshl_b32 s{sTMP}, s{sTYPE}, 3
    s_add_u32 s{sTMP}, s{sTMP}, s{sG}
    s_cmp_eq_u32 s{sTMP}, 15
    s_cbranch_scc1 K1_TRANS
    s_lshl_b32 s{sMT}, s{sMT}, 2
    v_lshrrev_b32 v2, 5, v0
    v_lshlrev_b32 v3, 3, v2
    v_bfe_u32 v4, v0, 2, 2
    v_add_u32 v3, v3, v4
    v_mul_u32_u24 v3, 448, v3
    v_bfe_u32 v4, v0, 4, 1
    v_lshl_add_u32 v3, v4, 5, v3
    v_and_b32 v4, 3, v0
    v_lshl_add_u32 v3, v4, 3, v3
    s_cmp_ge_u32 s{sWAVE}, 4
    s_cbranch_scc1 K1_LOADER
    s_add_u32 s{sMT}, s{sMT}, s{sWAVE}
    s_setprio {os.environ.get("K1CP", "1")}
    """)
    ACC = 8
    NW = 7
    WF = 120
    XF = 148
    vT = 156
    vXA = 163
    vH, vL16, vTK, vUA, vSA = 2, 4, 5, 6, 7
    U = [120, 136]
    vA, vB, vRINV, vO6, vO7, vVW, vVR, vMA, vOA, T = 152, 154, 156, 157, 158, 159, 160, 161, 162, 163
    for j in range(7):
        p(f"s_mul_i32 s{sTMP}, s{sTS}, {j}")
        p(f"v_add_u32 v{vT+j}, s{sTMP}, v3")
    p(f"""
    v_and_b32 v{vTK}, 31, v0
    v_bfe_u32 v1, v0, 1, 3
    v_xor_b32 v1, v{vH}, v1
    s_lshl_b32 s{sTMP}, s{sWAVE}, 12
    s_add_u32 s{sTMP}, s{sTMP}, {WST}
    v_lshl_add_u32 v3, v{vTK}, 7, s{sTMP}
    v_lshlrev_b32 v{vL16}, 4, v0
    """)
    for sp in range(4):
        p(f"v_xor_b32 v{vXA+sp}, {2*sp}, v1")
        p(f"v_lshl_add_u32 v{vXA+sp}, v{vXA+sp}, 4, v3")
    for i in range(112):
        p(f"v_mov_b32 v{ACC+i}, 0")
    p(f"""
    s_lshl_b32 s{sTMP}, s{sWAVE}, 8
    s_add_u32 s{sTMP}, s{sTMP}, {STA}
    v_lshl_add_u32 v{vSA}, v{vTK}, 3, s{sTMP}
    s_mov_b32 s{sCNT}, 7
    s_mov_b32 s{sCUR}, 0
    v_lshlrev_b32 v{vUA}, 4, v{vH}
    v_add_u32 v{vUA}, {CSA}, v{vUA}
    v_cmp_gt_u32 s[60:61], 32, v0
    s_mul_i32 s{sST}, s{sMT}, 114688
    s_lshl_b32 s{sTMP}, s{sT0}, 11
    s_add_u32 s{sST}, s{sST}, s{sTMP}
    s_add_u32 s{sST}, s{sST}, {HF}
    """)
    stamp(p, 1)
    p("s_barrier")
    stamp(p, 2)
    AH = 6

    def rdw(n):
        s, j = divmod(n % 28, 7)
        b = WF + 4 * (n % NW)
        o = [I(f"ds_read_b64_tr_b16 {vr(b,2)}, v{vT+j} offset:{16*448*s}"),
             I(f"ds_read_b64_tr_b16 {vr(b+2,2)}, v{vT+j} offset:{16*448*s+4*448}")]
        if s == 3:
            o.append(I(f"v_add_u32 v{vT+j}, s{sDELTA}, v{vT+j}"))
        return o

    def rdx(s):
        s %= 4
        return [I(f"ds_read_b128 {vr(XF+4*(s&1),4)}, v{vXA+s}"),
                I(f"v_add_u32 v{vXA+s}, s{sDELTA}, v{vXA+s}")]

    def delta():
        return [I(f"s_add_u32 s{sCUR}, s{sCUR}, 1"),
                I(f"s_cmp_eq_u32 s{sCUR}, 3"),
                I(f"s_cselect_b32 s{sCUR}, 0, s{sCUR}"),
                I(f"s_mov_b32 s{sTMP}, {STG}"),
                I(f"s_cselect_b32 s{sDELTA}, {(-2*STG) & 0xffffffff:#x}, s{sTMP}")]

    p.add(delta())
    p.add(rdx(0))
    for n in range(AH):
        p.add(rdw(n))
    body = [I(".p2align 6"), I("K1_LOOP:")]
    for n in range(28):
        s, j = divmod(n, 7)
        acc = vr(ACC + 16 * j, 16)
        body.append(I(f"{MF} {acc}, {vr(WF+4*(n%NW),4)}, {vr(XF+4*(s&1),4)}, {acc}"))
        m = n + AH
        if m < 28:
            body += rdw(m)
        if n == 22:
            body += delta()
        if n == 23:
            body += [I("s_waitcnt lgkmcnt(0)"), I("s_barrier")] + rdx(0) + rdw(28)
        if n >= 24:
            k = {24: [29], 25: [30, 31], 26: [32], 27: [33]}[n]
            for m in k:
                body += rdw(m)
        if j == 0 and s < 3:
            body += rdx(s + 1)
        if n == 26:
            body += [I(f"s_sub_u32 s{sCNT}, s{sCNT}, 1"), I(f"s_cmp_lg_u32 s{sCNT}, 0")]
    body += [I("s_cbranch_scc1 K1_LOOP")]
    p.loop(body)
    stamp(p, 3)

    def rdu(j):
        return [I(f"ds_read_b128 {vr(U[j&1]+4*q,4)}, v{vUA} offset:{128*j+32*q}") for q in range(4)]

    p(f"""
    s_nop 1
    ds_read_b64 {vr(vB,2)}, v{vSA}
    """)
    p.add(rdu(0))
    p(f"""
    v_mov_b32 v{vRINV}, v{vB+1}
    v_mov_b32 v{vA}, v{vB+1}
    s_cmp_eq_u32 s{sTYPE}, 1
    s_cbranch_scc1 K1_EQ
    """)
    p.flush()
    st_e = p.tr.copy()

    def common(j):
        u = U[j & 1]
        acc = ACC + 16 * j
        o = rdu(j + 1) if j < 6 else []
        for i in range(8):
            o.append(I(f"v_pk_fma_f32 {vr(u+2*i,2)}, {vr(u+2*i,2)}, {vr(vB,2)}, {vr(acc+2*i,2)} op_sel_hi:[1,0,1]"))
        for i in range(8):
            o.append(I(f"v_pk_mul_f32 {vr(u+2*i,2)}, {vr(u+2*i,2)}, {vr(vA,2)} op_sel_hi:[1,0]"))
        pk = ACC + 16 * j
        for i in range(8):
            o.append(I(f"v_cvt_pk_bf16_f32 v{pk+i}, v{u+2*i}, v{u+2*i+1}"))
        return o, pk

    def store(pk, off=0):
        return [I(f"buffer_store_dwordx4 {vr(pk,4)}, v{vL16}, s[{sWS}:{sWS+3}], s{sST} offen offset:{off} sc1"),
                I(f"buffer_store_dwordx4 {vr(pk+4,4)}, v{vL16}, s[{sWS}:{sWS+3}], s{sST} offen offset:{off+1024} sc1")]

    for j in range(7):
        o, pk = common(j)
        p.add(o)
        for i in range(8):
            p(f"v_pk_max_i16 v{pk+i}, v{pk+i}, 0")
        p.add(store(pk, 2048 * (j & 1)))
        if j & 1:
            p(f"s_add_u32 s{sST}, s{sST}, 4096")
    stamp_out(p, 4, 0, sWS, sWAVE, 2, 3)
    p("s_endpgm")
    p.flush()
    p.tr = st_e
    c = (28 ** -0.5) * 1.4426950408889634
    p(f"""
    K1_EQ:
    s_lshl_b32 s{sTMP}, s{sWAVE}, 11
    v_lshl_add_u32 v{vVW}, v{vH}, 3, s{sTMP}
    v_lshl_add_u32 v{vVW}, v{vTK}, 6, v{vVW}
    v_lshl_add_u32 v{vVR}, v{vH}, 8, s{sTMP}
    v_bfe_u32 v{T}, v0, 2, 2
    v_lshl_add_u32 v{vVR}, v{T}, 6, v{vVR}
    v_bfe_u32 v{T}, v0, 4, 1
    v_lshl_add_u32 v{vVR}, v{T}, 5, v{vVR}
    v_and_b32 v{T}, 3, v0
    v_lshl_add_u32 v{vVR}, v{T}, 3, v{vVR}
    v_cmp_gt_u32 vcc, 28, v{vTK}
    v_cndmask_b32 v{vMA}, 0, -1, vcc
    v_mov_b32 v{T}, 0x3f803f80
    v_cmp_eq_u32 vcc, 28, v{vTK}
    v_cndmask_b32 v{vOA}, 0, v{T}, vcc
    s_mov_b32 s{sT}, s{sT0}
    """)
    for j in range(7):
        if j == 6:
            p(f"""
            s_cmp_eq_u32 s{sT}, 48
            s_cbranch_scc1 K1_EX
            """)
        p(f"""
        s_lshr_b32 s{sTYPE}, s{sT}, 4
        s_and_b32 s{sTMP}, s{sT}, 15
        s_lshl_b32 s{sTMP}, s{sTMP}, 6
        s_add_u32 s{sTMP}, s{sTMP}, s{sMT}
        s_lshl_b32 s{sST}, s{sTMP}, 11
        s_lshl_b32 s{sTMP}, s{sTMP}, 12
        s_add_u32 s{sTMP}, s{sTMP}, {KVF}
        s_cmp_eq_u32 s{sTYPE}, 0
        s_cselect_b32 s{sST}, s{sST}, s{sTMP}
        s_cselect_b32 s{sTMP}, {f32bits(c):#x}, 1.0
        v_mul_f32 v{vA}, s{sTMP}, v{vRINV}
        s_cselect_b32 s{sTMP}, 0, 0x3f803f80
        s_cselect_b32 s{sTMP2}, 0, 0x3f80
        v_mov_b32 v{vO6}, s{sTMP}
        v_mov_b32 v{vO7}, s{sTMP2}
        s_add_u32 s{sT}, s{sT}, 1
        """)
        o, pk = common(j)
        p.add(o)
        p(f"""
        s_cmp_eq_u32 s{sTYPE}, 2
        s_cbranch_scc1 K1_EV{j}
        v_cndmask_b32 v{pk+6}, v{vO6}, v{pk+6}, s[60:61]
        v_cndmask_b32 v{pk+7}, v{vO7}, v{pk+7}, s[60:61]
        """)
        p.add(store(pk))
        p(f"s_branch K1_EN{j}")
        p.flush()
        keep = p.tr.copy()
        p(f"K1_EV{j}:")
        for q in range(4):
            p(f"ds_write_b64 v{vVW}, {vr(pk+2*q,2)} offset:{16*q}")
        pv = pk + 8
        for i in range(2):
            p(f"ds_read_b64_tr_b16 {vr(pv+4*i,2)}, v{vVR} offset:{1024*i}")
            p(f"ds_read_b64_tr_b16 {vr(pv+4*i+2,2)}, v{vVR} offset:{1024*i+512}")
        for i in range(8):
            p(f"v_and_or_b32 v{pv+i}, v{pv+i}, v{vMA}, v{vOA}")
        p.add(store(pv, 2048))
        p(f"K1_EN{j}:")
        p.flush()
        p.tr = keep
    p("K1_EX:")
    stamp_out(p, 4, 0, sWS, sWAVE, 2, 3)
    p("s_endpgm")
    p.flush()

    p.tr = Tracker()
    vO, vX = 8, 16
    p(f"""
    K1_LOADER:
    s_cmp_ge_u32 s{sWAVE}, 8
    s_cbranch_scc1 K1_STATS
    """)
    srd(p, sX, 44, XB)
    p(f"""
    s_sub_u32 s{sWAVE}, s{sWAVE}, 4
    s_add_u32 s{sXO}, s{sMT}, s{sWAVE}
    s_mul_i32 s{sXO}, s{sXO}, 28672
    v_lshrrev_b32 v4, 3, v0
    v_mul_u32_u24 v4, 896, v4
    v_lshrrev_b32 v5, 4, v0
    v_and_b32 v6, 7, v0
    v_xor_b32 v6, v5, v6
    v_lshl_add_u32 v{vX}, v6, 4, v4
    v_xor_b32 v6, 4, v6
    v_lshl_add_u32 v{vX+1}, v6, 4, v4
    s_cmp_eq_u32 s{sTYPE}, 1
    s_cselect_b32 s{sW}, s46, s52
    s_cselect_b32 s{sW+1}, s47, s53
    s_mov_b32 s{sTMP}, {W1B}
    s_cselect_b32 s{sW+2}, {WQKVB}, s{sTMP}
    s_and_b32 s{sW+1}, s{sW+1}, 0xffff
    s_mov_b32 s{sW+3}, 0x00020000
    s_mul_i32 s{sOFF}, s{sT0}, s{sTS}
    s_lshl_b32 s{sTMP}, s{sWAVE}, 4
    s_mul_i32 s{sTMP}, s{sTMP}, s{sSTRIDE}
    s_add_u32 s{sOFF}, s{sOFF}, s{sTMP}
    """)
    for d in range(7):
        p(f"""
        v_add_u32 v4, {64*d}, v0
        v_mul_u32_u24 v5, 2341, v4
        v_lshrrev_b32 v5, 16, v5
        v_mul_u32_u24 v6, 28, v5
        v_sub_u32 v4, v4, v6
        v_lshlrev_b32 v4, 4, v4
        v_mad_u32_u24 v{vO+d}, v5, s{sSTRIDE}, v4
        """)
    p(f"""
    s_mov_b32 s{sLS}, 0
    s_mov_b32 s{sK}, -2
    s_lshl_b32 s{sTMP3}, s{sSTRIDE}, 6
    K1_LT:
    s_lshl_b32 s{sM0}, s{sWAVE}, 12
    s_add_u32 s{sM0}, s{sM0}, s{sLS}
    """)
    for g in range(4):
        p(f"s_add_u32 m0, s{sM0}, {WST+1024*g}")
        p(f"s_add_u32 s{sTMP}, s{sXO}, {8*896*g}")
        p(f"buffer_load_dwordx4 v{vX+(g&1)}, s[{sX}:{sX+3}], s{sTMP} offen lds")
    p(f"""
    s_mul_i32 s{sM0}, s{sWAVE}, 7168
    s_add_u32 s{sM0}, s{sM0}, s{sLS}
    """)
    for d in range(7):
        p(f"s_add_u32 m0, s{sM0}, {1024*d}")
        p(f"buffer_load_dwordx4 v{vO+d}, s[{sW}:{sW+3}], s{sOFF} offen lds")
    p(f"""
    s_add_u32 s{sOFF}, s{sOFF}, s{sTMP3}
    s_add_u32 s{sXO}, s{sXO}, 128
    s_add_u32 s{sLS}, s{sLS}, {STG}
    s_cmp_eq_u32 s{sLS}, {3*STG}
    s_cselect_b32 s{sLS}, 0, s{sLS}
    s_add_u32 s{sK}, s{sK}, 1
    s_cmp_lt_i32 s{sK}, 0
    s_cbranch_scc1 K1_LT
    """)
    if os.environ.get("K1PF", "0") != "0":
        p(f"""
        s_cmp_lg_u32 s{sK}, 0
        s_cbranch_scc1 K1_LP
        s_lshr_b32 s{sTMP}, s{sMT}, 2
        s_and_b32 s{sTMP}, s{sTMP}, 3
        s_lshl_b32 s{sTMP}, s{sTMP}, 6
        s_add_u32 s{sTMP}, s{sTMP}, 64
        s_mul_i32 s{sTMP}, s{sTMP}, s{sSTRIDE}
        s_add_u32 s{sTMP}, s{sTMP}, s{sOFF}
        v_lshrrev_b32 v4, 3, v0
        v_and_b32 v5, 7, v0
        v_lshlrev_b32 v5, 6, v5
        v_mad_u32_u24 v6, v4, s{sSTRIDE}, v5
        s_lshl_b32 s{sTMP2}, s{sSTRIDE}, 3
        s_add_u32 s{sTMP2}, s{sTMP2}, s{sTMP}
        s_mov_b32 exec_lo, 0xd5d5d5d5
        s_mov_b32 exec_hi, 0xd5d5d5d5
        buffer_load_dword v20, v6, s[{sW}:{sW+3}], s{sTMP} offen
        buffer_load_dword v21, v6, s[{sW}:{sW+3}], s{sTMP2} offen
        s_mov_b64 exec, -1
        s_lshl_b32 s{sTMP}, s{sG}, 4
        s_lshl_b32 s{sTMP2}, s{sWAVE}, 2
        s_add_u32 s{sTMP}, s{sTMP}, s{sTMP2}
        s_lshl_b32 s{sTMP2}, s{sMT}, 5
        s_add_u32 s{sTMP}, s{sTMP}, s{sTMP2}
        s_mul_i32 s{sTMP}, s{sTMP}, 896
        v_lshrrev_b32 v4, 4, v0
        v_mul_u32_u24 v4, 896, v4
        v_and_b32 v5, 15, v0
        v_lshl_add_u32 v6, v5, 7, v4
        s_mov_b32 exec_lo, 0x00780078
        s_mov_b32 exec_hi, 0x00780078
        buffer_load_dword v22, v6, s[{sX}:{sX+3}], s{sTMP} offen
        s_mov_b64 exec, -1
        K1_LP:
        s_cmp_lt_u32 s{sK}, 2
        s_cbranch_scc1 K1_LQ
        """)
    stamp_if(p, 2, sK, 4)
    p("s_waitcnt vmcnt(11)")
    p("K1_LQ:")
    p("s_waitcnt vmcnt(14)")
    stamp_if(p, 3, sK, 4)
    p("s_barrier")
    stamp_if(p, 4, sK, 4)
    stamp_if(p, 1, sK, 3)
    p(f"""
    s_cmp_lt_u32 s{sK}, 5
    s_cbranch_scc1 K1_LT
    s_waitcnt vmcnt(0)
    s_barrier
    """)
    if os.environ.get("CPF", "1") != "0":
        p(f"""
        s_getpc_b64 s[4:5]
        K1_PC:
        s_add_u32 s4, s4, k2_kernel-K1_PC
        s_addc_u32 s5, s5, 0
        s_getpc_b64 s[8:9]
        s_add_u32 s8, s8, KD_k2_kernel@rel32@lo+4
        s_addc_u32 s9, s9, KD_k2_kernel@rel32@hi+12
        s_lshl_b32 s{sTMP}, s{sWAVE}, 12
        v_lshl_add_u32 v4, v0, 6, s{sTMP}
        v_min_u32 v4, K3_END-k2_kernel, v4
        v_and_b32 v5, 1, v0
        v_lshlrev_b32 v5, 6, v5
        global_load_dword v6, v4, s[4:5]
        global_load_dword v7, v5, s[8:9]
        """)
    stamp_out(p, 5, 0, sWS, sWAVE, 5, 6, wave_add=4)
    p("s_endpgm")
    p.flush()

    p.tr = Tracker()
    vTL, vS, F, E2, vXR, ONE, CS, XD = 18, 20, 32, 64, 72, 76, 80, 88
    T = E2
    p(f"""
    K1_STATS:
    s_setprio {os.environ.get("K1SP", "3")}
    s_sub_u32 s{sWAVE}, s{sWAVE}, 8
    s_mul_i32 s{sTMP}, s{sWAVE}, s{sTS}
    v_add_u32 v{vTL}, s{sTMP}, v3
    s_lshl_b32 s{sTMP}, s{sTS}, 2
    v_add_u32 v{vTL+1}, s{sTMP}, v{vTL}
    s_mov_b32 s{sCUR}, 0
    s_mov_b32 s{sCNT}, 7
    """)
    for i in range(4):
        p(f"v_mov_b32 v{vS+i}, 0")
    for i in range(8):
        p(f"v_mov_b32 v{CS+i}, 0")
    p(f"""
    v_and_b32 v4, 31, v0
    v_bfe_u32 v5, v0, 1, 3
    v_xor_b32 v5, v2, v5
    s_lshl_b32 s{sTMP}, s{sWAVE}, 12
    s_add_u32 s{sTMP}, s{sTMP}, {WST}
    v_lshl_add_u32 v6, v4, 7, s{sTMP}
    """)
    for sp in range(4):
        p(f"v_xor_b32 v{vXR+sp}, {2*sp}, v5")
        p(f"v_lshl_add_u32 v{vXR+sp}, v{vXR+sp}, 4, v6")
    p(f"""
    v_and_b32 v4, 15, v0
    v_bfe_u32 v5, v0, 4, 1
    v_mov_b32 v6, 0x3f803f80
    v_cmp_eq_u32 vcc, v4, v5
    v_cndmask_b32 v{ONE}, 0, v6, vcc
    v_mov_b32 v{ONE+1}, v{ONE}
    v_mov_b32 v{ONE+2}, v{ONE}
    v_mov_b32 v{ONE+3}, v{ONE}
    """)
    body = ["K1_SL:", "s_barrier",
            f"v_add_u32 v4, s{sCUR}, v{vTL}", f"v_add_u32 v5, s{sCUR}, v{vTL+1}"]
    for sp in range(4):
        body += [f"v_add_u32 v6, s{sCUR}, v{vXR+sp}", f"ds_read_b128 {vr(XD+4*sp,4)}, v6"]
    rds = []
    for s in range(4):
        for t in range(2):
            b = F + 16 * t + 4 * s
            rds.append([f"ds_read_b64_tr_b16 {vr(b,2)}, v{4+t} offset:{16*448*s}",
                        f"ds_read_b64_tr_b16 {vr(b+2,2)}, v{4+t} offset:{16*448*s+4*448}"])
    body += rds[0] + rds[1] + rds[2] + rds[3]
    for d in range(16):
        e = E2 + 2 * (d % 4)
        body += [f"v_lshlrev_b32 v{e}, 16, v{XD+d}",
                 f"v_and_b32 v{e+1}, 0xffff0000, v{XD+d}",
                 f"v_add_f32 v{vS}, v{vS}, v{e}",
                 f"v_add_f32 v{vS+1}, v{vS+1}, v{e+1}",
                 f"v_fmac_f32 v{vS+2}, v{e}, v{e}",
                 f"v_fmac_f32 v{vS+3}, v{e+1}, v{e+1}"]
        if d < 4:
            body += rds[4 + d]
        if d & 1:
            n = d >> 1
            t = n & 1
            body.append(f"v_mfma_f32_16x16x32_bf16 {vr(CS+4*t,4)}, {vr(ONE,4)}, {vr(F+16*t+4*(n>>1),4)}, {vr(CS+4*t,4)}")
    body += [f"s_add_u32 s{sCUR}, s{sCUR}, {STG}",
             f"s_cmp_eq_u32 s{sCUR}, {3*STG}",
             f"s_cselect_b32 s{sCUR}, 0, s{sCUR}",
             f"s_sub_u32 s{sCNT}, s{sCNT}, 1",
             f"s_cmp_lg_u32 s{sCNT}, 0",
             "s_cbranch_scc1 K1_SL"]
    p.loop(body)
    p(f"""
    v_add_f32 v{T}, v{vS}, v{vS+1}
    v_add_f32 v{T+4}, v{vS+2}, v{vS+3}
    v_mov_b32 v{T+1}, v{T}
    v_mov_b32 v{T+5}, v{T+4}
    s_lshl_b32 s{sTMP}, s{sWAVE}, 7
    s_add_u32 s{sTMP}, s{sTMP}, {CSA}
    v_permlane32_swap_b32 v{T}, v{T+1}
    v_permlane32_swap_b32 v{T+4}, v{T+5}
    v_add_f32 v{T}, v{T}, v{T+1}
    v_add_f32 v{T+4}, v{T+4}, v{T+5}
    v_mul_f32 v{T}, {f32bits(1.0/448.0):#x}, v{T}
    v_mul_f32 v{T+4}, {f32bits(1.0/448.0):#x}, v{T+4}
    v_fma_f32 v{T+4}, -v{T}, v{T}, v{T+4}
    v_cvt_pk_bf16_f32 v{T+1}, v{T}, v{T}
    v_max_f32 v{T+4}, 0, v{T+4}
    v_and_b32 v{T+1}, 0xffff0000, v{T+1}
    v_cvt_pk_bf16_f32 v{T+4}, v{T+4}, v{T+4}
    v_sub_f32 v{T+2}, 0, v{T+1}
    v_and_b32 v{T+4}, 0xffff0000, v{T+4}
    v_add_f32 v{T+4}, {f32bits(1e-5):#x}, v{T+4}
    v_cvt_pk_bf16_f32 v{T+4}, v{T+4}, v{T+4}
    v_and_b32 v{T+4}, 0xffff0000, v{T+4}
    v_sqrt_f32 v{T+4}, v{T+4}
    v_lshl_add_u32 v4, v0, 2, s{sTMP}
    v_cvt_pk_bf16_f32 v{T+4}, v{T+4}, v{T+4}
    v_and_b32 v{T+4}, 0xffff0000, v{T+4}
    v_rcp_f32 v{T+3}, v{T+4}
    s_lshl_b32 s{sTMP}, s{sWAVE}, 8
    s_add_u32 s{sTMP}, s{sTMP}, {STA}
    v_and_b32 v5, 31, v0
    v_lshl_add_u32 v5, v5, 3, s{sTMP}
    ds_write_b64 v5, {vr(T+2,2)}
    s_mov_b64 exec, 0xffff
    ds_write_b32 v4, v{CS}
    ds_write_b32 v4, v{CS+1} offset:64
    ds_write_b32 v4, v{CS+4} offset:512
    ds_write_b32 v4, v{CS+5} offset:576
    s_mov_b64 exec, -1
    s_waitcnt lgkmcnt(0)
    s_barrier
    s_endpgm
    """)
    p.flush()

    p.tr = Tracker()
    sW2, sWO, sC = 4, 8, sMT
    WOA = 128 * 896
    p(f"""
    K1_TRANS:
    s_cmp_ge_u32 s{sWAVE}, 8
    s_cbranch_scc1 K1_END
    """)
    srd(p, sW2, 54, W2B)
    srd(p, sWO, 48, WOB)
    vL, vB2, vTW, vTO = 1, 2, 3, 4
    p(f"""
    v_lshlrev_b32 v{vL}, 4, v0
    s_mul_i32 s{sOFF}, s{sC}, {28*896}
    s_lshl_b32 s{sM0}, s{sWAVE}, 12
    s_add_u32 s{sOFF}, s{sOFF}, s{sM0}
    s_add_u32 m0, s{sM0}, {WOA}
    s_cmp_eq_u32 s{sWAVE}, 7
    s_cbranch_scc1 K1_TR1
    """)
    for d in range(4):
        p(f"buffer_load_dwordx4 v{vL}, s[{sWO}:{sWO+3}], s{sOFF} offen offset:{1024*d} lds")
    p(f"""
    K1_TR1:
    s_mul_i32 s{sOFF}, s{sC}, {128*896}
    s_mul_i32 s{sM0}, s{sWAVE}, {14*1024}
    s_add_u32 s{sOFF}, s{sOFF}, s{sM0}
    """)
    for d in range(14):
        if d % 4 == 0:
            p(f"s_add_u32 m0, s{sM0}, {1024*d}")
            p(f"s_add_u32 s{sTMP}, s{sOFF}, {1024*d}")
        p(f"buffer_load_dwordx4 v{vL}, s[{sW2}:{sW2+3}], s{sTMP} offen offset:{1024*(d%4)} lds")
    p(f"""
    v_lshrrev_b32 v{vB2}, 5, v0
    v_lshlrev_b32 v{vTW}, 2, v{vB2}
    v_bfe_u32 v{vB2}, v0, 2, 2
    v_add_u32 v{vTW}, v{vTW}, v{vB2}
    v_mul_u32_u24 v{vTW}, 896, v{vTW}
    v_bfe_u32 v{vB2}, v0, 4, 1
    v_lshl_add_u32 v{vTW}, v{vB2}, 5, v{vTW}
    v_and_b32 v{vB2}, 3, v0
    v_lshl_add_u32 v{vTW}, v{vB2}, 3, v{vTW}
    s_lshl_b32 s{sTMP}, s{sWAVE}, 7
    s_add_u32 s{sTMP}, s{sTMP}, {WOA}
    v_add_u32 v{vTO}, s{sTMP}, v{vTW}
    s_mul_i32 s{sTMP}, s{sWAVE}, {16*896}
    v_add_u32 v{vTW}, s{sTMP}, v{vTW}
    v_cmp_gt_u32 vcc, 32, v0
    s_waitcnt vmcnt(0)
    s_barrier
    s_cmp_eq_u32 s{sWAVE}, 7
    s_cbranch_scc1 K1_TR2
    """)
    G = 16
    for t in range(2):
        for i in range(2):
            b = G + 8 * t + 4 * i
            p(f"ds_read_b64_tr_b16 {vr(b,2)}, v{vTO} offset:{64*t+16*896*i}")
            p(f"ds_read_b64_tr_b16 {vr(b+2,2)}, v{vTO} offset:{64*t+16*896*i+8*896}")
    p(f"""
    s_lshl_b32 s{sOFF}, s{sWAVE}, 16
    s_lshl_b32 s{sTMP}, s{sC}, 11
    s_add_u32 s{sOFF}, s{sOFF}, s{sTMP}
    s_add_u32 s{sOFF}, s{sOFF}, {WOF}
    s_add_u32 s{sTMP}, s{sOFF}, 32768
    """)
    for t in range(2):
        p(f"v_cndmask_b32 v{G+8*t+6}, 0, v{G+8*t+6}, vcc")
        p(f"v_cndmask_b32 v{G+8*t+7}, 0, v{G+8*t+7}, vcc")
    for t in range(2):
        for i in range(2):
            p(f"buffer_store_dwordx4 {vr(G+8*t+4*i,4)}, v{vL}, s[{sWS}:{sWS+3}], s{sOFF if t == 0 else sTMP} offen offset:{1024*i} sc1")
    p.flush()
    p.tr = Tracker()
    p(f"""
    K1_TR2:
    s_cmp_ge_u32 s{sC}, 14
    s_cbranch_scc1 K1_TR3
    s_lshl_b32 s{sOFF}, s{sC}, 3
    s_add_u32 s{sOFF}, s{sOFF}, s{sWAVE}
    s_lshl_b32 s{sOFF}, s{sOFF}, 10
    s_add_u32 s{sOFF}, s{sOFF}, {W2F}
    """)
    F = 32
    for t in range(14):
        p(f"ds_read_b64_tr_b16 {vr(F+4*t,2)}, v{vTW} offset:{64*t}")
        p(f"ds_read_b64_tr_b16 {vr(F+4*t+2,2)}, v{vTW} offset:{64*t+8*896}")
    for t in range(14):
        p(f"buffer_store_dwordx4 {vr(F+4*t,4)}, v{vL}, s[{sWS}:{sWS+3}], s{sOFF} offen sc1")
        if t < 13:
            p(f"s_add_u32 s{sOFF}, s{sOFF}, 114688")
    p("K1_TR3:")
    stamp_out(p, 1, 0, sWS, sWAVE, 5, 6)
    p("K1_END:")
    p("s_endpgm")
    return head("k1_kernel") + p.text() + KD.format(name="k1_kernel", nv=168, ns=(100 if STAMP or DBG else 64), acc=168)


K2_LDS = 48 * 1024 + 96 * 1024
K2_ACC = 112
REF_OFF = 90.0
L_LIMIT = 2.0 ** 50


def gen_k2():
    p = Prog()
    stamp.k = 1
    sWS, sG, sX = 4, 8, 32
    sWAVE, sHEAD, sQB, sTMP, sTMP2, sKV, sKV2, sHO, sWO_, sCNT, sMB, sNP, sKH, sTMP3 = range(12, 26)
    vL16 = 1
    p(f"""
    s_cmp_ge_u32 s2, 256
    s_cbranch_scc1 K2_END
    s_load_dwordx2 s[28:29], s[0:1], 64
    s_load_dwordx2 s[30:31], s[0:1], 0
    v_lshrrev_b32 v1, 6, v0
    v_and_b32 v0, 63, v0
    v_readfirstlane_b32 s{sWAVE}, v1
    s_and_b32 s{sTMP}, s2, 7
    s_lshr_b32 s{sTMP2}, s2, 3
    v_lshlrev_b32 v{vL16}, 4, v0
    s_cmp_ge_u32 s{sWAVE}, 4
    s_cbranch_scc1 K2_GEMM
    s_setprio 2
    s_lshl_b32 s{sHEAD}, s{sTMP}, 1
    s_and_b32 s{sTMP}, s{sTMP2}, 1
    s_add_u32 s{sHEAD}, s{sHEAD}, s{sTMP}
    s_lshr_b32 s{sQB}, s{sTMP2}, 1
    s_lshl_b32 s{sTMP}, s{sHEAD}, 6
    s_lshl_b32 s{sTMP2}, s{sQB}, 2
    s_add_u32 s{sTMP}, s{sTMP}, s{sTMP2}
    s_lshl_b32 s{sKV}, s{sHEAD}, 18
    s_add_u32 s{sKV}, s{sKV}, {KVF}
    s_mov_b32 s{sTMP3}, s{sKV}
    s_waitcnt lgkmcnt(0)
    """)
    stamp(p, 0)
    srd(p, sWS, 28, WS_BYTES)
    S = [8, 24]
    P = [40, 48]
    O0 = 56
    T = 72
    Q = 0
    OA = 32
    KV = [80, 96]

    def Oacc(u):
        return vr(O0, 16) if u == 0 else ar(OA + 16 * (u - 1), 16)

    KR = T + 24
    p(f"""
    buffer_load_dwordx4 {vr(KR,4)}, v{vL16}, s[{sWS}:{sWS+3}], s{sKV} offen
    buffer_load_dwordx4 {vr(KR+4,4)}, v{vL16}, s[{sWS}:{sWS+3}], s{sKV} offen offset:1024
    """)
    for u in range(4):
        p(f"""
        s_xor_b32 s{sTMP2}, s{sWAVE}, {u}
        s_add_u32 s{sTMP2}, s{sTMP2}, s{sTMP}
        s_lshl_b32 s{sTMP2}, s{sTMP2}, 11
        buffer_load_dwordx4 {ar(Q+8*u,4)}, v{vL16}, s[{sWS}:{sWS+3}], s{sTMP2} offen
        buffer_load_dwordx4 {ar(Q+8*u+4,4)}, v{vL16}, s[{sWS}:{sWS+3}], s{sTMP2} offen offset:1024
        """)
    p(f"""
    s_lshl_b32 s{sTMP}, s{sWAVE}, 16
    s_add_u32 s{sKV}, s{sKV}, s{sTMP}
    s_add_u32 s{sKV2}, s{sKV}, 4096
    """)
    for j in range(4):
        p(f"buffer_load_dwordx4 {ar(KV[0]+4*j,4)}, v{vL16}, s[{sWS}:{sWS+3}], s{sKV} offen offset:{1024*j}")
    for j in range(2):
        p(f"buffer_load_dwordx4 {ar(KV[1]+4*j,4)}, v{vL16}, s[{sWS}:{sWS+3}], s{sKV2} offen offset:{1024*j}")
    for i in range(48):
        p(f"v_accvgpr_write_b32 a{OA+i}, 0")
    for i in range(8):
        p(f"v_accvgpr_write_b32 a{KV[1]+8+i}, 0")
    for i in range(16):
        p(f"v_mov_b32 v{O0+i}, 0")
    for i in range(8):
        p(f"v_mov_b32 v{P[1]+i}, 0")
    vA1, vA2, vA3, vRA = 2, 3, 4, 5
    vAs = [None, vA1, vA2, vA3]
    for u in range(1, 4):
        p(f"""
        s_xor_b32 s{sTMP}, s{sWAVE}, {u}
        s_mul_i32 s{sTMP}, s{sTMP}, 3
        s_add_u32 s{sTMP}, s{sTMP}, {u-1}
        s_lshl_b32 s{sTMP}, s{sTMP}, 12
        v_add_u32 v{vAs[u]}, s{sTMP}, v{vL16}
        """)
    p(f"""
    s_mul_i32 s{sTMP}, s{sWAVE}, {3*4096}
    v_add_u32 v{vRA}, s{sTMP}, v{vL16}
    s_mov_b32 s{sCNT}, 8
    """)
    stamp(p, 1)

    def rowmax(m, d, first=True):
        if first:
            p(f"v_max3_f32 v{m}, v{d}, v{d+1}, v{d+2}")
            for r in range(3, 15, 2):
                p(f"v_max3_f32 v{m}, v{m}, v{d+r}, v{d+r+1}")
            p(f"v_max_f32 v{m}, v{m}, v{d+15}")
        else:
            for r in range(0, 16, 2):
                p(f"v_max3_f32 v{m}, v{m}, v{d+r}, v{d+r+1}")

    def put_ref(units, add):
        for u in units:
            m, m2 = T + u, T + 4 + u
            p(f"v_mov_b32 v{m2}, v{m}")
        for u in units:
            m, m2 = T + u, T + 4 + u
            p(f"v_permlane32_swap_b32 v{m}, v{m2}")
        for u in units:
            m, m2 = T + u, T + 4 + u
            a, b, c = T + 8 + 4 * u, T + 9 + 4 * u, T + 10 + 4 * u
            p(f"""
            v_max_f32 v{m}, v{m}, v{m2}
            v_sub_f32 v{a}, {f32bits(-add):#x}, v{m}
            v_and_b32 v{b}, 0xffff0000, v{a}
            v_sub_f32 v{a}, v{a}, v{b}
            v_and_b32 v{c}, 0xffff0000, v{a}
            v_sub_f32 v{a}, v{a}, v{c}
            v_lshrrev_b32 v{b}, 16, v{b}
            v_or_b32 v{b}, v{b}, v{c}
            v_lshrrev_b32 v{a}, 16, v{a}
            """)
        p("s_mov_b32 exec_lo, 0")
        for u in units:
            a, b = T + 8 + 4 * u, T + 9 + 4 * u
            p(f"v_accvgpr_write_b32 a{Q+8*u+6}, v{b}")
            p(f"v_accvgpr_write_b32 a{Q+8*u+7}, v{a}")
        p("s_mov_b32 exec_lo, -1")

    for u in range(4):
        d = S[u % 2]
        p(f"{MF} {vr(d,16)}, {vr(KR,4)}, {ar(Q+8*u,4)}, 0")
        p(f"{MF} {vr(d,16)}, {vr(KR+4,4)}, {ar(Q+8*u+4,4)}, {vr(d,16)}")
        if u % 2 == 1:
            for uu in (u - 1, u):
                rowmax(T + uu, S[uu % 2])
    put_ref(range(4), REF_OFF)

    def qk(n_u, kb, sbuf):
        k = KV[kb]
        return [I(f"{MF} {vr(S[sbuf],16)}, {ar(k,4)}, {ar(Q+8*n_u,4)}, 0"),
                I(f"{MF} {vr(S[sbuf],16)}, {ar(k+4,4)}, {ar(Q+8*n_u+4,4)}, {vr(S[sbuf],16)}")]

    def pv(u, vb, pbuf):
        v = KV[vb] + 8
        return [I(f"{MF} {Oacc(u)}, {ar(v,4)}, {vr(P[pbuf],4)}, {Oacc(u)}"),
                I(f"{MF} {Oacc(u)}, {ar(v+4,4)}, {vr(P[pbuf]+4,4)}, {Oacc(u)}")]

    def softmax(sb):
        s, pp = S[sb], P[sb]
        v = []
        for i in range(8):
            v.append(I(f"v_exp_f32 v{s+2*i}, v{s+2*i}"))
            v.append(I(f"v_exp_f32 v{s+2*i+1}, v{s+2*i+1}"))
            if i >= 1:
                v.append(I(f"v_cvt_pk_bf16_f32 v{pp+i-1}, v{s+2*i-2}, v{s+2*i-1}"))
        v.append(I(f"v_cvt_pk_bf16_f32 v{pp+7}, v{s+14}, v{s+15}"))
        return v

    def cost(i):
        return 8 if i.is_trans() else 4

    def slot(tb, u):
        nu = (u + 1) & 3
        pu = (u - 1) & 3
        mf = qk(nu, tb if u < 3 else 1 - tb, (u + 1) & 1) + pv(pu, tb if u > 0 else 1 - tb, (u - 1) & 1)
        ld = []
        if u == 0:
            so = sKV2 if tb == 0 else sKV
            ld += [I(f"buffer_load_dwordx4 {ar(KV[1-tb]+8+4*j,4)}, v{vL16}, s[{sWS}:{sWS+3}], s{so} offen offset:{2048+1024*j}") for j in range(2)]
        if u == 2:
            so = sKV if tb == 0 else sKV2
            ld += [I(f"buffer_load_dwordx4 {ar(KV[tb]+4*j,4)}, v{vL16}, s[{sWS}:{sWS+3}], s{so} offen offset:{1024*j}") for j in range(2)]
        va = softmax(u & 1)
        total = sum(cost(i) for i in va)
        out = []
        k = 0
        acc = 0
        for j, m in enumerate(mf):
            out.append(m)
            tgt = total * (j + 1) / len(mf)
            while k < len(va) and acc + cost(va[k]) / 2 <= tgt:
                out.append(va[k]); acc += cost(va[k]); k += 1
        out += va[k:]
        idx = max(i for i, x in enumerate(out) if x.kind == "mfma")
        if ld:
            out = out[:idx + 1] + interleave(out[idx + 1:], ld)
        return out

    stamp(p, 2)
    p.add(qk(0, 0, 0))
    body = [I(".p2align 6"), I("K2_LOOP:")]
    for tb in range(2):
        for u in range(4):
            if u == 1:
                so = sKV if tb == 0 else sKV2
                body.append(I(f"s_add_u32 s{so}, s{so}, 8192"))
            if tb == 1 and u == 3:
                body.append(I(f"s_sub_u32 s{sCNT}, s{sCNT}, 1"))
                body.append(I(f"s_cmp_lg_u32 s{sCNT}, 0"))
            body += slot(tb, u)
    body += [I("s_cbranch_scc1 K2_LOOP")]
    p.loop(body)
    stamp(p, 3)
    p.add(pv(3, 1, 1))
    for u in range(1, 4):
        for q in range(4):
            p(f"ds_write_b128 v{vAs[u]}, {ar(OA+16*(u-1)+4*q,4)} offset:{1024*q}")
    p(f"""
    s_lshl_b32 s{sTMP}, s{sQB}, 2
    s_add_u32 s{sTMP}, s{sTMP}, s{sWAVE}
    s_lshl_b32 s{sTMP}, s{sTMP}, 15
    s_lshl_b32 s{sTMP2}, s{sHEAD}, 11
    s_add_u32 s{sTMP}, s{sTMP}, s{sTMP2}
    s_add_u32 s{sTMP}, s{sTMP}, {OF}
    s_waitcnt lgkmcnt(0)
    """)
    stamp(p, 4)
    p("s_barrier")
    stamp(p, 5)
    R = 8
    for i in range(3):
        for q in range(4):
            p(f"ds_read_b128 {vr(R+16*i+4*q,4)}, v{vRA} offset:{4096*i+1024*q}")
    for i in range(3):
        for r in range(0, 16, 2):
            p(f"v_pk_add_f32 {vr(O0+r,2)}, {vr(O0+r,2)}, {vr(R+16*i+r,2)}")
    p("K2_NORM:")
    l, l2, ri, mx = T + 32, T + 33, T + 34, T + 36
    p(f"""
    v_mov_b32 v{l}, v{O0+12}
    v_mov_b32 v{l2}, v{O0+12}
    v_permlane32_swap_b32 v{l}, v{l2}
    v_rcp_f32 v{ri}, v{l2}
    """)
    for r in range(0, 16, 2):
        p(f"v_pk_mul_f32 {vr(O0+r,2)}, {vr(O0+r,2)}, {vr(ri,2)} op_sel_hi:[1,0]")
    for i in range(8):
        p(f"v_cvt_pk_bf16_f32 v{R+i}, v{O0+2*i}, v{O0+2*i+1}")
    p(f"""
    buffer_store_dwordx4 {vr(R,4)}, v{vL16}, s[{sWS}:{sWS+3}], s{sTMP} offen sc1
    buffer_store_dwordx4 {vr(R+4,4)}, v{vL16}, s[{sWS}:{sWS+3}], s{sTMP} offen offset:1024 sc1
    """)
    for r in range(0, 16, 2):
        p(f"v_pk_add_f32 {vr(O0+r,2)}, {vr(O0+r,2)}, {vr(O0+r,2)} neg_lo:[0,1] neg_hi:[0,1]")
    for r in (8, 4, 2):
        for k in range(0, r, 2):
            p(f"v_pk_add_f32 {vr(O0+k,2)}, {vr(O0+k,2)}, {vr(O0+r+k,2)}")
    p(f"""
    v_add_f32 v{mx}, v{O0}, v{O0+1}
    v_add_f32 v{mx}, v{mx}, v{l2}
    v_cmp_nlt_f32 vcc, v{mx}, v{mx+1}
    """.replace(f"v_cmp_nlt_f32 vcc, v{mx}, v{mx+1}", f"v_cmp_ngt_f32 vcc, {f32bits(L_LIMIT):#x}, v{mx}"))
    p(f"""
    s_cmp_eq_u32 s{sCNT}, 0
    s_cselect_b64 vcc, vcc, 0
    s_cbranch_vccnz K2_SLOW
    """)
    stamp_out(p, 6, 1, sWS, sWAVE, 2, 3)
    p("s_endpgm")
    p.flush()
    p.tr = Tracker()
    p(f"""
    K2_SLOW:
    s_waitcnt vmcnt(0) lgkmcnt(0)
    s_mov_b32 exec_lo, 0
    v_accvgpr_write_b32 a{Q+6}, 0
    v_accvgpr_write_b32 a{Q+7}, 0
    s_mov_b32 exec_lo, -1
    v_mov_b32 v{T}, 0xff800000
    s_mov_b32 s{sKV}, s{sTMP3}
    s_mov_b32 s{sCNT}, 64
    """)
    body = [I("K2_S1:")]
    body += [I(f"buffer_load_dwordx4 {ar(KV[0]+4*j,4)}, v{vL16}, s[{sWS}:{sWS+3}], s{sKV} offen offset:{1024*j}") for j in range(2)]
    body += qk(0, 0, 0)
    body += [I(f"v_max3_f32 v{T}, v{T}, v{S[0]+r}, v{S[0]+r+1}") for r in range(0, 16, 2)]
    body += [I(f"s_add_u32 s{sKV}, s{sKV}, 4096"), I(f"s_sub_u32 s{sCNT}, s{sCNT}, 1"), I(f"s_cmp_lg_u32 s{sCNT}, 0"), I("s_cbranch_scc1 K2_S1")]
    p.loop(body)
    put_ref([0], 0.0)
    for i in range(16):
        p(f"v_mov_b32 v{O0+i}, 0")
    p(f"""
    s_mov_b32 s{sKV}, s{sTMP3}
    s_mov_b32 s{sCNT}, 64
    """)
    body = [I("K2_S2:")]
    body += [I(f"buffer_load_dwordx4 {ar(KV[0]+4*j,4)}, v{vL16}, s[{sWS}:{sWS+3}], s{sKV} offen offset:{1024*j}") for j in range(4)]
    body += qk(0, 0, 0) + softmax(0) + pv(0, 0, 0)
    body += [I(f"s_add_u32 s{sKV}, s{sKV}, 4096"), I(f"s_sub_u32 s{sCNT}, s{sCNT}, 1"), I(f"s_cmp_lg_u32 s{sCNT}, 0"), I("s_cbranch_scc1 K2_S2")]
    p.loop(body)
    p(f"""
    s_mov_b32 s{sCNT}, 1
    s_nop 7
    s_nop 7
    s_branch K2_NORM
    """)
    p.flush()

    p.tr = Tracker()
    GA0 = 8
    Gv = [40, 64, 88]
    Ga = [96, 120]
    NBUF = 4

    def Gbuf(b, off, n):
        return vr(Gv[b] + off, n) if b < 3 else ar(Ga[b - 3] + off, n)

    def Gacc(mi, ni):
        return vr(GA0 + 16 * ni, 16) if mi == 0 else ar(32 * (mi - 1) + 16 * ni, 16)

    vH = [2, 3, 4, 5]
    vW1 = 6
    vW = [vL16, vW1]
    p(f"""
    K2_GEMM:
    s_sub_u32 s{sWAVE}, s{sWAVE}, 4
    s_and_b32 s{sKH}, s{sTMP}, 1
    s_lshr_b32 s{sMB}, s{sTMP}, 1
    s_lshl_b32 s{sMB}, s{sMB}, 2
    s_and_b32 s{sTMP}, s{sTMP2}, 3
    s_add_u32 s{sMB}, s{sMB}, s{sTMP}
    s_lshr_b32 s{sNP}, s{sTMP2}, 2
    s_cmp_ge_u32 s{sNP}, 7
    s_cbranch_scc1 K2_END
    """)
    for mi in range(4):
        p(f"""
        s_xor_b32 s{sTMP}, s{sWAVE}, {mi}
        s_mul_i32 s{sTMP}, s{sTMP}, 114688
        v_add_u32 v{vH[mi]}, s{sTMP}, v{vL16}
        """)
    p(f"""
    v_add_u32 v{vW1}, 114688, v{vL16}
    s_mul_i32 s{sTMP}, s{sKH}, 56
    s_mul_i32 s{sTMP2}, s{sWAVE}, 14
    s_add_u32 s{sTMP}, s{sTMP}, s{sTMP2}
    s_lshl_b32 s{sTMP}, s{sTMP}, 10
    s_mul_i32 s{sHO}, s{sMB}, {4*114688}
    s_add_u32 s{sHO}, s{sHO}, s{sTMP}
    s_add_u32 s{sHO}, s{sHO}, {HF}
    s_mul_i32 s{sWO_}, s{sNP}, {2*114688}
    s_add_u32 s{sWO_}, s{sWO_}, s{sTMP}
    s_add_u32 s{sWO_}, s{sWO_}, {W2F}
    s_waitcnt lgkmcnt(0)
    """)
    stamp(p, 0)
    srd(p, sWS, 28, WS_BYTES)

    def gload(k):
        b = k % NBUF
        o = []
        if k % 4 == 0 and k:
            o += [I(f"s_add_u32 s{sHO}, s{sHO}, 4096"), I(f"s_add_u32 s{sWO_}, s{sWO_}, 4096")]
        for ni in range(2):
            o.append(I(f"buffer_load_dwordx4 {Gbuf(b,16+4*ni,4)}, v{vW[ni]}, s[{sWS}:{sWS+3}], s{sWO_} offen offset:{1024*(k%4)}"))
        for mi in range(4):
            o.append(I(f"buffer_load_dwordx4 {Gbuf(b,4*mi,4)}, v{vH[mi]}, s[{sWS}:{sWS+3}], s{sHO} offen offset:{1024*(k%4)}"))
        return o

    for k in range(NBUF):
        p.add(gload(k))
    for k in range(14):
        b = k % NBUF
        for mi in range(4):
            for ni in range(2):
                c = "0" if k == 0 else Gacc(mi, ni)
                p(f"{MF} {Gacc(mi,ni)}, {Gbuf(b,16+4*ni,4)}, {Gbuf(b,4*mi,4)}, {c}")
        if k + NBUF < 14:
            p.add(gload(k + NBUF))
    stamp(p, 1)
    srd(p, sX, 30, XB)
    XR = Gv[2]
    vB1, vB2, vB3, vRB, vXO = 2, 3, 4, 5, 6
    vBs = [None, vB1, vB2, vB3]
    p(f"""
    s_cmp_eq_u32 s{sKH}, 0
    s_cselect_b32 s{sX+2}, s{sX+2}, 0
    v_and_b32 v{vXO}, 31, v0
    v_mul_u32_u24 v{vXO}, 896, v{vXO}
    v_lshrrev_b32 v7, 5, v0
    v_lshl_add_u32 v{vXO}, v7, 3, v{vXO}
    s_lshl_b32 s{sMB}, s{sMB}, 2
    s_add_u32 s{sMB}, s{sMB}, s{sWAVE}
    s_mul_i32 s{sTMP}, s{sMB}, 28672
    s_lshl_b32 s{sTMP2}, s{sNP}, 7
    s_add_u32 s{sTMP}, s{sTMP}, s{sTMP2}
    """)
    for q in range(8):
        p(f"buffer_load_dwordx2 {vr(XR+2*q,2)}, v{vXO}, s[{sX}:{sX+3}], s{sTMP} offen offset:{16*q}")
    for u in range(1, 4):
        p(f"""
        s_xor_b32 s{sTMP}, s{sWAVE}, {u}
        s_mul_i32 s{sTMP}, s{sTMP}, 3
        s_add_u32 s{sTMP}, s{sTMP}, {u-1}
        s_lshl_b32 s{sTMP}, s{sTMP}, 13
        s_add_u32 s{sTMP}, s{sTMP}, {48*1024}
        v_add_u32 v{vBs[u]}, s{sTMP}, v{vL16}
        """)
    p(f"""
    s_mul_i32 s{sTMP}, s{sWAVE}, {3*8192}
    s_add_u32 s{sTMP}, s{sTMP}, {48*1024}
    v_add_u32 v{vRB}, s{sTMP}, v{vL16}
    """)
    for mi in range(1, 4):
        for ni in range(2):
            for q in range(4):
                a = 32 * (mi - 1) + 16 * ni + 4 * q
                p(f"ds_write_b128 v{vBs[mi]}, {ar(a,4)} offset:{4096*ni+1024*q}")
    XU = Gv[0]
    for i in range(16):
        p(f"v_lshlrev_b32 v{XU+2*i}, 16, v{XR+i}")
        p(f"v_and_b32 v{XU+2*i+1}, 0xffff0000, v{XR+i}")
    for r in range(0, 32, 2):
        p(f"v_pk_add_f32 {vr(GA0+r,2)}, {vr(GA0+r,2)}, {vr(XU+r,2)}")
    p(f"""
    s_lshl_b32 s{sTMP}, s{sKH}, 6
    s_add_u32 s{sTMP}, s{sTMP}, s{sMB}
    s_mul_i32 s{sTMP}, s{sTMP}, 14
    s_lshl_b32 s{sTMP2}, s{sNP}, 1
    s_add_u32 s{sTMP}, s{sTMP}, s{sTMP2}
    s_lshl_b32 s{sTMP}, s{sTMP}, 11
    s_add_u32 s{sTMP}, s{sTMP}, {BP}
    s_waitcnt lgkmcnt(0)
    """)
    stamp(p, 2)
    p("s_barrier")
    stamp(p, 3)
    R = 40
    for i in range(2):
        for q in range(8):
            p(f"ds_read_b128 {vr(R+32*i+4*q,4)}, v{vRB} offset:{8192*i+1024*q}")
    for r in range(0, 32, 2):
        p(f"v_pk_add_f32 {vr(GA0+r,2)}, {vr(GA0+r,2)}, {vr(R+r,2)}")
    for q in range(8):
        p(f"ds_read_b128 {vr(R+4*q,4)}, v{vRB} offset:{8192*2+1024*q}")
    for r in range(0, 32, 2):
        p(f"v_pk_add_f32 {vr(GA0+r,2)}, {vr(GA0+r,2)}, {vr(R+32+r,2)}")
    for r in range(0, 32, 2):
        p(f"v_pk_add_f32 {vr(GA0+r,2)}, {vr(GA0+r,2)}, {vr(R+r,2)}")
    for i in range(16):
        p(f"v_cvt_pk_bf16_f32 v{R+32+i}, v{GA0+2*i}, v{GA0+2*i+1}")
    for q in range(4):
        p(f"buffer_store_dwordx4 {vr(R+32+4*q,4)}, v{vL16}, s[{sWS}:{sWS+3}], s{sTMP} offen offset:{1024*q} sc1")
    stamp_out(p, 4, 1, sWS, sWAVE, 2, 3, wave_add=4)
    p("K2_END:")
    p("s_endpgm")
    return head("k2_kernel") + p.text() + KD.format(name="k2_kernel", nv=256, ns=(100 if STAMP or DBG else 40), acc=K2_ACC)


K3_LDS = 48 * 1024


def gen_k3():
    p = Prog()
    stamp.k = 2
    sWS, sOUT = 4, 12
    sWAVE, sMP, sNP, sTMP, sTMP2, sA0, sA1, sB0, sB1, sMT, sNT = range(16, 27)
    F = 16
    ACC = 144
    BPv = 208
    UN = 224
    vL16, vXO, vT0, vT1, vA1, vA2, vA3, vRA = 1, 2, 3, 4, 5, 6, 7, 8
    p(f"""
    s_cmp_ge_u32 s2, 224
    s_cbranch_scc1 K3_END
    s_load_dwordx2 s[30:31], s[0:1], 48
    s_load_dwordx2 s[32:33], s[0:1], 64
    v_lshrrev_b32 v1, 6, v0
    v_and_b32 v0, 63, v0
    v_readfirstlane_b32 s{sWAVE}, v1
    s_and_b32 s{sTMP}, s2, 7
    s_lshr_b32 s{sTMP2}, s2, 3
    s_lshl_b32 s{sMP}, s{sTMP}, 2
    s_and_b32 s{sTMP}, s{sTMP2}, 3
    s_add_u32 s{sMP}, s{sMP}, s{sTMP}
    s_lshr_b32 s{sNP}, s{sTMP2}, 2
    v_lshlrev_b32 v{vL16}, 4, v0
    s_lshr_b32 s{sTMP}, s{sWAVE}, 1
    s_lshl_b32 s{sMT}, s{sMP}, 1
    s_add_u32 s{sMT}, s{sMT}, s{sTMP}
    s_and_b32 s{sTMP}, s{sWAVE}, 1
    s_lshl_b32 s{sNT}, s{sNP}, 1
    s_add_u32 s{sNT}, s{sNT}, s{sTMP}
    s_lshl_b32 s{sTMP}, s{sWAVE}, 13
    s_lshl_b32 s{sA0}, s{sNT}, 15
    s_add_u32 s{sA0}, s{sA0}, s{sTMP}
    s_add_u32 s{sA0}, s{sA0}, {WOF}
    s_xor_b32 s{sA1}, s{sA0}, 0x8000
    s_lshl_b32 s{sB0}, s{sMT}, 15
    s_add_u32 s{sB0}, s{sB0}, s{sTMP}
    s_add_u32 s{sB0}, s{sB0}, {OF}
    s_xor_b32 s{sB1}, s{sB0}, 0x8000
    s_mul_i32 s{sTMP}, s{sMT}, 14
    s_add_u32 s{sTMP}, s{sTMP}, s{sNT}
    s_lshl_b32 s{sTMP}, s{sTMP}, 11
    s_add_u32 s{sTMP}, s{sTMP}, {BP}
    s_add_u32 s{sTMP2}, s{sTMP}, {64*14*2048}
    s_waitcnt lgkmcnt(0)
    """)
    stamp(p, 0)
    srd(p, sWS, 32, WS_BYTES)
    so = [sA0, sA1, sB0, sB1]
    for s in range(8):
        if s == 4:
            for r in so:
                p(f"s_add_u32 s{r}, s{r}, 4096")
        for j in range(4):
            p(f"buffer_load_dwordx4 {vr(F+16*s+4*j,4)}, v{vL16}, s[{sWS}:{sWS+3}], s{so[j]} offen offset:{1024*(s%4)}")
    for h in range(2):
        for q in range(2):
            p(f"buffer_load_dwordx4 {vr(BPv+8*h+4*q,4)}, v{vL16}, s[{sWS}:{sWS+3}], s{sTMP if h==0 else sTMP2} offen offset:{1024*q}")
    srd(p, sOUT, 30, XB)
    p(f"""
    v_and_b32 v{vT0}, 31, v0
    v_mul_u32_u24 v{vT0}, 896, v{vT0}
    v_lshrrev_b32 v{vT1}, 5, v0
    v_lshl_add_u32 v{vXO}, v{vT1}, 4, v{vT0}
    s_mul_i32 s{sTMP}, s{sMT}, 28672
    s_lshl_b32 s{sTMP2}, s{sNT}, 6
    s_add_u32 s{sTMP}, s{sTMP}, s{sTMP2}
    """)
    vAs = [None, vA1, vA2, vA3]
    for u in range(1, 4):
        p(f"""
        s_xor_b32 s{sTMP2}, s{sWAVE}, {u}
        s_mul_i32 s{sTMP2}, s{sTMP2}, 3
        s_add_u32 s{sTMP2}, s{sTMP2}, {u-1}
        s_lshl_b32 s{sTMP2}, s{sTMP2}, 12
        v_add_u32 v{vAs[u]}, s{sTMP2}, v{vL16}
        """)
    p(f"""
    s_mul_i32 s{sTMP2}, s{sWAVE}, {3*4096}
    v_add_u32 v{vRA}, s{sTMP2}, v{vL16}
    """)
    stamp(p, 1)
    for s in range(8):
        for u in (1, 2, 3, 0):
            a, b = u & 1, u >> 1
            acc = vr(ACC + 16 * u, 16)
            p(f"{MF} {acc}, {vr(F+16*s+4*a,4)}, {vr(F+16*s+8+4*b,4)}, {'0' if s == 0 else acc}")
    stamp(p, 2)
    for u in range(1, 4):
        for q in range(4):
            p(f"ds_write_b128 v{vAs[u]}, {vr(ACC+16*u+4*q,4)} offset:{1024*q}")
    for i in range(16):
        p(f"v_lshlrev_b32 v{UN+2*i}, 16, v{BPv+i}")
        p(f"v_and_b32 v{UN+2*i+1}, 0xffff0000, v{BPv+i}")
    for r in range(0, 16, 2):
        p(f"v_pk_add_f32 {vr(UN+r,2)}, {vr(UN+r,2)}, {vr(UN+16+r,2)}")
    for r in range(0, 16, 2):
        p(f"v_pk_add_f32 {vr(ACC+r,2)}, {vr(ACC+r,2)}, {vr(UN+r,2)}")
    p("s_waitcnt lgkmcnt(0)")
    p("s_barrier")
    stamp(p, 3)
    R = F
    for i in range(3):
        for q in range(4):
            p(f"ds_read_b128 {vr(R+16*i+4*q,4)}, v{vRA} offset:{4096*i+1024*q}")
    for i in range(3):
        for r in range(0, 16, 2):
            p(f"v_pk_add_f32 {vr(ACC+r,2)}, {vr(ACC+r,2)}, {vr(R+16*i+r,2)}")
    PK = BPv
    for i in range(8):
        p(f"v_cvt_pk_bf16_f32 v{PK+i}, v{ACC+2*i}, v{ACC+2*i+1}")
    for qq in range(2):
        p(f"v_permlane32_swap_b32 v{PK+4*qq}, v{PK+4*qq+2}")
        p(f"v_permlane32_swap_b32 v{PK+4*qq+1}, v{PK+4*qq+3}")
    for qq in range(2):
        p(f"buffer_store_dwordx4 {vr(PK+4*qq,4)}, v{vXO}, s[{sOUT}:{sOUT+3}], s{sTMP} offen offset:{32*qq}")
    stamp_out(p, 4, 2, sWS, sWAVE, 3, 4)
    p("K3_END:")
    p("s_endpgm")
    return head("k3_kernel") + p.text() + KD.format(name="k3_kernel", nv=256, ns=(100 if STAMP or DBG else 40), acc=256)


HEADER = f"""; Kernarg layout for this problem (72 bytes, ptrs only, base s[0:1]):
; @launch kernel=k1_kernel grid=(256,1,1) block=(768,1,1) lds={K1_LDS}
; @launch kernel=k2_kernel grid=(256,1,1) block=(512,1,1) lds={K2_LDS}
; @launch kernel=k3_kernel grid=(224,1,1) block=(256,1,1) lds={K3_LDS}
.amdgcn_target "amdgcn-amd-amdhsa--gfx950"
"""


def post(txt):
    fl = os.environ.get("STFLAG", "")
    if fl:
        out = []
        for line in txt.split("\n"):
            if "buffer_store_dwordx4" in line:
                line = line + " " + fl
            out.append(line)
        txt = "\n".join(out)
    return txt


def main():
    global STAMP, DBG
    DBG = len(sys.argv) > 2 and sys.argv[2] == "dbg"
    STAMP = len(sys.argv) > 2 and sys.argv[2] == "stamp"
    txt = HEADER + gen_k1() + gen_k2() + gen_k3()
    txt = post(txt)
    out = sys.argv[1] if len(sys.argv) > 1 else f"cdna_kernels/{NAME}.s"
    open(out, "w").write(txt)
    print("wrote", out, len(txt), "bytes")


if __name__ == "__main__":
    main()
```

```python
import re

REG_RE = re.compile(r"\b([vas])\[(\d+):(\d+)\]|\b([vas])(\d+)\b|\b(vcc|exec|m0|scc)\b")

TRANS = ("v_exp_", "v_log_", "v_rcp_", "v_rsq_", "v_sqrt_", "v_sin_", "v_cos_")


def regs_of(text):
    out = []
    for m in REG_RE.finditer(text):
        if m.group(1):
            out += [(m.group(1), i) for i in range(int(m.group(2)), int(m.group(3)) + 1)]
        elif m.group(4):
            out.append((m.group(4), int(m.group(5))))
        else:
            out.append((m.group(6), 0))
    return out


def split_ops(s):
    ops, depth, cur = [], 0, ""
    for ch in s:
        if ch == "[" or ch == "(":
            depth += 1
        if ch == "]" or ch == ")":
            depth -= 1
        if ch == "," and depth == 0:
            ops.append(cur.strip())
            cur = ""
        else:
            cur += ch
    if cur.strip():
        ops.append(cur.strip())
    return ops


class I:
    def __init__(self, text, tag=None, comment=None):
        self.text = text.strip()
        self.tag = tag
        self.comment = comment
        self.kind = "other"
        self.w = []
        self.r = []
        self.srcc = []
        self.cnt = None
        self.optional = False
        self.parse()

    def parse(self):
        t = self.text
        if t.endswith(":") or t.startswith(".") or t.startswith(";") or t == "":
            self.kind = "label" if t.endswith(":") else "dir"
            self.op = ""
            return
        parts = t.split(None, 1)
        op = parts[0]
        self.op = op
        rest = parts[1] if len(parts) > 1 else ""
        ops = split_ops(rest)
        R = [regs_of(o.split(" ")[0] if not o.startswith("v[") and not o.startswith("s[") and not o.startswith("a[") else o.split(" ")[0]) for o in ops]
        flat = lambda L: [x for l in L for x in l]
        if op.startswith("v_mfma"):
            self.kind = "mfma"
            self.w = R[0]
            self.r = R[1] + R[2] + R[3]
            self.srcab = R[1] + R[2]
            self.srcc = R[3]
            self.passes = 8 if "32x32x16" in op else 4
        elif op.startswith("v_cmp"):
            self.kind = "valu"
            self.w = R[0]
            self.r = flat(R[1:])
            if op.startswith("v_cmpx"):
                self.w = self.w + [("exec", 0)]
        elif op.startswith("v_permlane") and "swap" in op:
            self.kind = "valu"
            self.w = R[0] + R[1]
            self.r = R[0] + R[1]
        elif op.startswith("v_"):
            self.kind = "valu"
            self.w = R[0]
            self.r = flat(R[1:])
            if op.startswith("v_dot2c") or op.startswith("v_fmac") or op.startswith("v_pk_fmac"):
                self.r = self.r + R[0]
            if op.startswith("v_add_co") or op.startswith("v_addc_co") or op.startswith("v_sub_co"):
                self.w = R[0] + R[1]
                self.r = flat(R[2:])
            if op.startswith("v_writelane"):
                self.r = self.r + R[0]
        elif op.startswith("buffer_load") or op.startswith("global_load"):
            self.kind = "vmem"
            self.cnt = "vm"
            if " lds" in t or "_lds_" in op:
                self.r = flat(R) + [("m0", 0)]
                self.ldsdma = True
            else:
                self.w = R[0]
                self.r = flat(R[1:])
        elif op.startswith("buffer_store") or op.startswith("global_store") or op.startswith("buffer_atomic") or op.startswith("global_atomic"):
            self.kind = "vmem"
            self.cnt = "vm"
            self.r = flat(R)
            self.store = True
            self.sdata = R[0] if op.startswith("buffer") else R[1]
        elif op.startswith("ds_read") or op.startswith("ds_bpermute") or op.startswith("ds_swizzle") or op.startswith("ds_permute"):
            self.kind = "ds"
            self.cnt = "lgkm"
            self.w = R[0]
            self.r = flat(R[1:])
        elif op.startswith("ds_"):
            self.kind = "ds"
            self.cnt = "lgkm"
            self.r = flat(R)
        elif op.startswith("s_load") or op.startswith("s_memtime") or op.startswith("s_memrealtime") or op.startswith("s_buffer_load"):
            self.kind = "smem"
            self.cnt = "smem"
            self.w = R[0]
            self.r = flat(R[1:])
        elif op in ("s_waitcnt", "s_nop", "s_barrier", "s_endpgm", "s_setprio", "s_sleep") or op.startswith("s_cbranch") or op == "s_branch":
            self.kind = "ctl"
        elif op.startswith("s_cmp") or op.startswith("s_bitcmp"):
            self.kind = "salu"
            self.r = flat(R)
            self.w = [("scc", 0)]
        elif op.startswith("s_"):
            self.kind = "salu"
            self.w = R[0] if R else []
            self.r = flat(R[1:])
            if "saveexec" in op:
                self.w = self.w + [("exec", 0)]
        elif op.startswith("@"):
            self.kind = "pseudo"
        else:
            raise ValueError("unknown instruction: " + t)

    @property
    def states(self):
        if self.kind in ("label", "dir", "pseudo"):
            return 0
        if self.op == "s_nop":
            return int(self.text.split()[1], 0) + 1
        return 1

    def is_trans(self):
        return self.kind == "valu" and self.op.startswith(TRANS)

    def is_dot(self):
        return self.kind == "valu" and self.op.startswith("v_dot")

    def __str__(self):
        if self.kind == "label":
            return self.text
        s = "    " + self.text
        if self.comment:
            s += "    ; " + self.comment
        return s


def vg(regs):
    return set(x for x in regs if x[0] in "va")


def sg(regs):
    return set(x for x in regs if x[0] in ("s", "vcc"))


XDL_VALU = {4: 8, 8: 12}
XDL_AB = {4: 8, 8: 12}
XDL_COVL = {4: 6, 8: 10}
XDL_WARC = {4: 3, 8: 7}


def need(p, c):
    n = 0
    pw, pr, cw, cr = p.w, p.r, c.w, c.r
    if p.kind == "valu":
        vw = vg(pw)
        if c.kind == "mfma" and vw & vg(cr):
            n = max(n, 3 if p.is_dot() else 2)
        if c.kind == "valu":
            if p.is_trans() and not c.is_trans() and (vw & vg(cr)):
                n = max(n, 1)
            if c.op.startswith("v_permlane") and vw & vg(cr):
                n = max(n, 2)
            if (c.op.startswith("v_readfirstlane") or c.op.startswith("v_readlane")) and vw & vg(cr):
                n = max(n, 1)
            if "dpp" in c.text or "row_" in c.text or "quad_perm" in c.text:
                if vw & vg(cr):
                    n = max(n, 2)
            if sg(pw) & sg(cr):
                n = max(n, 4 if c.op.startswith("v_readlane") or c.op.startswith("v_writelane") else 2)
            if ("exec", 0) in pw:
                if c.op.startswith("v_readfirstlane") or c.op.startswith("v_readlane") or c.op.startswith("v_permlane"):
                    n = max(n, 4)
        if p.is_dot():
            if c.kind in ("valu", "vmem", "ds") and (vw & (vg(cr) | vg(cw))):
                same_c = c.op == p.op and c.kind == "valu"
                if same_c:
                    ops = split_ops(c.text.split(None, 1)[1])
                    ab = vg(regs_of(ops[1]) + regs_of(ops[2]))
                    if vw & ab:
                        n = max(n, 3)
                else:
                    n = max(n, 3)
        if c.kind == "vmem" and sg(pw) & sg(cr):
            n = max(n, 5)
        if c.kind == "salu" and sg(pw) & sg(cr):
            n = max(n, 2)
        if c.kind == "mfma" and ("exec", 0) in pw:
            n = max(n, 4)
    if p.kind == "mfma":
        d = vg(pw)
        ps = p.passes
        if c.kind == "mfma":
            if d & vg(c.srcab):
                n = max(n, XDL_AB[ps])
            cc = vg(c.srcc)
            if d & cc:
                if not (cc == d and c.passes == ps):
                    n = max(n, XDL_COVL[ps])
            elif d & vg(cw):
                n = max(n, XDL_VALU[ps])
        elif c.kind in ("valu", "vmem", "ds"):
            if d & (vg(cr) | vg(cw)):
                n = max(n, XDL_VALU[ps])
        if c.kind in ("valu", "vmem", "ds") and vg(p.srcc) & vg(cw):
            n = max(n, XDL_WARC[ps])
    if p.kind == "vmem" and getattr(p, "store", False) and len(p.sdata) >= 3:
        if vg(p.sdata) & vg(cw):
            n = max(n, 2)
    if p.kind == "salu" and ("m0", 0) in pw and ("m0", 0) in cr:
        n = max(n, 1)
    return n


MAXD = 21


def pad_hazards(seq, before=()):
    out = []
    hist = list(before)[-MAXD * 2:]
    for ins in seq:
        if ins.kind in ("label", "dir", "pseudo"):
            out.append(ins)
            hist.append(ins)
            continue
        dist = 0
        add = 0
        for p in reversed(hist):
            if dist >= MAXD:
                break
            if p.states:
                k = need(p, ins)
                if k > dist:
                    add = max(add, k - dist)
            if not (p.optional and not ins.optional):
                dist += p.states
        while add > 0:
            k = min(add, 16)
            nop = I(f"s_nop {k-1}")
            nop.optional = ins.optional
            out.append(nop)
            hist.append(nop)
            add -= k
        out.append(ins)
        hist.append(ins)
        if len(hist) > 4 * MAXD:
            hist = hist[-2 * MAXD:]
    return out


class Tracker:
    def __init__(self):
        self.vm = []
        self.lg = []

    def copy(self):
        t = Tracker()
        t.vm = list(self.vm)
        t.lg = list(self.lg)
        return t

    def needed(self, ins):
        nv = nl = None
        if ins.optional:
            return None, None
        if ins.kind == "pseudo" and ins.op == "@wait":
            tags = ins.text.split()[1:]
            for q, name in ((self.vm, "v"), (self.lg, "l")):
                idx = [i for i, o in enumerate(q) if o.tag in tags]
                if idx:
                    n = len(q) - 1 - max(idx)
                    if name == "l" and any(o.cnt == "smem" for o in q):
                        n = 0
                    if name == "v":
                        nv = n
                    else:
                        nl = n
            return nv, nl
        touched = set(ins.r) | set(ins.w)
        if not touched:
            return None, None
        for q, name in ((self.vm, "v"), (self.lg, "l")):
            idx = [i for i, o in enumerate(q) if set(o.w) & touched]
            if idx:
                n = len(q) - 1 - max(idx)
                if name == "l" and any(o.cnt == "smem" for o in q):
                    n = 0
                if name == "v":
                    nv = n
                else:
                    nl = n
        return nv, nl

    def apply_wait(self, nv, nl):
        if nv is not None and len(self.vm) > nv:
            self.vm = self.vm[len(self.vm) - nv:] if nv else []
        if nl is not None and len(self.lg) > nl:
            self.lg = self.lg[len(self.lg) - nl:] if nl else []

    def issue(self, ins):
        if ins.optional:
            return
        if ins.kind == "ctl" and ins.op == "s_waitcnt":
            m = re.search(r"vmcnt\((\d+)\)", ins.text)
            nv = int(m.group(1)) if m else None
            m = re.search(r"lgkmcnt\((\d+)\)", ins.text)
            nl = int(m.group(1)) if m else None
            self.apply_wait(nv, nl)
        if ins.cnt == "vm":
            self.vm.append(ins)
        elif ins.cnt in ("lgkm", "smem"):
            self.lg.append(ins)


def mk_wait(nv, nl):
    s = "s_waitcnt"
    if nv is not None:
        s += f" vmcnt({min(nv,63)})"
    if nl is not None:
        s += f" lgkmcnt({min(nl,15)})"
    return I(s)


def mn(a, b):
    if a is None:
        return b
    if b is None:
        return a
    return min(a, b)


def add_waits(seq, tr, loop=False):
    if not loop:
        out = []
        for ins in seq:
            nv, nl = tr.needed(ins)
            if nv is not None or nl is not None:
                nv = None if nv is None else min(nv, 63)
                nl = None if nl is None else min(nl, 15)
                w = mk_wait(nv, nl)
                out.append(w)
                tr.apply_wait(nv, nl)
            if ins.kind != "pseudo":
                out.append(ins)
            tr.issue(ins)
        return out
    W = [(None, None)] * len(seq)
    for _ in range(6):
        changed = False
        t = tr.copy()
        for trip in range(4):
            for i, ins in enumerate(seq):
                nv, nl = t.needed(ins)
                nv = None if nv is None else min(nv, 63)
                nl = None if nl is None else min(nl, 15)
                new = (mn(W[i][0], nv), mn(W[i][1], nl))
                if new != W[i]:
                    W[i] = new
                    changed = True
                t.apply_wait(*W[i])
                t.issue(ins)
        if not changed:
            break
    else:
        raise RuntimeError("wait insertion did not converge")
    out = []
    for i, ins in enumerate(seq):
        if W[i] != (None, None):
            out.append(mk_wait(*W[i]))
        if ins.kind != "pseudo":
            out.append(ins)
    t1 = tr.copy()
    for ins in out:
        t1.issue(ins)
    t = t1.copy()
    for trip in range(3):
        for ins in out:
            t.issue(ins)
    tr.vm, tr.lg = t.vm, t.lg
    tr.one_trip = t1
    return out


class Prog:
    def __init__(self):
        self.out = []
        self.tr = Tracker()
        self.cur = []

    def __call__(self, text, tag=None, comment=None):
        for line in text.strip().split("\n"):
            line = line.split(";")[0].strip()
            if line:
                self.cur.append(I(line, tag=tag, comment=comment))

    def add(self, instrs):
        for x in instrs:
            self.cur.append(x if isinstance(x, I) else I(x))

    def flush(self):
        seq = add_waits(self.cur, self.tr)
        seq = pad_hazards(seq, self.out)
        self.out += seq
        self.cur = []

    def loop(self, body):
        self.flush()
        body = [x if isinstance(x, I) else I(x) for x in body]
        seq = add_waits(body, self.tr, loop=True)
        seq = pad_hazards(seq, self.out)
        seq2 = pad_hazards(seq, seq)
        self.out += seq2

    def fresh(self, drain=True):
        self.flush()
        self.tr = Tracker()
        self.out.append(I("s_nop 7") if False else I("; ---"))

    def text(self):
        self.flush()
        return "\n".join(str(i) for i in self.out)


def interleave(main, fill, start=0, end=None):
    end = len(main) if end is None else end
    n = end - start
    out = []
    k = 0
    for i, m in enumerate(main):
        out.append(m)
        if start <= i < end:
            tgt = (len(fill) * (i - start + 1)) // n
            while k < tgt:
                out.append(fill[k])
                k += 1
    out += fill[k:]
    return out


def opt(lines):
    out = []
    for x in lines:
        i = x if isinstance(x, I) else I(x)
        i.optional = True
        out.append(i)
    return out
```

```python
import sys, struct, os
from asmgen import *

NAME = "parallel_sum__mha_block__dense_activation_relu__prompt"

QF = 0
KVF = 2 << 20
HF = 6 << 20
W2F = 13 << 20
WOF = 15 << 20
OF = 16 << 20
BP = 18 << 20
WS_BYTES = 26 << 20
OOB = 0x40000000

XB = 2048 * 448 * 2
WQKVB = 448 * 1344 * 2
WOB = 448 * 448 * 2
W1B = 448 * 1792 * 2
W2B = 1792 * 448 * 2

MF = "v_mfma_f32_32x32x16_bf16"


def f32bits(x):
    return struct.unpack("<I", struct.pack("<f", x))[0]


def vr(b, n):
    return f"v[{b}:{b+n-1}]"


def ar(b, n):
    return f"a[{b}:{b+n-1}]"


def srd(p, d, base, nbytes):
    p(f"""
    s_mov_b32 s{d}, s{base}
    s_and_b32 s{d+1}, s{base+1}, 0xffff
    s_mov_b32 s{d+2}, {nbytes}
    s_mov_b32 s{d+3}, 0x00020000
    """)


STAMP = False
STAMP_BASE = 32 << 20


DBG = False


def dbg_mark(p, kidx, slot, vt=1):
    if not DBG:
        return
    uid = dbg_mark.n = getattr(dbg_mark, "n", 0) + 1
    p(f"""
    s_cmp_eq_u32 s2, 0
    s_cselect_b32 s70, 0, 32
    s_cbranch_scc1 DBGA{uid}
    s_cmp_lg_u32 s2, 200
    s_cbranch_scc1 DBGB{uid}
    DBGA{uid}:
    s_load_dwordx2 s[64:65], s[0:1], 64
    s_load_dwordx2 s[72:73], s[0:1], 56
    s_waitcnt vmcnt(0)
    s_memrealtime s[66:67]
    s_waitcnt lgkmcnt(0)
    s_add_u32 s64, s64, {30 << 20}
    s_addc_u32 s65, s65, 0
    s_mov_b64 s[68:69], exec
    s_mov_b64 exec, 1
    v_mov_b32 v{vt}, s70
    v_mov_b32 v{vt+1}, s66
    global_store_dword v{vt}, v{vt+1}, s[64:65] offset:{4*slot} sc0 sc1
    s_mov_b64 exec, s[68:69]
    """)
    if slot == 5:
        p(f"""
        s_waitcnt vmcnt(0)
        s_mov_b64 exec, 0xffff
        v_lshlrev_b32 v{vt}, 2, v0
        global_load_dword v{vt+1}, v{vt}, s[64:65] sc0 sc1
        s_waitcnt vmcnt(0)
        global_store_dword v{vt}, v{vt+1}, s[72:73]
        s_sub_u32 s72, s72, 1024
        s_subb_u32 s73, s73, 0
        global_store_dword v{vt}, v{vt+1}, s[72:73]
        s_mov_b64 exec, s[68:69]
        """)
    p(f"DBGB{uid}:")


def stamp(p, i):
    if DBG and i == 0:
        dbg_mark(p, stamp.k, 2 * stamp.k, 100)
    if STAMP:
        p(f"s_memrealtime s[{64+4*i}:{65+4*i}]")
        p(f"s_memtime s[{66+4*i}:{67+4*i}]")
        p("s_waitcnt lgkmcnt(0)")


def stamp_if(p, i, sreg, val):
    if STAMP:
        uid = stamp_if.n = getattr(stamp_if, "n", 0) + 1
        p(f"s_cmp_lg_u32 s{sreg}, {val}")
        p(f"s_cbranch_scc1 STI{uid}")
        stamp(p, i)
        p(f"STI{uid}:")


def stamp_out(p, n, kidx, sWS, sWAVE, vtmp=1, vtmp2=2, wave_add=0):
    dbg_mark(p, kidx, 2 * kidx + 1, 100)
    if not STAMP:
        return
    p("s_waitcnt vmcnt(0) lgkmcnt(0)")
    stamp(p, n)
    p(f"v_mov_b32 v{vtmp}, 0")
    for i in range(n + 1):
        p(f"v_writelane_b32 v{vtmp}, s{64+4*i}, {i}")
        p(f"v_writelane_b32 v{vtmp}, s{66+4*i}, {16+i}")
    p(f"""
    s_getreg_b32 s60, hwreg(HW_REG_HW_ID)
    s_getreg_b32 s61, hwreg(HW_REG_XCC_ID)
    v_writelane_b32 v{vtmp}, s60, 32
    v_writelane_b32 v{vtmp}, s61, 33
    s_lshl_b32 s60, s2, 3
    s_add_u32 s60, s60, s{sWAVE}
    s_add_u32 s60, s60, {wave_add}
    s_lshl_b32 s60, s60, 8
    s_add_u32 s60, s60, {STAMP_BASE + (kidx << 20)}
    v_lshlrev_b32 v{vtmp2}, 2, v0
    s_mov_b32 s{sWS+2}, {64 << 20}
    buffer_store_dword v{vtmp}, v{vtmp2}, s[{sWS}:{sWS+3}], s60 offen
    """)


KD = """
.section .rodata,"a"
.p2align 6
KD_{name}:
.amdhsa_kernel {name}
  .amdhsa_next_free_vgpr {nv}
  .amdhsa_next_free_sgpr {ns}
  .amdhsa_accum_offset {acc}
  .amdhsa_group_segment_fixed_size 0
  .amdhsa_kernarg_size 72
  .amdhsa_user_sgpr_count 2
  .amdhsa_user_sgpr_kernarg_segment_ptr 1
  .amdhsa_system_sgpr_workgroup_id_x 1
.end_amdhsa_kernel
"""


def head(name):
    return f""".text
.globl {name}
.p2align 8
.type {name},@function
{name}:
"""


SLOT = 28672
WAB = 64 * 192
CFA = 5 * SLOT
VSC = CFA + 2048
K1_LDS = VSC + 8192


def gen_k1():
    p = Prog()
    stamp.k = 0
    sX, sW, sWS = 4, 8, 16
    sWAVE, sMT, sT0, sG, sTMP, sTMP2, sTMP3, sST, sTYPE, sSTRIDE, sOFF, sM0, sK, sLS, sTS, sXO, sCUR, sT, sONE, sOB, sTY2 = range(20, 41)
    p(f"""
    s_cmp_ge_u32 s2, 256
    s_cbranch_scc1 K1_END
    s_load_dwordx4 s[44:47], s[0:1], 0
    s_load_dwordx2 s[48:49], s[0:1], 16
    s_load_dwordx4 s[52:55], s[0:1], 32
    s_load_dwordx2 s[56:57], s[0:1], 64
    v_lshrrev_b32 v1, 6, v0
    v_and_b32 v0, 63, v0
    v_readfirstlane_b32 s{sWAVE}, v1
    s_and_b32 s{sTMP}, s2, 7
    s_lshr_b32 s{sTMP2}, s2, 3
    s_lshr_b32 s{sMT}, s{sTMP}, 1
    s_lshl_b32 s{sMT}, s{sMT}, 2
    s_and_b32 s{sTMP3}, s{sTMP2}, 3
    s_add_u32 s{sMT}, s{sMT}, s{sTMP3}
    s_lshr_b32 s{sG}, s{sTMP2}, 2
    s_and_b32 s{sTYPE}, s{sTMP}, 1
    s_mul_i32 s{sT0}, s{sG}, 7
    s_cmp_eq_u32 s{sTYPE}, 1
    s_cselect_b32 s{sTS}, 56, 64
    s_movk_i32 s{sTMP}, 3584
    s_cselect_b32 s{sSTRIDE}, 2688, s{sTMP}
    s_lshl_b32 s{sTMP}, s{sTYPE}, 3
    s_add_u32 s{sTMP}, s{sTMP}, s{sG}
    s_cmp_eq_u32 s{sTMP}, 15
    s_waitcnt lgkmcnt(0)
    s_cbranch_scc1 K1_TRANS
    s_lshl_b32 s{sMT}, s{sMT}, 2
    s_cmp_ge_u32 s{sWAVE}, 4
    s_cbranch_scc1 K1_HELPER
    """)
    stamp(p, 0)
    srd(p, sWS, 56, WS_BYTES)

    def tr_lane(dstA, dstB0, dstB1, t0, t1):
        p(f"""
        v_lshrrev_b32 v{t0}, 5, v0
        v_lshlrev_b32 v{t0}, 3, v{t0}
        v_bfe_u32 v{t1}, v0, 2, 2
        v_add_u32 v{t0}, v{t0}, v{t1}
        v_bfe_u32 v{t1}, v0, 4, 1
        v_lshlrev_b32 v{dstB0}, 5, v{t1}
        v_and_b32 v{t1}, 3, v0
        v_lshl_add_u32 v{dstB0}, v{t1}, 3, v{dstB0}
        v_mul_u32_u24 v{dstA}, 192, v{t0}
        v_add_u32 v{dstA}, v{dstA}, v{dstB0}
        v_lshl_add_u32 v{dstB0}, v{t0}, 7, v{dstB0}
        v_bfe_u32 v{t1}, v0, 3, 1
        v_lshl_add_u32 v{dstB0}, v{t1}, 6, v{dstB0}
        v_xor_b32 v{dstB1}, 64, v{dstB0}
        """)

    X = 16
    ACCA, ACCB = 128, 176
    accs = [128, 144, 160, 176, 192, 128, 144]
    NW = 6
    WF = 208
    CFt, XM = 232, 236
    ST = 240
    vXA = 248
    vLA, vLB0, vLB1, vCA, vCB0, vCB1, vXC = 1, 2, 3, 252, 253, 254, 255
    vH, vL16, vTK, vCF, vA, vRINV, vO6, vO7, vVW, vVR, vMA, vOA = range(4, 16)
    p(f"s_add_u32 s{sMT}, s{sMT}, s{sWAVE}")
    tr_lane(vLA, vLB0, vLB1, vA, vRINV)
    p(f"""
    v_lshrrev_b32 v{vH}, 5, v0
    v_and_b32 v{vTK}, 31, v0
    v_bfe_u32 v{vA}, v0, 1, 3
    v_xor_b32 v{vA}, v{vH}, v{vA}
    s_lshl_b32 s{sTMP}, s{sWAVE}, 12
    s_add_u32 s{sTMP}, s{sTMP}, {WAB}
    v_lshl_add_u32 v{vRINV}, v{vTK}, 7, s{sTMP}
    v_lshlrev_b32 v{vL16}, 4, v0
    """)
    for sp in range(4):
        p(f"v_xor_b32 v{vXA+sp}, {2*sp}, v{vA}")
        p(f"v_lshl_add_u32 v{vXA+sp}, v{vXA+sp}, 4, v{vRINV}")
    for i in range(8):
        p(f"v_mov_b32 v{ST+i}, 0")
    p(f"""
    v_lshlrev_b32 v{vCF}, 3, v{vTK}
    v_add_u32 v{vCF}, {CFA}, v{vCF}
    v_mov_b32 v{CFt+2}, 0
    v_mov_b32 v{CFt+3}, 0
    v_mov_b32 v{XM+2}, 0
    v_mov_b32 v{XM+3}, 0
    v_cmp_gt_u32 s[60:61], 32, v0
    s_mov_b32 s{sONE}, 0x3f803f80
    s_mul_i32 s{sST}, s{sMT}, 114688
    s_lshl_b32 s{sTMP}, s{sT0}, 11
    s_add_u32 s{sST}, s{sST}, s{sTMP}
    s_add_u32 s{sST}, s{sST}, {HF}
    s_mov_b32 s{sT}, s{sT0}
    s_lshl_b32 s{sTMP}, s{sWAVE}, 11
    s_add_u32 s{sTMP}, s{sTMP}, {VSC}
    v_lshl_add_u32 v{vVW}, v{vH}, 3, s{sTMP}
    v_lshl_add_u32 v{vVW}, v{vTK}, 6, v{vVW}
    v_lshl_add_u32 v{vVR}, v{vH}, 8, s{sTMP}
    v_bfe_u32 v{vA}, v0, 2, 2
    v_lshl_add_u32 v{vVR}, v{vA}, 6, v{vVR}
    v_bfe_u32 v{vA}, v0, 4, 1
    v_lshl_add_u32 v{vVR}, v{vA}, 5, v{vVR}
    v_and_b32 v{vA}, 3, v0
    v_lshl_add_u32 v{vVR}, v{vA}, 3, v{vVR}
    v_cmp_gt_u32 vcc, 28, v{vTK}
    v_cndmask_b32 v{vMA}, 0, -1, vcc
    v_mov_b32 v{vA}, 0x3f803f80
    v_cmp_eq_u32 vcc, 28, v{vTK}
    v_cndmask_b32 v{vOA}, 0, v{vA}, vcc
    """)
    stamp(p, 1)

    seq = []
    for st in range(7):
        for sp in range(4):
            for j in range(3):
                seq.append((st, 4 * st + sp, j))
    for ph in range(2):
        for hs in range(2):
            for sp in range(14):
                for j in range(2):
                    seq.append((7 + 2 * ph + hs, 14 * hs + sp, 3 + 2 * ph + j))
    NA = 84

    def rdw(n):
        st, s, j = seq[n]
        b = WF + 4 * (n % NW)
        if st < 7:
            va, off, d = vCA, (s & 3) * 16 * 192 + 64 * j, 4 * 192
        else:
            va, off, d = (vCB0 if (j - 3) % 2 == 0 else vCB1), (s % 14) * 16 * 128, 4 * 128
        return [I(f"ds_read_b64_tr_b16 {vr(b,2)}, v{va} offset:{off}"),
                I(f"ds_read_b64_tr_b16 {vr(b+2,2)}, v{va} offset:{off+d}")]

    def mfma(n):
        st, s, j = seq[n]
        acc = vr(accs[j], 16)
        return I(f"{MF} {acc}, {vr(WF+4*(n%NW),4)}, {vr(X+4*s,4)}, {'0' if s == 0 else acc}")

    def enter(st):
        base = (st % 5) * SLOT
        o = [I("s_waitcnt lgkmcnt(0)"), I("s_barrier")]
        if st < 7:
            o.append(I(f"v_add_u32 v{vCA}, {base}, v{vLA}"))
            for sp in range(4):
                o.append(I(f"v_add_u32 v{vXC}, {base}, v{vXA+sp}"))
                o.append(I(f"ds_read_b128 {vr(X+4*(4*st+sp),4)}, v{vXC}"))
        elif st < 11:
            o.append(I(f"v_add_u32 v{vCB0}, {base}, v{vLB0}"))
            o.append(I(f"v_add_u32 v{vCB1}, {base}, v{vLB1}"))
        return o

    def stats(st):
        o = []
        for r in range(16):
            x = X + 16 * st + r
            o.append(I(f"v_dot2c_f32_bf16 v{ST+(r&3)}, s{sONE}, v{x}"))
            o.append(I(f"v_dot2c_f32_bf16 v{ST+4+(r&3)}, v{x}, v{x}"))
        return o

    AH = NW - 1

    def stream(n0, n1, fill=None, rd_state=None):
        out = []
        for n in range(n0, n1):
            out.append(mfma(n))
            while rd_state["next"] <= min(n + AH, len(seq) - 1):
                m = rd_state["next"]
                if seq[m][0] != rd_state["stage"]:
                    if n < rd_state["last_at"] + 2 and m > n + 1:
                        break
                    out += enter(seq[m][0])
                    rd_state["stage"] = seq[m][0]
                out += rdw(m)
                rd_state["next"] = m + 1
                rd_state["last_at"] = n
            if rd_state["next"] == len(seq) and rd_state["stage"] == 10 and n >= rd_state["last_at"] + 2:
                out += enter(11)
                rd_state["stage"] = 11
            if fill and (n - n0) in fill:
                out += fill[n - n0]
        return out

    rs = {"next": 0, "stage": 0, "last_at": -9}
    p.add(enter(0))
    stamp(p, 2)
    for m in range(AH):
        p.add(rdw(m))
    rs["next"] = AH
    for st in range(7):
        p.add(stats(st))
        p.add(stream(12 * st, 12 * st + 12, None, rs))
    stamp(p, 3)
    T = ST
    fin = [I(x.strip()) for x in f"""
    v_add_f32 v{T}, v{T}, v{T+1}
    v_add_f32 v{T+4}, v{T+4}, v{T+5}
    v_add_f32 v{T+2}, v{T+2}, v{T+3}
    v_add_f32 v{T+6}, v{T+6}, v{T+7}
    v_add_f32 v{T}, v{T}, v{T+2}
    v_add_f32 v{T+4}, v{T+4}, v{T+6}
    v_mov_b32 v{T+1}, v{T}
    v_mov_b32 v{T+5}, v{T+4}
    v_permlane32_swap_b32 v{T}, v{T+1}
    v_permlane32_swap_b32 v{T+4}, v{T+5}
    v_add_f32 v{T}, v{T}, v{T+1}
    v_add_f32 v{T+4}, v{T+4}, v{T+5}
    v_mul_f32 v{T}, {f32bits(1.0/448.0):#x}, v{T}
    v_mul_f32 v{T+4}, {f32bits(1.0/448.0):#x}, v{T+4}
    v_fma_f32 v{T+4}, -v{T}, v{T}, v{T+4}
    v_cvt_pk_bf16_f32 v{T+1}, -v{T}, -v{T}
    v_max_f32 v{T+4}, 0, v{T+4}
    v_cndmask_b32 v{XM}, 0, v{T+1}, s[60:61]
    v_cvt_pk_bf16_f32 v{T+4}, v{T+4}, v{T+4}
    v_and_b32 v{XM+1}, 0xffff, v{XM}
    v_and_b32 v{T+4}, 0xffff0000, v{T+4}
    v_add_f32 v{T+4}, {f32bits(1e-5):#x}, v{T+4}
    v_cvt_pk_bf16_f32 v{T+4}, v{T+4}, v{T+4}
    v_and_b32 v{T+4}, 0xffff0000, v{T+4}
    v_sqrt_f32 v{T+4}, v{T+4}
    v_cvt_pk_bf16_f32 v{T+4}, v{T+4}, v{T+4}
    v_and_b32 v{T+4}, 0xffff0000, v{T+4}
    v_rcp_f32 v{vRINV}, v{T+4}
    """.strip().split("\n")]
    p(f"""
    s_cmp_eq_u32 s{sTYPE}, 1
    s_cbranch_scc1 K1_QB
    """)
    p.flush()
    tr_b, rs_b, hist_b = p.tr.copy(), dict(rs), list(p.out[-60:])
    c = (28 ** -0.5) * 1.4426950408889634

    def store(pk, off=0):
        return [I(f"buffer_store_dwordx4 {vr(pk,4)}, v{vL16}, s[{sWS}:{sWS+3}], s{sST} offen offset:{off} sc1"),
                I(f"buffer_store_dwordx4 {vr(pk+4,4)}, v{vL16}, s[{sWS}:{sWS+3}], s{sST} offen offset:{off+1024} sc1")]

    def epi(j, qkv, packed):
        acc = accs[j]
        g0 = [I(f"ds_read_b64 {vr(CFt,2)}, v{vCF} offset:{256*j}")]
        g1 = [I(f"{MF} {vr(acc,16)}, {vr(CFt,4)}, {vr(XM,4)}, {vr(acc,16)}")]
        g2 = []
        sc = vRINV
        if qkv:
            sc = vA
            g1 += [I(x) for x in [
                f"s_lshr_b32 s{sTY2}, s{sT}, 4",
                f"s_and_b32 s{sTMP}, s{sT}, 15",
                f"s_lshl_b32 s{sTMP}, s{sTMP}, 6",
                f"s_add_u32 s{sTMP}, s{sTMP}, s{sMT}",
                f"s_lshl_b32 s{sST}, s{sTMP}, 11",
                f"s_lshl_b32 s{sTMP}, s{sTMP}, 12",
                f"s_add_u32 s{sTMP}, s{sTMP}, {KVF}",
                f"s_cmp_eq_u32 s{sTY2}, 0",
                f"s_cselect_b32 s{sST}, s{sST}, s{sTMP}",
                f"s_cselect_b32 s{sTMP}, {f32bits(c):#x}, 1.0",
                f"v_mul_f32 v{vA}, s{sTMP}, v{vRINV}",
                f"s_cselect_b32 s{sTMP}, 0, 0x3f803f80",
                f"s_cselect_b32 s{sTMP2}, 0, 0x3f80",
                f"v_mov_b32 v{vO6}, s{sTMP}",
                f"v_mov_b32 v{vO7}, s{sTMP2}",
                f"s_add_u32 s{sT}, s{sT}, 1"]]
            if j == 6:
                g1 += [I(f"s_cmp_eq_u32 s{sTY2}, 3"), I(f"s_cselect_b32 s{sST}, {OOB}, s{sST}")]
        for i in range(8):
            g2.append(I(f"v_mul_f32 v{acc+2*i}, v{sc}, v{acc+2*i}"))
            g2.append(I(f"v_mul_f32 v{acc+2*i+1}, v{sc}, v{acc+2*i+1}"))
            g2.append(I(f"v_cvt_pk_bf16_f32 v{acc+i}, v{acc+2*i}, v{acc+2*i+1}"))
            if not qkv:
                g2.append(I(f"v_pk_max_i16 v{acc+i}, v{acc+i}, 0"))
        if not qkv:
            g2 += store(acc, 2048 * (j & 1))
            if j & 1:
                g2.append(I(f"s_add_u32 s{sST}, s{sST}, 4096"))
            return g0, g1, g2, []
        pv = acc + 8
        blk = [I(f"s_cmp_eq_u32 s{sTY2}, 2"), I(f"s_cbranch_scc1 K1_EV{j}")]
        blk += opt([f"v_cndmask_b32 v{acc+6}, v{vO6}, v{acc+6}, s[60:61]",
                    f"v_cndmask_b32 v{acc+7}, v{vO7}, v{acc+7}, s[60:61]"] + store(acc) + [f"s_branch K1_EN{j}"])
        blk += [I(f"K1_EV{j}:")]
        v = [f"ds_write_b64 v{vVW}, {vr(acc+2*q,2)} offset:{16*q}" for q in range(4)]
        for i in range(2):
            v += [f"ds_read_b64_tr_b16 {vr(pv+4*i,2)}, v{vVR} offset:{1024*i}",
                  f"ds_read_b64_tr_b16 {vr(pv+4*i+2,2)}, v{vVR} offset:{1024*i+512}"]
        v += ["s_waitcnt lgkmcnt(0)"]
        v += [f"v_and_or_b32 v{pv+i}, v{pv+i}, v{vMA}, v{vOA}" for i in range(8)]
        blk += opt(v + store(pv, 2048))
        blk += [I(f"K1_EN{j}:")]
        return g0, g1, g2, blk

    def plan(tiles, qkv, start, span, pre=None):
        fill = {}
        def put(i, l):
            fill.setdefault(i, []).extend(l)
        if pre:
            for i, x in enumerate(pre):
                put((i * start) // len(pre), [x])
        per = span // len(tiles)
        for k, j in enumerate(tiles):
            g0, g1, g2, blk = epi(j, qkv, False)
            b = start + k * per
            put(max(b - 3, 0) if k or start >= 3 else b, g0)
            put(b if (k or start >= 3) else b + 3, g1)
            b2 = b + (3 if (k or start >= 3) else 6)
            n = b + per - 1 - b2
            for i, x in enumerate(g2):
                put(b2 + (i * n) // len(g2), [x])
            put(b + per - 1, blk)
        return fill

    for qkv in (False, True):
        if qkv:
            p.tr = tr_b.copy()
            p("K1_QB:")
        rs = dict(rs_b)
        p.add(stream(NA, NA + 56, plan([0, 1, 2], qkv, 8, 48, fin), rs))
        p.add(stream(NA + 56, NA + 112, plan([3, 4], qkv, 1, 40), rs))
        stamp(p, 4)
        e = [epi(j, qkv, True) for j in (5, 6)]
        p.add(e[0][0] + e[0][1] + e[1][0] + e[0][2][:2] + e[1][1][:1] + e[0][2][2:] + e[0][3] + e[1][1][1:] + e[1][2] + e[1][3])
        stamp_out(p, 5, 0, sWS, sWAVE, 2, 3)
        p("s_endpgm")
        if qkv:
            seq2 = add_waits(p.cur, p.tr)
            p.out += pad_hazards(seq2, hist_b)
            p.cur = []
        else:
            p.flush()

    p.tr = Tracker()
    vOA3, vX, vOB, hLA, hLB, ONE, CS, F = 8, 12, 14, 16, 17, 20, 24, 32
    p("K1_HELPER:")
    stamp(p, 0)
    srd(p, sX, 44, XB)
    p(f"""
    s_sub_u32 s{sWAVE}, s{sWAVE}, 4
    s_add_u32 s{sXO}, s{sMT}, s{sWAVE}
    s_mul_i32 s{sXO}, s{sXO}, 28672
    v_lshrrev_b32 v4, 3, v0
    v_mul_u32_u24 v7, 896, v4
    v_lshrrev_b32 v5, 4, v0
    v_and_b32 v6, 7, v0
    v_xor_b32 v6, v5, v6
    v_lshl_add_u32 v{vX}, v6, 4, v7
    v_xor_b32 v6, 4, v6
    v_lshl_add_u32 v{vX+1}, v6, 4, v7
    s_cmp_eq_u32 s{sTYPE}, 1
    s_cselect_b32 s{sW}, s46, s52
    s_cselect_b32 s{sW+1}, s47, s53
    s_mov_b32 s{sTMP}, {W1B}
    s_cselect_b32 s{sW+2}, {WQKVB}, s{sTMP}
    s_and_b32 s{sW+1}, s{sW+1}, 0xffff
    s_mov_b32 s{sW+3}, 0x00020000
    s_mul_i32 s{sOB}, s{sT0}, s{sTS}
    s_lshl_b32 s{sTMP}, s{sWAVE}, 4
    s_mul_i32 s{sTMP}, s{sTMP}, s{sSTRIDE}
    s_add_u32 s{sOFF}, s{sOB}, s{sTMP}
    """)
    for d in range(3):
        p(f"""
        v_add_u32 v1, {64*d}, v0
        v_mul_u32_u24 v2, 5462, v1
        v_lshrrev_b32 v2, 16, v2
        v_mul_u32_u24 v3, 12, v2
        v_sub_u32 v1, v1, v3
        v_lshrrev_b32 v3, 2, v1
        v_and_b32 v1, 3, v1
        v_lshlrev_b32 v1, 4, v1
        v_mad_u32_u24 v1, v3, s{sTS}, v1
        v_mad_u32_u24 v{vOA3+d}, v2, s{sSTRIDE}, v1
        """)
    p(f"""
    v_mov_b32 v{vOB}, 0
    s_mov_b32 s{sLS}, 0
    s_mov_b32 s{sK}, -4
    s_lshl_b32 s{sTMP3}, s{sSTRIDE}, 6
    K1_LA:
    s_lshl_b32 s{sM0}, s{sWAVE}, 12
    s_add_u32 s{sM0}, s{sM0}, s{sLS}
    """)
    for g in range(4):
        p(f"s_add_u32 m0, s{sM0}, {WAB+1024*g}")
        p(f"s_add_u32 s{sTMP}, s{sXO}, {8*896*g}")
        p(f"buffer_load_dwordx4 v{vX+(g&1)}, s[{sX}:{sX+3}], s{sTMP} offen lds")
    p(f"""
    s_mul_i32 s{sM0}, s{sWAVE}, 3072
    s_add_u32 s{sM0}, s{sM0}, s{sLS}
    """)
    for d in range(3):
        p(f"s_add_u32 m0, s{sM0}, {1024*d}")
        p(f"buffer_load_dwordx4 v{vOA3+d}, s[{sW}:{sW+3}], s{sOFF} offen lds")
    p(f"""
    s_add_u32 s{sOFF}, s{sOFF}, s{sTMP3}
    s_add_u32 s{sXO}, s{sXO}, 128
    K1_LX:
    s_add_u32 s{sLS}, s{sLS}, {SLOT}
    s_cmp_eq_u32 s{sLS}, {5*SLOT}
    s_cselect_b32 s{sLS}, 0, s{sLS}
    s_add_u32 s{sK}, s{sK}, 1
    s_cmp_lt_i32 s{sK}, 0
    s_cbranch_scc1 K1_LA
    s_cmp_lg_u32 s{sK}, 0
    s_cbranch_scc1 K1_LC
    """)
    tr_lane(hLA, hLB, hLB + 1, 1, 2)
    p(f"""
    s_lshl_b32 s{sTMP}, s{sWAVE}, 6
    v_add_u32 v{hLA}, s{sTMP}, v{hLA}
    s_and_b32 s{sTMP}, s{sWAVE}, 1
    s_lshl_b32 s{sTMP}, s{sTMP}, 6
    v_xor_b32 v{hLB}, s{sTMP}, v{hLB}
    v_bfe_u32 v1, v0, 2, 1
    v_bfe_u32 v2, v0, 4, 1
    v_xor_b32 v1, v1, v2
    v_and_b32 v3, 3, v0
    v_lshlrev_b32 v3, 4, v3
    v_mad_u32_u24 v3, v1, s{sTS}, v3
    v_mad_u32_u24 v{vOB}, v4, s{sSTRIDE}, v3
    v_and_b32 v1, 15, v0
    v_mov_b32 v3, 0x3f803f80
    v_cmp_eq_u32 vcc, v1, v2
    v_cndmask_b32 v{ONE}, 0, v3, vcc
    v_mov_b32 v{ONE+1}, v{ONE}
    v_mov_b32 v{ONE+2}, v{ONE}
    v_mov_b32 v{ONE+3}, v{ONE}
    v_mov_b32 v{CS}, 0
    v_mov_b32 v{CS+1}, 0
    v_mov_b32 v{CS+2}, 0
    v_mov_b32 v{CS+3}, 0
    s_mov_b32 s{sCUR}, 0
    s_mul_i32 s{sTMP}, s{sTS}, 3
    s_add_u32 s{sOB}, s{sOB}, s{sTMP}
    s_mul_i32 s{sTMP}, s{sWAVE}, 56
    s_mul_i32 s{sTMP}, s{sTMP}, s{sSTRIDE}
    s_add_u32 s{sOB}, s{sOB}, s{sTMP}
    s_setprio 2
    s_branch K1_LW
    """)
    p.flush()
    p.tr = Tracker()
    M16 = "v_mfma_f32_16x16x32_bf16"

    def publish(tile_sreg):
        p(f"""
        s_lshl_b32 s{sTMP}, s{tile_sreg}, 8
        s_add_u32 s{sTMP}, s{sTMP}, {CFA}
        v_lshl_add_u32 v1, v0, 3, s{sTMP}
        """)
        for r in range(2):
            a, b2, c2 = F + 4 * r, F + 4 * r + 1, F + 4 * r + 2
            p(f"""
            v_and_b32 v{a}, 0xffff0000, v{CS+r}
            v_sub_f32 v{b2}, v{CS+r}, v{a}
            v_and_b32 v{c2}, 0xffff0000, v{b2}
            v_sub_f32 v{b2}, v{b2}, v{c2}
            v_lshrrev_b32 v{a}, 16, v{a}
            v_or_b32 v{a}, v{a}, v{c2}
            v_lshrrev_b32 v{b2}, 16, v{b2}
            """)
        p(f"""
        s_mov_b64 exec, 0xffff
        ds_write_b64 v1, {vr(F,2)}
        ds_write_b64 v1, {vr(F+4,2)} offset:128
        s_mov_b64 exec, -1
        v_mov_b32 v{CS}, 0
        v_mov_b32 v{CS+1}, 0
        s_waitcnt lgkmcnt(0)
        """)

    p(f"""
    K1_LC:
    s_cmp_gt_u32 s{sK}, 7
    s_cbranch_scc1 K1_LCB
    s_cmp_eq_u32 s{sWAVE}, 3
    s_cbranch_scc1 K1_LN
    v_add_u32 v1, s{sCUR}, v{hLA}
    """)
    for sp in range(4):
        p(f"ds_read_b64_tr_b16 {vr(F+4*sp,2)}, v1 offset:{16*192*sp}")
        p(f"ds_read_b64_tr_b16 {vr(F+4*sp+2,2)}, v1 offset:{16*192*sp+4*192}")
    for sp in range(4):
        p(f"{M16} {vr(CS,4)}, {vr(ONE,4)}, {vr(F+4*sp,4)}, {vr(CS,4)}")
    p(f"""
    s_cmp_lg_u32 s{sK}, 7
    s_cbranch_scc1 K1_LN
    s_mov_b32 s{sTMP2}, s{sWAVE}
    s_branch K1_LP
    """)
    p.flush()
    p.tr = Tracker()
    p(f"""
    K1_LCB:
    s_sub_u32 s{sTMP}, s{sK}, 8
    s_lshr_b32 s{sTMP}, s{sTMP}, 1
    s_lshr_b32 s{sTMP2}, s{sWAVE}, 1
    s_cmp_lg_u32 s{sTMP}, s{sTMP2}
    s_cbranch_scc1 K1_LN
    v_add_u32 v1, s{sCUR}, v{hLB}
    """)
    for sp in range(14):
        p(f"ds_read_b64_tr_b16 {vr(F+4*sp,2)}, v1 offset:{2048*sp}")
        p(f"ds_read_b64_tr_b16 {vr(F+4*sp+2,2)}, v1 offset:{2048*sp+512}")
        if sp >= 5:
            p(f"{M16} {vr(CS,4)}, {vr(ONE,4)}, {vr(F+4*(sp-5),4)}, {vr(CS,4)}")
    for sp in range(9, 14):
        p(f"{M16} {vr(CS,4)}, {vr(ONE,4)}, {vr(F+4*sp,4)}, {vr(CS,4)}")
    p(f"""
    s_and_b32 s{sTMP}, s{sK}, 1
    s_cmp_eq_u32 s{sTMP}, 0
    s_cbranch_scc1 K1_LN
    s_add_u32 s{sTMP2}, s{sWAVE}, 3
    K1_LP:
    s_nop 7
    """)
    publish(sTMP2)
    p(f"""
    K1_LN:
    s_add_u32 s{sCUR}, s{sCUR}, {SLOT}
    s_cmp_eq_u32 s{sCUR}, {5*SLOT}
    s_cselect_b32 s{sCUR}, 0, s{sCUR}
    K1_LW:
    s_cmp_lt_u32 s{sK}, 8
    s_cbranch_scc1 K1_W21
    s_cmp_eq_u32 s{sK}, 8
    s_cbranch_scc1 K1_W14
    s_cmp_eq_u32 s{sK}, 9
    s_cbranch_scc1 K1_W7
    s_waitcnt vmcnt(0)
    K1_W7:
    s_waitcnt vmcnt(7)
    K1_W14:
    s_waitcnt vmcnt(14)
    K1_W21:
    s_waitcnt vmcnt(21)
    s_barrier
    s_cmp_lt_u32 s{sK}, 3
    s_cbranch_scc1 K1_LA
    s_cmp_lt_u32 s{sK}, 7
    s_cbranch_scc1 K1_LB
    s_add_u32 s{sK}, s{sK}, 1
    s_cmp_lt_u32 s{sK}, 12
    s_cbranch_scc1 K1_LC
    """)
    if os.environ.get("CPF", "0") != "0":
        pass
    if STAMP:
        srd(p, sWS, 56, WS_BYTES)
    stamp_out(p, 1, 0, sWS, sWAVE, 5, 6, wave_add=4)
    p("s_endpgm")
    p(f"""
    K1_LB:
    s_mul_i32 s{sM0}, s{sWAVE}, 7168
    s_add_u32 s{sM0}, s{sM0}, s{sLS}
    s_lshl_b32 s{sTMP2}, s{sSTRIDE}, 3
    s_mov_b32 s{sTMP}, s{sOB}
    """)
    for d in range(7):
        p(f"s_add_u32 m0, s{sM0}, {1024*d}")
        p(f"buffer_load_dwordx4 v{vOB}, s[{sW}:{sW+3}], s{sTMP} offen lds")
        if d < 6:
            p(f"s_add_u32 s{sTMP}, s{sTMP}, s{sTMP2}")
    p(f"""
    s_mul_i32 s{sTMP}, s{sSTRIDE}, 224
    s_lshl_b32 s{sTMP2}, s{sTS}, 1
    s_sub_u32 s{sTMP2}, s{sTMP2}, s{sTMP}
    s_and_b32 s{sM0}, s{sK}, 1
    s_cmp_eq_u32 s{sM0}, 1
    s_cselect_b32 s{sTMP}, s{sTMP}, s{sTMP2}
    s_add_u32 s{sOB}, s{sOB}, s{sTMP}
    s_branch K1_LX
    """)
    p.flush()

    p.tr = Tracker()
    sW2, sWO, sC = 4, 8, sMT
    WOA = 128 * 896
    p("K1_TRANS:")
    stamp(p, 0)
    srd(p, sWS, 56, WS_BYTES)
    srd(p, sW2, 54, W2B)
    srd(p, sWO, 48, WOB)
    vL, vB2, vTW, vTO = 1, 2, 3, 4
    p(f"""
    v_lshlrev_b32 v{vL}, 4, v0
    s_mul_i32 s{sOFF}, s{sC}, {28*896}
    s_lshl_b32 s{sM0}, s{sWAVE}, 12
    s_add_u32 s{sOFF}, s{sOFF}, s{sM0}
    s_add_u32 m0, s{sM0}, {WOA}
    s_cmp_eq_u32 s{sWAVE}, 7
    s_cbranch_scc1 K1_TR1
    """)
    for d in range(4):
        p(f"buffer_load_dwordx4 v{vL}, s[{sWO}:{sWO+3}], s{sOFF} offen offset:{1024*d} lds")
    p(f"""
    K1_TR1:
    s_mul_i32 s{sOFF}, s{sC}, {128*896}
    s_mul_i32 s{sM0}, s{sWAVE}, {14*1024}
    s_add_u32 s{sOFF}, s{sOFF}, s{sM0}
    """)
    for d in range(14):
        if d % 4 == 0:
            p(f"s_add_u32 m0, s{sM0}, {1024*d}")
            p(f"s_add_u32 s{sTMP}, s{sOFF}, {1024*d}")
        p(f"buffer_load_dwordx4 v{vL}, s[{sW2}:{sW2+3}], s{sTMP} offen offset:{1024*(d%4)} lds")
    p(f"""
    v_lshrrev_b32 v{vB2}, 5, v0
    v_lshlrev_b32 v{vTW}, 2, v{vB2}
    v_bfe_u32 v{vB2}, v0, 2, 2
    v_add_u32 v{vTW}, v{vTW}, v{vB2}
    v_mul_u32_u24 v{vTW}, 896, v{vTW}
    v_bfe_u32 v{vB2}, v0, 4, 1
    v_lshl_add_u32 v{vTW}, v{vB2}, 5, v{vTW}
    v_and_b32 v{vB2}, 3, v0
    v_lshl_add_u32 v{vTW}, v{vB2}, 3, v{vTW}
    s_lshl_b32 s{sTMP}, s{sWAVE}, 7
    s_add_u32 s{sTMP}, s{sTMP}, {WOA}
    v_add_u32 v{vTO}, s{sTMP}, v{vTW}
    s_mul_i32 s{sTMP}, s{sWAVE}, {16*896}
    v_add_u32 v{vTW}, s{sTMP}, v{vTW}
    v_cmp_gt_u32 vcc, 32, v0
    s_waitcnt vmcnt(0)
    s_barrier
    s_cmp_eq_u32 s{sWAVE}, 7
    s_cbranch_scc1 K1_TR2
    """)
    G = 16
    for t in range(2):
        for i in range(2):
            b = G + 8 * t + 4 * i
            p(f"ds_read_b64_tr_b16 {vr(b,2)}, v{vTO} offset:{64*t+16*896*i}")
            p(f"ds_read_b64_tr_b16 {vr(b+2,2)}, v{vTO} offset:{64*t+16*896*i+8*896}")
    p(f"""
    s_lshl_b32 s{sOFF}, s{sWAVE}, 16
    s_lshl_b32 s{sTMP}, s{sC}, 11
    s_add_u32 s{sOFF}, s{sOFF}, s{sTMP}
    s_add_u32 s{sOFF}, s{sOFF}, {WOF}
    s_add_u32 s{sTMP}, s{sOFF}, 32768
    """)
    for t in range(2):
        p(f"v_cndmask_b32 v{G+8*t+6}, 0, v{G+8*t+6}, vcc")
        p(f"v_cndmask_b32 v{G+8*t+7}, 0, v{G+8*t+7}, vcc")
    for t in range(2):
        for i in range(2):
            p(f"buffer_store_dwordx4 {vr(G+8*t+4*i,4)}, v{vL}, s[{sWS}:{sWS+3}], s{sOFF if t == 0 else sTMP} offen offset:{1024*i} sc1")
    p.flush()
    p.tr = Tracker()
    p(f"""
    K1_TR2:
    s_cmp_ge_u32 s{sC}, 14
    s_cbranch_scc1 K1_TR3
    s_lshl_b32 s{sOFF}, s{sC}, 3
    s_add_u32 s{sOFF}, s{sOFF}, s{sWAVE}
    s_lshl_b32 s{sOFF}, s{sOFF}, 10
    s_add_u32 s{sOFF}, s{sOFF}, {W2F}
    """)
    F = 32
    for t in range(14):
        p(f"ds_read_b64_tr_b16 {vr(F+4*t,2)}, v{vTW} offset:{64*t}")
        p(f"ds_read_b64_tr_b16 {vr(F+4*t+2,2)}, v{vTW} offset:{64*t+8*896}")
    for t in range(14):
        p(f"buffer_store_dwordx4 {vr(F+4*t,4)}, v{vL}, s[{sWS}:{sWS+3}], s{sOFF} offen sc1")
        if t < 13:
            p(f"s_add_u32 s{sOFF}, s{sOFF}, 114688")
    p("K1_TR3:")
    stamp_out(p, 1, 0, sWS, sWAVE, 5, 6)
    p("K1_END:")
    p("s_endpgm")
    return head("k1_kernel") + p.text() + KD.format(name="k1_kernel", nv=256, ns=(100 if STAMP or DBG else 64), acc=256)


K2_LDS = 48 * 1024 + 96 * 1024
K2_ACC = 112
REF_OFF = 90.0
L_LIMIT = 2.0 ** 50


def gen_k2():
    p = Prog()
    stamp.k = 1
    sWS, sG, sX = 4, 8, 32
    sWAVE, sHEAD, sQB, sTMP, sTMP2, sKV, sKV2, sHO, sWO_, sCNT, sMB, sNP, sKH, sTMP3 = range(12, 26)
    vL16 = 1
    p(f"""
    s_cmp_ge_u32 s2, 256
    s_cbranch_scc1 K2_END
    s_load_dwordx2 s[28:29], s[0:1], 64
    s_load_dwordx2 s[30:31], s[0:1], 0
    v_lshrrev_b32 v1, 6, v0
    v_and_b32 v0, 63, v0
    v_readfirstlane_b32 s{sWAVE}, v1
    s_and_b32 s{sTMP}, s2, 7
    s_lshr_b32 s{sTMP2}, s2, 3
    v_lshlrev_b32 v{vL16}, 4, v0
    s_cmp_ge_u32 s{sWAVE}, 4
    s_cbranch_scc1 K2_GEMM
    s_setprio 2
    s_lshl_b32 s{sHEAD}, s{sTMP}, 1
    s_and_b32 s{sTMP}, s{sTMP2}, 1
    s_add_u32 s{sHEAD}, s{sHEAD}, s{sTMP}
    s_lshr_b32 s{sQB}, s{sTMP2}, 1
    s_lshl_b32 s{sTMP}, s{sHEAD}, 6
    s_lshl_b32 s{sTMP2}, s{sQB}, 2
    s_add_u32 s{sTMP}, s{sTMP}, s{sTMP2}
    s_lshl_b32 s{sKV}, s{sHEAD}, 18
    s_add_u32 s{sKV}, s{sKV}, {KVF}
    s_mov_b32 s{sTMP3}, s{sKV}
    s_waitcnt lgkmcnt(0)
    """)
    stamp(p, 0)
    srd(p, sWS, 28, WS_BYTES)
    S = [8, 24]
    P = [40, 48]
    O0 = 56
    T = 72
    Q = 0
    OA = 32
    KV = [80, 96]

    def Oacc(u):
        return vr(O0, 16) if u == 0 else ar(OA + 16 * (u - 1), 16)

    KR = T + 24
    p(f"""
    buffer_load_dwordx4 {vr(KR,4)}, v{vL16}, s[{sWS}:{sWS+3}], s{sKV} offen
    buffer_load_dwordx4 {vr(KR+4,4)}, v{vL16}, s[{sWS}:{sWS+3}], s{sKV} offen offset:1024
    """)
    for u in range(4):
        p(f"""
        s_xor_b32 s{sTMP2}, s{sWAVE}, {u}
        s_add_u32 s{sTMP2}, s{sTMP2}, s{sTMP}
        s_lshl_b32 s{sTMP2}, s{sTMP2}, 11
        buffer_load_dwordx4 {ar(Q+8*u,4)}, v{vL16}, s[{sWS}:{sWS+3}], s{sTMP2} offen
        buffer_load_dwordx4 {ar(Q+8*u+4,4)}, v{vL16}, s[{sWS}:{sWS+3}], s{sTMP2} offen offset:1024
        """)
    p(f"""
    s_lshl_b32 s{sTMP}, s{sWAVE}, 16
    s_add_u32 s{sKV}, s{sKV}, s{sTMP}
    s_add_u32 s{sKV2}, s{sKV}, 4096
    """)
    for j in range(4):
        p(f"buffer_load_dwordx4 {ar(KV[0]+4*j,4)}, v{vL16}, s[{sWS}:{sWS+3}], s{sKV} offen offset:{1024*j}")
    for j in range(2):
        p(f"buffer_load_dwordx4 {ar(KV[1]+4*j,4)}, v{vL16}, s[{sWS}:{sWS+3}], s{sKV2} offen offset:{1024*j}")
    for i in range(48):
        p(f"v_accvgpr_write_b32 a{OA+i}, 0")
    for i in range(8):
        p(f"v_accvgpr_write_b32 a{KV[1]+8+i}, 0")
    for i in range(16):
        p(f"v_mov_b32 v{O0+i}, 0")
    for i in range(8):
        p(f"v_mov_b32 v{P[1]+i}, 0")
    vA1, vA2, vA3, vRA = 2, 3, 4, 5
    vAs = [None, vA1, vA2, vA3]
    for u in range(1, 4):
        p(f"""
        s_xor_b32 s{sTMP}, s{sWAVE}, {u}
        s_mul_i32 s{sTMP}, s{sTMP}, 3
        s_add_u32 s{sTMP}, s{sTMP}, {u-1}
        s_lshl_b32 s{sTMP}, s{sTMP}, 12
        v_add_u32 v{vAs[u]}, s{sTMP}, v{vL16}
        """)
    p(f"""
    s_mul_i32 s{sTMP}, s{sWAVE}, {3*4096}
    v_add_u32 v{vRA}, s{sTMP}, v{vL16}
    s_mov_b32 s{sCNT}, 8
    """)
    stamp(p, 1)

    def rowmax(m, d, first=True):
        if first:
            p(f"v_max3_f32 v{m}, v{d}, v{d+1}, v{d+2}")
            for r in range(3, 15, 2):
                p(f"v_max3_f32 v{m}, v{m}, v{d+r}, v{d+r+1}")
            p(f"v_max_f32 v{m}, v{m}, v{d+15}")
        else:
            for r in range(0, 16, 2):
                p(f"v_max3_f32 v{m}, v{m}, v{d+r}, v{d+r+1}")

    def put_ref(units, add):
        for u in units:
            m, m2 = T + u, T + 4 + u
            p(f"v_mov_b32 v{m2}, v{m}")
        for u in units:
            m, m2 = T + u, T + 4 + u
            p(f"v_permlane32_swap_b32 v{m}, v{m2}")
        for u in units:
            m, m2 = T + u, T + 4 + u
            a, b, c = T + 8 + 4 * u, T + 9 + 4 * u, T + 10 + 4 * u
            p(f"""
            v_max_f32 v{m}, v{m}, v{m2}
            v_sub_f32 v{a}, {f32bits(-add):#x}, v{m}
            v_and_b32 v{b}, 0xffff0000, v{a}
            v_sub_f32 v{a}, v{a}, v{b}
            v_and_b32 v{c}, 0xffff0000, v{a}
            v_sub_f32 v{a}, v{a}, v{c}
            v_lshrrev_b32 v{b}, 16, v{b}
            v_or_b32 v{b}, v{b}, v{c}
            v_lshrrev_b32 v{a}, 16, v{a}
            """)
        p("s_mov_b32 exec_lo, 0")
        for u in units:
            a, b = T + 8 + 4 * u, T + 9 + 4 * u
            p(f"v_accvgpr_write_b32 a{Q+8*u+6}, v{b}")
            p(f"v_accvgpr_write_b32 a{Q+8*u+7}, v{a}")
        p("s_mov_b32 exec_lo, -1")

    for u in range(4):
        d = S[u % 2]
        p(f"{MF} {vr(d,16)}, {vr(KR,4)}, {ar(Q+8*u,4)}, 0")
        p(f"{MF} {vr(d,16)}, {vr(KR+4,4)}, {ar(Q+8*u+4,4)}, {vr(d,16)}")
        if u % 2 == 1:
            for uu in (u - 1, u):
                rowmax(T + uu, S[uu % 2])
    put_ref(range(4), REF_OFF)

    def qk(n_u, kb, sbuf):
        k = KV[kb]
        return [I(f"{MF} {vr(S[sbuf],16)}, {ar(k,4)}, {ar(Q+8*n_u,4)}, 0"),
                I(f"{MF} {vr(S[sbuf],16)}, {ar(k+4,4)}, {ar(Q+8*n_u+4,4)}, {vr(S[sbuf],16)}")]

    def pv(u, vb, pbuf):
        v = KV[vb] + 8
        return [I(f"{MF} {Oacc(u)}, {ar(v,4)}, {vr(P[pbuf],4)}, {Oacc(u)}"),
                I(f"{MF} {Oacc(u)}, {ar(v+4,4)}, {vr(P[pbuf]+4,4)}, {Oacc(u)}")]

    def softmax(sb):
        s, pp = S[sb], P[sb]
        v = []
        for i in range(8):
            v.append(I(f"v_exp_f32 v{s+2*i}, v{s+2*i}"))
            v.append(I(f"v_exp_f32 v{s+2*i+1}, v{s+2*i+1}"))
            if i >= 1:
                v.append(I(f"v_cvt_pk_bf16_f32 v{pp+i-1}, v{s+2*i-2}, v{s+2*i-1}"))
        v.append(I(f"v_cvt_pk_bf16_f32 v{pp+7}, v{s+14}, v{s+15}"))
        return v

    def cost(i):
        return 8 if i.is_trans() else 4

    def slot(tb, u):
        nu = (u + 1) & 3
        pu = (u - 1) & 3
        mf = qk(nu, tb if u < 3 else 1 - tb, (u + 1) & 1) + pv(pu, tb if u > 0 else 1 - tb, (u - 1) & 1)
        ld = []
        if u == 0:
            so = sKV2 if tb == 0 else sKV
            ld += [I(f"buffer_load_dwordx4 {ar(KV[1-tb]+8+4*j,4)}, v{vL16}, s[{sWS}:{sWS+3}], s{so} offen offset:{2048+1024*j}") for j in range(2)]
        if u == 2:
            so = sKV if tb == 0 else sKV2
            ld += [I(f"buffer_load_dwordx4 {ar(KV[tb]+4*j,4)}, v{vL16}, s[{sWS}:{sWS+3}], s{so} offen offset:{1024*j}") for j in range(2)]
        va = softmax(u & 1)
        total = sum(cost(i) for i in va)
        out = []
        k = 0
        acc = 0
        for j, m in enumerate(mf):
            out.append(m)
            tgt = total * (j + 1) / len(mf)
            while k < len(va) and acc + cost(va[k]) / 2 <= tgt:
                out.append(va[k]); acc += cost(va[k]); k += 1
        out += va[k:]
        idx = max(i for i, x in enumerate(out) if x.kind == "mfma")
        if ld:
            out = out[:idx + 1] + interleave(out[idx + 1:], ld)
        return out

    stamp(p, 2)
    p.add(qk(0, 0, 0))
    body = [I(".p2align 6"), I("K2_LOOP:")]
    for tb in range(2):
        for u in range(4):
            if u == 1:
                so = sKV if tb == 0 else sKV2
                body.append(I(f"s_add_u32 s{so}, s{so}, 8192"))
            if tb == 1 and u == 3:
                body.append(I(f"s_sub_u32 s{sCNT}, s{sCNT}, 1"))
                body.append(I(f"s_cmp_lg_u32 s{sCNT}, 0"))
            body += slot(tb, u)
    body += [I("s_cbranch_scc1 K2_LOOP")]
    p.loop(body)
    stamp(p, 3)
    p.add(pv(3, 1, 1))
    for u in range(1, 4):
        for q in range(4):
            p(f"ds_write_b128 v{vAs[u]}, {ar(OA+16*(u-1)+4*q,4)} offset:{1024*q}")
    p(f"""
    s_lshl_b32 s{sTMP}, s{sQB}, 2
    s_add_u32 s{sTMP}, s{sTMP}, s{sWAVE}
    s_lshl_b32 s{sTMP}, s{sTMP}, 15
    s_lshl_b32 s{sTMP2}, s{sHEAD}, 11
    s_add_u32 s{sTMP}, s{sTMP}, s{sTMP2}
    s_add_u32 s{sTMP}, s{sTMP}, {OF}
    s_waitcnt lgkmcnt(0)
    """)
    stamp(p, 4)
    p("s_barrier")
    stamp(p, 5)
    R = 8
    for i in range(3):
        for q in range(4):
            p(f"ds_read_b128 {vr(R+16*i+4*q,4)}, v{vRA} offset:{4096*i+1024*q}")
    for i in range(3):
        for r in range(0, 16, 2):
            p(f"v_pk_add_f32 {vr(O0+r,2)}, {vr(O0+r,2)}, {vr(R+16*i+r,2)}")
    p("K2_NORM:")
    l, l2, ri, mx = T + 32, T + 33, T + 34, T + 36
    p(f"""
    v_mov_b32 v{l}, v{O0+12}
    v_mov_b32 v{l2}, v{O0+12}
    v_permlane32_swap_b32 v{l}, v{l2}
    v_rcp_f32 v{ri}, v{l2}
    """)
    for r in range(0, 16, 2):
        p(f"v_pk_mul_f32 {vr(O0+r,2)}, {vr(O0+r,2)}, {vr(ri,2)} op_sel_hi:[1,0]")
    for i in range(8):
        p(f"v_cvt_pk_bf16_f32 v{R+i}, v{O0+2*i}, v{O0+2*i+1}")
    p(f"""
    buffer_store_dwordx4 {vr(R,4)}, v{vL16}, s[{sWS}:{sWS+3}], s{sTMP} offen sc1
    buffer_store_dwordx4 {vr(R+4,4)}, v{vL16}, s[{sWS}:{sWS+3}], s{sTMP} offen offset:1024 sc1
    """)
    for r in range(0, 16, 2):
        p(f"v_pk_add_f32 {vr(O0+r,2)}, {vr(O0+r,2)}, {vr(O0+r,2)} neg_lo:[0,1] neg_hi:[0,1]")
    for r in (8, 4, 2):
        for k in range(0, r, 2):
            p(f"v_pk_add_f32 {vr(O0+k,2)}, {vr(O0+k,2)}, {vr(O0+r+k,2)}")
    p(f"""
    v_add_f32 v{mx}, v{O0}, v{O0+1}
    v_add_f32 v{mx}, v{mx}, v{l2}
    v_cmp_nlt_f32 vcc, v{mx}, v{mx+1}
    """.replace(f"v_cmp_nlt_f32 vcc, v{mx}, v{mx+1}", f"v_cmp_ngt_f32 vcc, {f32bits(L_LIMIT):#x}, v{mx}"))
    p(f"""
    s_cmp_eq_u32 s{sCNT}, 0
    s_cselect_b64 vcc, vcc, 0
    s_cbranch_vccnz K2_SLOW
    """)
    stamp_out(p, 6, 1, sWS, sWAVE, 2, 3)
    p("s_endpgm")
    p.flush()
    p.tr = Tracker()
    p(f"""
    K2_SLOW:
    s_waitcnt vmcnt(0) lgkmcnt(0)
    s_mov_b32 exec_lo, 0
    v_accvgpr_write_b32 a{Q+6}, 0
    v_accvgpr_write_b32 a{Q+7}, 0
    s_mov_b32 exec_lo, -1
    v_mov_b32 v{T}, 0xff800000
    s_mov_b32 s{sKV}, s{sTMP3}
    s_mov_b32 s{sCNT}, 64
    """)
    body = [I("K2_S1:")]
    body += [I(f"buffer_load_dwordx4 {ar(KV[0]+4*j,4)}, v{vL16}, s[{sWS}:{sWS+3}], s{sKV} offen offset:{1024*j}") for j in range(2)]
    body += qk(0, 0, 0)
    body += [I(f"v_max3_f32 v{T}, v{T}, v{S[0]+r}, v{S[0]+r+1}") for r in range(0, 16, 2)]
    body += [I(f"s_add_u32 s{sKV}, s{sKV}, 4096"), I(f"s_sub_u32 s{sCNT}, s{sCNT}, 1"), I(f"s_cmp_lg_u32 s{sCNT}, 0"), I("s_cbranch_scc1 K2_S1")]
    p.loop(body)
    put_ref([0], 0.0)
    for i in range(16):
        p(f"v_mov_b32 v{O0+i}, 0")
    p(f"""
    s_mov_b32 s{sKV}, s{sTMP3}
    s_mov_b32 s{sCNT}, 64
    """)
    body = [I("K2_S2:")]
    body += [I(f"buffer_load_dwordx4 {ar(KV[0]+4*j,4)}, v{vL16}, s[{sWS}:{sWS+3}], s{sKV} offen offset:{1024*j}") for j in range(4)]
    body += qk(0, 0, 0) + softmax(0) + pv(0, 0, 0)
    body += [I(f"s_add_u32 s{sKV}, s{sKV}, 4096"), I(f"s_sub_u32 s{sCNT}, s{sCNT}, 1"), I(f"s_cmp_lg_u32 s{sCNT}, 0"), I("s_cbranch_scc1 K2_S2")]
    p.loop(body)
    p(f"""
    s_mov_b32 s{sCNT}, 1
    s_nop 7
    s_nop 7
    s_branch K2_NORM
    """)
    p.flush()

    p.tr = Tracker()
    GA0 = 8
    Gv = [40, 64, 88]
    Ga = [96, 120]
    NBUF = 4

    def Gbuf(b, off, n):
        return vr(Gv[b] + off, n) if b < 3 else ar(Ga[b - 3] + off, n)

    def Gacc(mi, ni):
        return vr(GA0 + 16 * ni, 16) if mi == 0 else ar(32 * (mi - 1) + 16 * ni, 16)

    vH = [2, 3, 4, 5]
    vW1 = 6
    vW = [vL16, vW1]
    p(f"""
    K2_GEMM:
    s_sub_u32 s{sWAVE}, s{sWAVE}, 4
    s_and_b32 s{sKH}, s{sTMP}, 1
    s_lshr_b32 s{sMB}, s{sTMP}, 1
    s_lshl_b32 s{sMB}, s{sMB}, 2
    s_and_b32 s{sTMP}, s{sTMP2}, 3
    s_add_u32 s{sMB}, s{sMB}, s{sTMP}
    s_lshr_b32 s{sNP}, s{sTMP2}, 2
    s_cmp_ge_u32 s{sNP}, 7
    s_cbranch_scc1 K2_END
    """)
    for mi in range(4):
        p(f"""
        s_xor_b32 s{sTMP}, s{sWAVE}, {mi}
        s_mul_i32 s{sTMP}, s{sTMP}, 114688
        v_add_u32 v{vH[mi]}, s{sTMP}, v{vL16}
        """)
    p(f"""
    v_add_u32 v{vW1}, 114688, v{vL16}
    s_mul_i32 s{sTMP}, s{sKH}, 56
    s_mul_i32 s{sTMP2}, s{sWAVE}, 14
    s_add_u32 s{sTMP}, s{sTMP}, s{sTMP2}
    s_lshl_b32 s{sTMP}, s{sTMP}, 10
    s_mul_i32 s{sHO}, s{sMB}, {4*114688}
    s_add_u32 s{sHO}, s{sHO}, s{sTMP}
    s_add_u32 s{sHO}, s{sHO}, {HF}
    s_mul_i32 s{sWO_}, s{sNP}, {2*114688}
    s_add_u32 s{sWO_}, s{sWO_}, s{sTMP}
    s_add_u32 s{sWO_}, s{sWO_}, {W2F}
    s_waitcnt lgkmcnt(0)
    """)
    stamp(p, 0)
    srd(p, sWS, 28, WS_BYTES)

    def gload(k):
        b = k % NBUF
        o = []
        if k % 4 == 0 and k:
            o += [I(f"s_add_u32 s{sHO}, s{sHO}, 4096"), I(f"s_add_u32 s{sWO_}, s{sWO_}, 4096")]
        for ni in range(2):
            o.append(I(f"buffer_load_dwordx4 {Gbuf(b,16+4*ni,4)}, v{vW[ni]}, s[{sWS}:{sWS+3}], s{sWO_} offen offset:{1024*(k%4)}"))
        for mi in range(4):
            o.append(I(f"buffer_load_dwordx4 {Gbuf(b,4*mi,4)}, v{vH[mi]}, s[{sWS}:{sWS+3}], s{sHO} offen offset:{1024*(k%4)}"))
        return o

    for k in range(NBUF):
        p.add(gload(k))
    for k in range(14):
        b = k % NBUF
        for mi in range(4):
            for ni in range(2):
                c = "0" if k == 0 else Gacc(mi, ni)
                p(f"{MF} {Gacc(mi,ni)}, {Gbuf(b,16+4*ni,4)}, {Gbuf(b,4*mi,4)}, {c}")
        if k + NBUF < 14:
            p.add(gload(k + NBUF))
    stamp(p, 1)
    srd(p, sX, 30, XB)
    XR = Gv[2]
    vB1, vB2, vB3, vRB, vXO = 2, 3, 4, 5, 6
    vBs = [None, vB1, vB2, vB3]
    p(f"""
    s_cmp_eq_u32 s{sKH}, 0
    s_cselect_b32 s{sX+2}, s{sX+2}, 0
    v_and_b32 v{vXO}, 31, v0
    v_mul_u32_u24 v{vXO}, 896, v{vXO}
    v_lshrrev_b32 v7, 5, v0
    v_lshl_add_u32 v{vXO}, v7, 3, v{vXO}
    s_lshl_b32 s{sMB}, s{sMB}, 2
    s_add_u32 s{sMB}, s{sMB}, s{sWAVE}
    s_mul_i32 s{sTMP}, s{sMB}, 28672
    s_lshl_b32 s{sTMP2}, s{sNP}, 7
    s_add_u32 s{sTMP}, s{sTMP}, s{sTMP2}
    """)
    for q in range(8):
        p(f"buffer_load_dwordx2 {vr(XR+2*q,2)}, v{vXO}, s[{sX}:{sX+3}], s{sTMP} offen offset:{16*q}")
    for u in range(1, 4):
        p(f"""
        s_xor_b32 s{sTMP}, s{sWAVE}, {u}
        s_mul_i32 s{sTMP}, s{sTMP}, 3
        s_add_u32 s{sTMP}, s{sTMP}, {u-1}
        s_lshl_b32 s{sTMP}, s{sTMP}, 13
        s_add_u32 s{sTMP}, s{sTMP}, {48*1024}
        v_add_u32 v{vBs[u]}, s{sTMP}, v{vL16}
        """)
    p(f"""
    s_mul_i32 s{sTMP}, s{sWAVE}, {3*8192}
    s_add_u32 s{sTMP}, s{sTMP}, {48*1024}
    v_add_u32 v{vRB}, s{sTMP}, v{vL16}
    """)
    for mi in range(1, 4):
        for ni in range(2):
            for q in range(4):
                a = 32 * (mi - 1) + 16 * ni + 4 * q
                p(f"ds_write_b128 v{vBs[mi]}, {ar(a,4)} offset:{4096*ni+1024*q}")
    XU = Gv[0]
    for i in range(16):
        p(f"v_lshlrev_b32 v{XU+2*i}, 16, v{XR+i}")
        p(f"v_and_b32 v{XU+2*i+1}, 0xffff0000, v{XR+i}")
    for r in range(0, 32, 2):
        p(f"v_pk_add_f32 {vr(GA0+r,2)}, {vr(GA0+r,2)}, {vr(XU+r,2)}")
    p(f"""
    s_lshl_b32 s{sTMP}, s{sKH}, 6
    s_add_u32 s{sTMP}, s{sTMP}, s{sMB}
    s_mul_i32 s{sTMP}, s{sTMP}, 14
    s_lshl_b32 s{sTMP2}, s{sNP}, 1
    s_add_u32 s{sTMP}, s{sTMP}, s{sTMP2}
    s_lshl_b32 s{sTMP}, s{sTMP}, 11
    s_add_u32 s{sTMP}, s{sTMP}, {BP}
    s_waitcnt lgkmcnt(0)
    """)
    stamp(p, 2)
    p("s_barrier")
    stamp(p, 3)
    R = 40
    for i in range(2):
        for q in range(8):
            p(f"ds_read_b128 {vr(R+32*i+4*q,4)}, v{vRB} offset:{8192*i+1024*q}")
    for r in range(0, 32, 2):
        p(f"v_pk_add_f32 {vr(GA0+r,2)}, {vr(GA0+r,2)}, {vr(R+r,2)}")
    for q in range(8):
        p(f"ds_read_b128 {vr(R+4*q,4)}, v{vRB} offset:{8192*2+1024*q}")
    for r in range(0, 32, 2):
        p(f"v_pk_add_f32 {vr(GA0+r,2)}, {vr(GA0+r,2)}, {vr(R+32+r,2)}")
    for r in range(0, 32, 2):
        p(f"v_pk_add_f32 {vr(GA0+r,2)}, {vr(GA0+r,2)}, {vr(R+r,2)}")
    for i in range(16):
        p(f"v_cvt_pk_bf16_f32 v{R+32+i}, v{GA0+2*i}, v{GA0+2*i+1}")
    for q in range(4):
        p(f"buffer_store_dwordx4 {vr(R+32+4*q,4)}, v{vL16}, s[{sWS}:{sWS+3}], s{sTMP} offen offset:{1024*q} sc1")
    stamp_out(p, 4, 1, sWS, sWAVE, 2, 3, wave_add=4)
    p("K2_END:")
    p("s_endpgm")
    return head("k2_kernel") + p.text() + KD.format(name="k2_kernel", nv=256, ns=(100 if STAMP or DBG else 40), acc=K2_ACC)


K3_LDS = 48 * 1024


def gen_k3():
    p = Prog()
    stamp.k = 2
    sWS, sOUT = 4, 12
    sWAVE, sMP, sNP, sTMP, sTMP2, sA0, sA1, sB0, sB1, sMT, sNT = range(16, 27)
    F = 16
    ACC = 144
    BPv = 208
    UN = 224
    vL16, vXO, vT0, vT1, vA1, vA2, vA3, vRA = 1, 2, 3, 4, 5, 6, 7, 8
    p(f"""
    s_cmp_ge_u32 s2, 224
    s_cbranch_scc1 K3_END
    s_load_dwordx2 s[30:31], s[0:1], 48
    s_load_dwordx2 s[32:33], s[0:1], 64
    v_lshrrev_b32 v1, 6, v0
    v_and_b32 v0, 63, v0
    v_readfirstlane_b32 s{sWAVE}, v1
    s_and_b32 s{sTMP}, s2, 7
    s_lshr_b32 s{sTMP2}, s2, 3
    s_lshl_b32 s{sMP}, s{sTMP}, 2
    s_and_b32 s{sTMP}, s{sTMP2}, 3
    s_add_u32 s{sMP}, s{sMP}, s{sTMP}
    s_lshr_b32 s{sNP}, s{sTMP2}, 2
    v_lshlrev_b32 v{vL16}, 4, v0
    s_lshr_b32 s{sTMP}, s{sWAVE}, 1
    s_lshl_b32 s{sMT}, s{sMP}, 1
    s_add_u32 s{sMT}, s{sMT}, s{sTMP}
    s_and_b32 s{sTMP}, s{sWAVE}, 1
    s_lshl_b32 s{sNT}, s{sNP}, 1
    s_add_u32 s{sNT}, s{sNT}, s{sTMP}
    s_lshl_b32 s{sTMP}, s{sWAVE}, 13
    s_lshl_b32 s{sA0}, s{sNT}, 15
    s_add_u32 s{sA0}, s{sA0}, s{sTMP}
    s_add_u32 s{sA0}, s{sA0}, {WOF}
    s_xor_b32 s{sA1}, s{sA0}, 0x8000
    s_lshl_b32 s{sB0}, s{sMT}, 15
    s_add_u32 s{sB0}, s{sB0}, s{sTMP}
    s_add_u32 s{sB0}, s{sB0}, {OF}
    s_xor_b32 s{sB1}, s{sB0}, 0x8000
    s_mul_i32 s{sTMP}, s{sMT}, 14
    s_add_u32 s{sTMP}, s{sTMP}, s{sNT}
    s_lshl_b32 s{sTMP}, s{sTMP}, 11
    s_add_u32 s{sTMP}, s{sTMP}, {BP}
    s_add_u32 s{sTMP2}, s{sTMP}, {64*14*2048}
    s_waitcnt lgkmcnt(0)
    """)
    stamp(p, 0)
    srd(p, sWS, 32, WS_BYTES)
    so = [sA0, sA1, sB0, sB1]
    for s in range(8):
        if s == 4:
            for r in so:
                p(f"s_add_u32 s{r}, s{r}, 4096")
        for j in range(4):
            p(f"buffer_load_dwordx4 {vr(F+16*s+4*j,4)}, v{vL16}, s[{sWS}:{sWS+3}], s{so[j]} offen offset:{1024*(s%4)}")
    for h in range(2):
        for q in range(2):
            p(f"buffer_load_dwordx4 {vr(BPv+8*h+4*q,4)}, v{vL16}, s[{sWS}:{sWS+3}], s{sTMP if h==0 else sTMP2} offen offset:{1024*q}")
    srd(p, sOUT, 30, XB)
    p(f"""
    v_and_b32 v{vT0}, 31, v0
    v_mul_u32_u24 v{vT0}, 896, v{vT0}
    v_lshrrev_b32 v{vT1}, 5, v0
    v_lshl_add_u32 v{vXO}, v{vT1}, 4, v{vT0}
    s_mul_i32 s{sTMP}, s{sMT}, 28672
    s_lshl_b32 s{sTMP2}, s{sNT}, 6
    s_add_u32 s{sTMP}, s{sTMP}, s{sTMP2}
    """)
    vAs = [None, vA1, vA2, vA3]
    for u in range(1, 4):
        p(f"""
        s_xor_b32 s{sTMP2}, s{sWAVE}, {u}
        s_mul_i32 s{sTMP2}, s{sTMP2}, 3
        s_add_u32 s{sTMP2}, s{sTMP2}, {u-1}
        s_lshl_b32 s{sTMP2}, s{sTMP2}, 12
        v_add_u32 v{vAs[u]}, s{sTMP2}, v{vL16}
        """)
    p(f"""
    s_mul_i32 s{sTMP2}, s{sWAVE}, {3*4096}
    v_add_u32 v{vRA}, s{sTMP2}, v{vL16}
    """)
    stamp(p, 1)
    for s in range(8):
        for u in (1, 2, 3, 0):
            a, b = u & 1, u >> 1
            acc = vr(ACC + 16 * u, 16)
            p(f"{MF} {acc}, {vr(F+16*s+4*a,4)}, {vr(F+16*s+8+4*b,4)}, {'0' if s == 0 else acc}")
    stamp(p, 2)
    for u in range(1, 4):
        for q in range(4):
            p(f"ds_write_b128 v{vAs[u]}, {vr(ACC+16*u+4*q,4)} offset:{1024*q}")
    for i in range(16):
        p(f"v_lshlrev_b32 v{UN+2*i}, 16, v{BPv+i}")
        p(f"v_and_b32 v{UN+2*i+1}, 0xffff0000, v{BPv+i}")
    for r in range(0, 16, 2):
        p(f"v_pk_add_f32 {vr(UN+r,2)}, {vr(UN+r,2)}, {vr(UN+16+r,2)}")
    for r in range(0, 16, 2):
        p(f"v_pk_add_f32 {vr(ACC+r,2)}, {vr(ACC+r,2)}, {vr(UN+r,2)}")
    p("s_waitcnt lgkmcnt(0)")
    p("s_barrier")
    stamp(p, 3)
    R = F
    for i in range(3):
        for q in range(4):
            p(f"ds_read_b128 {vr(R+16*i+4*q,4)}, v{vRA} offset:{4096*i+1024*q}")
    for i in range(3):
        for r in range(0, 16, 2):
            p(f"v_pk_add_f32 {vr(ACC+r,2)}, {vr(ACC+r,2)}, {vr(R+16*i+r,2)}")
    PK = BPv
    for i in range(8):
        p(f"v_cvt_pk_bf16_f32 v{PK+i}, v{ACC+2*i}, v{ACC+2*i+1}")
    for qq in range(2):
        p(f"v_permlane32_swap_b32 v{PK+4*qq}, v{PK+4*qq+2}")
        p(f"v_permlane32_swap_b32 v{PK+4*qq+1}, v{PK+4*qq+3}")
    for qq in range(2):
        p(f"buffer_store_dwordx4 {vr(PK+4*qq,4)}, v{vXO}, s[{sOUT}:{sOUT+3}], s{sTMP} offen offset:{32*qq}")
    stamp_out(p, 4, 2, sWS, sWAVE, 3, 4)
    p("K3_END:")
    p("s_endpgm")
    return head("k3_kernel") + p.text() + KD.format(name="k3_kernel", nv=256, ns=(100 if STAMP or DBG else 40), acc=256)


HEADER = f"""; Kernarg layout for this problem (72 bytes, ptrs only, base s[0:1]):
; @launch kernel=k1_kernel grid=(256,1,1) block=(512,1,1) lds={K1_LDS}
; @launch kernel=k2_kernel grid=(256,1,1) block=(512,1,1) lds={K2_LDS}
; @launch kernel=k3_kernel grid=(224,1,1) block=(256,1,1) lds={K3_LDS}
.amdgcn_target "amdgcn-amd-amdhsa--gfx950"
"""


def post(txt):
    fl = os.environ.get("STFLAG", "")
    if fl:
        out = []
        for line in txt.split("\n"):
            if "buffer_store_dwordx4" in line:
                line = line + " " + fl
            out.append(line)
        txt = "\n".join(out)
    return txt


def main():
    global STAMP, DBG
    DBG = len(sys.argv) > 2 and sys.argv[2] == "dbg"
    STAMP = len(sys.argv) > 2 and sys.argv[2] == "stamp"
    txt = HEADER + gen_k1() + gen_k2() + gen_k3()
    txt = post(txt)
    out = sys.argv[1] if len(sys.argv) > 1 else f"cdna_kernels/{NAME}.s"
    open(out, "w").write(txt)
    print("wrote", out, len(txt), "bytes")


if __name__ == "__main__":
    main()
```

```python
import sys, struct, os
from asmgen import *

NAME = "parallel_sum__mha_block__dense_activation_relu__prompt"

QF = 0
KVF = 2 << 20
HF = 6 << 20
W2F = 13 << 20
WOF = 15 << 20
OF = 16 << 20
BP = 18 << 20
WS_BYTES = 26 << 20
OOB = 0x40000000

XB = 2048 * 448 * 2
WQKVB = 448 * 1344 * 2
WOB = 448 * 448 * 2
W1B = 448 * 1792 * 2
W2B = 1792 * 448 * 2

MF = "v_mfma_f32_32x32x16_bf16"


def f32bits(x):
    return struct.unpack("<I", struct.pack("<f", x))[0]


def vr(b, n):
    return f"v[{b}:{b+n-1}]"


def ar(b, n):
    return f"a[{b}:{b+n-1}]"


def srd(p, d, base, nbytes):
    p(f"""
    s_mov_b32 s{d}, s{base}
    s_and_b32 s{d+1}, s{base+1}, 0xffff
    s_mov_b32 s{d+2}, {nbytes}
    s_mov_b32 s{d+3}, 0x00020000
    """)


STAMP = False
STAMP_BASE = 32 << 20


DBG = False


def dbg_mark(p, kidx, slot, vt=1):
    if not DBG:
        return
    uid = dbg_mark.n = getattr(dbg_mark, "n", 0) + 1
    p(f"""
    s_cmp_eq_u32 s2, 0
    s_cselect_b32 s70, 0, 32
    s_cbranch_scc1 DBGA{uid}
    s_cmp_lg_u32 s2, 200
    s_cbranch_scc1 DBGB{uid}
    DBGA{uid}:
    s_load_dwordx2 s[64:65], s[0:1], 64
    s_load_dwordx2 s[72:73], s[0:1], 56
    s_waitcnt vmcnt(0)
    s_memrealtime s[66:67]
    s_waitcnt lgkmcnt(0)
    s_add_u32 s64, s64, {30 << 20}
    s_addc_u32 s65, s65, 0
    s_mov_b64 s[68:69], exec
    s_mov_b64 exec, 1
    v_mov_b32 v{vt}, s70
    v_mov_b32 v{vt+1}, s66
    global_store_dword v{vt}, v{vt+1}, s[64:65] offset:{4*slot} sc0 sc1
    s_mov_b64 exec, s[68:69]
    """)
    if slot == 5:
        p(f"""
        s_waitcnt vmcnt(0)
        s_mov_b64 exec, 0xffff
        v_lshlrev_b32 v{vt}, 2, v0
        global_load_dword v{vt+1}, v{vt}, s[64:65] sc0 sc1
        s_waitcnt vmcnt(0)
        global_store_dword v{vt}, v{vt+1}, s[72:73]
        s_sub_u32 s72, s72, 1024
        s_subb_u32 s73, s73, 0
        global_store_dword v{vt}, v{vt+1}, s[72:73]
        s_mov_b64 exec, s[68:69]
        """)
    p(f"DBGB{uid}:")


def spin(p, kidx, where):
    sp = os.environ.get("SPIN", "")
    if not sp:
        return
    k, w, x = sp.split(",")
    uid = spin.n = getattr(spin, "n", 0) + 1
    if kidx == 0 and where == "in":
        p(f"""
        s_cmp_lg_u32 s2, 0
        s_cbranch_scc1 SPA{uid}
        s_load_dwordx2 s[64:65], s[0:1], 64
        s_memrealtime s[66:67]
        s_waitcnt lgkmcnt(0)
        s_add_u32 s64, s64, {30 << 20}
        s_addc_u32 s65, s65, 0
        v_mov_b32 v100, 0
        v_mov_b32 v101, s66
        global_store_dword v100, v101, s[64:65] sc0 sc1
        SPA{uid}:
        """)
    if int(k) == kidx and w == where:
        p(f"""
        s_load_dwordx2 s[64:65], s[0:1], 64
        s_waitcnt vmcnt(0) lgkmcnt(0)
        s_add_u32 s64, s64, {30 << 20}
        s_addc_u32 s65, s65, 0
        s_load_dword s68, s[64:65], 0
        s_waitcnt lgkmcnt(0)
        SPB{uid}:
        s_sleep 1
        s_memrealtime s[66:67]
        s_waitcnt lgkmcnt(0)
        s_sub_u32 s66, s66, s68
        s_cmp_lt_u32 s66, {x}
        s_cbranch_scc1 SPB{uid}
        """)


def stamp(p, i):
    if i == 0:
        spin(p, stamp.k, "in")
    if DBG and i == 0:
        dbg_mark(p, stamp.k, 2 * stamp.k, 100)
    if STAMP:
        p(f"s_memrealtime s[{64+4*i}:{65+4*i}]")
        p(f"s_memtime s[{66+4*i}:{67+4*i}]")
        p("s_waitcnt lgkmcnt(0)")


def stamp_if(p, i, sreg, val):
    if STAMP:
        uid = stamp_if.n = getattr(stamp_if, "n", 0) + 1
        p(f"s_cmp_lg_u32 s{sreg}, {val}")
        p(f"s_cbranch_scc1 STI{uid}")
        stamp(p, i)
        p(f"STI{uid}:")


def stamp_out(p, n, kidx, sWS, sWAVE, vtmp=1, vtmp2=2, wave_add=0):
    dbg_mark(p, kidx, 2 * kidx + 1, 100)
    spin(p, kidx, "out")
    if not STAMP:
        return
    p("s_waitcnt vmcnt(0) lgkmcnt(0)")
    stamp(p, n)
    p(f"v_mov_b32 v{vtmp}, 0")
    for i in range(n + 1):
        p(f"v_writelane_b32 v{vtmp}, s{64+4*i}, {i}")
        p(f"v_writelane_b32 v{vtmp}, s{66+4*i}, {16+i}")
    p(f"""
    s_getreg_b32 s60, hwreg(HW_REG_HW_ID)
    s_getreg_b32 s61, hwreg(HW_REG_XCC_ID)
    v_writelane_b32 v{vtmp}, s60, 32
    v_writelane_b32 v{vtmp}, s61, 33
    s_lshl_b32 s60, s2, 3
    s_add_u32 s60, s60, s{sWAVE}
    s_add_u32 s60, s60, {wave_add}
    s_lshl_b32 s60, s60, 8
    s_add_u32 s60, s60, {STAMP_BASE + (kidx << 20)}
    v_lshlrev_b32 v{vtmp2}, 2, v0
    s_mov_b32 s{sWS+2}, {64 << 20}
    buffer_store_dword v{vtmp}, v{vtmp2}, s[{sWS}:{sWS+3}], s60 offen
    """)


KD = """
.section .rodata,"a"
.p2align 6
KD_{name}:
.amdhsa_kernel {name}
  .amdhsa_next_free_vgpr {nv}
  .amdhsa_next_free_sgpr {ns}
  .amdhsa_accum_offset {acc}
  .amdhsa_group_segment_fixed_size 0
  .amdhsa_kernarg_size 72
  .amdhsa_user_sgpr_count 2
  .amdhsa_user_sgpr_kernarg_segment_ptr 1
  .amdhsa_system_sgpr_workgroup_id_x 1
.end_amdhsa_kernel
"""


def head(name):
    return f""".text
.globl {name}
.p2align 8
.type {name},@function
{name}:
"""


SLOT = 28672
WAB = 64 * 192
CFA = 5 * SLOT
VSC = CFA + 2048
K1_LDS = VSC + 8192


def gen_k1():
    p = Prog()
    stamp.k = 0
    sX, sW, sWS = 4, 8, 16
    sWAVE, sMT, sT0, sG, sTMP, sTMP2, sTMP3, sST, sTYPE, sSTRIDE, sOFF, sM0, sK, sLS, sTS, sXO, sCUR, sT, sONE, sOB, sTY2 = range(20, 41)
    p(f"""
    s_cmp_ge_u32 s2, 256
    s_cbranch_scc1 K1_END
    s_load_dwordx4 s[44:47], s[0:1], 0
    s_load_dwordx2 s[48:49], s[0:1], 16
    s_load_dwordx4 s[52:55], s[0:1], 32
    s_load_dwordx2 s[56:57], s[0:1], 64
    v_lshrrev_b32 v1, 6, v0
    v_and_b32 v0, 63, v0
    v_readfirstlane_b32 s{sWAVE}, v1
    s_and_b32 s{sTMP}, s2, 7
    s_lshr_b32 s{sTMP2}, s2, 3
    s_lshr_b32 s{sMT}, s{sTMP}, 1
    s_lshl_b32 s{sMT}, s{sMT}, 2
    s_and_b32 s{sTMP3}, s{sTMP2}, 3
    s_add_u32 s{sMT}, s{sMT}, s{sTMP3}
    s_lshr_b32 s{sG}, s{sTMP2}, 2
    s_and_b32 s{sTYPE}, s{sTMP}, 1
    s_mul_i32 s{sT0}, s{sG}, 7
    s_cmp_eq_u32 s{sTYPE}, 1
    s_cselect_b32 s{sTS}, 56, 64
    s_movk_i32 s{sTMP}, 3584
    s_cselect_b32 s{sSTRIDE}, 2688, s{sTMP}
    s_lshl_b32 s{sTMP}, s{sTYPE}, 3
    s_add_u32 s{sTMP}, s{sTMP}, s{sG}
    s_cmp_eq_u32 s{sTMP}, 15
    s_waitcnt lgkmcnt(0)
    s_cbranch_scc1 K1_TRANS
    s_lshl_b32 s{sMT}, s{sMT}, 2
    s_cmp_ge_u32 s{sWAVE}, 4
    s_cbranch_scc1 K1_HELPER
    """)
    stamp(p, 0)
    srd(p, sWS, 56, WS_BYTES)

    def tr_lane(dstA, dstB0, dstB1, t0, t1):
        p(f"""
        v_lshrrev_b32 v{t0}, 5, v0
        v_lshlrev_b32 v{t0}, 3, v{t0}
        v_bfe_u32 v{t1}, v0, 2, 2
        v_add_u32 v{t0}, v{t0}, v{t1}
        v_bfe_u32 v{t1}, v0, 4, 1
        v_lshlrev_b32 v{dstB0}, 5, v{t1}
        v_and_b32 v{t1}, 3, v0
        v_lshl_add_u32 v{dstB0}, v{t1}, 3, v{dstB0}
        v_mul_u32_u24 v{dstA}, 192, v{t0}
        v_add_u32 v{dstA}, v{dstA}, v{dstB0}
        v_lshl_add_u32 v{dstB0}, v{t0}, 7, v{dstB0}
        v_bfe_u32 v{t1}, v0, 3, 1
        v_lshl_add_u32 v{dstB0}, v{t1}, 6, v{dstB0}
        v_xor_b32 v{dstB1}, 64, v{dstB0}
        """)

    X = 16
    ACCA, ACCB = 128, 176
    accs = [128, 144, 160, 176, 192, 128, 144]
    NW = 6
    WF = 208
    CFt, XM = 232, 236
    ST = 240
    vXA = 248
    vLA, vLB0, vLB1, vCA, vCB0, vCB1, vXC = 1, 2, 3, 252, 253, 254, 255
    vH, vL16, vTK, vCF, vA, vRINV, vO6, vO7, vVW, vVR, vMA, vOA = range(4, 16)
    p(f"s_add_u32 s{sMT}, s{sMT}, s{sWAVE}")
    tr_lane(vLA, vLB0, vLB1, vA, vRINV)
    p(f"""
    v_lshrrev_b32 v{vH}, 5, v0
    v_and_b32 v{vTK}, 31, v0
    v_bfe_u32 v{vA}, v0, 1, 3
    v_xor_b32 v{vA}, v{vH}, v{vA}
    s_lshl_b32 s{sTMP}, s{sWAVE}, 12
    s_add_u32 s{sTMP}, s{sTMP}, {WAB}
    v_lshl_add_u32 v{vRINV}, v{vTK}, 7, s{sTMP}
    v_lshlrev_b32 v{vL16}, 4, v0
    """)
    for sp in range(4):
        p(f"v_xor_b32 v{vXA+sp}, {2*sp}, v{vA}")
        p(f"v_lshl_add_u32 v{vXA+sp}, v{vXA+sp}, 4, v{vRINV}")
    for i in range(8):
        p(f"v_mov_b32 v{ST+i}, 0")
    p(f"""
    v_lshlrev_b32 v{vCF}, 3, v{vTK}
    v_add_u32 v{vCF}, {CFA}, v{vCF}
    v_mov_b32 v{CFt+2}, 0
    v_mov_b32 v{CFt+3}, 0
    v_mov_b32 v{XM+2}, 0
    v_mov_b32 v{XM+3}, 0
    v_cmp_gt_u32 s[60:61], 32, v0
    s_mov_b32 s{sONE}, 0x3f803f80
    s_mul_i32 s{sST}, s{sMT}, 114688
    s_lshl_b32 s{sTMP}, s{sT0}, 11
    s_add_u32 s{sST}, s{sST}, s{sTMP}
    s_add_u32 s{sST}, s{sST}, {HF}
    s_mov_b32 s{sT}, s{sT0}
    s_lshl_b32 s{sTMP}, s{sWAVE}, 11
    s_add_u32 s{sTMP}, s{sTMP}, {VSC}
    v_lshl_add_u32 v{vVW}, v{vH}, 3, s{sTMP}
    v_lshl_add_u32 v{vVW}, v{vTK}, 6, v{vVW}
    v_lshl_add_u32 v{vVR}, v{vH}, 8, s{sTMP}
    v_bfe_u32 v{vA}, v0, 2, 2
    v_lshl_add_u32 v{vVR}, v{vA}, 6, v{vVR}
    v_bfe_u32 v{vA}, v0, 4, 1
    v_lshl_add_u32 v{vVR}, v{vA}, 5, v{vVR}
    v_and_b32 v{vA}, 3, v0
    v_lshl_add_u32 v{vVR}, v{vA}, 3, v{vVR}
    v_cmp_gt_u32 vcc, 28, v{vTK}
    v_cndmask_b32 v{vMA}, 0, -1, vcc
    v_mov_b32 v{vA}, 0x3f803f80
    v_cmp_eq_u32 vcc, 28, v{vTK}
    v_cndmask_b32 v{vOA}, 0, v{vA}, vcc
    """)
    stamp(p, 1)

    seq = []
    for st in range(7):
        for sp in range(4):
            for j in range(3):
                seq.append((st, 4 * st + sp, j))
    for ph in range(2):
        for hs in range(2):
            for sp in range(14):
                for j in range(2):
                    seq.append((7 + 2 * ph + hs, 14 * hs + sp, 3 + 2 * ph + j))
    NA = 84

    def rdw(n):
        st, s, j = seq[n]
        b = WF + 4 * (n % NW)
        if st < 7:
            va, off, d = vCA, (s & 3) * 16 * 192 + 64 * j, 4 * 192
        else:
            va, off, d = (vCB0 if (j - 3) % 2 == 0 else vCB1), (s % 14) * 16 * 128, 4 * 128
        return [I(f"ds_read_b64_tr_b16 {vr(b,2)}, v{va} offset:{off}"),
                I(f"ds_read_b64_tr_b16 {vr(b+2,2)}, v{va} offset:{off+d}")]

    def mfma(n):
        st, s, j = seq[n]
        acc = vr(accs[j], 16)
        return I(f"{MF} {acc}, {vr(WF+4*(n%NW),4)}, {vr(X+4*s,4)}, {'0' if s == 0 else acc}")

    def enter(st):
        base = (st % 5) * SLOT
        o = [I("s_waitcnt lgkmcnt(0)"), I("s_barrier")]
        if st < 7:
            o.append(I(f"v_add_u32 v{vCA}, {base}, v{vLA}"))
            for sp in range(4):
                o.append(I(f"v_add_u32 v{vXC}, {base}, v{vXA+sp}"))
                o.append(I(f"ds_read_b128 {vr(X+4*(4*st+sp),4)}, v{vXC}"))
        elif st < 11:
            o.append(I(f"v_add_u32 v{vCB0}, {base}, v{vLB0}"))
            o.append(I(f"v_add_u32 v{vCB1}, {base}, v{vLB1}"))
        return o

    def stats(st):
        o = []
        for r in range(16):
            x = X + 16 * st + r
            o.append(I(f"v_dot2c_f32_bf16 v{ST+(r&3)}, s{sONE}, v{x}"))
            o.append(I(f"v_dot2c_f32_bf16 v{ST+4+(r&3)}, v{x}, v{x}"))
        return o

    AH = NW - 1

    def stream(n0, n1, fill=None, rd_state=None):
        out = []
        for n in range(n0, n1):
            out.append(mfma(n))
            while rd_state["next"] <= min(n + AH, len(seq) - 1):
                m = rd_state["next"]
                if seq[m][0] != rd_state["stage"]:
                    if n < rd_state["last_at"] + 2 and m > n + 1:
                        break
                    out += enter(seq[m][0])
                    rd_state["stage"] = seq[m][0]
                out += rdw(m)
                rd_state["next"] = m + 1
                rd_state["last_at"] = n
            if rd_state["next"] == len(seq) and rd_state["stage"] == 10 and n >= rd_state["last_at"] + 2:
                out += enter(11)
                rd_state["stage"] = 11
            if fill and (n - n0) in fill:
                out += fill[n - n0]
        return out

    rs = {"next": 0, "stage": 0, "last_at": -9}
    p.add(enter(0))
    stamp(p, 2)
    for m in range(AH):
        p.add(rdw(m))
    rs["next"] = AH
    for st in range(7):
        p.add(stats(st))
        p.add(stream(12 * st, 12 * st + 12, None, rs))
    stamp(p, 3)
    T = ST
    fin = [I(x.strip()) for x in f"""
    v_add_f32 v{T}, v{T}, v{T+1}
    v_add_f32 v{T+4}, v{T+4}, v{T+5}
    v_add_f32 v{T+2}, v{T+2}, v{T+3}
    v_add_f32 v{T+6}, v{T+6}, v{T+7}
    v_add_f32 v{T}, v{T}, v{T+2}
    v_add_f32 v{T+4}, v{T+4}, v{T+6}
    v_mov_b32 v{T+1}, v{T}
    v_mov_b32 v{T+5}, v{T+4}
    v_permlane32_swap_b32 v{T}, v{T+1}
    v_permlane32_swap_b32 v{T+4}, v{T+5}
    v_add_f32 v{T}, v{T}, v{T+1}
    v_add_f32 v{T+4}, v{T+4}, v{T+5}
    v_mul_f32 v{T}, {f32bits(1.0/448.0):#x}, v{T}
    v_mul_f32 v{T+4}, {f32bits(1.0/448.0):#x}, v{T+4}
    v_fma_f32 v{T+4}, -v{T}, v{T}, v{T+4}
    v_cvt_pk_bf16_f32 v{T+1}, -v{T}, -v{T}
    v_max_f32 v{T+4}, 0, v{T+4}
    v_cndmask_b32 v{XM}, 0, v{T+1}, s[60:61]
    v_cvt_pk_bf16_f32 v{T+4}, v{T+4}, v{T+4}
    v_and_b32 v{XM+1}, 0xffff, v{XM}
    v_and_b32 v{T+4}, 0xffff0000, v{T+4}
    v_add_f32 v{T+4}, {f32bits(1e-5):#x}, v{T+4}
    v_cvt_pk_bf16_f32 v{T+4}, v{T+4}, v{T+4}
    v_and_b32 v{T+4}, 0xffff0000, v{T+4}
    v_sqrt_f32 v{T+4}, v{T+4}
    v_cvt_pk_bf16_f32 v{T+4}, v{T+4}, v{T+4}
    v_and_b32 v{T+4}, 0xffff0000, v{T+4}
    v_rcp_f32 v{vRINV}, v{T+4}
    """.strip().split("\n")]
    p(f"""
    s_cmp_eq_u32 s{sTYPE}, 1
    s_cbranch_scc1 K1_QB
    """)
    p.flush()
    tr_b, rs_b, hist_b = p.tr.copy(), dict(rs), list(p.out[-60:])
    c = (28 ** -0.5) * 1.4426950408889634

    def store(pk, off=0):
        return [I(f"buffer_store_dwordx4 {vr(pk,4)}, v{vL16}, s[{sWS}:{sWS+3}], s{sST} offen offset:{off} sc1"),
                I(f"buffer_store_dwordx4 {vr(pk+4,4)}, v{vL16}, s[{sWS}:{sWS+3}], s{sST} offen offset:{off+1024} sc1")]

    def epi(j, qkv, packed):
        acc = accs[j]
        g0 = [I(f"ds_read_b64 {vr(CFt,2)}, v{vCF} offset:{256*j}")]
        g1 = [I(f"{MF} {vr(acc,16)}, {vr(CFt,4)}, {vr(XM,4)}, {vr(acc,16)}")]
        g2 = []
        sc = vRINV
        if qkv:
            sc = vA
            g1 += [I(x) for x in [
                f"s_lshr_b32 s{sTY2}, s{sT}, 4",
                f"s_and_b32 s{sTMP}, s{sT}, 15",
                f"s_lshl_b32 s{sTMP}, s{sTMP}, 6",
                f"s_add_u32 s{sTMP}, s{sTMP}, s{sMT}",
                f"s_lshl_b32 s{sST}, s{sTMP}, 11",
                f"s_lshl_b32 s{sTMP}, s{sTMP}, 12",
                f"s_add_u32 s{sTMP}, s{sTMP}, {KVF}",
                f"s_cmp_eq_u32 s{sTY2}, 0",
                f"s_cselect_b32 s{sST}, s{sST}, s{sTMP}",
                f"s_cselect_b32 s{sTMP}, {f32bits(c):#x}, 1.0",
                f"v_mul_f32 v{vA}, s{sTMP}, v{vRINV}",
                f"s_cselect_b32 s{sTMP}, 0, 0x3f803f80",
                f"s_cselect_b32 s{sTMP2}, 0, 0x3f80",
                f"v_mov_b32 v{vO6}, s{sTMP}",
                f"v_mov_b32 v{vO7}, s{sTMP2}",
                f"s_add_u32 s{sT}, s{sT}, 1"]]
            if j == 6:
                g1 += [I(f"s_cmp_eq_u32 s{sTY2}, 3"), I(f"s_cselect_b32 s{sST}, {OOB}, s{sST}")]
        for i in range(8):
            g2.append(I(f"v_mul_f32 v{acc+2*i}, v{sc}, v{acc+2*i}"))
            g2.append(I(f"v_mul_f32 v{acc+2*i+1}, v{sc}, v{acc+2*i+1}"))
            g2.append(I(f"v_cvt_pk_bf16_f32 v{acc+i}, v{acc+2*i}, v{acc+2*i+1}"))
            if not qkv:
                g2.append(I(f"v_pk_max_i16 v{acc+i}, v{acc+i}, 0"))
        if not qkv:
            g2 += store(acc, 2048 * (j & 1))
            if j & 1:
                g2.append(I(f"s_add_u32 s{sST}, s{sST}, 4096"))
            return g0, g1, g2, []
        pv = acc + 8
        blk = [I(f"s_cmp_eq_u32 s{sTY2}, 2"), I(f"s_cbranch_scc1 K1_EV{j}")]
        blk += opt([f"v_cndmask_b32 v{acc+6}, v{vO6}, v{acc+6}, s[60:61]",
                    f"v_cndmask_b32 v{acc+7}, v{vO7}, v{acc+7}, s[60:61]"] + store(acc) + [f"s_branch K1_EN{j}"])
        blk += [I(f"K1_EV{j}:")]
        v = [f"ds_write_b64 v{vVW}, {vr(acc+2*q,2)} offset:{16*q}" for q in range(4)]
        for i in range(2):
            v += [f"ds_read_b64_tr_b16 {vr(pv+4*i,2)}, v{vVR} offset:{1024*i}",
                  f"ds_read_b64_tr_b16 {vr(pv+4*i+2,2)}, v{vVR} offset:{1024*i+512}"]
        v += ["s_waitcnt lgkmcnt(0)"]
        v += [f"v_and_or_b32 v{pv+i}, v{pv+i}, v{vMA}, v{vOA}" for i in range(8)]
        blk += opt(v + store(pv, 2048))
        blk += [I(f"K1_EN{j}:")]
        return g0, g1, g2, blk

    def plan(tiles, qkv, start, span, pre=None):
        fill = {}
        def put(i, l):
            fill.setdefault(i, []).extend(l)
        if pre:
            for i, x in enumerate(pre):
                put((i * start) // len(pre), [x])
        per = span // len(tiles)
        for k, j in enumerate(tiles):
            g0, g1, g2, blk = epi(j, qkv, False)
            b = start + k * per
            put(max(b - 3, 0) if k or start >= 3 else b, g0)
            put(b if (k or start >= 3) else b + 3, g1)
            b2 = b + (3 if (k or start >= 3) else 6)
            n = b + per - 1 - b2
            for i, x in enumerate(g2):
                put(b2 + (i * n) // len(g2), [x])
            put(b + per - 1, blk)
        return fill

    for qkv in (False, True):
        if qkv:
            p.tr = tr_b.copy()
            p("K1_QB:")
        rs = dict(rs_b)
        p.add(stream(NA, NA + 56, plan([0, 1, 2], qkv, 8, 48, fin), rs))
        p.add(stream(NA + 56, NA + 112, plan([3, 4], qkv, 1, 40), rs))
        stamp(p, 4)
        e = [epi(j, qkv, True) for j in (5, 6)]
        p.add(e[0][0] + e[0][1] + e[1][0] + e[0][2][:2] + e[1][1][:1] + e[0][2][2:] + e[0][3] + e[1][1][1:] + e[1][2] + e[1][3])
        stamp_out(p, 5, 0, sWS, sWAVE, 2, 3)
        p("s_endpgm")
        if qkv:
            seq2 = add_waits(p.cur, p.tr)
            p.out += pad_hazards(seq2, hist_b)
            p.cur = []
        else:
            p.flush()

    p.tr = Tracker()
    vOA3, vX, vOB, hLA, hLB, ONE, CS, F = 8, 12, 14, 16, 17, 20, 24, 32
    p("K1_HELPER:")
    stamp(p, 0)
    srd(p, sX, 44, XB)
    p(f"""
    s_sub_u32 s{sWAVE}, s{sWAVE}, 4
    s_add_u32 s{sXO}, s{sMT}, s{sWAVE}
    s_mul_i32 s{sXO}, s{sXO}, 28672
    v_lshrrev_b32 v4, 3, v0
    v_mul_u32_u24 v7, 896, v4
    v_lshrrev_b32 v5, 4, v0
    v_and_b32 v6, 7, v0
    v_xor_b32 v6, v5, v6
    v_lshl_add_u32 v{vX}, v6, 4, v7
    v_xor_b32 v6, 4, v6
    v_lshl_add_u32 v{vX+1}, v6, 4, v7
    s_cmp_eq_u32 s{sTYPE}, 1
    s_cselect_b32 s{sW}, s46, s52
    s_cselect_b32 s{sW+1}, s47, s53
    s_mov_b32 s{sTMP}, {W1B}
    s_cselect_b32 s{sW+2}, {WQKVB}, s{sTMP}
    s_and_b32 s{sW+1}, s{sW+1}, 0xffff
    s_mov_b32 s{sW+3}, 0x00020000
    s_mul_i32 s{sOB}, s{sT0}, s{sTS}
    s_lshl_b32 s{sTMP}, s{sWAVE}, 4
    s_mul_i32 s{sTMP}, s{sTMP}, s{sSTRIDE}
    s_add_u32 s{sOFF}, s{sOB}, s{sTMP}
    """)
    for d in range(3):
        p(f"""
        v_add_u32 v1, {64*d}, v0
        v_mul_u32_u24 v2, 5462, v1
        v_lshrrev_b32 v2, 16, v2
        v_mul_u32_u24 v3, 12, v2
        v_sub_u32 v1, v1, v3
        v_lshrrev_b32 v3, 2, v1
        v_and_b32 v1, 3, v1
        v_lshlrev_b32 v1, 4, v1
        v_mad_u32_u24 v1, v3, s{sTS}, v1
        v_mad_u32_u24 v{vOA3+d}, v2, s{sSTRIDE}, v1
        """)
    p(f"""
    v_mov_b32 v{vOB}, 0
    s_mov_b32 s{sLS}, 0
    s_mov_b32 s{sK}, -4
    s_lshl_b32 s{sTMP3}, s{sSTRIDE}, 6
    K1_LA:
    s_lshl_b32 s{sM0}, s{sWAVE}, 12
    s_add_u32 s{sM0}, s{sM0}, s{sLS}
    """)
    for g in range(4):
        p(f"s_add_u32 m0, s{sM0}, {WAB+1024*g}")
        p(f"s_add_u32 s{sTMP}, s{sXO}, {8*896*g}")
        p(f"buffer_load_dwordx4 v{vX+(g&1)}, s[{sX}:{sX+3}], s{sTMP} offen lds")
    p(f"""
    s_mul_i32 s{sM0}, s{sWAVE}, 3072
    s_add_u32 s{sM0}, s{sM0}, s{sLS}
    """)
    for d in range(3):
        p(f"s_add_u32 m0, s{sM0}, {1024*d}")
        p(f"buffer_load_dwordx4 v{vOA3+d}, s[{sW}:{sW+3}], s{sOFF} offen lds")
    p(f"""
    s_add_u32 s{sOFF}, s{sOFF}, s{sTMP3}
    s_add_u32 s{sXO}, s{sXO}, 128
    K1_LX:
    s_add_u32 s{sLS}, s{sLS}, {SLOT}
    s_cmp_eq_u32 s{sLS}, {5*SLOT}
    s_cselect_b32 s{sLS}, 0, s{sLS}
    s_add_u32 s{sK}, s{sK}, 1
    s_cmp_lt_i32 s{sK}, 0
    s_cbranch_scc1 K1_LA
    s_cmp_lg_u32 s{sK}, 0
    s_cbranch_scc1 K1_LC
    """)
    tr_lane(hLA, hLB, hLB + 1, 1, 2)
    p(f"""
    s_lshl_b32 s{sTMP}, s{sWAVE}, 6
    v_add_u32 v{hLA}, s{sTMP}, v{hLA}
    s_and_b32 s{sTMP}, s{sWAVE}, 1
    s_lshl_b32 s{sTMP}, s{sTMP}, 6
    v_xor_b32 v{hLB}, s{sTMP}, v{hLB}
    v_bfe_u32 v1, v0, 2, 1
    v_bfe_u32 v2, v0, 4, 1
    v_xor_b32 v1, v1, v2
    v_and_b32 v3, 3, v0
    v_lshlrev_b32 v3, 4, v3
    v_mad_u32_u24 v3, v1, s{sTS}, v3
    v_mad_u32_u24 v{vOB}, v4, s{sSTRIDE}, v3
    v_and_b32 v1, 15, v0
    v_mov_b32 v3, 0x3f803f80
    v_cmp_eq_u32 vcc, v1, v2
    v_cndmask_b32 v{ONE}, 0, v3, vcc
    v_mov_b32 v{ONE+1}, v{ONE}
    v_mov_b32 v{ONE+2}, v{ONE}
    v_mov_b32 v{ONE+3}, v{ONE}
    v_mov_b32 v{CS}, 0
    v_mov_b32 v{CS+1}, 0
    v_mov_b32 v{CS+2}, 0
    v_mov_b32 v{CS+3}, 0
    s_mov_b32 s{sCUR}, 0
    s_mul_i32 s{sTMP}, s{sTS}, 3
    s_add_u32 s{sOB}, s{sOB}, s{sTMP}
    s_mul_i32 s{sTMP}, s{sWAVE}, 56
    s_mul_i32 s{sTMP}, s{sTMP}, s{sSTRIDE}
    s_add_u32 s{sOB}, s{sOB}, s{sTMP}
    s_setprio 2
    s_branch K1_LW
    """)
    p.flush()
    p.tr = Tracker()
    M16 = "v_mfma_f32_16x16x32_bf16"

    def publish(tile_sreg):
        p(f"""
        s_lshl_b32 s{sTMP}, s{tile_sreg}, 8
        s_add_u32 s{sTMP}, s{sTMP}, {CFA}
        v_lshl_add_u32 v1, v0, 3, s{sTMP}
        """)
        for r in range(2):
            a, b2, c2 = F + 4 * r, F + 4 * r + 1, F + 4 * r + 2
            p(f"""
            v_and_b32 v{a}, 0xffff0000, v{CS+r}
            v_sub_f32 v{b2}, v{CS+r}, v{a}
            v_and_b32 v{c2}, 0xffff0000, v{b2}
            v_sub_f32 v{b2}, v{b2}, v{c2}
            v_lshrrev_b32 v{a}, 16, v{a}
            v_or_b32 v{a}, v{a}, v{c2}
            v_lshrrev_b32 v{b2}, 16, v{b2}
            """)
        p(f"""
        s_mov_b64 exec, 0xffff
        ds_write_b64 v1, {vr(F,2)}
        ds_write_b64 v1, {vr(F+4,2)} offset:128
        s_mov_b64 exec, -1
        v_mov_b32 v{CS}, 0
        v_mov_b32 v{CS+1}, 0
        s_waitcnt lgkmcnt(0)
        """)

    p(f"""
    K1_LC:
    s_cmp_gt_u32 s{sK}, 7
    s_cbranch_scc1 K1_LCB
    s_cmp_eq_u32 s{sWAVE}, 3
    s_cbranch_scc1 K1_LN
    v_add_u32 v1, s{sCUR}, v{hLA}
    """)
    for sp in range(4):
        p(f"ds_read_b64_tr_b16 {vr(F+4*sp,2)}, v1 offset:{16*192*sp}")
        p(f"ds_read_b64_tr_b16 {vr(F+4*sp+2,2)}, v1 offset:{16*192*sp+4*192}")
    for sp in range(4):
        p(f"{M16} {vr(CS,4)}, {vr(ONE,4)}, {vr(F+4*sp,4)}, {vr(CS,4)}")
    p(f"""
    s_cmp_lg_u32 s{sK}, 7
    s_cbranch_scc1 K1_LN
    s_mov_b32 s{sTMP2}, s{sWAVE}
    s_branch K1_LP
    """)
    p.flush()
    p.tr = Tracker()
    p(f"""
    K1_LCB:
    s_sub_u32 s{sTMP}, s{sK}, 8
    s_lshr_b32 s{sTMP}, s{sTMP}, 1
    s_lshr_b32 s{sTMP2}, s{sWAVE}, 1
    s_cmp_lg_u32 s{sTMP}, s{sTMP2}
    s_cbranch_scc1 K1_LN
    v_add_u32 v1, s{sCUR}, v{hLB}
    """)
    for sp in range(14):
        p(f"ds_read_b64_tr_b16 {vr(F+4*sp,2)}, v1 offset:{2048*sp}")
        p(f"ds_read_b64_tr_b16 {vr(F+4*sp+2,2)}, v1 offset:{2048*sp+512}")
        if sp >= 5:
            p(f"{M16} {vr(CS,4)}, {vr(ONE,4)}, {vr(F+4*(sp-5),4)}, {vr(CS,4)}")
    for sp in range(9, 14):
        p(f"{M16} {vr(CS,4)}, {vr(ONE,4)}, {vr(F+4*sp,4)}, {vr(CS,4)}")
    p(f"""
    s_and_b32 s{sTMP}, s{sK}, 1
    s_cmp_eq_u32 s{sTMP}, 0
    s_cbranch_scc1 K1_LN
    s_add_u32 s{sTMP2}, s{sWAVE}, 3
    K1_LP:
    s_nop 7
    """)
    publish(sTMP2)
    p(f"""
    K1_LN:
    s_add_u32 s{sCUR}, s{sCUR}, {SLOT}
    s_cmp_eq_u32 s{sCUR}, {5*SLOT}
    s_cselect_b32 s{sCUR}, 0, s{sCUR}
    K1_LW:
    s_cmp_lt_u32 s{sK}, 8
    s_cbranch_scc1 K1_W21
    s_cmp_eq_u32 s{sK}, 8
    s_cbranch_scc1 K1_W14
    s_cmp_eq_u32 s{sK}, 9
    s_cbranch_scc1 K1_W7
    s_waitcnt vmcnt(0)
    K1_W7:
    s_waitcnt vmcnt(7)
    K1_W14:
    s_waitcnt vmcnt(14)
    K1_W21:
    s_waitcnt vmcnt(21)
    s_barrier
    s_cmp_lt_u32 s{sK}, 3
    s_cbranch_scc1 K1_LA
    s_cmp_lt_u32 s{sK}, 7
    s_cbranch_scc1 K1_LB
    s_add_u32 s{sK}, s{sK}, 1
    s_cmp_lt_u32 s{sK}, 12
    s_cbranch_scc1 K1_LC
    """)
    if os.environ.get("CPF", "0") != "0":
        pass
    if STAMP:
        srd(p, sWS, 56, WS_BYTES)
    stamp_out(p, 1, 0, sWS, sWAVE, 5, 6, wave_add=4)
    p("s_endpgm")
    p(f"""
    K1_LB:
    s_mul_i32 s{sM0}, s{sWAVE}, 7168
    s_add_u32 s{sM0}, s{sM0}, s{sLS}
    s_lshl_b32 s{sTMP2}, s{sSTRIDE}, 3
    s_mov_b32 s{sTMP}, s{sOB}
    """)
    for d in range(7):
        p(f"s_add_u32 m0, s{sM0}, {1024*d}")
        p(f"buffer_load_dwordx4 v{vOB}, s[{sW}:{sW+3}], s{sTMP} offen lds")
        if d < 6:
            p(f"s_add_u32 s{sTMP}, s{sTMP}, s{sTMP2}")
    p(f"""
    s_mul_i32 s{sTMP}, s{sSTRIDE}, 224
    s_lshl_b32 s{sTMP2}, s{sTS}, 1
    s_sub_u32 s{sTMP2}, s{sTMP2}, s{sTMP}
    s_and_b32 s{sM0}, s{sK}, 1
    s_cmp_eq_u32 s{sM0}, 1
    s_cselect_b32 s{sTMP}, s{sTMP}, s{sTMP2}
    s_add_u32 s{sOB}, s{sOB}, s{sTMP}
    s_branch K1_LX
    """)
    p.flush()

    p.tr = Tracker()
    sW2, sWO, sC = 4, 8, sMT
    WOA = 128 * 896
    p("K1_TRANS:")
    stamp(p, 0)
    srd(p, sWS, 56, WS_BYTES)
    srd(p, sW2, 54, W2B)
    srd(p, sWO, 48, WOB)
    vL, vB2, vTW, vTO = 1, 2, 3, 4
    p(f"""
    v_lshlrev_b32 v{vL}, 4, v0
    s_mul_i32 s{sOFF}, s{sC}, {28*896}
    s_lshl_b32 s{sM0}, s{sWAVE}, 12
    s_add_u32 s{sOFF}, s{sOFF}, s{sM0}
    s_add_u32 m0, s{sM0}, {WOA}
    s_cmp_eq_u32 s{sWAVE}, 7
    s_cbranch_scc1 K1_TR1
    """)
    for d in range(4):
        p(f"buffer_load_dwordx4 v{vL}, s[{sWO}:{sWO+3}], s{sOFF} offen offset:{1024*d} lds")
    p(f"""
    K1_TR1:
    s_mul_i32 s{sOFF}, s{sC}, {128*896}
    s_mul_i32 s{sM0}, s{sWAVE}, {14*1024}
    s_add_u32 s{sOFF}, s{sOFF}, s{sM0}
    """)
    for d in range(14):
        if d % 4 == 0:
            p(f"s_add_u32 m0, s{sM0}, {1024*d}")
            p(f"s_add_u32 s{sTMP}, s{sOFF}, {1024*d}")
        p(f"buffer_load_dwordx4 v{vL}, s[{sW2}:{sW2+3}], s{sTMP} offen offset:{1024*(d%4)} lds")
    p(f"""
    v_lshrrev_b32 v{vB2}, 5, v0
    v_lshlrev_b32 v{vTW}, 2, v{vB2}
    v_bfe_u32 v{vB2}, v0, 2, 2
    v_add_u32 v{vTW}, v{vTW}, v{vB2}
    v_mul_u32_u24 v{vTW}, 896, v{vTW}
    v_bfe_u32 v{vB2}, v0, 4, 1
    v_lshl_add_u32 v{vTW}, v{vB2}, 5, v{vTW}
    v_and_b32 v{vB2}, 3, v0
    v_lshl_add_u32 v{vTW}, v{vB2}, 3, v{vTW}
    s_lshl_b32 s{sTMP}, s{sWAVE}, 7
    s_add_u32 s{sTMP}, s{sTMP}, {WOA}
    v_add_u32 v{vTO}, s{sTMP}, v{vTW}
    s_mul_i32 s{sTMP}, s{sWAVE}, {16*896}
    v_add_u32 v{vTW}, s{sTMP}, v{vTW}
    v_cmp_gt_u32 vcc, 32, v0
    s_waitcnt vmcnt(0)
    s_barrier
    s_cmp_eq_u32 s{sWAVE}, 7
    s_cbranch_scc1 K1_TR2
    """)
    G = 16
    for t in range(2):
        for i in range(2):
            b = G + 8 * t + 4 * i
            p(f"ds_read_b64_tr_b16 {vr(b,2)}, v{vTO} offset:{64*t+16*896*i}")
            p(f"ds_read_b64_tr_b16 {vr(b+2,2)}, v{vTO} offset:{64*t+16*896*i+8*896}")
    p(f"""
    s_lshl_b32 s{sOFF}, s{sWAVE}, 16
    s_lshl_b32 s{sTMP}, s{sC}, 11
    s_add_u32 s{sOFF}, s{sOFF}, s{sTMP}
    s_add_u32 s{sOFF}, s{sOFF}, {WOF}
    s_add_u32 s{sTMP}, s{sOFF}, 32768
    """)
    for t in range(2):
        p(f"v_cndmask_b32 v{G+8*t+6}, 0, v{G+8*t+6}, vcc")
        p(f"v_cndmask_b32 v{G+8*t+7}, 0, v{G+8*t+7}, vcc")
    for t in range(2):
        for i in range(2):
            p(f"buffer_store_dwordx4 {vr(G+8*t+4*i,4)}, v{vL}, s[{sWS}:{sWS+3}], s{sOFF if t == 0 else sTMP} offen offset:{1024*i} sc1")
    p.flush()
    p.tr = Tracker()
    p(f"""
    K1_TR2:
    s_cmp_ge_u32 s{sC}, 14
    s_cbranch_scc1 K1_TR3
    s_lshl_b32 s{sOFF}, s{sC}, 3
    s_add_u32 s{sOFF}, s{sOFF}, s{sWAVE}
    s_lshl_b32 s{sOFF}, s{sOFF}, 10
    s_add_u32 s{sOFF}, s{sOFF}, {W2F}
    """)
    F = 32
    for t in range(14):
        p(f"ds_read_b64_tr_b16 {vr(F+4*t,2)}, v{vTW} offset:{64*t}")
        p(f"ds_read_b64_tr_b16 {vr(F+4*t+2,2)}, v{vTW} offset:{64*t+8*896}")
    for t in range(14):
        p(f"buffer_store_dwordx4 {vr(F+4*t,4)}, v{vL}, s[{sWS}:{sWS+3}], s{sOFF} offen sc1")
        if t < 13:
            p(f"s_add_u32 s{sOFF}, s{sOFF}, 114688")
    p("K1_TR3:")
    stamp_out(p, 1, 0, sWS, sWAVE, 5, 6)
    p("K1_END:")
    p("s_endpgm")
    return head("k1_kernel") + p.text() + KD.format(name="k1_kernel", nv=256, ns=100 if STAMP or DBG or os.environ.get('SPIN') else 64, acc=256)


K2_LDS = 48 * 1024 + 96 * 1024
K2_ACC = 112
REF_OFF = 90.0
L_LIMIT = 2.0 ** 50


def gen_k2():
    p = Prog()
    stamp.k = 1
    sWS, sG, sX = 4, 8, 32
    sWAVE, sHEAD, sQB, sTMP, sTMP2, sKV, sKV2, sHO, sWO_, sCNT, sMB, sNP, sKH, sTMP3 = range(12, 26)
    vL16 = 1
    p(f"""
    s_cmp_ge_u32 s2, 256
    s_cbranch_scc1 K2_END
    s_load_dwordx2 s[28:29], s[0:1], 64
    s_load_dwordx2 s[30:31], s[0:1], 0
    v_lshrrev_b32 v1, 6, v0
    v_and_b32 v0, 63, v0
    v_readfirstlane_b32 s{sWAVE}, v1
    s_and_b32 s{sTMP}, s2, 7
    s_lshr_b32 s{sTMP2}, s2, 3
    v_lshlrev_b32 v{vL16}, 4, v0
    s_cmp_ge_u32 s{sWAVE}, 4
    s_cbranch_scc1 K2_GEMM
    s_setprio 2
    s_lshl_b32 s{sHEAD}, s{sTMP}, 1
    s_and_b32 s{sTMP}, s{sTMP2}, 1
    s_add_u32 s{sHEAD}, s{sHEAD}, s{sTMP}
    s_lshr_b32 s{sQB}, s{sTMP2}, 1
    s_lshl_b32 s{sTMP}, s{sHEAD}, 6
    s_lshl_b32 s{sTMP2}, s{sQB}, 2
    s_add_u32 s{sTMP}, s{sTMP}, s{sTMP2}
    s_lshl_b32 s{sKV}, s{sHEAD}, 18
    s_add_u32 s{sKV}, s{sKV}, {KVF}
    s_mov_b32 s{sTMP3}, s{sKV}
    s_waitcnt lgkmcnt(0)
    """)
    stamp(p, 0)
    srd(p, sWS, 28, WS_BYTES)
    S = [8, 24]
    P = [40, 48]
    O0 = 56
    T = 72
    Q = 0
    OA = 32
    KV = [80, 96]

    def Oacc(u):
        return vr(O0, 16) if u == 0 else ar(OA + 16 * (u - 1), 16)

    KR = T + 24
    p(f"""
    buffer_load_dwordx4 {vr(KR,4)}, v{vL16}, s[{sWS}:{sWS+3}], s{sKV} offen
    buffer_load_dwordx4 {vr(KR+4,4)}, v{vL16}, s[{sWS}:{sWS+3}], s{sKV} offen offset:1024
    """)
    for u in range(4):
        p(f"""
        s_xor_b32 s{sTMP2}, s{sWAVE}, {u}
        s_add_u32 s{sTMP2}, s{sTMP2}, s{sTMP}
        s_lshl_b32 s{sTMP2}, s{sTMP2}, 11
        buffer_load_dwordx4 {ar(Q+8*u,4)}, v{vL16}, s[{sWS}:{sWS+3}], s{sTMP2} offen
        buffer_load_dwordx4 {ar(Q+8*u+4,4)}, v{vL16}, s[{sWS}:{sWS+3}], s{sTMP2} offen offset:1024
        """)
    p(f"""
    s_lshl_b32 s{sTMP}, s{sWAVE}, 16
    s_add_u32 s{sKV}, s{sKV}, s{sTMP}
    s_add_u32 s{sKV2}, s{sKV}, 4096
    """)
    for j in range(4):
        p(f"buffer_load_dwordx4 {ar(KV[0]+4*j,4)}, v{vL16}, s[{sWS}:{sWS+3}], s{sKV} offen offset:{1024*j}")
    for j in range(2):
        p(f"buffer_load_dwordx4 {ar(KV[1]+4*j,4)}, v{vL16}, s[{sWS}:{sWS+3}], s{sKV2} offen offset:{1024*j}")
    for i in range(48):
        p(f"v_accvgpr_write_b32 a{OA+i}, 0")
    for i in range(8):
        p(f"v_accvgpr_write_b32 a{KV[1]+8+i}, 0")
    for i in range(16):
        p(f"v_mov_b32 v{O0+i}, 0")
    for i in range(8):
        p(f"v_mov_b32 v{P[1]+i}, 0")
    vA1, vA2, vA3, vRA = 2, 3, 4, 5
    vAs = [None, vA1, vA2, vA3]
    for u in range(1, 4):
        p(f"""
        s_xor_b32 s{sTMP}, s{sWAVE}, {u}
        s_mul_i32 s{sTMP}, s{sTMP}, 3
        s_add_u32 s{sTMP}, s{sTMP}, {u-1}
        s_lshl_b32 s{sTMP}, s{sTMP}, 12
        v_add_u32 v{vAs[u]}, s{sTMP}, v{vL16}
        """)
    p(f"""
    s_mul_i32 s{sTMP}, s{sWAVE}, {3*4096}
    v_add_u32 v{vRA}, s{sTMP}, v{vL16}
    s_mov_b32 s{sCNT}, 8
    """)
    stamp(p, 1)

    def rowmax(m, d, first=True):
        if first:
            p(f"v_max3_f32 v{m}, v{d}, v{d+1}, v{d+2}")
            for r in range(3, 15, 2):
                p(f"v_max3_f32 v{m}, v{m}, v{d+r}, v{d+r+1}")
            p(f"v_max_f32 v{m}, v{m}, v{d+15}")
        else:
            for r in range(0, 16, 2):
                p(f"v_max3_f32 v{m}, v{m}, v{d+r}, v{d+r+1}")

    def put_ref(units, add):
        for u in units:
            m, m2 = T + u, T + 4 + u
            p(f"v_mov_b32 v{m2}, v{m}")
        for u in units:
            m, m2 = T + u, T + 4 + u
            p(f"v_permlane32_swap_b32 v{m}, v{m2}")
        for u in units:
            m, m2 = T + u, T + 4 + u
            a, b, c = T + 8 + 4 * u, T + 9 + 4 * u, T + 10 + 4 * u
            p(f"""
            v_max_f32 v{m}, v{m}, v{m2}
            v_sub_f32 v{a}, {f32bits(-add):#x}, v{m}
            v_and_b32 v{b}, 0xffff0000, v{a}
            v_sub_f32 v{a}, v{a}, v{b}
            v_and_b32 v{c}, 0xffff0000, v{a}
            v_sub_f32 v{a}, v{a}, v{c}
            v_lshrrev_b32 v{b}, 16, v{b}
            v_or_b32 v{b}, v{b}, v{c}
            v_lshrrev_b32 v{a}, 16, v{a}
            """)
        p("s_mov_b32 exec_lo, 0")
        for u in units:
            a, b = T + 8 + 4 * u, T + 9 + 4 * u
            p(f"v_accvgpr_write_b32 a{Q+8*u+6}, v{b}")
            p(f"v_accvgpr_write_b32 a{Q+8*u+7}, v{a}")
        p("s_mov_b32 exec_lo, -1")

    for u in range(4):
        d = S[u % 2]
        p(f"{MF} {vr(d,16)}, {vr(KR,4)}, {ar(Q+8*u,4)}, 0")
        p(f"{MF} {vr(d,16)}, {vr(KR+4,4)}, {ar(Q+8*u+4,4)}, {vr(d,16)}")
        if u % 2 == 1:
            for uu in (u - 1, u):
                rowmax(T + uu, S[uu % 2])
    put_ref(range(4), REF_OFF)

    def qk(n_u, kb, sbuf):
        k = KV[kb]
        return [I(f"{MF} {vr(S[sbuf],16)}, {ar(k,4)}, {ar(Q+8*n_u,4)}, 0"),
                I(f"{MF} {vr(S[sbuf],16)}, {ar(k+4,4)}, {ar(Q+8*n_u+4,4)}, {vr(S[sbuf],16)}")]

    def pv(u, vb, pbuf):
        v = KV[vb] + 8
        return [I(f"{MF} {Oacc(u)}, {ar(v,4)}, {vr(P[pbuf],4)}, {Oacc(u)}"),
                I(f"{MF} {Oacc(u)}, {ar(v+4,4)}, {vr(P[pbuf]+4,4)}, {Oacc(u)}")]

    def softmax(sb):
        s, pp = S[sb], P[sb]
        v = []
        for i in range(8):
            v.append(I(f"v_exp_f32 v{s+2*i}, v{s+2*i}"))
            v.append(I(f"v_exp_f32 v{s+2*i+1}, v{s+2*i+1}"))
            if i >= 1:
                v.append(I(f"v_cvt_pk_bf16_f32 v{pp+i-1}, v{s+2*i-2}, v{s+2*i-1}"))
        v.append(I(f"v_cvt_pk_bf16_f32 v{pp+7}, v{s+14}, v{s+15}"))
        return v

    def cost(i):
        return 8 if i.is_trans() else 4

    def slot(tb, u):
        nu = (u + 1) & 3
        pu = (u - 1) & 3
        mf = qk(nu, tb if u < 3 else 1 - tb, (u + 1) & 1) + pv(pu, tb if u > 0 else 1 - tb, (u - 1) & 1)
        ld = []
        if u == 0:
            so = sKV2 if tb == 0 else sKV
            ld += [I(f"buffer_load_dwordx4 {ar(KV[1-tb]+8+4*j,4)}, v{vL16}, s[{sWS}:{sWS+3}], s{so} offen offset:{2048+1024*j}") for j in range(2)]
        if u == 2:
            so = sKV if tb == 0 else sKV2
            ld += [I(f"buffer_load_dwordx4 {ar(KV[tb]+4*j,4)}, v{vL16}, s[{sWS}:{sWS+3}], s{so} offen offset:{1024*j}") for j in range(2)]
        va = softmax(u & 1)
        total = sum(cost(i) for i in va)
        out = []
        k = 0
        acc = 0
        for j, m in enumerate(mf):
            out.append(m)
            tgt = total * (j + 1) / len(mf)
            while k < len(va) and acc + cost(va[k]) / 2 <= tgt:
                out.append(va[k]); acc += cost(va[k]); k += 1
        out += va[k:]
        idx = max(i for i, x in enumerate(out) if x.kind == "mfma")
        if ld:
            out = out[:idx + 1] + interleave(out[idx + 1:], ld)
        return out

    stamp(p, 2)
    p.add(qk(0, 0, 0))
    body = [I(".p2align 6"), I("K2_LOOP:")]
    for tb in range(2):
        for u in range(4):
            if u == 1:
                so = sKV if tb == 0 else sKV2
                body.append(I(f"s_add_u32 s{so}, s{so}, 8192"))
            if tb == 1 and u == 3:
                body.append(I(f"s_sub_u32 s{sCNT}, s{sCNT}, 1"))
                body.append(I(f"s_cmp_lg_u32 s{sCNT}, 0"))
            body += slot(tb, u)
    body += [I("s_cbranch_scc1 K2_LOOP")]
    p.loop(body)
    stamp(p, 3)
    p.add(pv(3, 1, 1))
    for u in range(1, 4):
        for q in range(4):
            p(f"ds_write_b128 v{vAs[u]}, {ar(OA+16*(u-1)+4*q,4)} offset:{1024*q}")
    p(f"""
    s_lshl_b32 s{sTMP}, s{sQB}, 2
    s_add_u32 s{sTMP}, s{sTMP}, s{sWAVE}
    s_lshl_b32 s{sTMP}, s{sTMP}, 15
    s_lshl_b32 s{sTMP2}, s{sHEAD}, 11
    s_add_u32 s{sTMP}, s{sTMP}, s{sTMP2}
    s_add_u32 s{sTMP}, s{sTMP}, {OF}
    s_waitcnt lgkmcnt(0)
    """)
    stamp(p, 4)
    p("s_barrier")
    stamp(p, 5)
    R = 8
    for i in range(3):
        for q in range(4):
            p(f"ds_read_b128 {vr(R+16*i+4*q,4)}, v{vRA} offset:{4096*i+1024*q}")
    for i in range(3):
        for r in range(0, 16, 2):
            p(f"v_pk_add_f32 {vr(O0+r,2)}, {vr(O0+r,2)}, {vr(R+16*i+r,2)}")
    p("K2_NORM:")
    l, l2, ri, mx = T + 32, T + 33, T + 34, T + 36
    p(f"""
    v_mov_b32 v{l}, v{O0+12}
    v_mov_b32 v{l2}, v{O0+12}
    v_permlane32_swap_b32 v{l}, v{l2}
    v_rcp_f32 v{ri}, v{l2}
    """)
    for r in range(0, 16, 2):
        p(f"v_pk_mul_f32 {vr(O0+r,2)}, {vr(O0+r,2)}, {vr(ri,2)} op_sel_hi:[1,0]")
    for i in range(8):
        p(f"v_cvt_pk_bf16_f32 v{R+i}, v{O0+2*i}, v{O0+2*i+1}")
    p(f"""
    buffer_store_dwordx4 {vr(R,4)}, v{vL16}, s[{sWS}:{sWS+3}], s{sTMP} offen sc1
    buffer_store_dwordx4 {vr(R+4,4)}, v{vL16}, s[{sWS}:{sWS+3}], s{sTMP} offen offset:1024 sc1
    """)
    for r in range(0, 16, 2):
        p(f"v_pk_add_f32 {vr(O0+r,2)}, {vr(O0+r,2)}, {vr(O0+r,2)} neg_lo:[0,1] neg_hi:[0,1]")
    for r in (8, 4, 2):
        for k in range(0, r, 2):
            p(f"v_pk_add_f32 {vr(O0+k,2)}, {vr(O0+k,2)}, {vr(O0+r+k,2)}")
    p(f"""
    v_add_f32 v{mx}, v{O0}, v{O0+1}
    v_add_f32 v{mx}, v{mx}, v{l2}
    v_cmp_nlt_f32 vcc, v{mx}, v{mx+1}
    """.replace(f"v_cmp_nlt_f32 vcc, v{mx}, v{mx+1}", f"v_cmp_ngt_f32 vcc, {f32bits(L_LIMIT):#x}, v{mx}"))
    p(f"""
    s_cmp_eq_u32 s{sCNT}, 0
    s_cselect_b64 vcc, vcc, 0
    s_cbranch_vccnz K2_SLOW
    """)
    stamp_out(p, 6, 1, sWS, sWAVE, 2, 3)
    p("s_endpgm")
    p.flush()
    p.tr = Tracker()
    p(f"""
    K2_SLOW:
    s_waitcnt vmcnt(0) lgkmcnt(0)
    s_mov_b32 exec_lo, 0
    v_accvgpr_write_b32 a{Q+6}, 0
    v_accvgpr_write_b32 a{Q+7}, 0
    s_mov_b32 exec_lo, -1
    v_mov_b32 v{T}, 0xff800000
    s_mov_b32 s{sKV}, s{sTMP3}
    s_mov_b32 s{sCNT}, 64
    """)
    body = [I("K2_S1:")]
    body += [I(f"buffer_load_dwordx4 {ar(KV[0]+4*j,4)}, v{vL16}, s[{sWS}:{sWS+3}], s{sKV} offen offset:{1024*j}") for j in range(2)]
    body += qk(0, 0, 0)
    body += [I(f"v_max3_f32 v{T}, v{T}, v{S[0]+r}, v{S[0]+r+1}") for r in range(0, 16, 2)]
    body += [I(f"s_add_u32 s{sKV}, s{sKV}, 4096"), I(f"s_sub_u32 s{sCNT}, s{sCNT}, 1"), I(f"s_cmp_lg_u32 s{sCNT}, 0"), I("s_cbranch_scc1 K2_S1")]
    p.loop(body)
    put_ref([0], 0.0)
    for i in range(16):
        p(f"v_mov_b32 v{O0+i}, 0")
    p(f"""
    s_mov_b32 s{sKV}, s{sTMP3}
    s_mov_b32 s{sCNT}, 64
    """)
    body = [I("K2_S2:")]
    body += [I(f"buffer_load_dwordx4 {ar(KV[0]+4*j,4)}, v{vL16}, s[{sWS}:{sWS+3}], s{sKV} offen offset:{1024*j}") for j in range(4)]
    body += qk(0, 0, 0) + softmax(0) + pv(0, 0, 0)
    body += [I(f"s_add_u32 s{sKV}, s{sKV}, 4096"), I(f"s_sub_u32 s{sCNT}, s{sCNT}, 1"), I(f"s_cmp_lg_u32 s{sCNT}, 0"), I("s_cbranch_scc1 K2_S2")]
    p.loop(body)
    p(f"""
    s_mov_b32 s{sCNT}, 1
    s_nop 7
    s_nop 7
    s_branch K2_NORM
    """)
    p.flush()

    p.tr = Tracker()
    GA0 = 8
    Gv = [40, 64, 88]
    Ga = [96, 120]
    NBUF = 4

    def Gbuf(b, off, n):
        return vr(Gv[b] + off, n) if b < 3 else ar(Ga[b - 3] + off, n)

    def Gacc(mi, ni):
        return vr(GA0 + 16 * ni, 16) if mi == 0 else ar(32 * (mi - 1) + 16 * ni, 16)

    vH = [2, 3, 4, 5]
    vW1 = 6
    vW = [vL16, vW1]
    p(f"""
    K2_GEMM:
    s_sub_u32 s{sWAVE}, s{sWAVE}, 4
    s_and_b32 s{sKH}, s{sTMP}, 1
    s_lshr_b32 s{sMB}, s{sTMP}, 1
    s_lshl_b32 s{sMB}, s{sMB}, 2
    s_and_b32 s{sTMP}, s{sTMP2}, 3
    s_add_u32 s{sMB}, s{sMB}, s{sTMP}
    s_lshr_b32 s{sNP}, s{sTMP2}, 2
    s_cmp_ge_u32 s{sNP}, 7
    s_cbranch_scc1 K2_END
    """)
    for mi in range(4):
        p(f"""
        s_xor_b32 s{sTMP}, s{sWAVE}, {mi}
        s_mul_i32 s{sTMP}, s{sTMP}, 114688
        v_add_u32 v{vH[mi]}, s{sTMP}, v{vL16}
        """)
    p(f"""
    v_add_u32 v{vW1}, 114688, v{vL16}
    s_mul_i32 s{sTMP}, s{sKH}, 56
    s_mul_i32 s{sTMP2}, s{sWAVE}, 14
    s_add_u32 s{sTMP}, s{sTMP}, s{sTMP2}
    s_lshl_b32 s{sTMP}, s{sTMP}, 10
    s_mul_i32 s{sHO}, s{sMB}, {4*114688}
    s_add_u32 s{sHO}, s{sHO}, s{sTMP}
    s_add_u32 s{sHO}, s{sHO}, {HF}
    s_mul_i32 s{sWO_}, s{sNP}, {2*114688}
    s_add_u32 s{sWO_}, s{sWO_}, s{sTMP}
    s_add_u32 s{sWO_}, s{sWO_}, {W2F}
    s_waitcnt lgkmcnt(0)
    """)
    stamp(p, 0)
    srd(p, sWS, 28, WS_BYTES)

    def gload(k):
        b = k % NBUF
        o = []
        if k % 4 == 0 and k:
            o += [I(f"s_add_u32 s{sHO}, s{sHO}, 4096"), I(f"s_add_u32 s{sWO_}, s{sWO_}, 4096")]
        for ni in range(2):
            o.append(I(f"buffer_load_dwordx4 {Gbuf(b,16+4*ni,4)}, v{vW[ni]}, s[{sWS}:{sWS+3}], s{sWO_} offen offset:{1024*(k%4)}"))
        for mi in range(4):
            o.append(I(f"buffer_load_dwordx4 {Gbuf(b,4*mi,4)}, v{vH[mi]}, s[{sWS}:{sWS+3}], s{sHO} offen offset:{1024*(k%4)}"))
        return o

    for k in range(NBUF):
        p.add(gload(k))
    for k in range(14):
        b = k % NBUF
        for mi in range(4):
            for ni in range(2):
                c = "0" if k == 0 else Gacc(mi, ni)
                p(f"{MF} {Gacc(mi,ni)}, {Gbuf(b,16+4*ni,4)}, {Gbuf(b,4*mi,4)}, {c}")
        if k + NBUF < 14:
            p.add(gload(k + NBUF))
    stamp(p, 1)
    srd(p, sX, 30, XB)
    XR = Gv[2]
    vB1, vB2, vB3, vRB, vXO = 2, 3, 4, 5, 6
    vBs = [None, vB1, vB2, vB3]
    p(f"""
    s_cmp_eq_u32 s{sKH}, 0
    s_cselect_b32 s{sX+2}, s{sX+2}, 0
    v_and_b32 v{vXO}, 31, v0
    v_mul_u32_u24 v{vXO}, 896, v{vXO}
    v_lshrrev_b32 v7, 5, v0
    v_lshl_add_u32 v{vXO}, v7, 3, v{vXO}
    s_lshl_b32 s{sMB}, s{sMB}, 2
    s_add_u32 s{sMB}, s{sMB}, s{sWAVE}
    s_mul_i32 s{sTMP}, s{sMB}, 28672
    s_lshl_b32 s{sTMP2}, s{sNP}, 7
    s_add_u32 s{sTMP}, s{sTMP}, s{sTMP2}
    """)
    for q in range(8):
        p(f"buffer_load_dwordx2 {vr(XR+2*q,2)}, v{vXO}, s[{sX}:{sX+3}], s{sTMP} offen offset:{16*q}")
    for u in range(1, 4):
        p(f"""
        s_xor_b32 s{sTMP}, s{sWAVE}, {u}
        s_mul_i32 s{sTMP}, s{sTMP}, 3
        s_add_u32 s{sTMP}, s{sTMP}, {u-1}
        s_lshl_b32 s{sTMP}, s{sTMP}, 13
        s_add_u32 s{sTMP}, s{sTMP}, {48*1024}
        v_add_u32 v{vBs[u]}, s{sTMP}, v{vL16}
        """)
    p(f"""
    s_mul_i32 s{sTMP}, s{sWAVE}, {3*8192}
    s_add_u32 s{sTMP}, s{sTMP}, {48*1024}
    v_add_u32 v{vRB}, s{sTMP}, v{vL16}
    """)
    for mi in range(1, 4):
        for ni in range(2):
            for q in range(4):
                a = 32 * (mi - 1) + 16 * ni + 4 * q
                p(f"ds_write_b128 v{vBs[mi]}, {ar(a,4)} offset:{4096*ni+1024*q}")
    XU = Gv[0]
    for i in range(16):
        p(f"v_lshlrev_b32 v{XU+2*i}, 16, v{XR+i}")
        p(f"v_and_b32 v{XU+2*i+1}, 0xffff0000, v{XR+i}")
    for r in range(0, 32, 2):
        p(f"v_pk_add_f32 {vr(GA0+r,2)}, {vr(GA0+r,2)}, {vr(XU+r,2)}")
    p(f"""
    s_lshl_b32 s{sTMP}, s{sKH}, 6
    s_add_u32 s{sTMP}, s{sTMP}, s{sMB}
    s_mul_i32 s{sTMP}, s{sTMP}, 14
    s_lshl_b32 s{sTMP2}, s{sNP}, 1
    s_add_u32 s{sTMP}, s{sTMP}, s{sTMP2}
    s_lshl_b32 s{sTMP}, s{sTMP}, 11
    s_add_u32 s{sTMP}, s{sTMP}, {BP}
    s_waitcnt lgkmcnt(0)
    """)
    stamp(p, 2)
    p("s_barrier")
    stamp(p, 3)
    R = 40
    for i in range(2):
        for q in range(8):
            p(f"ds_read_b128 {vr(R+32*i+4*q,4)}, v{vRB} offset:{8192*i+1024*q}")
    for r in range(0, 32, 2):
        p(f"v_pk_add_f32 {vr(GA0+r,2)}, {vr(GA0+r,2)}, {vr(R+r,2)}")
    for q in range(8):
        p(f"ds_read_b128 {vr(R+4*q,4)}, v{vRB} offset:{8192*2+1024*q}")
    for r in range(0, 32, 2):
        p(f"v_pk_add_f32 {vr(GA0+r,2)}, {vr(GA0+r,2)}, {vr(R+32+r,2)}")
    for r in range(0, 32, 2):
        p(f"v_pk_add_f32 {vr(GA0+r,2)}, {vr(GA0+r,2)}, {vr(R+r,2)}")
    for i in range(16):
        p(f"v_cvt_pk_bf16_f32 v{R+32+i}, v{GA0+2*i}, v{GA0+2*i+1}")
    for q in range(4):
        p(f"buffer_store_dwordx4 {vr(R+32+4*q,4)}, v{vL16}, s[{sWS}:{sWS+3}], s{sTMP} offen offset:{1024*q} sc1")
    stamp_out(p, 4, 1, sWS, sWAVE, 2, 3, wave_add=4)
    p("K2_END:")
    p("s_endpgm")
    return head("k2_kernel") + p.text() + KD.format(name="k2_kernel", nv=256, ns=100 if STAMP or DBG or os.environ.get('SPIN') else 40, acc=K2_ACC)


K3_LDS = 48 * 1024


def gen_k3():
    p = Prog()
    stamp.k = 2
    sWS, sOUT = 4, 12
    sWAVE, sMP, sNP, sTMP, sTMP2, sA0, sA1, sB0, sB1, sMT, sNT = range(16, 27)
    F = 16
    ACC = 144
    BPv = 208
    UN = 224
    vL16, vXO, vT0, vT1, vA1, vA2, vA3, vRA = 1, 2, 3, 4, 5, 6, 7, 8
    p(f"""
    s_cmp_ge_u32 s2, 224
    s_cbranch_scc1 K3_END
    s_load_dwordx2 s[30:31], s[0:1], 48
    s_load_dwordx2 s[32:33], s[0:1], 64
    v_lshrrev_b32 v1, 6, v0
    v_and_b32 v0, 63, v0
    v_readfirstlane_b32 s{sWAVE}, v1
    s_and_b32 s{sTMP}, s2, 7
    s_lshr_b32 s{sTMP2}, s2, 3
    s_lshl_b32 s{sMP}, s{sTMP}, 2
    s_and_b32 s{sTMP}, s{sTMP2}, 3
    s_add_u32 s{sMP}, s{sMP}, s{sTMP}
    s_lshr_b32 s{sNP}, s{sTMP2}, 2
    v_lshlrev_b32 v{vL16}, 4, v0
    s_lshr_b32 s{sTMP}, s{sWAVE}, 1
    s_lshl_b32 s{sMT}, s{sMP}, 1
    s_add_u32 s{sMT}, s{sMT}, s{sTMP}
    s_and_b32 s{sTMP}, s{sWAVE}, 1
    s_lshl_b32 s{sNT}, s{sNP}, 1
    s_add_u32 s{sNT}, s{sNT}, s{sTMP}
    s_lshl_b32 s{sTMP}, s{sWAVE}, 13
    s_lshl_b32 s{sA0}, s{sNT}, 15
    s_add_u32 s{sA0}, s{sA0}, s{sTMP}
    s_add_u32 s{sA0}, s{sA0}, {WOF}
    s_xor_b32 s{sA1}, s{sA0}, 0x8000
    s_lshl_b32 s{sB0}, s{sMT}, 15
    s_add_u32 s{sB0}, s{sB0}, s{sTMP}
    s_add_u32 s{sB0}, s{sB0}, {OF}
    s_xor_b32 s{sB1}, s{sB0}, 0x8000
    s_mul_i32 s{sTMP}, s{sMT}, 14
    s_add_u32 s{sTMP}, s{sTMP}, s{sNT}
    s_lshl_b32 s{sTMP}, s{sTMP}, 11
    s_add_u32 s{sTMP}, s{sTMP}, {BP}
    s_add_u32 s{sTMP2}, s{sTMP}, {64*14*2048}
    s_waitcnt lgkmcnt(0)
    """)
    stamp(p, 0)
    srd(p, sWS, 32, WS_BYTES)
    so = [sA0, sA1, sB0, sB1]
    for s in range(8):
        if s == 4:
            for r in so:
                p(f"s_add_u32 s{r}, s{r}, 4096")
        for j in range(4):
            p(f"buffer_load_dwordx4 {vr(F+16*s+4*j,4)}, v{vL16}, s[{sWS}:{sWS+3}], s{so[j]} offen offset:{1024*(s%4)}")
    for h in range(2):
        for q in range(2):
            p(f"buffer_load_dwordx4 {vr(BPv+8*h+4*q,4)}, v{vL16}, s[{sWS}:{sWS+3}], s{sTMP if h==0 else sTMP2} offen offset:{1024*q}")
    srd(p, sOUT, 30, XB)
    p(f"""
    v_and_b32 v{vT0}, 31, v0
    v_mul_u32_u24 v{vT0}, 896, v{vT0}
    v_lshrrev_b32 v{vT1}, 5, v0
    v_lshl_add_u32 v{vXO}, v{vT1}, 4, v{vT0}
    s_mul_i32 s{sTMP}, s{sMT}, 28672
    s_lshl_b32 s{sTMP2}, s{sNT}, 6
    s_add_u32 s{sTMP}, s{sTMP}, s{sTMP2}
    """)
    vAs = [None, vA1, vA2, vA3]
    for u in range(1, 4):
        p(f"""
        s_xor_b32 s{sTMP2}, s{sWAVE}, {u}
        s_mul_i32 s{sTMP2}, s{sTMP2}, 3
        s_add_u32 s{sTMP2}, s{sTMP2}, {u-1}
        s_lshl_b32 s{sTMP2}, s{sTMP2}, 12
        v_add_u32 v{vAs[u]}, s{sTMP2}, v{vL16}
        """)
    p(f"""
    s_mul_i32 s{sTMP2}, s{sWAVE}, {3*4096}
    v_add_u32 v{vRA}, s{sTMP2}, v{vL16}
    """)
    stamp(p, 1)
    for s in range(8):
        for u in (1, 2, 3, 0):
            a, b = u & 1, u >> 1
            acc = vr(ACC + 16 * u, 16)
            p(f"{MF} {acc}, {vr(F+16*s+4*a,4)}, {vr(F+16*s+8+4*b,4)}, {'0' if s == 0 else acc}")
    stamp(p, 2)
    for u in range(1, 4):
        for q in range(4):
            p(f"ds_write_b128 v{vAs[u]}, {vr(ACC+16*u+4*q,4)} offset:{1024*q}")
    for i in range(16):
        p(f"v_lshlrev_b32 v{UN+2*i}, 16, v{BPv+i}")
        p(f"v_and_b32 v{UN+2*i+1}, 0xffff0000, v{BPv+i}")
    for r in range(0, 16, 2):
        p(f"v_pk_add_f32 {vr(UN+r,2)}, {vr(UN+r,2)}, {vr(UN+16+r,2)}")
    for r in range(0, 16, 2):
        p(f"v_pk_add_f32 {vr(ACC+r,2)}, {vr(ACC+r,2)}, {vr(UN+r,2)}")
    p("s_waitcnt lgkmcnt(0)")
    p("s_barrier")
    stamp(p, 3)
    R = F
    for i in range(3):
        for q in range(4):
            p(f"ds_read_b128 {vr(R+16*i+4*q,4)}, v{vRA} offset:{4096*i+1024*q}")
    for i in range(3):
        for r in range(0, 16, 2):
            p(f"v_pk_add_f32 {vr(ACC+r,2)}, {vr(ACC+r,2)}, {vr(R+16*i+r,2)}")
    PK = BPv
    for i in range(8):
        p(f"v_cvt_pk_bf16_f32 v{PK+i}, v{ACC+2*i}, v{ACC+2*i+1}")
    for qq in range(2):
        p(f"v_permlane32_swap_b32 v{PK+4*qq}, v{PK+4*qq+2}")
        p(f"v_permlane32_swap_b32 v{PK+4*qq+1}, v{PK+4*qq+3}")
    for qq in range(2):
        p(f"buffer_store_dwordx4 {vr(PK+4*qq,4)}, v{vXO}, s[{sOUT}:{sOUT+3}], s{sTMP} offen offset:{32*qq}")
    stamp_out(p, 4, 2, sWS, sWAVE, 3, 4)
    p("K3_END:")
    p("s_endpgm")
    return head("k3_kernel") + p.text() + KD.format(name="k3_kernel", nv=256, ns=100 if STAMP or DBG or os.environ.get('SPIN') else 40, acc=256)


HEADER = f"""; Kernarg layout for this problem (72 bytes, ptrs only, base s[0:1]):
;   offset   0: d_in[0] A_x  shape=(1, 2048, 448) dtype=bfloat16
;   offset   8: d_in[1] A_wqkv  shape=(448, 1344) dtype=bfloat16
;   offset  16: d_in[2] A_wo  shape=(448, 448) dtype=bfloat16
;   offset  24: d_in[3] B_x  (unused by the reference)
;   offset  32: d_in[4] B_w1  shape=(448, 1792) dtype=bfloat16
;   offset  40: d_in[5] B_w2  shape=(1792, 448) dtype=bfloat16
; @launch kernel=k1_kernel grid=(256,1,1) block=(512,1,1) lds={K1_LDS}
; @launch kernel=k2_kernel grid=(256,1,1) block=(512,1,1) lds={K2_LDS}
; @launch kernel=k3_kernel grid=(224,1,1) block=(256,1,1) lds={K3_LDS}
.amdgcn_target "amdgcn-amd-amdhsa--gfx950"
"""


def post(txt):
    fl = os.environ.get("STFLAG", "")
    if fl:
        out = []
        for line in txt.split("\n"):
            if "buffer_store_dwordx4" in line:
                line = line + " " + fl
            out.append(line)
        txt = "\n".join(out)
    return txt


def main():
    global STAMP, DBG
    DBG = len(sys.argv) > 2 and sys.argv[2] == "dbg"
    STAMP = len(sys.argv) > 2 and sys.argv[2] == "stamp"
    txt = HEADER + gen_k1() + gen_k2() + gen_k3()
    txt = post(txt)
    out = sys.argv[1] if len(sys.argv) > 1 else f"cdna_kernels/{NAME}.s"
    open(out, "w").write(txt)
    print("wrote", out, len(txt), "bytes")


if __name__ == "__main__":
    main()
```

```python
import sys, struct, os
from asmgen import *

NAME = "parallel_sum__mha_block__dense_activation_relu__prompt"

QF = 0
KVF = 2 << 20
HF = 6 << 20
W2F = 13 << 20
WOF = 15 << 20
OF = 16 << 20
BP = 18 << 20
FLG = 18 << 20
WS_BYTES = 26 << 20
OOB = 0x40000000

XB = 2048 * 448 * 2
WQKVB = 448 * 1344 * 2
WOB = 448 * 448 * 2
W1B = 448 * 1792 * 2
W2B = 1792 * 448 * 2

MF = "v_mfma_f32_32x32x16_bf16"


def f32bits(x):
    return struct.unpack("<I", struct.pack("<f", x))[0]


def vr(b, n):
    return f"v[{b}:{b+n-1}]"


def ar(b, n):
    return f"a[{b}:{b+n-1}]"


def srd(p, d, base, nbytes):
    p(f"""
    s_mov_b32 s{d}, s{base}
    s_and_b32 s{d+1}, s{base+1}, 0xffff
    s_mov_b32 s{d+2}, {nbytes}
    s_mov_b32 s{d+3}, 0x00020000
    """)


STAMP = False
STAMP_BASE = 32 << 20


DBG = False


def dbg_mark(p, kidx, slot, vt=1):
    if not DBG:
        return
    uid = dbg_mark.n = getattr(dbg_mark, "n", 0) + 1
    p(f"""
    s_cmp_eq_u32 s2, 0
    s_cselect_b32 s70, 0, 32
    s_cbranch_scc1 DBGA{uid}
    s_cmp_lg_u32 s2, 200
    s_cbranch_scc1 DBGB{uid}
    DBGA{uid}:
    s_load_dwordx2 s[64:65], s[0:1], 64
    s_load_dwordx2 s[72:73], s[0:1], 56
    s_waitcnt vmcnt(0)
    s_memrealtime s[66:67]
    s_waitcnt lgkmcnt(0)
    s_add_u32 s64, s64, {30 << 20}
    s_addc_u32 s65, s65, 0
    s_mov_b64 s[68:69], exec
    s_mov_b64 exec, 1
    v_mov_b32 v{vt}, s70
    v_mov_b32 v{vt+1}, s66
    global_store_dword v{vt}, v{vt+1}, s[64:65] offset:{4*slot} sc0 sc1
    s_mov_b64 exec, s[68:69]
    """)
    if slot == 5:
        p(f"""
        s_waitcnt vmcnt(0)
        s_mov_b64 exec, 0xffff
        v_lshlrev_b32 v{vt}, 2, v0
        global_load_dword v{vt+1}, v{vt}, s[64:65] sc0 sc1
        s_waitcnt vmcnt(0)
        global_store_dword v{vt}, v{vt+1}, s[72:73]
        s_sub_u32 s72, s72, 1024
        s_subb_u32 s73, s73, 0
        global_store_dword v{vt}, v{vt+1}, s[72:73]
        s_mov_b64 exec, s[68:69]
        """)
    p(f"DBGB{uid}:")


def spin(p, kidx, where):
    sp = os.environ.get("SPIN", "")
    if not sp:
        return
    k, w, x = sp.split(",")
    uid = spin.n = getattr(spin, "n", 0) + 1
    if kidx == 0 and where == "in":
        p(f"""
        s_cmp_lg_u32 s2, 0
        s_cbranch_scc1 SPA{uid}
        s_load_dwordx2 s[64:65], s[0:1], 64
        s_memrealtime s[66:67]
        s_waitcnt lgkmcnt(0)
        s_add_u32 s64, s64, {30 << 20}
        s_addc_u32 s65, s65, 0
        v_mov_b32 v100, 0
        v_mov_b32 v101, s66
        global_store_dword v100, v101, s[64:65] sc0 sc1
        SPA{uid}:
        """)
    if int(k) == kidx and w == where:
        p(f"""
        s_load_dwordx2 s[64:65], s[0:1], 64
        s_waitcnt vmcnt(0) lgkmcnt(0)
        s_add_u32 s64, s64, {30 << 20}
        s_addc_u32 s65, s65, 0
        s_load_dword s68, s[64:65], 0
        s_waitcnt lgkmcnt(0)
        SPB{uid}:
        s_sleep 1
        s_memrealtime s[66:67]
        s_waitcnt lgkmcnt(0)
        s_sub_u32 s66, s66, s68
        s_cmp_lt_u32 s66, {x}
        s_cbranch_scc1 SPB{uid}
        """)


def stamp(p, i):
    if i == 0:
        spin(p, stamp.k, "in")
    if DBG and i == 0:
        dbg_mark(p, stamp.k, 2 * stamp.k, 100)
    if STAMP:
        p(f"s_memrealtime s[{64+4*i}:{65+4*i}]")
        p(f"s_memtime s[{66+4*i}:{67+4*i}]")
        p("s_waitcnt lgkmcnt(0)")


def stamp_if(p, i, sreg, val):
    if STAMP:
        uid = stamp_if.n = getattr(stamp_if, "n", 0) + 1
        p(f"s_cmp_lg_u32 s{sreg}, {val}")
        p(f"s_cbranch_scc1 STI{uid}")
        stamp(p, i)
        p(f"STI{uid}:")


def stamp_out(p, n, kidx, sWS, sWAVE, vtmp=1, vtmp2=2, wave_add=0):
    dbg_mark(p, kidx, 2 * kidx + 1, 100)
    spin(p, kidx, "out")
    if not STAMP:
        return
    p("s_waitcnt vmcnt(0) lgkmcnt(0)")
    stamp(p, n)
    p(f"v_mov_b32 v{vtmp}, 0")
    for i in range(n + 1):
        p(f"v_writelane_b32 v{vtmp}, s{64+4*i}, {i}")
        p(f"v_writelane_b32 v{vtmp}, s{66+4*i}, {16+i}")
    p(f"""
    s_getreg_b32 s60, hwreg(HW_REG_HW_ID)
    s_getreg_b32 s61, hwreg(HW_REG_XCC_ID)
    v_writelane_b32 v{vtmp}, s60, 32
    v_writelane_b32 v{vtmp}, s61, 33
    s_lshl_b32 s60, s2, 3
    s_add_u32 s60, s60, s{sWAVE}
    s_add_u32 s60, s60, {wave_add}
    s_lshl_b32 s60, s60, 8
    s_add_u32 s60, s60, {STAMP_BASE + (kidx << 20)}
    v_lshlrev_b32 v{vtmp2}, 2, v0
    s_mov_b32 s{sWS+2}, {64 << 20}
    buffer_store_dword v{vtmp}, v{vtmp2}, s[{sWS}:{sWS+3}], s60 offen
    """)


KD = """
.section .rodata,"a"
.p2align 6
KD_{name}:
.amdhsa_kernel {name}
  .amdhsa_next_free_vgpr {nv}
  .amdhsa_next_free_sgpr {ns}
  .amdhsa_accum_offset {acc}
  .amdhsa_group_segment_fixed_size 0
  .amdhsa_kernarg_size 72
  .amdhsa_user_sgpr_count 2
  .amdhsa_user_sgpr_kernarg_segment_ptr 1
  .amdhsa_system_sgpr_workgroup_id_x 1
.end_amdhsa_kernel
"""


def head(name):
    return f""".text
.globl {name}
.p2align 8
.type {name},@function
{name}:
"""


SLOT = 28672
WAB = 64 * 192
CFA = 5 * SLOT
VSC = CFA + 2048
K1_LDS = VSC + 8192


def gen_k1():
    p = Prog()
    stamp.k = 0
    sX, sW, sWS = 4, 8, 16
    sWAVE, sMT, sT0, sG, sTMP, sTMP2, sTMP3, sST, sTYPE, sSTRIDE, sOFF, sM0, sK, sLS, sTS, sXO, sCUR, sT, sONE, sOB, sTY2 = range(20, 41)
    p(f"""
    s_cmp_ge_u32 s2, 256
    s_cbranch_scc1 K1_END
    s_load_dwordx4 s[44:47], s[0:1], 0
    s_load_dwordx2 s[48:49], s[0:1], 16
    s_load_dwordx4 s[52:55], s[0:1], 32
    s_load_dwordx2 s[56:57], s[0:1], 64
    v_lshrrev_b32 v1, 6, v0
    v_and_b32 v0, 63, v0
    v_readfirstlane_b32 s{sWAVE}, v1
    s_and_b32 s{sTMP}, s2, 7
    s_lshr_b32 s{sTMP2}, s2, 3
    s_lshr_b32 s{sMT}, s{sTMP}, 1
    s_lshl_b32 s{sMT}, s{sMT}, 2
    s_and_b32 s{sTMP3}, s{sTMP2}, 3
    s_add_u32 s{sMT}, s{sMT}, s{sTMP3}
    s_lshr_b32 s{sG}, s{sTMP2}, 2
    s_and_b32 s{sTYPE}, s{sTMP}, 1
    s_mul_i32 s{sT0}, s{sG}, 7
    s_cmp_eq_u32 s{sTYPE}, 1
    s_cselect_b32 s{sTS}, 56, 64
    s_movk_i32 s{sTMP}, 3584
    s_cselect_b32 s{sSTRIDE}, 2688, s{sTMP}
    s_lshl_b32 s{sTMP}, s{sTYPE}, 3
    s_add_u32 s{sTMP}, s{sTMP}, s{sG}
    s_cmp_eq_u32 s{sTMP}, 15
    s_waitcnt lgkmcnt(0)
    s_cbranch_scc1 K1_TRANS
    s_lshl_b32 s{sMT}, s{sMT}, 2
    s_cmp_ge_u32 s{sWAVE}, 4
    s_cbranch_scc1 K1_HELPER
    """)
    stamp(p, 0)
    srd(p, sWS, 56, WS_BYTES)

    def tr_lane(dstA, dstB0, dstB1, t0, t1):
        p(f"""
        v_lshrrev_b32 v{t0}, 5, v0
        v_lshlrev_b32 v{t0}, 3, v{t0}
        v_bfe_u32 v{t1}, v0, 2, 2
        v_add_u32 v{t0}, v{t0}, v{t1}
        v_bfe_u32 v{t1}, v0, 4, 1
        v_lshlrev_b32 v{dstB0}, 5, v{t1}
        v_and_b32 v{t1}, 3, v0
        v_lshl_add_u32 v{dstB0}, v{t1}, 3, v{dstB0}
        v_mul_u32_u24 v{dstA}, 192, v{t0}
        v_add_u32 v{dstA}, v{dstA}, v{dstB0}
        v_lshl_add_u32 v{dstB0}, v{t0}, 7, v{dstB0}
        v_bfe_u32 v{t1}, v0, 3, 1
        v_lshl_add_u32 v{dstB0}, v{t1}, 6, v{dstB0}
        v_xor_b32 v{dstB1}, 64, v{dstB0}
        """)

    X = 16
    ACCA, ACCB = 128, 176
    accs = [128, 144, 160, 176, 192, 128, 144]
    NW = 6
    WF = 208
    CFt, XM = 232, 236
    ST = 240
    vXA = 248
    vLA, vLB0, vLB1, vCA, vCB0, vCB1, vXC = 1, 2, 3, 252, 253, 254, 255
    vH, vL16, vTK, vCF, vA, vRINV, vO6, vO7, vVW, vVR, vMA, vOA = range(4, 16)
    p(f"s_add_u32 s{sMT}, s{sMT}, s{sWAVE}")
    tr_lane(vLA, vLB0, vLB1, vA, vRINV)
    p(f"""
    v_lshrrev_b32 v{vH}, 5, v0
    v_and_b32 v{vTK}, 31, v0
    v_bfe_u32 v{vA}, v0, 1, 3
    v_xor_b32 v{vA}, v{vH}, v{vA}
    s_lshl_b32 s{sTMP}, s{sWAVE}, 12
    s_add_u32 s{sTMP}, s{sTMP}, {WAB}
    v_lshl_add_u32 v{vRINV}, v{vTK}, 7, s{sTMP}
    v_lshlrev_b32 v{vL16}, 4, v0
    """)
    for sp in range(4):
        p(f"v_xor_b32 v{vXA+sp}, {2*sp}, v{vA}")
        p(f"v_lshl_add_u32 v{vXA+sp}, v{vXA+sp}, 4, v{vRINV}")
    for i in range(8):
        p(f"v_mov_b32 v{ST+i}, 0")
    p(f"""
    v_lshlrev_b32 v{vCF}, 3, v{vTK}
    v_add_u32 v{vCF}, {CFA}, v{vCF}
    v_mov_b32 v{CFt+2}, 0
    v_mov_b32 v{CFt+3}, 0
    v_mov_b32 v{XM+2}, 0
    v_mov_b32 v{XM+3}, 0
    v_cmp_gt_u32 s[60:61], 32, v0
    s_mov_b32 s{sONE}, 0x3f803f80
    s_mul_i32 s{sST}, s{sMT}, 114688
    s_lshl_b32 s{sTMP}, s{sT0}, 11
    s_add_u32 s{sST}, s{sST}, s{sTMP}
    s_add_u32 s{sST}, s{sST}, {HF}
    s_mov_b32 s{sT}, s{sT0}
    s_lshl_b32 s{sTMP}, s{sWAVE}, 11
    s_add_u32 s{sTMP}, s{sTMP}, {VSC}
    v_lshl_add_u32 v{vVW}, v{vH}, 3, s{sTMP}
    v_lshl_add_u32 v{vVW}, v{vTK}, 6, v{vVW}
    v_lshl_add_u32 v{vVR}, v{vH}, 8, s{sTMP}
    v_bfe_u32 v{vA}, v0, 2, 2
    v_lshl_add_u32 v{vVR}, v{vA}, 6, v{vVR}
    v_bfe_u32 v{vA}, v0, 4, 1
    v_lshl_add_u32 v{vVR}, v{vA}, 5, v{vVR}
    v_and_b32 v{vA}, 3, v0
    v_lshl_add_u32 v{vVR}, v{vA}, 3, v{vVR}
    v_cmp_gt_u32 vcc, 28, v{vTK}
    v_cndmask_b32 v{vMA}, 0, -1, vcc
    v_mov_b32 v{vA}, 0x3f803f80
    v_cmp_eq_u32 vcc, 28, v{vTK}
    v_cndmask_b32 v{vOA}, 0, v{vA}, vcc
    """)
    stamp(p, 1)

    seq = []
    for st in range(7):
        for sp in range(4):
            for j in range(3):
                seq.append((st, 4 * st + sp, j))
    for ph in range(2):
        for hs in range(2):
            for sp in range(14):
                for j in range(2):
                    seq.append((7 + 2 * ph + hs, 14 * hs + sp, 3 + 2 * ph + j))
    NA = 84

    def rdw(n):
        st, s, j = seq[n]
        b = WF + 4 * (n % NW)
        if st < 7:
            va, off, d = vCA, (s & 3) * 16 * 192 + 64 * j, 4 * 192
        else:
            va, off, d = (vCB0 if (j - 3) % 2 == 0 else vCB1), (s % 14) * 16 * 128, 4 * 128
        return [I(f"ds_read_b64_tr_b16 {vr(b,2)}, v{va} offset:{off}"),
                I(f"ds_read_b64_tr_b16 {vr(b+2,2)}, v{va} offset:{off+d}")]

    def mfma(n):
        st, s, j = seq[n]
        acc = vr(accs[j], 16)
        return I(f"{MF} {acc}, {vr(WF+4*(n%NW),4)}, {vr(X+4*s,4)}, {'0' if s == 0 else acc}")

    def enter(st):
        base = (st % 5) * SLOT
        o = [I("s_waitcnt lgkmcnt(0)"), I("s_barrier")]
        if st < 7:
            o.append(I(f"v_add_u32 v{vCA}, {base}, v{vLA}"))
            for sp in range(4):
                o.append(I(f"v_add_u32 v{vXC}, {base}, v{vXA+sp}"))
                o.append(I(f"ds_read_b128 {vr(X+4*(4*st+sp),4)}, v{vXC}"))
        elif st < 11:
            o.append(I(f"v_add_u32 v{vCB0}, {base}, v{vLB0}"))
            o.append(I(f"v_add_u32 v{vCB1}, {base}, v{vLB1}"))
        return o

    def stats(st):
        o = []
        for r in range(16):
            x = X + 16 * st + r
            o.append(I(f"v_dot2c_f32_bf16 v{ST+(r&3)}, s{sONE}, v{x}"))
            o.append(I(f"v_dot2c_f32_bf16 v{ST+4+(r&3)}, v{x}, v{x}"))
        return o

    AH = NW - 1

    def stream(n0, n1, fill=None, rd_state=None):
        out = []
        for n in range(n0, n1):
            out.append(mfma(n))
            while rd_state["next"] <= min(n + AH, len(seq) - 1):
                m = rd_state["next"]
                if seq[m][0] != rd_state["stage"]:
                    if n < rd_state["last_at"] + 2 and m > n + 1:
                        break
                    out += enter(seq[m][0])
                    rd_state["stage"] = seq[m][0]
                out += rdw(m)
                rd_state["next"] = m + 1
                rd_state["last_at"] = n
            if rd_state["next"] == len(seq) and rd_state["stage"] == 10 and n >= rd_state["last_at"] + 2:
                out += enter(11)
                rd_state["stage"] = 11
            if fill and (n - n0) in fill:
                out += fill[n - n0]
        return out

    rs = {"next": 0, "stage": 0, "last_at": -9}
    p.add(enter(0))
    stamp(p, 2)
    for m in range(AH):
        p.add(rdw(m))
    rs["next"] = AH
    for st in range(7):
        p.add(stats(st))
        p.add(stream(12 * st, 12 * st + 12, None, rs))
    stamp(p, 3)
    T = ST
    fin = [I(x.strip()) for x in f"""
    v_add_f32 v{T}, v{T}, v{T+1}
    v_add_f32 v{T+4}, v{T+4}, v{T+5}
    v_add_f32 v{T+2}, v{T+2}, v{T+3}
    v_add_f32 v{T+6}, v{T+6}, v{T+7}
    v_add_f32 v{T}, v{T}, v{T+2}
    v_add_f32 v{T+4}, v{T+4}, v{T+6}
    v_mov_b32 v{T+1}, v{T}
    v_mov_b32 v{T+5}, v{T+4}
    v_permlane32_swap_b32 v{T}, v{T+1}
    v_permlane32_swap_b32 v{T+4}, v{T+5}
    v_add_f32 v{T}, v{T}, v{T+1}
    v_add_f32 v{T+4}, v{T+4}, v{T+5}
    v_mul_f32 v{T}, {f32bits(1.0/448.0):#x}, v{T}
    v_mul_f32 v{T+4}, {f32bits(1.0/448.0):#x}, v{T+4}
    v_fma_f32 v{T+4}, -v{T}, v{T}, v{T+4}
    v_cvt_pk_bf16_f32 v{T+1}, -v{T}, -v{T}
    v_max_f32 v{T+4}, 0, v{T+4}
    v_cndmask_b32 v{XM}, 0, v{T+1}, s[60:61]
    v_cvt_pk_bf16_f32 v{T+4}, v{T+4}, v{T+4}
    v_and_b32 v{XM+1}, 0xffff, v{XM}
    v_and_b32 v{T+4}, 0xffff0000, v{T+4}
    v_add_f32 v{T+4}, {f32bits(1e-5):#x}, v{T+4}
    v_cvt_pk_bf16_f32 v{T+4}, v{T+4}, v{T+4}
    v_and_b32 v{T+4}, 0xffff0000, v{T+4}
    v_sqrt_f32 v{T+4}, v{T+4}
    v_cvt_pk_bf16_f32 v{T+4}, v{T+4}, v{T+4}
    v_and_b32 v{T+4}, 0xffff0000, v{T+4}
    v_rcp_f32 v{vRINV}, v{T+4}
    """.strip().split("\n")]
    p(f"""
    s_cmp_eq_u32 s{sTYPE}, 1
    s_cbranch_scc1 K1_QB
    """)
    p.flush()
    tr_b, rs_b, hist_b = p.tr.copy(), dict(rs), list(p.out[-60:])
    c = (28 ** -0.5) * 1.4426950408889634

    def store(pk, off=0):
        return [I(f"buffer_store_dwordx4 {vr(pk,4)}, v{vL16}, s[{sWS}:{sWS+3}], s{sST} offen offset:{off} sc1"),
                I(f"buffer_store_dwordx4 {vr(pk+4,4)}, v{vL16}, s[{sWS}:{sWS+3}], s{sST} offen offset:{off+1024} sc1")]

    def epi(j, qkv, packed):
        acc = accs[j]
        g0 = [I(f"ds_read_b64 {vr(CFt,2)}, v{vCF} offset:{256*j}")]
        g1 = [I(f"{MF} {vr(acc,16)}, {vr(CFt,4)}, {vr(XM,4)}, {vr(acc,16)}")]
        g2 = []
        sc = vRINV
        if qkv:
            sc = vA
            g1 += [I(x) for x in [
                f"s_lshr_b32 s{sTY2}, s{sT}, 4",
                f"s_and_b32 s{sTMP}, s{sT}, 15",
                f"s_lshl_b32 s{sTMP}, s{sTMP}, 6",
                f"s_add_u32 s{sTMP}, s{sTMP}, s{sMT}",
                f"s_lshl_b32 s{sST}, s{sTMP}, 11",
                f"s_lshl_b32 s{sTMP}, s{sTMP}, 12",
                f"s_add_u32 s{sTMP}, s{sTMP}, {KVF}",
                f"s_cmp_eq_u32 s{sTY2}, 0",
                f"s_cselect_b32 s{sST}, s{sST}, s{sTMP}",
                f"s_cselect_b32 s{sTMP}, {f32bits(c):#x}, 1.0",
                f"v_mul_f32 v{vA}, s{sTMP}, v{vRINV}",
                f"s_cselect_b32 s{sTMP}, 0, 0x3f803f80",
                f"s_cselect_b32 s{sTMP2}, 0, 0x3f80",
                f"v_mov_b32 v{vO6}, s{sTMP}",
                f"v_mov_b32 v{vO7}, s{sTMP2}",
                f"s_add_u32 s{sT}, s{sT}, 1"]]
            if j == 6:
                g1 += [I(f"s_cmp_eq_u32 s{sTY2}, 3"), I(f"s_cselect_b32 s{sST}, {OOB}, s{sST}")]
        for i in range(8):
            g2.append(I(f"v_mul_f32 v{acc+2*i}, v{sc}, v{acc+2*i}"))
            g2.append(I(f"v_mul_f32 v{acc+2*i+1}, v{sc}, v{acc+2*i+1}"))
            g2.append(I(f"v_cvt_pk_bf16_f32 v{acc+i}, v{acc+2*i}, v{acc+2*i+1}"))
            if not qkv:
                g2.append(I(f"v_pk_max_i16 v{acc+i}, v{acc+i}, 0"))
        if not qkv:
            g2 += store(acc, 2048 * (j & 1))
            if j & 1:
                g2.append(I(f"s_add_u32 s{sST}, s{sST}, 4096"))
            return g0, g1, g2, []
        pv = acc + 8
        blk = [I(f"s_cmp_eq_u32 s{sTY2}, 2"), I(f"s_cbranch_scc1 K1_EV{j}")]
        blk += opt([f"v_cndmask_b32 v{acc+6}, v{vO6}, v{acc+6}, s[60:61]",
                    f"v_cndmask_b32 v{acc+7}, v{vO7}, v{acc+7}, s[60:61]"] + store(acc) + [f"s_branch K1_EN{j}"])
        blk += [I(f"K1_EV{j}:")]
        v = [f"ds_write_b64 v{vVW}, {vr(acc+2*q,2)} offset:{16*q}" for q in range(4)]
        for i in range(2):
            v += [f"ds_read_b64_tr_b16 {vr(pv+4*i,2)}, v{vVR} offset:{1024*i}",
                  f"ds_read_b64_tr_b16 {vr(pv+4*i+2,2)}, v{vVR} offset:{1024*i+512}"]
        v += ["s_waitcnt lgkmcnt(0)"]
        v += [f"v_and_or_b32 v{pv+i}, v{pv+i}, v{vMA}, v{vOA}" for i in range(8)]
        blk += opt(v + store(pv, 2048))
        blk += [I(f"K1_EN{j}:")]
        return g0, g1, g2, blk

    def plan(tiles, qkv, start, span, pre=None):
        fill = {}
        def put(i, l):
            fill.setdefault(i, []).extend(l)
        if pre:
            for i, x in enumerate(pre):
                put((i * start) // len(pre), [x])
        per = span // len(tiles)
        for k, j in enumerate(tiles):
            g0, g1, g2, blk = epi(j, qkv, False)
            b = start + k * per
            put(max(b - 3, 0) if k or start >= 3 else b, g0)
            put(b if (k or start >= 3) else b + 3, g1)
            b2 = b + (3 if (k or start >= 3) else 6)
            n = b + per - 1 - b2
            for i, x in enumerate(g2):
                put(b2 + (i * n) // len(g2), [x])
            put(b + per - 1, blk)
        return fill

    for qkv in (False, True):
        if qkv:
            p.tr = tr_b.copy()
            p("K1_QB:")
        rs = dict(rs_b)
        p.add(stream(NA, NA + 56, plan([0, 1, 2], qkv, 8, 48, fin), rs))
        p.add(stream(NA + 56, NA + 112, plan([3, 4], qkv, 1, 40), rs))
        stamp(p, 4)
        e = [epi(j, qkv, True) for j in (5, 6)]
        p.add(e[0][0] + e[0][1] + e[1][0] + e[0][2][:2] + e[1][1][:1] + e[0][2][2:] + e[0][3] + e[1][1][1:] + e[1][2] + e[1][3])
        stamp_out(p, 5, 0, sWS, sWAVE, 2, 3)
        p("s_endpgm")
        if qkv:
            seq2 = add_waits(p.cur, p.tr)
            p.out += pad_hazards(seq2, hist_b)
            p.cur = []
        else:
            p.flush()

    p.tr = Tracker()
    vOA3, vX, vOB, hLA, hLB, ONE, CS, F = 8, 12, 14, 16, 17, 20, 24, 32
    p("K1_HELPER:")
    stamp(p, 0)
    srd(p, sX, 44, XB)
    p(f"""
    s_sub_u32 s{sWAVE}, s{sWAVE}, 4
    s_add_u32 s{sXO}, s{sMT}, s{sWAVE}
    s_mul_i32 s{sXO}, s{sXO}, 28672
    v_lshrrev_b32 v4, 3, v0
    v_mul_u32_u24 v7, 896, v4
    v_lshrrev_b32 v5, 4, v0
    v_and_b32 v6, 7, v0
    v_xor_b32 v6, v5, v6
    v_lshl_add_u32 v{vX}, v6, 4, v7
    v_xor_b32 v6, 4, v6
    v_lshl_add_u32 v{vX+1}, v6, 4, v7
    s_cmp_eq_u32 s{sTYPE}, 1
    s_cselect_b32 s{sW}, s46, s52
    s_cselect_b32 s{sW+1}, s47, s53
    s_mov_b32 s{sTMP}, {W1B}
    s_cselect_b32 s{sW+2}, {WQKVB}, s{sTMP}
    s_and_b32 s{sW+1}, s{sW+1}, 0xffff
    s_mov_b32 s{sW+3}, 0x00020000
    s_mul_i32 s{sOB}, s{sT0}, s{sTS}
    s_lshl_b32 s{sTMP}, s{sWAVE}, 4
    s_mul_i32 s{sTMP}, s{sTMP}, s{sSTRIDE}
    s_add_u32 s{sOFF}, s{sOB}, s{sTMP}
    """)
    for d in range(3):
        p(f"""
        v_add_u32 v1, {64*d}, v0
        v_mul_u32_u24 v2, 5462, v1
        v_lshrrev_b32 v2, 16, v2
        v_mul_u32_u24 v3, 12, v2
        v_sub_u32 v1, v1, v3
        v_lshrrev_b32 v3, 2, v1
        v_and_b32 v1, 3, v1
        v_lshlrev_b32 v1, 4, v1
        v_mad_u32_u24 v1, v3, s{sTS}, v1
        v_mad_u32_u24 v{vOA3+d}, v2, s{sSTRIDE}, v1
        """)
    p(f"""
    v_mov_b32 v{vOB}, 0
    s_mov_b32 s{sLS}, 0
    s_mov_b32 s{sK}, -4
    s_lshl_b32 s{sTMP3}, s{sSTRIDE}, 6
    K1_LA:
    s_lshl_b32 s{sM0}, s{sWAVE}, 12
    s_add_u32 s{sM0}, s{sM0}, s{sLS}
    """)
    for g in range(4):
        p(f"s_add_u32 m0, s{sM0}, {WAB+1024*g}")
        p(f"s_add_u32 s{sTMP}, s{sXO}, {8*896*g}")
        p(f"buffer_load_dwordx4 v{vX+(g&1)}, s[{sX}:{sX+3}], s{sTMP} offen lds")
    p(f"""
    s_mul_i32 s{sM0}, s{sWAVE}, 3072
    s_add_u32 s{sM0}, s{sM0}, s{sLS}
    """)
    for d in range(3):
        p(f"s_add_u32 m0, s{sM0}, {1024*d}")
        p(f"buffer_load_dwordx4 v{vOA3+d}, s[{sW}:{sW+3}], s{sOFF} offen lds")
    p(f"""
    s_add_u32 s{sOFF}, s{sOFF}, s{sTMP3}
    s_add_u32 s{sXO}, s{sXO}, 128
    K1_LX:
    s_add_u32 s{sLS}, s{sLS}, {SLOT}
    s_cmp_eq_u32 s{sLS}, {5*SLOT}
    s_cselect_b32 s{sLS}, 0, s{sLS}
    s_add_u32 s{sK}, s{sK}, 1
    s_cmp_lt_i32 s{sK}, 0
    s_cbranch_scc1 K1_LA
    s_cmp_lg_u32 s{sK}, 0
    s_cbranch_scc1 K1_LC
    """)
    tr_lane(hLA, hLB, hLB + 1, 1, 2)
    p(f"""
    s_lshl_b32 s{sTMP}, s{sWAVE}, 6
    v_add_u32 v{hLA}, s{sTMP}, v{hLA}
    s_and_b32 s{sTMP}, s{sWAVE}, 1
    s_lshl_b32 s{sTMP}, s{sTMP}, 6
    v_xor_b32 v{hLB}, s{sTMP}, v{hLB}
    v_bfe_u32 v1, v0, 2, 1
    v_bfe_u32 v2, v0, 4, 1
    v_xor_b32 v1, v1, v2
    v_and_b32 v3, 3, v0
    v_lshlrev_b32 v3, 4, v3
    v_mad_u32_u24 v3, v1, s{sTS}, v3
    v_mad_u32_u24 v{vOB}, v4, s{sSTRIDE}, v3
    v_and_b32 v1, 15, v0
    v_mov_b32 v3, 0x3f803f80
    v_cmp_eq_u32 vcc, v1, v2
    v_cndmask_b32 v{ONE}, 0, v3, vcc
    v_mov_b32 v{ONE+1}, v{ONE}
    v_mov_b32 v{ONE+2}, v{ONE}
    v_mov_b32 v{ONE+3}, v{ONE}
    v_mov_b32 v{CS}, 0
    v_mov_b32 v{CS+1}, 0
    v_mov_b32 v{CS+2}, 0
    v_mov_b32 v{CS+3}, 0
    s_mov_b32 s{sCUR}, 0
    s_mul_i32 s{sTMP}, s{sTS}, 3
    s_add_u32 s{sOB}, s{sOB}, s{sTMP}
    s_mul_i32 s{sTMP}, s{sWAVE}, 56
    s_mul_i32 s{sTMP}, s{sTMP}, s{sSTRIDE}
    s_add_u32 s{sOB}, s{sOB}, s{sTMP}
    s_setprio 2
    s_branch K1_LW
    """)
    p.flush()
    p.tr = Tracker()
    M16 = "v_mfma_f32_16x16x32_bf16"

    def publish(tile_sreg):
        p(f"""
        s_lshl_b32 s{sTMP}, s{tile_sreg}, 8
        s_add_u32 s{sTMP}, s{sTMP}, {CFA}
        v_lshl_add_u32 v1, v0, 3, s{sTMP}
        """)
        for r in range(2):
            a, b2, c2 = F + 4 * r, F + 4 * r + 1, F + 4 * r + 2
            p(f"""
            v_and_b32 v{a}, 0xffff0000, v{CS+r}
            v_sub_f32 v{b2}, v{CS+r}, v{a}
            v_and_b32 v{c2}, 0xffff0000, v{b2}
            v_sub_f32 v{b2}, v{b2}, v{c2}
            v_lshrrev_b32 v{a}, 16, v{a}
            v_or_b32 v{a}, v{a}, v{c2}
            v_lshrrev_b32 v{b2}, 16, v{b2}
            """)
        p(f"""
        s_mov_b64 exec, 0xffff
        ds_write_b64 v1, {vr(F,2)}
        ds_write_b64 v1, {vr(F+4,2)} offset:128
        s_mov_b64 exec, -1
        v_mov_b32 v{CS}, 0
        v_mov_b32 v{CS+1}, 0
        s_waitcnt lgkmcnt(0)
        """)

    p(f"""
    K1_LC:
    s_cmp_gt_u32 s{sK}, 7
    s_cbranch_scc1 K1_LCB
    s_cmp_eq_u32 s{sWAVE}, 3
    s_cbranch_scc1 K1_LN
    v_add_u32 v1, s{sCUR}, v{hLA}
    """)
    for sp in range(4):
        p(f"ds_read_b64_tr_b16 {vr(F+4*sp,2)}, v1 offset:{16*192*sp}")
        p(f"ds_read_b64_tr_b16 {vr(F+4*sp+2,2)}, v1 offset:{16*192*sp+4*192}")
    for sp in range(4):
        p(f"{M16} {vr(CS,4)}, {vr(ONE,4)}, {vr(F+4*sp,4)}, {vr(CS,4)}")
    p(f"""
    s_cmp_lg_u32 s{sK}, 7
    s_cbranch_scc1 K1_LN
    s_mov_b32 s{sTMP2}, s{sWAVE}
    s_branch K1_LP
    """)
    p.flush()
    p.tr = Tracker()
    p(f"""
    K1_LCB:
    s_sub_u32 s{sTMP}, s{sK}, 8
    s_lshr_b32 s{sTMP}, s{sTMP}, 1
    s_lshr_b32 s{sTMP2}, s{sWAVE}, 1
    s_cmp_lg_u32 s{sTMP}, s{sTMP2}
    s_cbranch_scc1 K1_LN
    v_add_u32 v1, s{sCUR}, v{hLB}
    """)
    for sp in range(14):
        p(f"ds_read_b64_tr_b16 {vr(F+4*sp,2)}, v1 offset:{2048*sp}")
        p(f"ds_read_b64_tr_b16 {vr(F+4*sp+2,2)}, v1 offset:{2048*sp+512}")
        if sp >= 5:
            p(f"{M16} {vr(CS,4)}, {vr(ONE,4)}, {vr(F+4*(sp-5),4)}, {vr(CS,4)}")
    for sp in range(9, 14):
        p(f"{M16} {vr(CS,4)}, {vr(ONE,4)}, {vr(F+4*sp,4)}, {vr(CS,4)}")
    p(f"""
    s_and_b32 s{sTMP}, s{sK}, 1
    s_cmp_eq_u32 s{sTMP}, 0
    s_cbranch_scc1 K1_LN
    s_add_u32 s{sTMP2}, s{sWAVE}, 3
    K1_LP:
    s_nop 7
    """)
    publish(sTMP2)
    p(f"""
    K1_LN:
    s_add_u32 s{sCUR}, s{sCUR}, {SLOT}
    s_cmp_eq_u32 s{sCUR}, {5*SLOT}
    s_cselect_b32 s{sCUR}, 0, s{sCUR}
    K1_LW:
    s_cmp_lt_u32 s{sK}, 8
    s_cbranch_scc1 K1_W21
    s_cmp_eq_u32 s{sK}, 8
    s_cbranch_scc1 K1_W14
    s_cmp_eq_u32 s{sK}, 9
    s_cbranch_scc1 K1_W7
    s_waitcnt vmcnt(0)
    K1_W7:
    s_waitcnt vmcnt(7)
    K1_W14:
    s_waitcnt vmcnt(14)
    K1_W21:
    s_waitcnt vmcnt(21)
    s_barrier
    s_cmp_lt_u32 s{sK}, 3
    s_cbranch_scc1 K1_LA
    s_cmp_lt_u32 s{sK}, 7
    s_cbranch_scc1 K1_LB
    s_add_u32 s{sK}, s{sK}, 1
    s_cmp_lt_u32 s{sK}, 12
    s_cbranch_scc1 K1_LC
    """)
    if os.environ.get("CPF", "0") != "0":
        pass
    if STAMP:
        srd(p, sWS, 56, WS_BYTES)
    stamp_out(p, 1, 0, sWS, sWAVE, 5, 6, wave_add=4)
    p("s_endpgm")
    p(f"""
    K1_LB:
    s_mul_i32 s{sM0}, s{sWAVE}, 7168
    s_add_u32 s{sM0}, s{sM0}, s{sLS}
    s_lshl_b32 s{sTMP2}, s{sSTRIDE}, 3
    s_mov_b32 s{sTMP}, s{sOB}
    """)
    for d in range(7):
        p(f"s_add_u32 m0, s{sM0}, {1024*d}")
        p(f"buffer_load_dwordx4 v{vOB}, s[{sW}:{sW+3}], s{sTMP} offen lds")
        if d < 6:
            p(f"s_add_u32 s{sTMP}, s{sTMP}, s{sTMP2}")
    p(f"""
    s_mul_i32 s{sTMP}, s{sSTRIDE}, 224
    s_lshl_b32 s{sTMP2}, s{sTS}, 1
    s_sub_u32 s{sTMP2}, s{sTMP2}, s{sTMP}
    s_and_b32 s{sM0}, s{sK}, 1
    s_cmp_eq_u32 s{sM0}, 1
    s_cselect_b32 s{sTMP}, s{sTMP}, s{sTMP2}
    s_add_u32 s{sOB}, s{sOB}, s{sTMP}
    s_branch K1_LX
    """)
    p.flush()

    p.tr = Tracker()
    sW2, sWO, sC = 4, 8, sMT
    WOA = 128 * 896
    p("K1_TRANS:")
    stamp(p, 0)
    srd(p, sWS, 56, WS_BYTES)
    srd(p, sW2, 54, W2B)
    srd(p, sWO, 48, WOB)
    vL, vB2, vTW, vTO = 1, 2, 3, 4
    p(f"""
    v_lshlrev_b32 v{vL}, 4, v0
    s_mul_i32 s{sOFF}, s{sC}, {28*896}
    s_lshl_b32 s{sM0}, s{sWAVE}, 12
    s_add_u32 s{sOFF}, s{sOFF}, s{sM0}
    s_add_u32 m0, s{sM0}, {WOA}
    s_cmp_eq_u32 s{sWAVE}, 7
    s_cbranch_scc1 K1_TR1
    """)
    for d in range(4):
        p(f"buffer_load_dwordx4 v{vL}, s[{sWO}:{sWO+3}], s{sOFF} offen offset:{1024*d} lds")
    p(f"""
    K1_TR1:
    s_mul_i32 s{sOFF}, s{sC}, {128*896}
    s_mul_i32 s{sM0}, s{sWAVE}, {14*1024}
    s_add_u32 s{sOFF}, s{sOFF}, s{sM0}
    """)
    for d in range(14):
        if d % 4 == 0:
            p(f"s_add_u32 m0, s{sM0}, {1024*d}")
            p(f"s_add_u32 s{sTMP}, s{sOFF}, {1024*d}")
        p(f"buffer_load_dwordx4 v{vL}, s[{sW2}:{sW2+3}], s{sTMP} offen offset:{1024*(d%4)} lds")
    p(f"""
    v_lshrrev_b32 v{vB2}, 5, v0
    v_lshlrev_b32 v{vTW}, 2, v{vB2}
    v_bfe_u32 v{vB2}, v0, 2, 2
    v_add_u32 v{vTW}, v{vTW}, v{vB2}
    v_mul_u32_u24 v{vTW}, 896, v{vTW}
    v_bfe_u32 v{vB2}, v0, 4, 1
    v_lshl_add_u32 v{vTW}, v{vB2}, 5, v{vTW}
    v_and_b32 v{vB2}, 3, v0
    v_lshl_add_u32 v{vTW}, v{vB2}, 3, v{vTW}
    s_lshl_b32 s{sTMP}, s{sWAVE}, 7
    s_add_u32 s{sTMP}, s{sTMP}, {WOA}
    v_add_u32 v{vTO}, s{sTMP}, v{vTW}
    s_mul_i32 s{sTMP}, s{sWAVE}, {16*896}
    v_add_u32 v{vTW}, s{sTMP}, v{vTW}
    v_cmp_gt_u32 vcc, 32, v0
    s_waitcnt vmcnt(0)
    s_barrier
    s_cmp_eq_u32 s{sWAVE}, 7
    s_cbranch_scc1 K1_TR2
    """)
    G = 16
    for t in range(2):
        for i in range(2):
            b = G + 8 * t + 4 * i
            p(f"ds_read_b64_tr_b16 {vr(b,2)}, v{vTO} offset:{64*t+16*896*i}")
            p(f"ds_read_b64_tr_b16 {vr(b+2,2)}, v{vTO} offset:{64*t+16*896*i+8*896}")
    p(f"""
    s_lshl_b32 s{sOFF}, s{sWAVE}, 16
    s_lshl_b32 s{sTMP}, s{sC}, 11
    s_add_u32 s{sOFF}, s{sOFF}, s{sTMP}
    s_add_u32 s{sOFF}, s{sOFF}, {WOF}
    s_add_u32 s{sTMP}, s{sOFF}, 32768
    """)
    for t in range(2):
        p(f"v_cndmask_b32 v{G+8*t+6}, 0, v{G+8*t+6}, vcc")
        p(f"v_cndmask_b32 v{G+8*t+7}, 0, v{G+8*t+7}, vcc")
    for t in range(2):
        for i in range(2):
            p(f"buffer_store_dwordx4 {vr(G+8*t+4*i,4)}, v{vL}, s[{sWS}:{sWS+3}], s{sOFF if t == 0 else sTMP} offen offset:{1024*i} sc1")
    p.flush()
    p.tr = Tracker()
    p(f"""
    K1_TR2:
    s_cmp_lg_u32 s{sC}, 15
    s_cbranch_scc1 K1_TR4
    s_cmp_ge_u32 s{sWAVE}, 4
    s_cbranch_scc1 K1_TR3
    s_lshl_b32 s{sOFF}, s{sWAVE}, 10
    s_add_u32 s{sOFF}, s{sOFF}, {FLG}
    v_mov_b32 v8, 0
    v_mov_b32 v9, 0
    v_mov_b32 v10, 0
    v_mov_b32 v11, 0
    buffer_store_dwordx4 v[8:11], v{vL}, s[{sWS}:{sWS+3}], s{sOFF} offen sc1
    K1_TR4:
    s_cmp_ge_u32 s{sC}, 14
    s_cbranch_scc1 K1_TR3
    s_lshl_b32 s{sOFF}, s{sC}, 3
    s_add_u32 s{sOFF}, s{sOFF}, s{sWAVE}
    s_lshl_b32 s{sOFF}, s{sOFF}, 10
    s_add_u32 s{sOFF}, s{sOFF}, {W2F}
    """)
    F = 32
    for t in range(14):
        p(f"ds_read_b64_tr_b16 {vr(F+4*t,2)}, v{vTW} offset:{64*t}")
        p(f"ds_read_b64_tr_b16 {vr(F+4*t+2,2)}, v{vTW} offset:{64*t+8*896}")
    for t in range(14):
        p(f"buffer_store_dwordx4 {vr(F+4*t,4)}, v{vL}, s[{sWS}:{sWS+3}], s{sOFF} offen sc1")
        if t < 13:
            p(f"s_add_u32 s{sOFF}, s{sOFF}, 114688")
    p("K1_TR3:")
    stamp_out(p, 1, 0, sWS, sWAVE, 5, 6)
    p("K1_END:")
    p("s_endpgm")
    return head("k1_kernel") + p.text() + KD.format(name="k1_kernel", nv=256, ns=100 if STAMP or DBG or os.environ.get('SPIN') else 64, acc=256)


K2_LDS = 96 * 1024
K2_ACC = 112
REF_OFF = 90.0
L_LIMIT = 2.0 ** 50


def gen_k2():
    p = Prog()
    stamp.k = 1
    sWS, sG, sX = 4, 8, 32
    sWAVE, sHEAD, sQB, sTMP, sTMP2, sKV, sKV2, sHO, sWO_, sCNT, sMB, sNP, sKH, sTMP3 = range(12, 26)
    vL16 = 1
    p(f"""
    s_cmp_ge_u32 s2, 256
    s_cbranch_scc1 K2_END
    s_load_dwordx2 s[28:29], s[0:1], 64
    s_load_dwordx2 s[30:31], s[0:1], 0
    v_lshrrev_b32 v1, 6, v0
    v_and_b32 v0, 63, v0
    v_readfirstlane_b32 s{sWAVE}, v1
    s_and_b32 s{sTMP}, s2, 7
    s_lshr_b32 s{sTMP2}, s2, 3
    v_lshlrev_b32 v{vL16}, 4, v0
    s_cmp_ge_u32 s{sWAVE}, 4
    s_cbranch_scc1 K2_GEMM
    s_setprio 2
    s_lshl_b32 s{sHEAD}, s{sTMP}, 1
    s_and_b32 s{sTMP}, s{sTMP2}, 1
    s_add_u32 s{sHEAD}, s{sHEAD}, s{sTMP}
    s_lshr_b32 s{sQB}, s{sTMP2}, 1
    s_lshl_b32 s{sTMP}, s{sHEAD}, 6
    s_lshl_b32 s{sTMP2}, s{sQB}, 2
    s_add_u32 s{sTMP}, s{sTMP}, s{sTMP2}
    s_lshl_b32 s{sKV}, s{sHEAD}, 18
    s_add_u32 s{sKV}, s{sKV}, {KVF}
    s_mov_b32 s{sTMP3}, s{sKV}
    s_waitcnt lgkmcnt(0)
    """)
    stamp(p, 0)
    srd(p, sWS, 28, WS_BYTES)
    S = [8, 24]
    P = [40, 48]
    O0 = 56
    T = 72
    Q = 0
    OA = 32
    KV = [80, 96]

    def Oacc(u):
        return vr(O0, 16) if u == 0 else ar(OA + 16 * (u - 1), 16)

    KR = T + 24
    p(f"""
    buffer_load_dwordx4 {vr(KR,4)}, v{vL16}, s[{sWS}:{sWS+3}], s{sKV} offen
    buffer_load_dwordx4 {vr(KR+4,4)}, v{vL16}, s[{sWS}:{sWS+3}], s{sKV} offen offset:1024
    """)
    for u in range(4):
        p(f"""
        s_xor_b32 s{sTMP2}, s{sWAVE}, {u}
        s_add_u32 s{sTMP2}, s{sTMP2}, s{sTMP}
        s_lshl_b32 s{sTMP2}, s{sTMP2}, 11
        buffer_load_dwordx4 {ar(Q+8*u,4)}, v{vL16}, s[{sWS}:{sWS+3}], s{sTMP2} offen
        buffer_load_dwordx4 {ar(Q+8*u+4,4)}, v{vL16}, s[{sWS}:{sWS+3}], s{sTMP2} offen offset:1024
        """)
    p(f"""
    s_lshl_b32 s{sTMP}, s{sWAVE}, 16
    s_add_u32 s{sKV}, s{sKV}, s{sTMP}
    s_add_u32 s{sKV2}, s{sKV}, 4096
    """)
    for j in range(4):
        p(f"buffer_load_dwordx4 {ar(KV[0]+4*j,4)}, v{vL16}, s[{sWS}:{sWS+3}], s{sKV} offen offset:{1024*j}")
    for j in range(2):
        p(f"buffer_load_dwordx4 {ar(KV[1]+4*j,4)}, v{vL16}, s[{sWS}:{sWS+3}], s{sKV2} offen offset:{1024*j}")
    for i in range(48):
        p(f"v_accvgpr_write_b32 a{OA+i}, 0")
    for i in range(8):
        p(f"v_accvgpr_write_b32 a{KV[1]+8+i}, 0")
    for i in range(16):
        p(f"v_mov_b32 v{O0+i}, 0")
    for i in range(8):
        p(f"v_mov_b32 v{P[1]+i}, 0")
    vA1, vA2, vA3, vRA = 2, 3, 4, 5
    vAs = [None, vA1, vA2, vA3]
    for u in range(1, 4):
        p(f"""
        s_xor_b32 s{sTMP}, s{sWAVE}, {u}
        s_mul_i32 s{sTMP}, s{sTMP}, 3
        s_add_u32 s{sTMP}, s{sTMP}, {u-1}
        s_lshl_b32 s{sTMP}, s{sTMP}, 12
        v_add_u32 v{vAs[u]}, s{sTMP}, v{vL16}
        """)
    p(f"""
    s_mul_i32 s{sTMP}, s{sWAVE}, {3*4096}
    v_add_u32 v{vRA}, s{sTMP}, v{vL16}
    s_mov_b32 s{sCNT}, 8
    """)
    stamp(p, 1)

    def rowmax(m, d, first=True):
        if first:
            p(f"v_max3_f32 v{m}, v{d}, v{d+1}, v{d+2}")
            for r in range(3, 15, 2):
                p(f"v_max3_f32 v{m}, v{m}, v{d+r}, v{d+r+1}")
            p(f"v_max_f32 v{m}, v{m}, v{d+15}")
        else:
            for r in range(0, 16, 2):
                p(f"v_max3_f32 v{m}, v{m}, v{d+r}, v{d+r+1}")

    def put_ref(units, add):
        for u in units:
            m, m2 = T + u, T + 4 + u
            p(f"v_mov_b32 v{m2}, v{m}")
        for u in units:
            m, m2 = T + u, T + 4 + u
            p(f"v_permlane32_swap_b32 v{m}, v{m2}")
        for u in units:
            m, m2 = T + u, T + 4 + u
            a, b, c = T + 8 + 4 * u, T + 9 + 4 * u, T + 10 + 4 * u
            p(f"""
            v_max_f32 v{m}, v{m}, v{m2}
            v_sub_f32 v{a}, {f32bits(-add):#x}, v{m}
            v_and_b32 v{b}, 0xffff0000, v{a}
            v_sub_f32 v{a}, v{a}, v{b}
            v_and_b32 v{c}, 0xffff0000, v{a}
            v_sub_f32 v{a}, v{a}, v{c}
            v_lshrrev_b32 v{b}, 16, v{b}
            v_or_b32 v{b}, v{b}, v{c}
            v_lshrrev_b32 v{a}, 16, v{a}
            """)
        p("s_mov_b32 exec_lo, 0")
        for u in units:
            a, b = T + 8 + 4 * u, T + 9 + 4 * u
            p(f"v_accvgpr_write_b32 a{Q+8*u+6}, v{b}")
            p(f"v_accvgpr_write_b32 a{Q+8*u+7}, v{a}")
        p("s_mov_b32 exec_lo, -1")

    for u in range(4):
        d = S[u % 2]
        p(f"{MF} {vr(d,16)}, {vr(KR,4)}, {ar(Q+8*u,4)}, 0")
        p(f"{MF} {vr(d,16)}, {vr(KR+4,4)}, {ar(Q+8*u+4,4)}, {vr(d,16)}")
        if u % 2 == 1:
            for uu in (u - 1, u):
                rowmax(T + uu, S[uu % 2])
    put_ref(range(4), REF_OFF)

    def qk(n_u, kb, sbuf):
        k = KV[kb]
        return [I(f"{MF} {vr(S[sbuf],16)}, {ar(k,4)}, {ar(Q+8*n_u,4)}, 0"),
                I(f"{MF} {vr(S[sbuf],16)}, {ar(k+4,4)}, {ar(Q+8*n_u+4,4)}, {vr(S[sbuf],16)}")]

    def pv(u, vb, pbuf):
        v = KV[vb] + 8
        return [I(f"{MF} {Oacc(u)}, {ar(v,4)}, {vr(P[pbuf],4)}, {Oacc(u)}"),
                I(f"{MF} {Oacc(u)}, {ar(v+4,4)}, {vr(P[pbuf]+4,4)}, {Oacc(u)}")]

    def softmax(sb):
        s, pp = S[sb], P[sb]
        v = []
        for i in range(8):
            v.append(I(f"v_exp_f32 v{s+2*i}, v{s+2*i}"))
            v.append(I(f"v_exp_f32 v{s+2*i+1}, v{s+2*i+1}"))
            if i >= 1:
                v.append(I(f"v_cvt_pk_bf16_f32 v{pp+i-1}, v{s+2*i-2}, v{s+2*i-1}"))
        v.append(I(f"v_cvt_pk_bf16_f32 v{pp+7}, v{s+14}, v{s+15}"))
        return v

    def cost(i):
        return 8 if i.is_trans() else 4

    def slot(tb, u):
        nu = (u + 1) & 3
        pu = (u - 1) & 3
        mf = qk(nu, tb if u < 3 else 1 - tb, (u + 1) & 1) + pv(pu, tb if u > 0 else 1 - tb, (u - 1) & 1)
        ld = []
        if u == 0:
            so = sKV2 if tb == 0 else sKV
            ld += [I(f"buffer_load_dwordx4 {ar(KV[1-tb]+8+4*j,4)}, v{vL16}, s[{sWS}:{sWS+3}], s{so} offen offset:{2048+1024*j}") for j in range(2)]
        if u == 2:
            so = sKV if tb == 0 else sKV2
            ld += [I(f"buffer_load_dwordx4 {ar(KV[tb]+4*j,4)}, v{vL16}, s[{sWS}:{sWS+3}], s{so} offen offset:{1024*j}") for j in range(2)]
        va = softmax(u & 1)
        total = sum(cost(i) for i in va)
        out = []
        k = 0
        acc = 0
        for j, m in enumerate(mf):
            out.append(m)
            tgt = total * (j + 1) / len(mf)
            while k < len(va) and acc + cost(va[k]) / 2 <= tgt:
                out.append(va[k]); acc += cost(va[k]); k += 1
        out += va[k:]
        idx = max(i for i, x in enumerate(out) if x.kind == "mfma")
        if ld:
            out = out[:idx + 1] + interleave(out[idx + 1:], ld)
        return out

    stamp(p, 2)
    p.add(qk(0, 0, 0))
    p("s_nop 11")
    body = [I(".p2align 6"), I("K2_LOOP:")]
    for tb in range(2):
        for u in range(4):
            if u == 1:
                so = sKV if tb == 0 else sKV2
                body.append(I(f"s_add_u32 s{so}, s{so}, 8192"))
            if tb == 1 and u == 3:
                body.append(I(f"s_sub_u32 s{sCNT}, s{sCNT}, 1"))
                body.append(I(f"s_cmp_lg_u32 s{sCNT}, 0"))
            body += slot(tb, u)
    body += [I("s_cbranch_scc1 K2_LOOP")]
    p.loop(body)
    stamp(p, 3)
    p.add(pv(3, 1, 1))
    for u in range(1, 4):
        for q in range(4):
            p(f"ds_write_b128 v{vAs[u]}, {ar(OA+16*(u-1)+4*q,4)} offset:{1024*q}")
    p(f"""
    s_lshl_b32 s{sTMP}, s{sQB}, 2
    s_add_u32 s{sTMP}, s{sTMP}, s{sWAVE}
    s_lshl_b32 s{sTMP}, s{sTMP}, 15
    s_lshl_b32 s{sTMP2}, s{sHEAD}, 11
    s_add_u32 s{sTMP}, s{sTMP}, s{sTMP2}
    s_add_u32 s{sTMP}, s{sTMP}, {OF}
    s_waitcnt lgkmcnt(0)
    """)
    stamp(p, 4)
    p("s_barrier")
    stamp(p, 5)
    R = 8
    for i in range(3):
        for q in range(4):
            p(f"ds_read_b128 {vr(R+16*i+4*q,4)}, v{vRA} offset:{4096*i+1024*q}")
    for i in range(3):
        for r in range(0, 16, 2):
            p(f"v_pk_add_f32 {vr(O0+r,2)}, {vr(O0+r,2)}, {vr(R+16*i+r,2)}")
    p("K2_NORM:")
    l, l2, ri, mx = T + 32, T + 33, T + 34, T + 36
    p(f"""
    v_mov_b32 v{l}, v{O0+12}
    v_mov_b32 v{l2}, v{O0+12}
    v_permlane32_swap_b32 v{l}, v{l2}
    v_rcp_f32 v{ri}, v{l2}
    """)
    for r in range(0, 16, 2):
        p(f"v_pk_mul_f32 {vr(O0+r,2)}, {vr(O0+r,2)}, {vr(ri,2)} op_sel_hi:[1,0]")
    for i in range(8):
        p(f"v_cvt_pk_bf16_f32 v{R+i}, v{O0+2*i}, v{O0+2*i+1}")
    for r in range(0, 16, 2):
        p(f"v_pk_add_f32 {vr(O0+r,2)}, {vr(O0+r,2)}, {vr(O0+r,2)} neg_lo:[0,1] neg_hi:[0,1]")
    for r in (8, 4, 2):
        for k in range(0, r, 2):
            p(f"v_pk_add_f32 {vr(O0+k,2)}, {vr(O0+k,2)}, {vr(O0+r+k,2)}")
    p(f"""
    v_add_f32 v{mx}, v{O0}, v{O0+1}
    v_add_f32 v{mx}, v{mx}, v{l2}
    v_cmp_ngt_f32 vcc, {f32bits(L_LIMIT):#x}, v{mx}
    s_cmp_eq_u32 s{sCNT}, 0
    s_cselect_b64 vcc, vcc, 0
    s_cbranch_vccnz K2_SLOW
    buffer_store_dwordx4 {vr(R,4)}, v{vL16}, s[{sWS}:{sWS+3}], s{sTMP} offen sc1
    buffer_store_dwordx4 {vr(R+4,4)}, v{vL16}, s[{sWS}:{sWS+3}], s{sTMP} offen offset:1024 sc1
    s_lshl_b32 s{sTMP}, s{sQB}, 2
    s_add_u32 s{sTMP}, s{sTMP}, s{sWAVE}
    s_lshl_b32 s{sTMP}, s{sTMP}, 4
    s_add_u32 s{sTMP}, s{sTMP}, s{sHEAD}
    s_lshl_b32 s{sTMP}, s{sTMP}, 2
    s_add_u32 s{sTMP}, s{sTMP}, {FLG}
    v_mov_b32 v{l}, 1
    s_mov_b64 exec, 1
    s_waitcnt vmcnt(0)
    buffer_store_dword v{l}, v{vL16}, s[{sWS}:{sWS+3}], s{sTMP} offen sc1
    s_mov_b64 exec, -1
    """)
    stamp_out(p, 6, 1, sWS, sWAVE, 2, 3)
    p("s_endpgm")
    p.flush()
    p.tr = Tracker()
    p(f"""
    K2_SLOW:
    s_waitcnt vmcnt(0) lgkmcnt(0)
    s_mov_b32 exec_lo, 0
    v_accvgpr_write_b32 a{Q+6}, 0
    v_accvgpr_write_b32 a{Q+7}, 0
    s_mov_b32 exec_lo, -1
    v_mov_b32 v{T}, 0xff800000
    s_mov_b32 s{sKV}, s{sTMP3}
    s_mov_b32 s{sCNT}, 64
    """)
    body = [I("K2_S1:")]
    body += [I(f"buffer_load_dwordx4 {ar(KV[0]+4*j,4)}, v{vL16}, s[{sWS}:{sWS+3}], s{sKV} offen offset:{1024*j}") for j in range(2)]
    body += qk(0, 0, 0)
    body += [I(f"v_max3_f32 v{T}, v{T}, v{S[0]+r}, v{S[0]+r+1}") for r in range(0, 16, 2)]
    body += [I(f"s_add_u32 s{sKV}, s{sKV}, 4096"), I(f"s_sub_u32 s{sCNT}, s{sCNT}, 1"), I(f"s_cmp_lg_u32 s{sCNT}, 0"), I("s_cbranch_scc1 K2_S1")]
    p.loop(body)
    put_ref([0], 0.0)
    for i in range(16):
        p(f"v_mov_b32 v{O0+i}, 0")
    p(f"""
    s_mov_b32 s{sKV}, s{sTMP3}
    s_mov_b32 s{sCNT}, 64
    """)
    body = [I("K2_S2:")]
    body += [I(f"buffer_load_dwordx4 {ar(KV[0]+4*j,4)}, v{vL16}, s[{sWS}:{sWS+3}], s{sKV} offen offset:{1024*j}") for j in range(4)]
    body += qk(0, 0, 0) + softmax(0) + pv(0, 0, 0)
    body += [I(f"s_add_u32 s{sKV}, s{sKV}, 4096"), I(f"s_sub_u32 s{sCNT}, s{sCNT}, 1"), I(f"s_cmp_lg_u32 s{sCNT}, 0"), I("s_cbranch_scc1 K2_S2")]
    p.loop(body)
    p(f"""
    s_mov_b32 s{sCNT}, 1
    s_nop 7
    s_nop 7
    s_branch K2_NORM
    """)
    p.flush()

    p.tr = Tracker()
    sOUT = 36
    sA0, sA1, sB0, sB1, sMT, sNT, sMP = sKV, sKV2, sHO, sWO_, sMB, sKH, sHEAD
    AC0 = 8
    Gv = [24, 40, 56, 72, 88]
    Ga = [112, 128]
    WO = 48
    XR = 104
    NBUF = 7

    def Gbuf(b, off, n):
        return vr(Gv[b] + off, n) if b < 5 else ar(Ga[b - 5] + off, n)

    def Gacc(u):
        return vr(AC0, 16) if u == 0 else ar(16 * (u - 1), 16)

    vXO, vA1, vA2, vA3, vRA, vF = 2, 3, 4, 5, 6, 7
    p(f"""
    K2_GEMM:
    s_sub_u32 s{sWAVE}, s{sWAVE}, 4
    s_lshr_b32 s{sNP}, s{sTMP2}, 2
    s_cmp_ge_u32 s{sNP}, 7
    s_cbranch_scc1 K2_END
    s_load_dwordx2 s[40:41], s[0:1], 48
    s_lshl_b32 s{sMP}, s{sTMP}, 2
    s_and_b32 s{sTMP}, s{sTMP2}, 3
    s_add_u32 s{sMP}, s{sMP}, s{sTMP}
    s_lshr_b32 s{sTMP}, s{sWAVE}, 1
    s_lshl_b32 s{sMT}, s{sMP}, 1
    s_add_u32 s{sMT}, s{sMT}, s{sTMP}
    s_and_b32 s{sTMP}, s{sWAVE}, 1
    s_lshl_b32 s{sNT}, s{sNP}, 1
    s_add_u32 s{sNT}, s{sNT}, s{sTMP}
    s_mul_i32 s{sTMP}, s{sWAVE}, {28*1024}
    s_mul_i32 s{sA0}, s{sNT}, 114688
    s_xor_b32 s{sTMP2}, s{sNT}, 1
    s_mul_i32 s{sA1}, s{sTMP2}, 114688
    s_mul_i32 s{sB0}, s{sMT}, 114688
    s_xor_b32 s{sTMP2}, s{sMT}, 1
    s_mul_i32 s{sB1}, s{sTMP2}, 114688
    s_add_u32 s{sTMP2}, s{sTMP}, {W2F}
    s_add_u32 s{sA0}, s{sA0}, s{sTMP2}
    s_add_u32 s{sA1}, s{sA1}, s{sTMP2}
    s_add_u32 s{sTMP2}, s{sTMP}, {HF}
    s_add_u32 s{sB0}, s{sB0}, s{sTMP2}
    s_add_u32 s{sB1}, s{sB1}, s{sTMP2}
    s_waitcnt lgkmcnt(0)
    """)
    stamp(p, 0)
    srd(p, sWS, 28, WS_BYTES)
    so = [sA0, sA1, sB0, sB1]

    def gload(k):
        b = k % NBUF
        o = [I(f"buffer_load_dwordx4 {Gbuf(b,4*j,4)}, v{vL16}, s[{sWS}:{sWS+3}], s{so[j]} offen offset:{1024*(b%4)}") for j in range(4)]
        if b == 3 or b == 6:
            o += [I(f"s_add_u32 s{r}, s{r}, {4096 if b == 3 else 3072}") for r in so]
        return o

    def gmm(b):
        return [I(f"{MF} {Gacc(u)}, {Gbuf(b,4*(u&1),4)}, {Gbuf(b,8+4*(u>>1),4)}, {Gacc(u)}") for u in (1, 2, 3, 0)]

    for k in range(NBUF):
        p.add(gload(k))
    for i in range(48):
        p(f"v_accvgpr_write_b32 a{i}, 0")
    for i in range(16):
        p(f"v_mov_b32 v{AC0+i}, 0")
    p(f"s_mov_b32 s{sCNT}, 3")
    body = [I("K2_GL:")]
    for b in range(NBUF):
        body += gmm(b) + gload(b)
    body += [I(f"s_sub_u32 s{sCNT}, s{sCNT}, 1"), I(f"s_cmp_lg_u32 s{sCNT}, 0"), I("s_cbranch_scc1 K2_GL")]
    p.loop(body)
    p(f"""
    s_lshl_b32 s{sTMP}, s{sWAVE}, 13
    s_lshl_b32 s{sA0}, s{sNT}, 15
    s_add_u32 s{sA0}, s{sA0}, s{sTMP}
    s_add_u32 s{sA0}, s{sA0}, {WOF}
    s_xor_b32 s{sA1}, s{sA0}, 0x8000
    s_lshl_b32 s{sB0}, s{sMT}, 15
    s_add_u32 s{sB0}, s{sB0}, s{sTMP}
    s_add_u32 s{sB0}, s{sB0}, {OF}
    s_xor_b32 s{sB1}, s{sB0}, 0x8000
    """)
    srd(p, sX, 30, XB)
    srd(p, sOUT, 40, XB)
    wl = []
    for s in range(8):
        if s == 4:
            wl += [I(f"s_add_u32 s{r}, s{r}, 4096") for r in (sA0, sA1)]
        for j in range(2):
            wl.append(I(f"buffer_load_dwordx4 {ar(WO+8*s+4*j,4)}, v{vL16}, s[{sWS}:{sWS+3}], s{so[j]} offen offset:{1024*(s%4)}"))
    last = []
    for b in range(NBUF):
        last += gmm(b)
    p.add(interleave(last, wl))
    stamp(p, 1)
    p(f"""
    v_and_b32 v{vF}, 31, v0
    v_mul_u32_u24 v{vF}, 896, v{vF}
    v_lshrrev_b32 v{vRA}, 5, v0
    v_lshl_add_u32 v{vXO}, v{vRA}, 3, v{vF}
    s_mul_i32 s{sTMP3}, s{sMT}, 28672
    s_lshl_b32 s{sTMP2}, s{sNT}, 6
    s_add_u32 s{sTMP3}, s{sTMP3}, s{sTMP2}
    """)
    for q in range(4):
        p(f"buffer_load_dwordx2 {vr(XR+2*q,2)}, v{vXO}, s[{sX}:{sX+3}], s{sTMP3} offen offset:{16*q}")
    p(f"v_lshl_add_u32 v{vXO}, v{vRA}, 4, v{vF}")
    vAs = [None, vA1, vA2, vA3]
    for u in range(1, 4):
        p(f"""
        s_xor_b32 s{sTMP2}, s{sWAVE}, {u}
        s_mul_i32 s{sTMP2}, s{sTMP2}, 3
        s_add_u32 s{sTMP2}, s{sTMP2}, {u-1+12}
        s_lshl_b32 s{sTMP2}, s{sTMP2}, 12
        v_add_u32 v{vAs[u]}, s{sTMP2}, v{vL16}
        """)
    UN = Gv[4]
    p(f"""
    s_mul_i32 s{sTMP2}, s{sWAVE}, {3*4096}
    s_add_u32 s{sTMP2}, s{sTMP2}, {48*1024}
    v_add_u32 v{vRA}, s{sTMP2}, v{vL16}
    v_and_b32 v{vF}, 31, v0
    v_lshlrev_b32 v{vF}, 2, v{vF}
    s_lshl_b32 s{sTMP}, s{sMP}, 7
    s_add_u32 s{sTMP}, s{sTMP}, {FLG}
    """)
    for i in range(8):
        p(f"v_lshlrev_b32 v{UN+2*i}, 16, v{XR+i}")
        p(f"v_and_b32 v{UN+2*i+1}, 0xffff0000, v{XR+i}")
    for r in range(16):
        p(f"v_add_f32 v{AC0+r}, v{AC0+r}, v{UN+r}")
    p(f"""
    s_mov_b32 s{sCNT}, 0x40000
    s_waitcnt vmcnt(0)
    """)
    stamp(p, 2)
    p("s_barrier")
    stamp(p, 3)
    p.flush()
    p(f"""
    s_cmp_lg_u32 s{sWAVE}, 0
    s_cbranch_scc1 K2_GO
    s_sleep {os.environ.get("SL0", "16")}
    K2_POLL:
    s_sleep {os.environ.get("SL1", "4")}
    buffer_load_dword v{XR}, v{vF}, s[{sWS}:{sWS+3}], s{sTMP} offen sc1
    s_sub_u32 s{sCNT}, s{sCNT}, 1
    s_cmp_eq_u32 s{sCNT}, 0
    s_cbranch_scc1 K2_GO
    s_waitcnt vmcnt(0)
    v_cmp_ne_u32 vcc, 1, v{XR}
    s_nop 1
    s_cbranch_vccnz K2_POLL
    K2_GO:
    s_barrier
    """)
    stamp(p, 4)
    OFv = Gv[0]
    for s in range(8):
        if s == 4:
            for r in (sB0, sB1):
                p(f"s_add_u32 s{r}, s{r}, 4096")
        for j in range(2):
            p(f"buffer_load_dwordx4 {vr(OFv+8*s+4*j,4)}, v{vL16}, s[{sWS}:{sWS+3}], s{so[2+j]} offen offset:{1024*(s%4)} sc1")
    for s in range(8):
        for u in (1, 2, 3, 0):
            p(f"{MF} {Gacc(u)}, {ar(WO+8*s+4*(u&1),4)}, {vr(OFv+8*s+4*(u>>1),4)}, {Gacc(u)}")
    stamp(p, 5)
    for u in range(1, 4):
        for q in range(4):
            p(f"ds_write_b128 v{vAs[u]}, {ar(16*(u-1)+4*q,4)} offset:{1024*q}")
    p("s_waitcnt lgkmcnt(0)")
    p("s_barrier")
    R = Gv[0]
    for i in range(3):
        for q in range(4):
            p(f"ds_read_b128 {vr(R+16*i+4*q,4)}, v{vRA} offset:{4096*i+1024*q}")
    for i in range(3):
        for r in range(0, 16, 2):
            p(f"v_pk_add_f32 {vr(AC0+r,2)}, {vr(AC0+r,2)}, {vr(R+16*i+r,2)}")
    PK = XR
    for i in range(8):
        p(f"v_cvt_pk_bf16_f32 v{PK+i}, v{AC0+2*i}, v{AC0+2*i+1}")
    for qq in range(2):
        p(f"v_permlane32_swap_b32 v{PK+4*qq}, v{PK+4*qq+2}")
        p(f"v_permlane32_swap_b32 v{PK+4*qq+1}, v{PK+4*qq+3}")
    for qq in range(2):
        p(f"buffer_store_dwordx4 {vr(PK+4*qq,4)}, v{vXO}, s[{sOUT}:{sOUT+3}], s{sTMP3} offen offset:{32*qq}")
    stamp_out(p, 6, 1, sWS, sWAVE, 2, 3, wave_add=4)
    p("K2_END:")
    p("s_endpgm")
    return head("k2_kernel") + p.text() + KD.format(name="k2_kernel", nv=256, ns=100 if STAMP or DBG or os.environ.get('SPIN') else 48, acc=K2_ACC)


K3_LDS = 48 * 1024


def gen_k3():
    p = Prog()
    stamp.k = 2
    sWS, sOUT = 4, 12
    sWAVE, sMP, sNP, sTMP, sTMP2, sA0, sA1, sB0, sB1, sMT, sNT = range(16, 27)
    F = 16
    ACC = 144
    BPv = 208
    UN = 224
    vL16, vXO, vT0, vT1, vA1, vA2, vA3, vRA = 1, 2, 3, 4, 5, 6, 7, 8
    p(f"""
    s_cmp_ge_u32 s2, 224
    s_cbranch_scc1 K3_END
    s_load_dwordx2 s[30:31], s[0:1], 48
    s_load_dwordx2 s[32:33], s[0:1], 64
    v_lshrrev_b32 v1, 6, v0
    v_and_b32 v0, 63, v0
    v_readfirstlane_b32 s{sWAVE}, v1
    s_and_b32 s{sTMP}, s2, 7
    s_lshr_b32 s{sTMP2}, s2, 3
    s_lshl_b32 s{sMP}, s{sTMP}, 2
    s_and_b32 s{sTMP}, s{sTMP2}, 3
    s_add_u32 s{sMP}, s{sMP}, s{sTMP}
    s_lshr_b32 s{sNP}, s{sTMP2}, 2
    v_lshlrev_b32 v{vL16}, 4, v0
    s_lshr_b32 s{sTMP}, s{sWAVE}, 1
    s_lshl_b32 s{sMT}, s{sMP}, 1
    s_add_u32 s{sMT}, s{sMT}, s{sTMP}
    s_and_b32 s{sTMP}, s{sWAVE}, 1
    s_lshl_b32 s{sNT}, s{sNP}, 1
    s_add_u32 s{sNT}, s{sNT}, s{sTMP}
    s_lshl_b32 s{sTMP}, s{sWAVE}, 13
    s_lshl_b32 s{sA0}, s{sNT}, 15
    s_add_u32 s{sA0}, s{sA0}, s{sTMP}
    s_add_u32 s{sA0}, s{sA0}, {WOF}
    s_xor_b32 s{sA1}, s{sA0}, 0x8000
    s_lshl_b32 s{sB0}, s{sMT}, 15
    s_add_u32 s{sB0}, s{sB0}, s{sTMP}
    s_add_u32 s{sB0}, s{sB0}, {OF}
    s_xor_b32 s{sB1}, s{sB0}, 0x8000
    s_mul_i32 s{sTMP}, s{sMT}, 14
    s_add_u32 s{sTMP}, s{sTMP}, s{sNT}
    s_lshl_b32 s{sTMP}, s{sTMP}, 11
    s_add_u32 s{sTMP}, s{sTMP}, {BP}
    s_add_u32 s{sTMP2}, s{sTMP}, {64*14*2048}
    s_waitcnt lgkmcnt(0)
    """)
    stamp(p, 0)
    srd(p, sWS, 32, WS_BYTES)
    so = [sA0, sA1, sB0, sB1]
    for s in range(8):
        if s == 4:
            for r in so:
                p(f"s_add_u32 s{r}, s{r}, 4096")
        for j in range(4):
            p(f"buffer_load_dwordx4 {vr(F+16*s+4*j,4)}, v{vL16}, s[{sWS}:{sWS+3}], s{so[j]} offen offset:{1024*(s%4)}")
    for h in range(2):
        for q in range(2):
            p(f"buffer_load_dwordx4 {vr(BPv+8*h+4*q,4)}, v{vL16}, s[{sWS}:{sWS+3}], s{sTMP if h==0 else sTMP2} offen offset:{1024*q}")
    srd(p, sOUT, 30, XB)
    p(f"""
    v_and_b32 v{vT0}, 31, v0
    v_mul_u32_u24 v{vT0}, 896, v{vT0}
    v_lshrrev_b32 v{vT1}, 5, v0
    v_lshl_add_u32 v{vXO}, v{vT1}, 4, v{vT0}
    s_mul_i32 s{sTMP}, s{sMT}, 28672
    s_lshl_b32 s{sTMP2}, s{sNT}, 6
    s_add_u32 s{sTMP}, s{sTMP}, s{sTMP2}
    """)
    vAs = [None, vA1, vA2, vA3]
    for u in range(1, 4):
        p(f"""
        s_xor_b32 s{sTMP2}, s{sWAVE}, {u}
        s_mul_i32 s{sTMP2}, s{sTMP2}, 3
        s_add_u32 s{sTMP2}, s{sTMP2}, {u-1}
        s_lshl_b32 s{sTMP2}, s{sTMP2}, 12
        v_add_u32 v{vAs[u]}, s{sTMP2}, v{vL16}
        """)
    p(f"""
    s_mul_i32 s{sTMP2}, s{sWAVE}, {3*4096}
    v_add_u32 v{vRA}, s{sTMP2}, v{vL16}
    """)
    stamp(p, 1)
    for s in range(8):
        for u in (1, 2, 3, 0):
            a, b = u & 1, u >> 1
            acc = vr(ACC + 16 * u, 16)
            p(f"{MF} {acc}, {vr(F+16*s+4*a,4)}, {vr(F+16*s+8+4*b,4)}, {'0' if s == 0 else acc}")
    stamp(p, 2)
    for u in range(1, 4):
        for q in range(4):
            p(f"ds_write_b128 v{vAs[u]}, {vr(ACC+16*u+4*q,4)} offset:{1024*q}")
    for i in range(16):
        p(f"v_lshlrev_b32 v{UN+2*i}, 16, v{BPv+i}")
        p(f"v_and_b32 v{UN+2*i+1}, 0xffff0000, v{BPv+i}")
    for r in range(0, 16, 2):
        p(f"v_pk_add_f32 {vr(UN+r,2)}, {vr(UN+r,2)}, {vr(UN+16+r,2)}")
    for r in range(0, 16, 2):
        p(f"v_pk_add_f32 {vr(ACC+r,2)}, {vr(ACC+r,2)}, {vr(UN+r,2)}")
    p("s_waitcnt lgkmcnt(0)")
    p("s_barrier")
    stamp(p, 3)
    R = F
    for i in range(3):
        for q in range(4):
            p(f"ds_read_b128 {vr(R+16*i+4*q,4)}, v{vRA} offset:{4096*i+1024*q}")
    for i in range(3):
        for r in range(0, 16, 2):
            p(f"v_pk_add_f32 {vr(ACC+r,2)}, {vr(ACC+r,2)}, {vr(R+16*i+r,2)}")
    PK = BPv
    for i in range(8):
        p(f"v_cvt_pk_bf16_f32 v{PK+i}, v{ACC+2*i}, v{ACC+2*i+1}")
    for qq in range(2):
        p(f"v_permlane32_swap_b32 v{PK+4*qq}, v{PK+4*qq+2}")
        p(f"v_permlane32_swap_b32 v{PK+4*qq+1}, v{PK+4*qq+3}")
    for qq in range(2):
        p(f"buffer_store_dwordx4 {vr(PK+4*qq,4)}, v{vXO}, s[{sOUT}:{sOUT+3}], s{sTMP} offen offset:{32*qq}")
    stamp_out(p, 4, 2, sWS, sWAVE, 3, 4)
    p("K3_END:")
    p("s_endpgm")
    return head("k3_kernel") + p.text() + KD.format(name="k3_kernel", nv=256, ns=100 if STAMP or DBG or os.environ.get('SPIN') else 40, acc=256)


HEADER = f"""; Kernarg layout for this problem (72 bytes, ptrs only, base s[0:1]):
;   offset   0: d_in[0] A_x  shape=(1, 2048, 448) dtype=bfloat16
;   offset   8: d_in[1] A_wqkv  shape=(448, 1344) dtype=bfloat16
;   offset  16: d_in[2] A_wo  shape=(448, 448) dtype=bfloat16
;   offset  24: d_in[3] B_x  (unused by the reference)
;   offset  32: d_in[4] B_w1  shape=(448, 1792) dtype=bfloat16
;   offset  40: d_in[5] B_w2  shape=(1792, 448) dtype=bfloat16
; @launch kernel=k1_kernel grid=(256,1,1) block=(512,1,1) lds={K1_LDS}
; @launch kernel=k2_kernel grid=(256,1,1) block=(512,1,1) lds={K2_LDS}
.amdgcn_target "amdgcn-amd-amdhsa--gfx950"
"""


def post(txt):
    fl = os.environ.get("STFLAG", "")
    if fl:
        out = []
        for line in txt.split("\n"):
            if "buffer_store_dwordx4" in line:
                line = line + " " + fl
            out.append(line)
        txt = "\n".join(out)
    return txt


def main():
    global STAMP, DBG
    DBG = len(sys.argv) > 2 and sys.argv[2] == "dbg"
    STAMP = len(sys.argv) > 2 and sys.argv[2] == "stamp"
    txt = HEADER + gen_k1() + gen_k2()
    txt = post(txt)
    out = sys.argv[1] if len(sys.argv) > 1 else f"cdna_kernels/{NAME}.s"
    open(out, "w").write(txt)
    print("wrote", out, len(txt), "bytes")


if __name__ == "__main__":
    main()
```

```python
import sys, struct, os
from asmgen import *

NAME = "parallel_sum__mha_block__dense_activation_relu__prompt"
E = os.environ.get

QF = 0
KVF = 2 << 20
HF = 6 << 20
W2F = 13 << 20
WOF = 15 << 20
OF = 16 << 20
FLG = 18 << 20
FQ = FLG
FH = FLG + 4096
FW = FLG + 8192
FO = FLG + 12288
WS_BYTES = 19 << 20

XB = 2048 * 448 * 2
WQKVB = 448 * 1344 * 2
WOB = 448 * 448 * 2
W1B = 448 * 1792 * 2
W2B = 1792 * 448 * 2

MF = "v_mfma_f32_32x32x16_bf16"
M16 = "v_mfma_f32_16x16x32_bf16"

SLOT = 28672
WAB = 64 * 192
CFA = 5 * SLOT
VSC = CFA + 7168
EPA = VSC + 8192
LDS_BYTES = EPA + 64
REF_OFF = 90.0
L_LIMIT = 2.0 ** 50
POLL_MAX = 0x40000


def f32bits(x):
    return struct.unpack("<I", struct.pack("<f", x))[0]


def vr(b, n):
    return f"v[{b}:{b+n-1}]"


def ar(b, n):
    return f"a[{b}:{b+n-1}]"


def srd(p, d, base, nbytes):
    p(f"""
    s_mov_b32 s{d}, s{base}
    s_and_b32 s{d+1}, s{base+1}, 0xffff
    s_mov_b32 s{d+2}, {nbytes}
    s_mov_b32 s{d+3}, 0x00020000
    """)


STAMP = False
STAMP_BASE = 32 << 20


def stamp(p, i, diag=None):
    if E("DIAG") and i > 0 and i < 7 and diag != E("DIAG"):
        return
    if not E("DIAG") and diag:
        return
    if STAMP:
        p(f"s_memrealtime s[{64+4*i}:{65+4*i}]")
        p(f"s_memtime s[{66+4*i}:{67+4*i}]")
        p("s_waitcnt lgkmcnt(0)")


def stamp_out(p, n, sWS, sWAVE, vtmp=1, vtmp2=2, wave_add=0):
    if not STAMP:
        return
    p("s_waitcnt vmcnt(0) lgkmcnt(0)")
    stamp(p, n)
    p(f"v_mov_b32 v{vtmp}, 0")
    for i in range(n + 1):
        p(f"v_writelane_b32 v{vtmp}, s{64+4*i}, {i}")
        p(f"v_writelane_b32 v{vtmp}, s{66+4*i}, {16+i}")
    p(f"""
    s_lshl_b32 s62, s2, 3
    s_add_u32 s62, s62, s{sWAVE}
    s_add_u32 s62, s62, {wave_add}
    s_lshl_b32 s62, s62, 8
    s_add_u32 s62, s62, {STAMP_BASE}
    v_lshlrev_b32 v{vtmp2}, 2, v0
    s_mov_b32 s{sWS+2}, {64 << 20}
    buffer_store_dword v{vtmp}, v{vtmp2}, s[{sWS}:{sWS+3}], s62 offen
    """)


def poll(p, name, vdst, vaddr, sWS, soff, sEP, sCNT, sleep):
    p.flush()
    p(f"""
    s_mov_b32 s{sCNT}, {POLL_MAX}
    {name}:
    buffer_load_dword v{vdst}, v{vaddr}, s[{sWS}:{sWS+3}], {soff} offen sc1
    s_sub_u32 s{sCNT}, s{sCNT}, 1
    s_cmp_eq_u32 s{sCNT}, 0
    s_waitcnt vmcnt(0)
    s_cbranch_scc1 {name}X
    v_cmp_ne_u32 vcc, s{sEP}, v{vdst}
    s_nop 1
    s_cbranch_vccz {name}X
    s_sleep {sleep}
    s_branch {name}
    {name}X:
    """)
    p.flush()


def gen():
    p = Prog()
    sX, sW, sW2, sWS, sKVR = 4, 8, 12, 16, 56
    (sWAVE, sMT, sG, sTMP, sTMP2, sTMP3, sST, sTY, sM0, sXO, sT, sONE, sOA, sOB, sEP, sCNT,
     sJ, sI, sHEAD, sQB) = range(20, 40)
    sKV, sKV2, sKV0 = sXO, sOA, sOB
    p(f"""
    s_cmp_ge_u32 s2, 256
    s_cbranch_scc1 K_END
    s_load_dwordx4 s[40:43], s[0:1], 0
    s_load_dwordx2 s[44:45], s[0:1], 16
    s_load_dwordx8 s[48:55], s[0:1], 32
    s_load_dwordx2 s[46:47], s[0:1], 64
    v_lshrrev_b32 v1, 6, v0
    v_and_b32 v0, 63, v0
    v_readfirstlane_b32 s{sWAVE}, v1
    s_and_b32 s{sJ}, s2, 7
    s_lshr_b32 s{sI}, s2, 3
    s_lshr_b32 s{sMT}, s{sJ}, 1
    s_lshl_b32 s{sMT}, s{sMT}, 2
    s_and_b32 s{sTMP}, s{sI}, 3
    s_add_u32 s{sMT}, s{sMT}, s{sTMP}
    s_lshl_b32 s{sMT}, s{sMT}, 2
    s_and_b32 s{sG}, s{sJ}, 1
    s_lshl_b32 s{sG}, s{sG}, 3
    s_lshr_b32 s{sTMP}, s{sI}, 2
    s_add_u32 s{sG}, s{sG}, s{sTMP}
    s_cmp_ge_u32 s{sWAVE}, 4
    s_waitcnt lgkmcnt(0)
    s_cbranch_scc1 K_HELPER
    """)
    stamp(p, 0)
    srd(p, sWS, 46, WS_BYTES)

    def tr_lane(dstA, dstB0, dstB1, t0, t1):
        p(f"""
        v_lshrrev_b32 v{t0}, 5, v0
        v_lshlrev_b32 v{t0}, 3, v{t0}
        v_bfe_u32 v{t1}, v0, 2, 2
        v_add_u32 v{t0}, v{t0}, v{t1}
        v_bfe_u32 v{t1}, v0, 4, 1
        v_lshlrev_b32 v{dstB0}, 5, v{t1}
        v_and_b32 v{t1}, 3, v0
        v_lshl_add_u32 v{dstB0}, v{t1}, 3, v{dstB0}
        v_mul_u32_u24 v{dstA}, 192, v{t0}
        v_add_u32 v{dstA}, v{dstA}, v{dstB0}
        v_lshl_add_u32 v{dstB0}, v{t0}, 7, v{dstB0}
        v_bfe_u32 v{t1}, v0, 3, 1
        v_lshl_add_u32 v{dstB0}, v{t1}, 6, v{dstB0}
        v_xor_b32 v{dstB1}, 64, v{dstB0}
        """)

    X = 0
    CFt, XM = 112, 116
    accs = [16, 32, 48, 64, 80, 16, 32]
    NW = int(E('NW', '8'))
    WF = 96
    GR, SX, ONEc, vXA, vLA, vXC, vSW, vSR = 64, 80, 84, 88, 92, 93, 94, 95
    ST = 64
    vL16, vLB0, vLB1, vC0, vC1, vCF, vA, vRINV, vVW, vVR, vMA, vOA, vT0, vT1, vPL = range(1, 16)
    p(f"s_add_u32 s{sMT}, s{sMT}, s{sWAVE}")
    tr_lane(vLA, vLB0, vLB1, vA, vRINV)
    p(f"""
    v_lshrrev_b32 v{vT1}, 5, v0
    v_and_b32 v{vT0}, 31, v0
    v_bfe_u32 v{vA}, v0, 1, 3
    v_xor_b32 v{vA}, v{vT1}, v{vA}
    s_lshl_b32 s{sTMP}, s{sWAVE}, 12
    s_add_u32 s{sTMP}, s{sTMP}, {WAB}
    v_lshl_add_u32 v{vRINV}, v{vT0}, 7, s{sTMP}
    v_lshlrev_b32 v{vL16}, 4, v0
    """)
    for sp in range(4):
        p(f"v_xor_b32 v{vXA+sp}, {2*sp}, v{vA}")
        p(f"v_lshl_add_u32 v{vXA+sp}, v{vXA+sp}, 4, v{vRINV}")
    p(f"""
    v_and_b32 v{vA}, 15, v0
    v_bfe_u32 v{vRINV}, v0, 4, 1
    v_mov_b32 v{vCF}, 0x3f803f80
    v_cmp_eq_u32 vcc, v{vA}, v{vRINV}
    v_cndmask_b32 v{ONEc}, 0, v{vCF}, vcc
    v_mov_b32 v{ONEc+1}, v{ONEc}
    v_mov_b32 v{ONEc+2}, v{ONEc}
    v_mov_b32 v{ONEc+3}, v{ONEc}
    v_add_u32 v{vCF}, {CFA}, v{vL16}
    s_mul_i32 s{sT}, s{sG}, 3
    s_lshl_b32 s{sTMP}, s{sWAVE}, 11
    s_add_u32 s{sTMP}, s{sTMP}, {VSC}
    v_lshl_add_u32 v{vSW}, v{vT0}, 4, s{sTMP}
    v_and_b32 v{vA}, 3, v0
    v_lshl_add_u32 v{vSR}, v{vA}, 2, v{vSW}
    v_lshl_add_u32 v{vVW}, v{vT1}, 3, s{sTMP}
    v_lshl_add_u32 v{vVW}, v{vT0}, 6, v{vVW}
    v_lshl_add_u32 v{vVR}, v{vT1}, 8, s{sTMP}
    v_bfe_u32 v{vA}, v0, 2, 2
    v_lshl_add_u32 v{vVR}, v{vA}, 6, v{vVR}
    v_bfe_u32 v{vA}, v0, 4, 1
    v_lshl_add_u32 v{vVR}, v{vA}, 5, v{vVR}
    v_and_b32 v{vA}, 3, v0
    v_lshl_add_u32 v{vVR}, v{vA}, 3, v{vVR}
    v_cmp_gt_u32 vcc, 28, v{vT0}
    v_cndmask_b32 v{vMA}, 0, -1, vcc
    v_mov_b32 v{vA}, 0x3f803f80
    v_cmp_eq_u32 vcc, 28, v{vT0}
    v_cndmask_b32 v{vOA}, 0, v{vA}, vcc
    s_lshl_b32 s{sHEAD}, s{sJ}, 1
    s_and_b32 s{sTMP}, s{sI}, 1
    s_add_u32 s{sHEAD}, s{sHEAD}, s{sTMP}
    s_lshr_b32 s{sQB}, s{sI}, 1
    """)
    p(f"""
    s_add_u32 s{sTMP}, s{sHEAD}, 16
    s_mul_i32 s{sTMP}, s{sTMP}, 43
    s_lshr_b32 s{sTMP}, s{sTMP}, 7
    s_lshl_b32 s{sTMP}, s{sTMP}, 8
    v_mov_b32 v{vPL}, s{sTMP}
    s_lshl_b32 s{sTMP2}, s{sWAVE}, 6
    s_add_u32 s{sTMP}, s{sTMP}, s{sTMP2}
    v_and_b32 v{vA}, 15, v0
    s_mov_b64 exec, 0xffff
    v_lshl_add_u32 v{vPL}, v{vA}, 2, s{sTMP}
    s_add_u32 s{sTMP}, s{sHEAD}, 32
    s_mul_i32 s{sTMP}, s{sTMP}, 43
    s_lshr_b32 s{sTMP}, s{sTMP}, 7
    s_lshl_b32 s{sTMP}, s{sTMP}, 8
    s_add_u32 s{sTMP}, s{sTMP}, s{sTMP2}
    s_mov_b32 exec_lo, 0xffff0000
    v_lshl_add_u32 v{vPL}, v{vA}, 2, s{sTMP}
    s_mul_i32 s{sTMP}, s{sHEAD}, 43
    s_lshr_b32 s{sTMP}, s{sTMP}, 7
    s_lshl_b32 s{sTMP}, s{sTMP}, 8
    s_lshl_b32 s{sTMP2}, s{sQB}, 4
    s_add_u32 s{sTMP}, s{sTMP}, s{sTMP2}
    s_mov_b32 exec_lo, 0
    s_mov_b32 exec_hi, 15
    v_lshl_add_u32 v{vPL}, v{vA}, 2, s{sTMP}
    s_mov_b64 exec, -1
    v_add_u32 v{vPL}, {FQ}, v{vPL}
    """)

    seq = []
    for st in range(7):
        for sp in range(4):
            for j in range(3):
                seq.append((st, 4 * st + sp, j))
    for ph in range(2):
        for hs in range(2):
            for sp in range(14):
                for j in range(2):
                    seq.append((7 + 2 * ph + hs, 14 * hs + sp, 3 + 2 * ph + j))
    NA = 84

    def rdw(n):
        st, s, j = seq[n]
        b = WF + 4 * (n % NW)
        if st < 7:
            va, off, d = vC0, (s & 3) * 16 * 192 + 64 * j, 4 * 192
        else:
            va, off, d = (vC0 if (j - 3) % 2 == 0 else vC1), (s % 14) * 16 * 128, 4 * 128
        return [I(f"ds_read_b64_tr_b16 {vr(b,2)}, v{va} offset:{off}"),
                I(f"ds_read_b64_tr_b16 {vr(b+2,2)}, v{va} offset:{off+d}")]

    def mfma(n):
        st, s, j = seq[n]
        acc = vr(accs[j], 16)
        return I(f"{MF} {acc}, {vr(WF+4*(n%NW),4)}, {ar(X+4*s,4)}, {'0' if s == 0 else acc}")

    def enter(st):
        base = (st % 5) * SLOT
        o = [I("s_waitcnt lgkmcnt(0)"), I("s_barrier")]
        if STAMP and E("DIAG") == "A" and st in (2, 3, 4):
            i = {2: 1, 3: 3, 4: 5}[st]
            o = [I(f"s_memtime s[{66+4*i}:{67+4*i}]")] + o + [I(f"s_memtime s[{70+4*i}:{71+4*i}]"), I("s_waitcnt lgkmcnt(0)")]
        if st < 7:
            o.append(I(f"v_add_u32 v{vC0}, {base}, v{vLA}"))
            for sp in range(4):
                o.append(I(f"v_add_u32 v{vXC}, {base}, v{vXA+sp}"))
                o.append(I(f"ds_read_b128 {ar(X+4*(4*st+sp),4)}, v{vXC}"))
        elif st < 11:
            o.append(I(f"v_add_u32 v{vC0}, {base}, v{vLB0}"))
            o.append(I(f"v_add_u32 v{vC1}, {base}, v{vLB1}"))
        return o

    def stats(st):
        f = {}
        for sp in range(4):
            s_ = 4 * st + sp
            x = ar(X + 4 * s_, 4)
            f[3 * sp] = [I(f"{MF} {vr(GR,16)}, {x}, {x}, {'0' if s_ == 0 else vr(GR,16)}")]
            f[3 * sp + 1] = [I(f"{M16} {vr(SX,4)}, {vr(ONEc,4)}, {x}, {'0' if s_ == 0 else vr(SX,4)}")]
        return f

    AH = NW - 1

    def stream(n0, n1, fill, rs, limit):
        out = []
        q = rs.setdefault("q", [])
        RL = int(E("RL", "3"))

        def refill(n):
            while rs["next"] <= min(n + AH, limit - 1):
                m = rs["next"]
                if seq[m][0] != rs["stage"]:
                    q.append(("bar", m, enter(seq[m][0])))
                    rs["stage"] = seq[m][0]
                for x in rdw(m):
                    q.append(("rd", m, [x]))
                rs["next"] = m + 1
            if rs["next"] == len(seq) and rs["stage"] == 10:
                q.append(("bar", 10 ** 6, enter(11)))
                rs["stage"] = 11

        def drain(n, budget):
            rs["slot"] = rs.get("slot", 0) + 1
            while q:
                kind, m, ins = q[0]
                must = m <= n + 2
                if kind == "bar":
                    if rs["slot"] < rs["last_at"] + 2 and not must:
                        break
                    q.pop(0)
                    k = [i for i, x in enumerate(ins) if x.op == "s_barrier"][0] + 1
                    while k < len(ins) and ins[k].kind != "valu":
                        k += 1
                    out.extend(ins[:k])
                    rest = ins[k:]
                    q[:0] = [("rd", m, [x]) for x in rest]
                    budget -= 1
                    continue
                if budget <= 0 and not must:
                    break
                q.pop(0)
                out.extend(ins)
                if ins[0].kind == "ds":
                    budget -= 2 if "b128" in ins[0].op else 1
                    rs["last_at"] = rs["slot"]

        for n in range(n0, n1):
            out.append(mfma(n))
            refill(n)
            drain(n, RL)
            if fill and (n - n0) in fill:
                for x in fill[n - n0]:
                    out.append(x)
                    if x.kind == "mfma":
                        drain(n, RL if x.passes == 8 else 1)
        return out

    rs = {"next": 0, "stage": 0, "last_at": -9}
    p.add(enter(0))
    stamp(p, 1)
    for m in range(AH):
        p.add(rdw(m))
    rs["next"] = AH
    for st in range(7):
        if st == 4:
            p(f"v_mov_b32 v{vT0}, 0")
            p(f"global_load_dword v{vT1}, v{vT0}, s[54:55] sc0 sc1")
        f = stats(st)
        if st < 6:
            b0 = 13 - AH
            f = {b0: f[0] + f[1], b0 + 1: f[3] + f[4], b0 + 2: f[6] + f[7], b0 + 3: f[9] + f[10]}
        if st == 6:
            f = {0: f[0] + f[1], 1: f[3] + f[4], 2: f[6] + f[7], 3: f[9] + f[10]}
            ex = []
            for q in range(4):
                ex += [f"s_mov_b32 exec_lo, {0xF << (8*q):#x}", f"s_mov_b32 exec_hi, {0xF0 << (8*q):#x}",
                       f"ds_write_b128 v{vSW}, {vr(GR+4*q,4)}"]
            ex += ["s_mov_b64 exec, 0xffff",
                   f"ds_write_b32 v{vSW}, v{SX} offset:512",
                   f"ds_write_b32 v{vSW}, v{SX+1} offset:768",
                   "s_mov_b64 exec, -1",
                   f"ds_read_b32 v{ST+4}, v{vSR}",
                   f"ds_read_b32 v{ST}, v{vSW} offset:512"]
            f[7] = [I(x) for x in ex]
        if E("NOST") and st < 6:
            f = None
        p.add(stream(12 * st, 12 * st + (12 if st < 6 else 9), f, rs, NA))
    T = ST
    fin = [I(x.strip()) for x in f"""
    v_mul_f32 v{T}, {f32bits(1.0/448.0):#x}, v{T}
    v_mul_f32 v{T+4}, {f32bits(1.0/448.0):#x}, v{T+4}
    v_fma_f32 v{T+4}, -v{T}, v{T}, v{T+4}
    v_cvt_pk_bf16_f32 v{T+1}, -v{T}, -v{T}
    v_max_f32 v{T+4}, 0, v{T+4}
    v_and_b32 v{T+2}, 0xffff, v{T+1}
    v_cvt_pk_bf16_f32 v{T+4}, v{T+4}, v{T+4}
    v_accvgpr_write_b32 a{XM}, v{T+1}
    v_and_b32 v{T+4}, 0xffff0000, v{T+4}
    v_accvgpr_write_b32 a{XM+1}, v{T+2}
    v_add_f32 v{T+4}, {f32bits(1e-5):#x}, v{T+4}
    v_accvgpr_write_b32 a{XM+2}, v{T+1}
    v_cvt_pk_bf16_f32 v{T+4}, v{T+4}, v{T+4}
    v_accvgpr_write_b32 a{XM+3}, v{T+2}
    v_and_b32 v{T+4}, 0xffff0000, v{T+4}
    v_sqrt_f32 v{T+4}, v{T+4}
    v_mov_b32 v{T}, {EPA}
    v_cvt_pk_bf16_f32 v{T+4}, v{T+4}, v{T+4}
    v_and_b32 v{T+4}, 0xffff0000, v{T+4}
    v_rcp_f32 v{vRINV}, v{T+4}
    v_readfirstlane_b32 s{sEP}, v{vT1}
    """.strip().split("\n")]
    p.add(fin)
    p(f"""
    s_cmp_lg_u32 s{sEP}, 0
    s_cbranch_scc1 K_GEX
    """)
    p.add(opt([f"s_mov_b32 s{sCNT}, {POLL_MAX}",
               "K_GE:",
               f"global_load_dword v{vT1}, v{vT0}, s[54:55] sc0 sc1",
               f"s_sub_u32 s{sCNT}, s{sCNT}, 1",
               f"s_cmp_eq_u32 s{sCNT}, 0",
               "s_waitcnt vmcnt(0)",
               "s_cbranch_scc1 K_GEX",
               f"v_readfirstlane_b32 s{sEP}, v{vT1}",
               "s_sleep 4",
               f"s_cmp_eq_u32 s{sEP}, 0",
               "s_cbranch_scc1 K_GE"]))
    p(f"""
    K_GEX:
    ds_write_b32 v{T}, v{vT1}
    s_cmp_ge_u32 s{sG}, 14
    s_cbranch_scc1 K_SHORT
    """)
    p.flush()
    tr_s, rs_s, hist_s = p.tr.copy(), dict(rs, q=list(rs["q"])), list(p.out[-60:])
    p.add(stream(NA - 3, NA, None, rs, len(seq)))
    stamp(p, 2)
    stamp(p, 1, "B")
    c = (28 ** -0.5) * 1.4426950408889634

    def store(pk, off=0):
        return [I(f"buffer_store_dwordx4 {vr(pk,4)}, v{vL16}, s[{sWS}:{sWS+3}], s{sST} offen offset:{off} sc1"),
                I(f"buffer_store_dwordx4 {vr(pk+4,4)}, v{vL16}, s[{sWS}:{sWS+3}], s{sST} offen offset:{off+1024} sc1")]

    def epi(j, tag=""):
        qkv = j < 3
        acc = accs[j]
        g0 = [I(f"ds_read_b128 {ar(CFt,4)}, v{vCF} offset:{1024*j}")]
        g1 = [I(f"{MF} {vr(acc,16)}, {ar(CFt,4)}, {ar(XM,4)}, {vr(acc,16)}")]
        g2 = []
        sc = vRINV
        if qkv:
            sc = vA
            g1 += [I(x) for x in [
                f"s_lshr_b32 s{sTY}, s{sT}, 4",
                f"s_and_b32 s{sTMP}, s{sT}, 15",
                f"s_lshl_b32 s{sTMP}, s{sTMP}, 6",
                f"s_add_u32 s{sTMP}, s{sTMP}, s{sMT}",
                f"s_lshl_b32 s{sST}, s{sTMP}, 11",
                f"s_lshl_b32 s{sTMP}, s{sTMP}, 12",
                f"s_add_u32 s{sTMP}, s{sTMP}, {KVF}",
                f"s_cmp_eq_u32 s{sTY}, 0",
                f"s_cselect_b32 s{sST}, s{sST}, s{sTMP}",
                f"s_cselect_b32 s{sTMP}, {f32bits(c):#x}, 1.0",
                f"v_mul_f32 v{vA}, s{sTMP}, v{vRINV}",
                f"s_cselect_b32 s{sTMP}, 0, 0x3f803f80",
                f"s_cselect_b32 s{sTMP2}, 0, 0x3f80",
                f"s_add_u32 s{sT}, s{sT}, 1"]]
        elif j == 3:
            g1 += [I(x) for x in [
                f"s_mul_i32 s{sST}, s{sMT}, 114688",
                f"s_lshl_b32 s{sTMP}, s{sG}, 13",
                f"s_add_u32 s{sST}, s{sST}, s{sTMP}",
                f"s_add_u32 s{sST}, s{sST}, {HF}"]]
        for i in range(8):
            g2.append(I(f"v_mul_f32 v{acc+2*i}, v{sc}, v{acc+2*i}"))
            g2.append(I(f"v_mul_f32 v{acc+2*i+1}, v{sc}, v{acc+2*i+1}"))
            g2.append(I(f"v_cvt_pk_bf16_f32 v{acc+i}, v{acc+2*i}, v{acc+2*i+1}"))
            if not qkv:
                g2.append(I(f"v_pk_max_i16 v{acc+i}, v{acc+i}, 0"))
        if not qkv:
            blk = store(acc, 2048 * ((j - 3) & 1))
            if j == 4:
                blk.append(I(f"s_add_u32 s{sST}, s{sST}, 4096"))
            return g0, g1, g2, blk
        pv = acc + 8
        blk = [I(f"s_cmp_eq_u32 s{sTY}, 2"), I(f"s_cbranch_scc1 K_EV{j}{tag}")]
        blk += opt(["s_mov_b32 exec_lo, 0",
                    f"v_mov_b32 v{acc+6}, s{sTMP}",
                    f"v_mov_b32 v{acc+7}, s{sTMP2}",
                    "s_mov_b32 exec_lo, -1"] + store(acc) + [f"s_branch K_EN{j}{tag}"])
        blk += [I(f"K_EV{j}{tag}:")]
        v = [f"ds_write_b64 v{vVW}, {vr(acc+2*q,2)} offset:{16*q}" for q in range(4)]
        for i in range(2):
            v += [f"ds_read_b64_tr_b16 {vr(pv+4*i,2)}, v{vVR} offset:{1024*i}",
                  f"ds_read_b64_tr_b16 {vr(pv+4*i+2,2)}, v{vVR} offset:{1024*i+512}"]
        v += ["s_waitcnt lgkmcnt(0)"]
        v += [f"v_and_or_b32 v{pv+i}, v{pv+i}, v{vMA}, v{vOA}" for i in range(8)]
        blk += opt(v + store(pv, 2048))
        blk += [I(f"K_EN{j}{tag}:")]
        return g0, g1, g2, blk

    def plan(tiles, start, span):
        fill = {}

        def put(i, l):
            fill.setdefault(i, []).extend(l)
        per = span // len(tiles)
        for k, j in enumerate(tiles):
            g0, g1, g2, blk = epi(j)
            b = start + k * per
            put(b - 3 if k else b, g0)
            put(b if k else b + 3, g1)
            b2 = b + (3 if k else 6)
            n = b + per - 1 - b2
            for i, x in enumerate(g2):
                put(b2 + (i * n) // len(g2), [x])
            put(b + per - 1, blk)
        return fill

    def flag(base_expr_instrs, n_younger):
        return [I(x) for x in base_expr_instrs + [
            f"v_mov_b32 v{vT0}, s{sEP}",
            f"s_waitcnt vmcnt({n_younger})",
            "s_mov_b64 exec, 1",
            f"buffer_store_dword v{vT0}, v{vL16}, s[{sWS}:{sWS+3}], s{sTMP3} offen sc1",
            "s_mov_b64 exec, -1"]]

    fq_addr = [f"s_lshl_b32 s{sTMP3}, s{sG}, 6",
               f"s_add_u32 s{sTMP3}, s{sTMP3}, s{sMT}",
               f"s_lshl_b32 s{sTMP3}, s{sTMP3}, 2",
               f"s_add_u32 s{sTMP3}, s{sTMP3}, {FQ}"]
    S = [48, 64]
    P = [80, 88]
    O0 = 96
    KR = 48
    Q = 0
    KV = [32, 48]
    OA = 64

    def att_loads():
        o = [f"s_lshl_b32 s{sKV0}, s{sHEAD}, 18",
             f"s_add_u32 s{sKV0}, s{sKV0}, {KVF}",
             f"buffer_load_dwordx4 {vr(KR,4)}, v{vL16}, s[{sWS}:{sWS+3}], s{sKV0} offen sc1",
             f"buffer_load_dwordx4 {vr(KR+4,4)}, v{vL16}, s[{sWS}:{sWS+3}], s{sKV0} offen offset:1024 sc1",
             f"s_lshl_b32 s{sTMP}, s{sHEAD}, 6",
             f"s_lshl_b32 s{sTMP2}, s{sQB}, 2",
             f"s_add_u32 s{sTMP}, s{sTMP}, s{sTMP2}"]
        for u in range(4):
            o += [f"s_xor_b32 s{sTMP2}, s{sWAVE}, {u}",
                  f"s_add_u32 s{sTMP2}, s{sTMP2}, s{sTMP}",
                  f"s_lshl_b32 s{sTMP2}, s{sTMP2}, 11",
                  f"buffer_load_dwordx4 {ar(Q+8*u,4)}, v{vL16}, s[{sWS}:{sWS+3}], s{sTMP2} offen sc1",
                  f"buffer_load_dwordx4 {ar(Q+8*u+4,4)}, v{vL16}, s[{sWS}:{sWS+3}], s{sTMP2} offen offset:1024 sc1"]
        o += [f"s_lshl_b32 s{sTMP}, s{sWAVE}, 16",
              f"s_add_u32 s{sKV}, s{sKV0}, s{sTMP}",
              f"s_add_u32 s{sKV2}, s{sKV}, 4096"]
        for j in range(4):
            o.append(f"buffer_load_dwordx4 {ar(KV[0]+4*j,4)}, v{vL16}, s[{sWS}:{sWS+3}], s{sKV} offen offset:{1024*j} sc1")
        for j in range(2):
            o.append(f"buffer_load_dwordx4 {ar(KV[1]+4*j,4)}, v{vL16}, s[{sWS}:{sWS+3}], s{sKV2} offen offset:{1024*j} sc1")
        return [I(x) for x in o]

    def poll_opt(name, sleep):
        o = [I(f"v_cmp_ne_u32 vcc, s{sEP}, v{vT1}"), I("s_nop 1"), I(f"s_cbranch_vccz {name}X")]
        o += opt([f"s_mov_b32 s{sCNT}, {POLL_MAX}",
                  f"{name}:",
                  f"s_sleep {sleep}",
                  f"buffer_load_dword v{vT1}, v{vPL}, s[{sWS}:{sWS+3}], 0 offen sc1",
                  f"s_sub_u32 s{sCNT}, s{sCNT}, 1",
                  f"s_cmp_eq_u32 s{sCNT}, 0",
                  "s_waitcnt vmcnt(0)",
                  f"s_cbranch_scc1 {name}X",
                  f"v_cmp_ne_u32 vcc, s{sEP}, v{vT1}",
                  "s_nop 1",
                  f"s_cbranch_vccnz {name}"])
        o += [I(f"{name}X:")]
        return o

    QSPAN, FPOS, PPOS, CPOS = int(E("QSPAN", "39")), int(E("FPOS", "12")), int(E("PPOS", "33")), int(E("CPOS", "44"))
    p.add(stream(NA, NA + 56, plan([0, 1, 2], 0, QSPAN), rs, len(seq)))
    fc = plan([3, 4], 0, 32)
    t4_store = fc[31]
    fc[31] = []
    def dstamp(i):
        if STAMP and E("DIAG") == "B":
            return [I(f"s_memrealtime s[{64+4*i}:{65+4*i}]"), I(f"s_memtime s[{66+4*i}:{67+4*i}]"), I("s_waitcnt lgkmcnt(0)")]
        return []
    fc.setdefault(FPOS, []).extend(dstamp(2) + flag(fq_addr, 0) + dstamp(3))
    fc.setdefault(PPOS, []).append(I(f"buffer_load_dword v{vT1}, v{vPL}, s[{sWS}:{sWS+3}], 0 offen sc1"))
    fc.setdefault(CPOS, []).extend(dstamp(4) + poll_opt("K_PQ1", E("SLQ", "12"))[:3] + opt(dstamp(6)) + poll_opt("K_PQ1", E("SLQ", "12"))[3:] + dstamp(5))
    al = att_loads() + t4_store
    for i, x in enumerate(al):
        fc.setdefault(CPOS + (i * (55 - CPOS)) // len(al), []).append(x)
    p.add(stream(NA + 56, NA + 112, fc, rs, len(seq)))
    stamp(p, 3)
    e = [epi(j) for j in (5, 6)]
    p.add(e[0][0] + e[0][1] + e[1][0] + e[0][2][:2] + e[1][1] + e[0][2][2:] + e[0][3] + e[1][2] + e[1][3])
    p(f"""
    s_lshl_b32 s{sTMP3}, s{sMT}, 4
    s_add_u32 s{sTMP3}, s{sTMP3}, s{sG}
    s_lshl_b32 s{sTMP3}, s{sTMP3}, 2
    s_add_u32 s{sTMP3}, s{sTMP3}, {FH}
    s_branch K_ATT
    """)
    p.flush()
    tr_att = p.tr.copy()

    p.tr = tr_s
    p("K_SHORT:")
    p.add(stream(NA - 3, NA, None, rs_s, NA))
    p.add(enter(11))
    stamp(p, 2)
    for j in range(3):
        g0, g1, g2, blk = epi(j, "s")
        p.add(g0 + g1 + g2 + blk)
    p.add(flag(fq_addr, 0))
    stamp(p, 3)
    seq2 = add_waits(p.cur, p.tr)
    p.out += pad_hazards(seq2, hist_s)
    p.cur = []
    poll(p, "K_PQ2", vT1, vPL, sWS, "0", sEP, sCNT, 24)
    p.add(att_loads())
    p(f"s_mov_b32 s{sTMP3}, 0x40000000")
    for i in range(6):
        p(f"buffer_store_dword v{vT1}, v{vL16}, s[{sWS}:{sWS+3}], s{sTMP3} offen")
    p.flush()

    p.tr = tr_att

    def Oacc(u):
        return vr(O0, 16) if u == 0 else ar(OA + 16 * (u - 1), 16)

    vA1, vA2, vA3, vRA, vEP = 2, 3, 4, 5, 6
    vAs = [None, vA1, vA2, vA3]
    p(f"""
    K_ATT:
    s_setprio 2
    s_mov_b32 s{sKVR}, s{sWS}
    s_mov_b32 s{sKVR+1}, s{sWS+1}
    s_add_u32 s{sKVR+2}, s{sKV}, 65536
    s_mov_b32 s{sKVR+3}, 0x00020000
    v_mov_b32 v{vEP}, s{sEP}
    """)
    for i in range(48):
        p(f"v_accvgpr_write_b32 a{OA+i}, 0")
    for i in range(8):
        p(f"v_accvgpr_write_b32 a{KV[1]+8+i}, 0")
    for i in range(16):
        p(f"v_mov_b32 v{O0+i}, 0")
    for i in range(8):
        p(f"v_mov_b32 v{P[1]+i}, 0")
    RD = [64, 112]
    for u in range(1, 4):
        p(f"""
        s_xor_b32 s{sTMP}, s{sWAVE}, {u}
        s_mul_i32 s{sTMP}, s{sTMP}, 3
        s_add_u32 s{sTMP}, s{sTMP}, {u-1}
        s_lshl_b32 s{sTMP}, s{sTMP}, 12
        v_add_u32 v{vAs[u]}, s{sTMP}, v{vL16}
        """)
    p(f"""
    s_mul_i32 s{sTMP}, s{sWAVE}, {3*4096}
    v_add_u32 v{vRA}, s{sTMP}, v{vL16}
    s_mov_b32 s{sCNT}, 8
    """)
    M, M2, PC = 24, 28, 40

    def rowmax(m, d):
        p(f"v_max3_f32 v{m}, v{d}, v{d+1}, v{d+2}")
        for r in range(3, 15, 2):
            p(f"v_max3_f32 v{m}, v{m}, v{d+r}, v{d+r+1}")
        p(f"v_max_f32 v{m}, v{m}, v{d+15}")

    def put_ref(units, add):
        for u in units:
            p(f"v_mov_b32 v{M2+u}, v{M+u}")
        for u in units:
            p(f"v_permlane32_swap_b32 v{M+u}, v{M2+u}")
        for u in units:
            m, a, b, cc = M + u, M2 + u, PC + u, PC + 4 + u
            p(f"""
            v_max_f32 v{m}, v{m}, v{a}
            v_sub_f32 v{a}, {f32bits(-add):#x}, v{m}
            v_and_b32 v{b}, 0xffff0000, v{a}
            v_sub_f32 v{a}, v{a}, v{b}
            v_and_b32 v{cc}, 0xffff0000, v{a}
            v_sub_f32 v{a}, v{a}, v{cc}
            v_lshrrev_b32 v{b}, 16, v{b}
            v_or_b32 v{b}, v{b}, v{cc}
            v_lshrrev_b32 v{a}, 16, v{a}
            """)
        p("s_mov_b32 exec_lo, 0")
        for u in units:
            p(f"v_accvgpr_write_b32 a{Q+8*u+6}, v{PC+u}")
            p(f"v_accvgpr_write_b32 a{Q+8*u+7}, v{M2+u}")
        p("s_mov_b32 exec_lo, -1")

    for u in range(4):
        d = RD[u % 2]
        p(f"{MF} {vr(d,16)}, {vr(KR,4)}, {ar(Q+8*u,4)}, 0")
        p(f"{MF} {vr(d,16)}, {vr(KR+4,4)}, {ar(Q+8*u+4,4)}, {vr(d,16)}")
        if u % 2 == 1:
            for uu in (u - 1, u):
                rowmax(M + uu, RD[uu % 2])
    put_ref(range(4), REF_OFF)

    def qk(n_u, kb, sbuf):
        k = KV[kb]
        return [I(f"{MF} {vr(S[sbuf],16)}, {ar(k,4)}, {ar(Q+8*n_u,4)}, 0"),
                I(f"{MF} {vr(S[sbuf],16)}, {ar(k+4,4)}, {ar(Q+8*n_u+4,4)}, {vr(S[sbuf],16)}")]

    def pv(u, vb, pbuf):
        v = KV[vb] + 8
        return [I(f"{MF} {Oacc(u)}, {ar(v,4)}, {vr(P[pbuf],4)}, {Oacc(u)}"),
                I(f"{MF} {Oacc(u)}, {ar(v+4,4)}, {vr(P[pbuf]+4,4)}, {Oacc(u)}")]

    def softmax(sb):
        s, pp = S[sb], P[sb]
        v = []
        for i in range(8):
            v.append(I(f"v_exp_f32 v{s+2*i}, v{s+2*i}"))
            v.append(I(f"v_exp_f32 v{s+2*i+1}, v{s+2*i+1}"))
            if i >= 1:
                v.append(I(f"v_cvt_pk_bf16_f32 v{pp+i-1}, v{s+2*i-2}, v{s+2*i-1}"))
        v.append(I(f"v_cvt_pk_bf16_f32 v{pp+7}, v{s+14}, v{s+15}"))
        return v

    def cost(i):
        return 8 if i.is_trans() else 4

    def slot(tb, u):
        nu = (u + 1) & 3
        pu = (u - 1) & 3
        mf = qk(nu, tb if u < 3 else 1 - tb, (u + 1) & 1) + pv(pu, tb if u > 0 else 1 - tb, (u - 1) & 1)
        ld = []
        if u == 0:
            so = sKV2 if tb == 0 else sKV
            ld += [I(f"buffer_load_dwordx4 {ar(KV[1-tb]+8+4*j,4)}, v{vL16}, s[{sKVR}:{sKVR+3}], s{so} offen offset:{2048+1024*j} sc1") for j in range(2)]
        if u == 2:
            so = sKV if tb == 0 else sKV2
            ld += [I(f"buffer_load_dwordx4 {ar(KV[tb]+4*j,4)}, v{vL16}, s[{sKVR}:{sKVR+3}], s{so} offen offset:{1024*j} sc1") for j in range(2)]
        va = softmax(u & 1)
        total = sum(cost(i) for i in va)
        out = []
        k = 0
        acc = 0
        for j, m in enumerate(mf):
            out.append(m)
            tgt = total * (j + 1) / len(mf)
            while k < len(va) and acc + cost(va[k]) / 2 <= tgt:
                out.append(va[k]); acc += cost(va[k]); k += 1
        out += va[k:]
        idx = max(i for i, x in enumerate(out) if x.kind == "mfma")
        if ld:
            out = out[:idx + 1] + interleave(out[idx + 1:], ld)
        return out

    stamp(p, 4)
    p.add(qk(0, 0, 0))
    p("s_nop 11")
    body = [I(".p2align 6"), I("K_LOOP:")]
    for tb in range(2):
        for u in range(4):
            if u == 1:
                so = sKV if tb == 0 else sKV2
                body.append(I(f"s_add_u32 s{so}, s{so}, 8192"))
            if tb == 1 and u == 2:
                body += [I(f"s_cmp_lg_u32 s{sCNT}, 8"), I("s_cbranch_scc1 K_NF")]
                body += opt(["s_mov_b64 exec, 1",
                             f"buffer_store_dword v{vEP}, v{vL16}, s[{sWS}:{sWS+3}], s{sTMP3} offen sc1",
                             "s_mov_b64 exec, -1"])
                body += [I("K_NF:")]
            if tb == 1 and u == 3:
                body.append(I(f"s_sub_u32 s{sCNT}, s{sCNT}, 1"))
                body.append(I(f"s_cmp_lg_u32 s{sCNT}, 0"))
            body += slot(tb, u)
    body += [I("s_cbranch_scc1 K_LOOP")]
    p.loop(body)
    stamp(p, 5)
    p.add(pv(3, 1, 1))
    for u in range(1, 4):
        for q in range(4):
            p(f"ds_write_b128 v{vAs[u]}, {ar(OA+16*(u-1)+4*q,4)} offset:{1024*q}")
    p(f"""
    s_lshl_b32 s{sTMP2}, s{sQB}, 2
    s_add_u32 s{sTMP2}, s{sTMP2}, s{sWAVE}
    s_lshl_b32 s{sTMP}, s{sTMP2}, 15
    s_lshl_b32 s{sTMP3}, s{sHEAD}, 11
    s_add_u32 s{sTMP}, s{sTMP}, s{sTMP3}
    s_add_u32 s{sTMP}, s{sTMP}, {OF}
    s_lshl_b32 s{sTMP3}, s{sTMP2}, 4
    s_add_u32 s{sTMP3}, s{sTMP3}, s{sHEAD}
    s_lshl_b32 s{sTMP3}, s{sTMP3}, 2
    s_add_u32 s{sTMP3}, s{sTMP3}, {FO}
    s_waitcnt lgkmcnt(0)
    s_barrier
    """)
    stamp(p, 6)
    R = 48
    for i in range(3):
        for q in range(4):
            p(f"ds_read_b128 {vr(R+16*i+4*q,4)}, v{vRA} offset:{4096*i+1024*q}")
    for i in range(3):
        for r in range(0, 16, 2):
            p(f"v_pk_add_f32 {vr(O0+r,2)}, {vr(O0+r,2)}, {vr(R+16*i+r,2)}")
    p("K_NORM:")
    l, l2, ri, mx, PK = 16, 17, 18, 20, 32
    p(f"""
    v_mov_b32 v{l}, v{O0+12}
    v_mov_b32 v{l2}, v{O0+12}
    v_permlane32_swap_b32 v{l}, v{l2}
    v_rcp_f32 v{ri}, v{l2}
    """)
    for r in range(0, 16, 2):
        p(f"v_pk_mul_f32 {vr(O0+r,2)}, {vr(O0+r,2)}, {vr(ri,2)} op_sel_hi:[1,0]")
    for i in range(8):
        p(f"v_cvt_pk_bf16_f32 v{PK+i}, v{O0+2*i}, v{O0+2*i+1}")
    p(f"""
    buffer_store_dwordx4 {vr(PK,4)}, v{vL16}, s[{sWS}:{sWS+3}], s{sTMP} offen sc1
    buffer_store_dwordx4 {vr(PK+4,4)}, v{vL16}, s[{sWS}:{sWS+3}], s{sTMP} offen offset:1024 sc1
    """)
    for r in range(0, 16, 2):
        p(f"v_pk_add_f32 {vr(O0+r,2)}, {vr(O0+r,2)}, {vr(O0+r,2)} neg_lo:[0,1] neg_hi:[0,1]")
    for r in (8, 4, 2):
        for k in range(0, r, 2):
            p(f"v_pk_add_f32 {vr(O0+k,2)}, {vr(O0+k,2)}, {vr(O0+r+k,2)}")
    p(f"""
    v_add_f32 v{mx}, v{O0}, v{O0+1}
    v_add_f32 v{mx}, v{mx}, v{l2}
    v_cmp_ngt_f32 vcc, {f32bits(L_LIMIT):#x}, v{mx}
    s_cmp_eq_u32 s{sCNT}, 0
    s_cselect_b64 vcc, vcc, 0
    s_cbranch_vccnz K_SLOW
    s_mov_b64 exec, 1
    s_waitcnt vmcnt(0)
    buffer_store_dword v{vEP}, v{vL16}, s[{sWS}:{sWS+3}], s{sTMP3} offen sc1
    s_mov_b64 exec, -1
    """)
    stamp_out(p, 7, sWS, sWAVE, 2, 3)
    p("s_endpgm")
    p.flush()
    p.tr = Tracker()
    p(f"""
    K_SLOW:
    s_waitcnt vmcnt(0) lgkmcnt(0)
    s_mov_b32 exec_lo, 0
    v_accvgpr_write_b32 a{Q+6}, 0
    v_accvgpr_write_b32 a{Q+7}, 0
    s_mov_b32 exec_lo, -1
    v_mov_b32 v{M}, 0xff800000
    s_mov_b32 s{sKV}, s{sKV0}
    s_mov_b32 s{sCNT}, 64
    """)
    body = [I("K_S1:")]
    body += [I(f"buffer_load_dwordx4 {ar(KV[0]+4*j,4)}, v{vL16}, s[{sWS}:{sWS+3}], s{sKV} offen offset:{1024*j} sc1") for j in range(2)]
    body += qk(0, 0, 0)
    body += [I(f"v_max3_f32 v{M}, v{M}, v{S[0]+r}, v{S[0]+r+1}") for r in range(0, 16, 2)]
    body += [I(f"s_add_u32 s{sKV}, s{sKV}, 4096"), I(f"s_sub_u32 s{sCNT}, s{sCNT}, 1"), I(f"s_cmp_lg_u32 s{sCNT}, 0"), I("s_cbranch_scc1 K_S1")]
    p.loop(body)
    put_ref([0], 0.0)
    for i in range(16):
        p(f"v_mov_b32 v{O0+i}, 0")
    p(f"""
    s_mov_b32 s{sKV}, s{sKV0}
    s_mov_b32 s{sCNT}, 64
    """)
    body = [I("K_S2:")]
    body += [I(f"buffer_load_dwordx4 {ar(KV[0]+4*j,4)}, v{vL16}, s[{sWS}:{sWS+3}], s{sKV} offen offset:{1024*j} sc1") for j in range(4)]
    body += qk(0, 0, 0) + softmax(0) + pv(0, 0, 0)
    body += [I(f"s_add_u32 s{sKV}, s{sKV}, 4096"), I(f"s_sub_u32 s{sCNT}, s{sCNT}, 1"), I(f"s_cmp_lg_u32 s{sCNT}, 0"), I("s_cbranch_scc1 K_S2")]
    p.loop(body)
    p(f"""
    s_mov_b32 s{sCNT}, 1
    s_nop 7
    s_nop 7
    s_branch K_NORM
    """)
    p.flush()

    p.tr = Tracker()
    vOA3, vX, vOB, hLA, hLB, hCW, ONE, CS, F = 8, 12, 14, 16, 17, 19, 20, 24, 40
    hL16 = 1
    p("K_HELPER:")
    stamp(p, 0)
    srd(p, sX, 40, XB)
    srd(p, sW, 42, WQKVB)
    p(f"""
    s_sub_u32 s{sWAVE}, s{sWAVE}, 4
    s_add_u32 s{sXO}, s{sMT}, s{sWAVE}
    s_mul_i32 s{sXO}, s{sXO}, 28672
    v_lshrrev_b32 v4, 3, v0
    v_mul_u32_u24 v7, 896, v4
    v_lshrrev_b32 v5, 4, v0
    v_and_b32 v6, 7, v0
    v_xor_b32 v6, v5, v6
    v_lshl_add_u32 v{vX}, v6, 4, v7
    v_xor_b32 v6, 4, v6
    v_lshl_add_u32 v{vX+1}, v6, 4, v7
    s_mul_i32 s{sOA}, s{sG}, 168
    s_mul_i32 s{sTMP}, s{sWAVE}, {16*2688}
    s_add_u32 s{sOA}, s{sOA}, s{sTMP}
    s_lshl_b32 s{sM0}, s{sWAVE}, 12
    s_mul_i32 s{sTMP3}, s{sWAVE}, 3072
    """)

    def load_x(st):
        base = (st % 5) * SLOT
        for g in range(4):
            p(f"s_add_u32 m0, s{sM0}, {base+WAB+1024*g}")
            p(f"s_add_u32 s{sTMP}, s{sXO}, {8*896*g+128*st}")
            p(f"buffer_load_dwordx4 v{vX+(g&1)}, s[{sX}:{sX+3}], s{sTMP} offen lds", tag=f"st{st}")

    def load_wa(st):
        base = (st % 5) * SLOT
        p(f"s_add_u32 s{sTMP}, s{sOA}, {64*2688*st}")
        for d in range(3):
            p(f"s_add_u32 m0, s{sTMP3}, {base+1024*d}")
            p(f"buffer_load_dwordx4 v{vOA3+d}, s[{sW}:{sW+3}], s{sTMP} offen lds", tag=f"st{st}")

    def load_b(st):
        base = (st % 5) * SLOT
        ph, hs = divmod(st - 7, 2)
        for d in range(7):
            p(f"s_add_u32 m0, s{sT}, {base+1024*d}")
            p(f"s_add_u32 s{sTMP}, s{sOB}, {(224*hs+8*d)*3584+128*ph}")
            p(f"buffer_load_dwordx4 v{vOB}, s[{sW2}:{sW2+3}], s{sTMP} offen lds", tag=f"st{st}")

    load_x(0)
    for d in range(3):
        p(f"""
        v_add_u32 v1, {64*d}, v0
        v_mul_u32_u24 v2, 5462, v1
        v_lshrrev_b32 v2, 16, v2
        v_mul_u32_u24 v3, 12, v2
        v_sub_u32 v1, v1, v3
        v_lshrrev_b32 v3, 2, v1
        v_and_b32 v1, 3, v1
        v_lshlrev_b32 v1, 4, v1
        v_mad_u32_u24 v1, v3, 56, v1
        v_mul_u32_u24 v2, 2688, v2
        v_add_u32 v{vOA3+d}, v1, v2
        """)
    load_wa(0)
    NPRE = int(E("NPRE", "3"))
    for st in range(1, NPRE):
        load_x(st)
        load_wa(st)
    srd(p, sWS, 46, WS_BYTES)
    srd(p, sW2, 48, W1B)
    tr_lane(hLA, hLB, hLB + 1, 1, 2)
    p(f"""
    s_mul_i32 s{sTMP}, s{sWAVE}, {16*192}
    v_add_u32 v{hLA}, s{sTMP}, v{hLA}
    v_bfe_u32 v1, v0, 2, 1
    v_bfe_u32 v2, v0, 4, 1
    v_xor_b32 v1, v1, v2
    v_and_b32 v3, 3, v0
    v_lshlrev_b32 v3, 4, v3
    v_lshl_add_u32 v3, v1, 6, v3
    v_mul_u32_u24 v4, 3584, v4
    v_add_u32 v{vOB}, v4, v3
    v_and_b32 v1, 15, v0
    v_mov_b32 v3, 0x3f803f80
    v_cmp_eq_u32 vcc, v1, v2
    v_cndmask_b32 v{ONE}, 0, v3, vcc
    v_mov_b32 v{ONE+1}, v{ONE}
    v_mov_b32 v{ONE+2}, v{ONE}
    v_mov_b32 v{ONE+3}, v{ONE}
    s_lshl_b32 s{sOB}, s{sG}, 8
    s_mul_i32 s{sTMP}, s{sWAVE}, {56*3584}
    s_add_u32 s{sOB}, s{sOB}, s{sTMP}
    s_mul_i32 s{sT}, s{sWAVE}, 7168
    s_lshr_b32 s{sTMP}, s{sWAVE}, 1
    s_lshl_b32 s{sTMP}, s{sTMP}, 9
    s_and_b32 s{sTMP2}, s{sWAVE}, 1
    s_lshl_b32 s{sTMP2}, s{sTMP2}, 3
    s_add_u32 s{sTMP}, s{sTMP}, s{sTMP2}
    s_add_u32 s{sTMP}, s{sTMP}, {CFA}
    v_lshl_add_u32 v{hCW}, v0, 4, s{sTMP}
    v_lshlrev_b32 v{hL16}, 4, v0
    s_setprio {E("HP", "2")}
    s_add_u32 s{sTMP}, s2, s{sWAVE}
    s_cmp_lg_u32 s{sTMP}, 0
    s_cbranch_scc1 K_NOEP
    """)
    p.add(opt([f"s_memrealtime s[60:61]",
               "s_waitcnt lgkmcnt(0)",
               "s_or_b32 s60, s60, 1",
               "v_mov_b32 v2, 0",
               "v_mov_b32 v3, s60",
               "s_mov_b64 exec, 1",
               "global_store_dword v2, v3, s[54:55] sc0 sc1",
               "s_mov_b64 exec, -1"]))
    p("K_NOEP:")

    def publish(tiles, j0):
        for t in range(tiles):
            for r in range(2):
                c0 = CS + 4 * t + r
                a, b2, c2 = F + 8 * t + 4 * r, F + 8 * t + 4 * r + 1, F + 8 * t + 4 * r + 2
                p(f"""
                v_and_b32 v{a}, 0xffff0000, v{c0}
                v_sub_f32 v{b2}, v{c0}, v{a}
                v_and_b32 v{c2}, 0xffff0000, v{b2}
                v_sub_f32 v{b2}, v{b2}, v{c2}
                v_lshrrev_b32 v{a}, 16, v{a}
                v_or_b32 v{a}, v{a}, v{c2}
                v_lshrrev_b32 v{b2}, 16, v{b2}
                """)
        p("s_mov_b64 exec, 0xffff")
        for t in range(tiles):
            for r in range(2):
                p(f"ds_write_b64 v{hCW}, {vr(F+8*t+4*r,2)} offset:{1024*(j0+t)+256*r}")
        p("s_mov_b64 exec, -1")

    def colsum_a(st, between=None):
        if E("NOCS") and st < 6:
            if between:
                between()
            return
        p(f"v_add_u32 v2, {(st % 5) * SLOT}, v{hLA}")
        for j in range(3):
            p(f"ds_read_b64_tr_b16 {vr(F+4*j,2)}, v2 offset:{64*j}")
            p(f"ds_read_b64_tr_b16 {vr(F+4*j+2,2)}, v2 offset:{64*j+4*192}")
        if between:
            between()
        for j in range(3):
            p(f"{M16} {vr(CS+4*j,4)}, {vr(ONE,4)}, {vr(F+4*j,4)}, {'0' if st == 0 else vr(CS+4*j,4)}")
        if st == 6:
            publish(3, 0)

    def colsum_b(st):
        ph, hs = divmod(st - 7, 2)
        p(f"""
        s_add_u32 s{sTMP2}, s{sWAVE}, {2*hs}
        s_and_b32 s{sTMP2}, s{sTMP2}, 3
        s_lshl_b32 s{sTMP}, s{sTMP2}, 11
        s_add_u32 s{sTMP}, s{sTMP}, {(st % 5) * SLOT}
        v_add_u32 v2, s{sTMP}, v{hLB}
        v_add_u32 v3, s{sTMP}, v{hLB+1}
        """)
        for i in range(3):
            for t in range(2):
                b = F + 8 * i + 4 * t
                p(f"ds_read_b64_tr_b16 {vr(b,2)}, v{2+t} offset:{8192*i}")
                p(f"ds_read_b64_tr_b16 {vr(b+2,2)}, v{2+t} offset:{8192*i+512}")
        for i in range(3):
            for t in range(2):
                p(f"{M16} {vr(CS+4*t,4)}, {vr(ONE,4)}, {vr(F+8*i+4*t,4)}, {'0' if hs == 0 and i == 0 else vr(CS+4*t,4)}")
        p(f"""
        s_cmp_ge_u32 s{sTMP2}, 2
        s_cbranch_scc1 K_CB{st}
        """)
        o = []
        for t in range(2):
            b = F + 24 + 4 * t
            o += [f"ds_read_b64_tr_b16 {vr(b,2)}, v{2+t} offset:{8192*3}",
                  f"ds_read_b64_tr_b16 {vr(b+2,2)}, v{2+t} offset:{8192*3+512}"]
        o += ["s_waitcnt lgkmcnt(0)"]
        o += [f"{M16} {vr(CS+4*t,4)}, {vr(ONE,4)}, {vr(F+24+4*t,4)}, {vr(CS+4*t,4)}" for t in range(2)]
        p.add(opt(o))
        p(f"K_CB{st}:")
        if hs == 1:
            publish(2, 3 + 2 * ph)

    def bar(st):
        if st == 3:
            stamp(p, 2, "A")
        p(f"@wait st{st}")
        p("s_waitcnt lgkmcnt(0)")
        if st == 3:
            stamp(p, 3, "A")
        p("s_barrier")
        if st in (2, 3, 4):
            stamp(p, {2: 1, 3: 4, 4: 5}[st], "A")

    def load(st):
        if st < 7:
            load_x(st)
            load_wa(st)
        elif st < 11:
            load_b(st)

    bar(0)
    KSPLIT = 7 - NPRE
    for k in range(KSPLIT):
        colsum_a(k, lambda: load(k + NPRE))
        bar(k + 1)
    p(f"""
    s_cmp_ge_u32 s{sG}, 14
    s_cbranch_scc1 K_HTR
    """)
    p.flush()
    tr_h, hist_h = p.tr.copy(), list(p.out[-60:])
    for k in range(KSPLIT, 7):
        colsum_a(k, lambda: load(k + NPRE))
        bar(k + 1)
    for k in range(7, 11):
        load(k + NPRE)
        colsum_b(k)
        bar(k + 1)
    p("s_branch K_GEMM")
    p.flush()

    sU, sSL = sOA, sT

    def relayout_load(src_off_reg):
        for d in range(14):
            if d % 4 == 0:
                p(f"s_add_u32 m0, s{sSL}, {1024*d}")
                p(f"s_add_u32 s{sTMP}, s{src_off_reg}, {1024*d}")
            p(f"buffer_load_dwordx4 v{hL16}, s[{sW}:{sW+3}], s{sTMP} offen offset:{1024*(d%4)} lds", tag="rl")

    def relayout_store(dst_reg, stride, zero_reg=None):
        p(f"""
        v_lshrrev_b32 v2, 5, v0
        v_lshlrev_b32 v3, 2, v2
        v_bfe_u32 v2, v0, 2, 2
        v_add_u32 v3, v3, v2
        v_mul_u32_u24 v3, 896, v3
        v_bfe_u32 v2, v0, 4, 1
        v_lshl_add_u32 v3, v2, 5, v3
        v_and_b32 v2, 3, v0
        v_lshl_add_u32 v3, v2, 3, v3
        v_add_u32 v3, s{sSL}, v3
        v_mov_b32 v2, {EPA}
        s_waitcnt vmcnt(0)
        ds_read_b32 v4, v2
        """)
        for t in range(14):
            p(f"ds_read_b64_tr_b16 {vr(F+4*t,2)}, v3 offset:{64*t}")
            p(f"ds_read_b64_tr_b16 {vr(F+4*t+2,2)}, v3 offset:{64*t+8*896}")
        if zero_reg is not None:
            p("s_waitcnt lgkmcnt(0)")
            p("s_mov_b32 exec_lo, 0")
            p(f"s_mov_b32 exec_hi, s{zero_reg}")
            for t in range(14):
                p(f"v_mov_b32 v{F+4*t+2}, 0")
                p(f"v_mov_b32 v{F+4*t+3}, 0")
            p("s_mov_b64 exec, -1")
        for t in range(14):
            p(f"buffer_store_dwordx4 {vr(F+4*t,4)}, v{hL16}, s[{sWS}:{sWS+3}], s{dst_reg} offen sc1")
            p(f"s_add_u32 s{dst_reg}, s{dst_reg}, {stride}")
        p(f"""
        s_lshl_b32 s{sTMP}, s{sU}, 2
        s_add_u32 s{sTMP}, s{sTMP}, {FW}
        s_mov_b64 exec, 1
        s_waitcnt vmcnt(0) lgkmcnt(0)
        buffer_store_dword v4, v{hL16}, s[{sWS}:{sWS+3}], s{sTMP} offen sc1
        s_mov_b64 exec, -1
        """)

    p.tr = tr_h
    p("K_HTR:")
    for k in range(KSPLIT, 4):
        colsum_a(k)
        bar(k + 1)
    srd(p, sW, 50, W2B)
    p(f"""
    s_sub_u32 s{sU}, s{sG}, 14
    s_lshl_b32 s{sU}, s{sU}, 6
    s_add_u32 s{sU}, s{sU}, s{sMT}
    s_add_u32 s{sU}, s{sU}, s{sWAVE}
    s_mul_i32 s{sSL}, s{sWAVE}, 14336
    s_add_u32 s{sSL}, s{sSL}, {2*SLOT}
    s_mul_i32 s{sTMP3}, s{sU}, {16*896}
    """)
    relayout_load(sTMP3)
    for k in range(max(4, KSPLIT), 7):
        colsum_a(k)
        if k < 6:
            bar(k + 1)
    p(f"""
    s_waitcnt lgkmcnt(0)
    s_barrier
    s_cmp_ge_u32 s{sU}, 112
    s_cbranch_scc1 K_GEMM
    s_lshl_b32 s{sTMP3}, s{sU}, 10
    s_add_u32 s{sTMP3}, s{sTMP3}, {W2F}
    """)
    seq2 = add_waits(p.cur, p.tr)
    p.out += pad_hazards(seq2, hist_h)
    p.cur = []
    relayout_store(sTMP3, 114688)
    p("s_branch K_GEMM")
    p.flush()
    p.tr = Tracker()
    p(f"""
    K_HWO:
    s_cmp_lg_u32 s{sG}, 7
    s_cbranch_scc1 K_END
    s_cmp_ge_u32 s{sWAVE}, 2
    s_cbranch_scc1 K_END
    """)
    srd(p, sW, 44, WOB)
    p(f"""
    s_lshr_b32 s{sU}, s{sMT}, 1
    s_add_u32 s{sU}, s{sU}, s{sWAVE}
    s_lshr_b32 s{sTMP3}, s{sMT}, 2
    s_mul_i32 s{sTMP3}, s{sTMP3}, {28*896}
    s_mul_i32 s{sTMP}, s{sWAVE}, {16*896}
    s_add_u32 s{sTMP3}, s{sTMP3}, s{sTMP}
    s_mul_i32 s{sSL}, s{sWAVE}, 14336
    s_add_u32 s{sSL}, s{sSL}, {2*SLOT}
    """)
    relayout_load(sTMP3)
    p(f"""
    s_lshl_b32 s{sTMP3}, s{sU}, 10
    s_add_u32 s{sTMP3}, s{sTMP3}, {WOF}
    s_add_u32 s{sU}, s{sU}, 128
    s_sub_u32 s{sTMP2}, 0, s{sWAVE}
    """)
    relayout_store(sTMP3, 32768, sTMP2)
    p("s_endpgm")
    p.flush()

    p.tr = Tracker()
    sOUT = sW2
    sA0, sA1, sB0, sB1, sNT, sMP, sNP = sXO, sOA, sOB, sT, sTY, sHEAD, sQB
    AC0 = 8
    Gv = [24, 40, 56, 72, 88, 104]
    Ga = [112]
    WO = 48
    XR = 120
    NBUF = 7

    def Gbuf(b, off, n):
        return vr(Gv[b] + off, n) if b < 6 else ar(Ga[b - 6] + off, n)

    def Gacc(u):
        return vr(AC0, 16) if u == 0 else ar(16 * (u - 1), 16)

    vXO, vA1, vA2, vA3, vRA, vF = 2, 3, 4, 5, 6, 7
    p(f"""
    K_GEMM:
    s_setprio 0
    s_lshr_b32 s{sNP}, s{sI}, 2
    s_cmp_ge_u32 s{sNP}, 7
    s_cbranch_scc1 K_HWO
    """)
    stamp(p, 1)
    p(f"""
    v_mov_b32 v2, {EPA}
    ds_read_b32 v3, v2
    s_lshl_b32 s{sMP}, s{sJ}, 2
    s_and_b32 s{sTMP}, s{sI}, 3
    s_add_u32 s{sMP}, s{sMP}, s{sTMP}
    s_lshr_b32 s{sTMP}, s{sWAVE}, 1
    s_lshl_b32 s{sMT}, s{sMP}, 1
    s_add_u32 s{sMT}, s{sMT}, s{sTMP}
    s_and_b32 s{sTMP}, s{sWAVE}, 1
    s_lshl_b32 s{sNT}, s{sNP}, 1
    s_add_u32 s{sNT}, s{sNT}, s{sTMP}
    s_mul_i32 s{sTMP}, s{sWAVE}, {28*1024}
    s_mul_i32 s{sA0}, s{sNT}, 114688
    s_xor_b32 s{sTMP2}, s{sNT}, 1
    s_mul_i32 s{sA1}, s{sTMP2}, 114688
    s_mul_i32 s{sB0}, s{sMT}, 114688
    s_xor_b32 s{sTMP2}, s{sMT}, 1
    s_mul_i32 s{sB1}, s{sTMP2}, 114688
    s_add_u32 s{sTMP2}, s{sTMP}, {W2F}
    s_add_u32 s{sA0}, s{sA0}, s{sTMP2}
    s_add_u32 s{sA1}, s{sA1}, s{sTMP2}
    s_add_u32 s{sTMP2}, s{sTMP}, {HF}
    s_add_u32 s{sB0}, s{sB0}, s{sTMP2}
    s_add_u32 s{sB1}, s{sB1}, s{sTMP2}
    v_readfirstlane_b32 s{sEP}, v3
    """)
    for i in range(48):
        p(f"v_accvgpr_write_b32 a{i}, 0")
    for i in range(16):
        p(f"v_mov_b32 v{AC0+i}, 0")
    p(f"""
    v_mov_b32 v2, {EPA+4}
    s_cmp_lg_u32 s{sWAVE}, 0
    s_cbranch_scc1 K_PL
    v_lshlrev_b32 v{vF}, 2, v0
    v_add_u32 v{vF}, {FW}, v{vF}
    s_sleep {E('SLH0', '60')}
    """)
    poll(p, "K_PW0", XR, vF, sWS, "0", sEP, sCNT, E("SLH", "24"))
    p(f"v_add_u32 v{vF}, 256, v{vF}")
    p(f"v_min_u32 v{vF}, {FW + 111*4}, v{vF}")
    poll(p, "K_PW1", XR, vF, sWS, "0", sEP, sCNT, E("SLH", "24"))
    p(f"""
    v_and_b32 v4, 15, v0
    v_min_u32 v4, 13, v4
    v_bfe_u32 v5, v0, 4, 1
    v_lshl_add_u32 v4, v5, 4, v4
    s_lshl_b32 s{sTMP}, s{sMP}, 7
    s_add_u32 s{sTMP}, s{sTMP}, {FH}
    v_lshl_add_u32 v{vF}, v4, 2, s{sTMP}
    """)
    poll(p, "K_PH", XR, vF, sWS, "0", sEP, sCNT, E("SLH", "24"))
    p(f"""
    ds_write_b32 v2, v3
    s_branch K_PLX
    K_PL:
    s_mov_b32 s{sCNT}, {POLL_MAX*4}
    K_PL1:
    s_sleep 8
    ds_read_b32 v4, v2
    s_sub_u32 s{sCNT}, s{sCNT}, 1
    s_cmp_eq_u32 s{sCNT}, 0
    s_waitcnt lgkmcnt(0)
    s_cbranch_scc1 K_PLX
    v_cmp_ne_u32 vcc, s{sEP}, v4
    s_nop 1
    s_cbranch_vccnz K_PL1
    K_PLX:
    """)
    p.flush()
    stamp(p, 2)
    so = [sA0, sA1, sB0, sB1]

    def gload(k):
        b = k % NBUF
        o = [I(f"buffer_load_dwordx4 {Gbuf(b,4*j,4)}, v{hL16}, s[{sWS}:{sWS+3}], s{so[j]} offen offset:{1024*(b%4)} sc1") for j in range(4)]
        if b == 3 or b == 6:
            o += [I(f"s_add_u32 s{r}, s{r}, {4096 if b == 3 else 3072}") for r in so]
        return o

    def gmm(b):
        return [I(f"{MF} {Gacc(u)}, {Gbuf(b,4*(u&1),4)}, {Gbuf(b,8+4*(u>>1),4)}, {Gacc(u)}") for u in (1, 2, 3, 0)]

    for k in range(NBUF):
        p.add(gload(k))
    p(f"s_mov_b32 s{sCNT}, 3")
    body = [I("K_GL:")]
    for b in range(NBUF):
        body += gmm(b) + gload(b)
    body += [I(f"s_sub_u32 s{sCNT}, s{sCNT}, 1"), I(f"s_cmp_lg_u32 s{sCNT}, 0"), I("s_cbranch_scc1 K_GL")]
    p.loop(body)
    p(f"""
    s_lshl_b32 s{sTMP}, s{sWAVE}, 13
    s_lshl_b32 s{sA0}, s{sNT}, 15
    s_add_u32 s{sA0}, s{sA0}, s{sTMP}
    s_add_u32 s{sA0}, s{sA0}, {WOF}
    s_xor_b32 s{sA1}, s{sA0}, 0x8000
    s_lshl_b32 s{sB0}, s{sMT}, 15
    s_add_u32 s{sB0}, s{sB0}, s{sTMP}
    s_add_u32 s{sB0}, s{sB0}, {OF}
    s_xor_b32 s{sB1}, s{sB0}, 0x8000
    """)
    srd(p, sOUT, 52, XB)
    p(f"""
    v_and_b32 v{vF}, 7, v0
    s_lshl_b32 s{sTMP}, s{sWAVE}, 5
    s_add_u32 s{sTMP}, s{sTMP}, {FW + 128*4}
    v_lshl_add_u32 v{vF}, v{vF}, 2, s{sTMP}
    """)
    poll(p, "K_PWO", XR, vF, sWS, "0", sEP, sCNT, 24)
    wl = []
    for s in range(8):
        if s == 4:
            wl += [I(f"s_add_u32 s{r}, s{r}, 4096") for r in (sA0, sA1)]
        for j in range(2):
            wl.append(I(f"buffer_load_dwordx4 {ar(WO+8*s+4*j,4)}, v{hL16}, s[{sWS}:{sWS+3}], s{so[j]} offen offset:{1024*(s%4)} sc1"))
    last = []
    for b in range(NBUF):
        last += gmm(b)
    p.add(interleave(last, wl))
    stamp(p, 3)
    p(f"""
    v_and_b32 v{vF}, 31, v0
    v_mul_u32_u24 v{vF}, 896, v{vF}
    v_lshrrev_b32 v{vRA}, 5, v0
    v_lshl_add_u32 v{vXO}, v{vRA}, 3, v{vF}
    s_mul_i32 s{sTMP3}, s{sMT}, 28672
    s_lshl_b32 s{sTMP2}, s{sNT}, 6
    s_add_u32 s{sTMP3}, s{sTMP3}, s{sTMP2}
    """)
    for q in range(4):
        p(f"buffer_load_dwordx2 {vr(XR+2*q,2)}, v{vXO}, s[{sX}:{sX+3}], s{sTMP3} offen offset:{16*q}")
    p(f"v_lshl_add_u32 v{vXO}, v{vRA}, 4, v{vF}")
    vAs = [None, vA1, vA2, vA3]
    for u in range(1, 4):
        p(f"""
        s_xor_b32 s{sTMP2}, s{sWAVE}, {u}
        s_mul_i32 s{sTMP2}, s{sTMP2}, 3
        s_add_u32 s{sTMP2}, s{sTMP2}, {u-1+12}
        s_lshl_b32 s{sTMP2}, s{sTMP2}, 12
        v_add_u32 v{vAs[u]}, s{sTMP2}, v{hL16}
        """)
    UN = Gv[4]
    p(f"""
    s_mul_i32 s{sTMP2}, s{sWAVE}, {3*4096}
    s_add_u32 s{sTMP2}, s{sTMP2}, {48*1024}
    v_add_u32 v{vRA}, s{sTMP2}, v{hL16}
    v_and_b32 v{vF}, 31, v0
    v_lshlrev_b32 v{vF}, 2, v{vF}
    s_lshl_b32 s{sTMP}, s{sMP}, 7
    s_add_u32 s{sTMP}, s{sTMP}, {FO}
    """)
    for i in range(8):
        p(f"v_lshlrev_b32 v{UN+2*i}, 16, v{XR+i}")
        p(f"v_and_b32 v{UN+2*i+1}, 0xffff0000, v{XR+i}")
    for r in range(16):
        p(f"v_add_f32 v{AC0+r}, v{AC0+r}, v{UN+r}")
    p("s_waitcnt vmcnt(0)")
    p("s_barrier")
    stamp(p, 4)
    p(f"""
    s_cmp_lg_u32 s{sWAVE}, 0
    s_cbranch_scc1 K_POX
    s_sleep {E("SL0", "40")}
    """)
    poll(p, "K_PO", XR, vF, sWS, f"s{sTMP}", sEP, sCNT, E("SL1", "6"))
    p("s_barrier")
    stamp(p, 5)
    OFv = Gv[0]
    for s in range(8):
        if s == 4:
            for r in (sB0, sB1):
                p(f"s_add_u32 s{r}, s{r}, 4096")
        for j in range(2):
            p(f"buffer_load_dwordx4 {vr(OFv+8*s+4*j,4)}, v{hL16}, s[{sWS}:{sWS+3}], s{so[2+j]} offen offset:{1024*(s%4)} sc1")
    for s in range(8):
        for u in (1, 2, 3, 0):
            p(f"{MF} {Gacc(u)}, {ar(WO+8*s+4*(u&1),4)}, {vr(OFv+8*s+4*(u>>1),4)}, {Gacc(u)}")
    stamp(p, 6)
    for u in range(1, 4):
        for q in range(4):
            p(f"ds_write_b128 v{vAs[u]}, {ar(16*(u-1)+4*q,4)} offset:{1024*q}")
    p("s_waitcnt lgkmcnt(0)")
    p("s_barrier")
    R = Gv[0]
    for i in range(3):
        for q in range(4):
            p(f"ds_read_b128 {vr(R+16*i+4*q,4)}, v{vRA} offset:{4096*i+1024*q}")
    for i in range(3):
        for r in range(0, 16, 2):
            p(f"v_pk_add_f32 {vr(AC0+r,2)}, {vr(AC0+r,2)}, {vr(R+16*i+r,2)}")
    PK = XR
    for i in range(8):
        p(f"v_cvt_pk_bf16_f32 v{PK+i}, v{AC0+2*i}, v{AC0+2*i+1}")
    for qq in range(2):
        p(f"v_permlane32_swap_b32 v{PK+4*qq}, v{PK+4*qq+2}")
        p(f"v_permlane32_swap_b32 v{PK+4*qq+1}, v{PK+4*qq+3}")
    for qq in range(2):
        p(f"buffer_store_dwordx4 {vr(PK+4*qq,4)}, v{vXO}, s[{sOUT}:{sOUT+3}], s{sTMP3} offen offset:{32*qq}")
    stamp_out(p, 7, sWS, sWAVE, 2, 3, wave_add=4)
    p("K_END:")
    p("s_endpgm")
    return p.text()


HEADER = f"""; Kernarg layout for this problem (72 bytes, ptrs only, base s[0:1]):
; @launch grid=(256,1,1) block=(512,1,1) lds={LDS_BYTES}
.amdgcn_target "amdgcn-amd-amdhsa--gfx950"
.text
.globl {NAME}_kernel
.p2align 8
.type {NAME}_kernel,@function
{NAME}_kernel:
"""

KD = f"""
.section .rodata,"a"
.p2align 6
.amdhsa_kernel {NAME}_kernel
  .amdhsa_next_free_vgpr 256
  .amdhsa_next_free_sgpr {{ns}}
  .amdhsa_accum_offset 128
  .amdhsa_group_segment_fixed_size 0
  .amdhsa_kernarg_size 72
  .amdhsa_user_sgpr_count 2
  .amdhsa_user_sgpr_kernarg_segment_ptr 1
  .amdhsa_system_sgpr_workgroup_id_x 1
.end_amdhsa_kernel
"""


def main():
    global STAMP
    STAMP = len(sys.argv) > 2 and sys.argv[2] == "stamp"
    txt = HEADER + gen() + KD.format(ns=100 if STAMP else 64)
    out = sys.argv[1] if len(sys.argv) > 1 else f"cdna_kernels/{NAME}.s"
    open(out, "w").write(txt)
    print("wrote", out, len(txt), "bytes")


if __name__ == "__main__":
    main()
```

```python
import sys, struct, os
from asmgen import *

NAME = "parallel_sum__mha_block__dense_activation_relu__prompt"
E = os.environ.get

QF = 0
KVF = 2 << 20
HF = 6 << 20
W2F = 13 << 20
WOF = 15 << 20
OF = 16 << 20
FLG = 18 << 20
FQ = FLG
FH = FLG + 4096
FW = FLG + 8192
FO = FLG + 12288
WS_BYTES = 19 << 20

XB = 2048 * 448 * 2
WQKVB = 448 * 1344 * 2
WOB = 448 * 448 * 2
W1B = 448 * 1792 * 2
W2B = 1792 * 448 * 2

MF = "v_mfma_f32_32x32x16_bf16"
M16 = "v_mfma_f32_16x16x32_bf16"

SLOT = 28672
WAB = 64 * 192
CFA = 5 * SLOT
VSC = CFA + 7168
EPA = VSC + 4096
STQ, STH1, STH2 = 1 * SLOT, 2 * SLOT, 3 * SLOT
LDS_BYTES = EPA + 64
REF_OFF = 90.0
L_LIMIT = 2.0 ** 50
POLL_MAX = 0x40000


def f32bits(x):
    return struct.unpack("<I", struct.pack("<f", x))[0]


def vr(b, n):
    return f"v[{b}:{b+n-1}]"


def ar(b, n):
    return f"a[{b}:{b+n-1}]"


def srd(p, d, base, nbytes):
    p(f"""
    s_mov_b32 s{d}, s{base}
    s_and_b32 s{d+1}, s{base+1}, 0xffff
    s_mov_b32 s{d+2}, {nbytes}
    s_mov_b32 s{d+3}, 0x00020000
    """)


STAMP = False
STAMP_BASE = 32 << 20


def stamp(p, i, diag=None):
    if E("DIAG") and i > 0 and i < 7 and diag != E("DIAG"):
        return
    if not E("DIAG") and diag:
        return
    if STAMP:
        p(f"s_memrealtime s[{64+4*i}:{65+4*i}]")
        p(f"s_memtime s[{66+4*i}:{67+4*i}]")
        p("s_waitcnt lgkmcnt(0)")


def stamp_out(p, n, sWS, sWAVE, vtmp=1, vtmp2=2, wave_add=0):
    if not STAMP:
        return
    p("s_waitcnt vmcnt(0) lgkmcnt(0)")
    stamp(p, n)
    p(f"v_mov_b32 v{vtmp}, 0")
    for i in range(n + 1):
        p(f"v_writelane_b32 v{vtmp}, s{64+4*i}, {i}")
        p(f"v_writelane_b32 v{vtmp}, s{66+4*i}, {16+i}")
    p(f"""
    s_lshl_b32 s62, s2, 3
    s_add_u32 s62, s62, s{sWAVE}
    s_add_u32 s62, s62, {wave_add}
    s_lshl_b32 s62, s62, 8
    s_add_u32 s62, s62, {STAMP_BASE}
    v_lshlrev_b32 v{vtmp2}, 2, v0
    s_mov_b32 s{sWS+2}, {64 << 20}
    buffer_store_dword v{vtmp}, v{vtmp2}, s[{sWS}:{sWS+3}], s62 offen
    """)


def poll(p, name, vdst, vaddr, sWS, soff, sEP, sCNT, sleep):
    p.flush()
    p(f"""
    s_mov_b32 s{sCNT}, {POLL_MAX}
    {name}:
    buffer_load_dword v{vdst}, v{vaddr}, s[{sWS}:{sWS+3}], {soff} offen sc1
    s_sub_u32 s{sCNT}, s{sCNT}, 1
    s_cmp_eq_u32 s{sCNT}, 0
    s_waitcnt vmcnt(0)
    s_cbranch_scc1 {name}X
    v_cmp_ne_u32 vcc, s{sEP}, v{vdst}
    s_nop 1
    s_cbranch_vccz {name}X
    s_sleep {sleep}
    s_branch {name}
    {name}X:
    """)
    p.flush()


def gen():
    p = Prog()
    sX, sW, sW2, sWS, sKVR = 4, 8, 12, 16, 56
    (sWAVE, sMT, sG, sTMP, sTMP2, sTMP3, sST, sTY, sM0, sXO, sT, sONE, sOA, sOB, sEP, sCNT,
     sJ, sI, sHEAD, sQB) = range(20, 40)
    sKV, sKV2, sKV0 = sXO, sOA, sOB
    sVS, sVT = sM0, sONE
    p(f"""
    s_cmp_ge_u32 s2, 256
    s_cbranch_scc1 K_END
    s_load_dwordx4 s[40:43], s[0:1], 0
    s_load_dwordx2 s[44:45], s[0:1], 16
    s_load_dwordx8 s[48:55], s[0:1], 32
    s_load_dwordx2 s[46:47], s[0:1], 64
    v_lshrrev_b32 v1, 6, v0
    v_and_b32 v0, 63, v0
    v_readfirstlane_b32 s{sWAVE}, v1
    s_and_b32 s{sJ}, s2, 7
    s_lshr_b32 s{sI}, s2, 3
    s_lshr_b32 s{sMT}, s{sJ}, 1
    s_lshl_b32 s{sMT}, s{sMT}, 2
    s_and_b32 s{sTMP}, s{sI}, 3
    s_add_u32 s{sMT}, s{sMT}, s{sTMP}
    s_lshl_b32 s{sMT}, s{sMT}, 2
    s_and_b32 s{sG}, s{sJ}, 1
    s_lshl_b32 s{sG}, s{sG}, 3
    s_lshr_b32 s{sTMP}, s{sI}, 2
    s_add_u32 s{sG}, s{sG}, s{sTMP}
    s_cmp_ge_u32 s{sWAVE}, 4
    s_waitcnt lgkmcnt(0)
    s_cbranch_scc1 K_HELPER
    """)
    stamp(p, 0)
    srd(p, sWS, 46, WS_BYTES)

    def tr_lane(dstA, dstB0, dstB1, t0, t1):
        p(f"""
        v_lshrrev_b32 v{t0}, 5, v0
        v_lshlrev_b32 v{t0}, 3, v{t0}
        v_bfe_u32 v{t1}, v0, 2, 2
        v_add_u32 v{t0}, v{t0}, v{t1}
        v_bfe_u32 v{t1}, v0, 4, 1
        v_lshlrev_b32 v{dstB0}, 5, v{t1}
        v_and_b32 v{t1}, 3, v0
        v_lshl_add_u32 v{dstB0}, v{t1}, 3, v{dstB0}
        v_mul_u32_u24 v{dstA}, 192, v{t0}
        v_add_u32 v{dstA}, v{dstA}, v{dstB0}
        v_lshl_add_u32 v{dstB0}, v{t0}, 7, v{dstB0}
        v_bfe_u32 v{t1}, v0, 3, 1
        v_lshl_add_u32 v{dstB0}, v{t1}, 6, v{dstB0}
        v_xor_b32 v{dstB1}, 64, v{dstB0}
        """)

    X = 0
    CFt, XM = 112, 116
    accs = [16, 32, 48, 64, 80, 16, 32]
    NW = int(E('NW', '8'))
    WF = 96
    GR, SX, ONEc, vXA, vLA, vXC, vSW, vSR = 64, 80, 84, 88, 92, 93, 94, 95
    ST = 64
    vL16, vLB0, vLB1, vC0, vC1, vCF, vA, vRINV, vVW, vVR, vMA, vOA, vT0, vT1, vPL = range(1, 16)
    p(f"s_add_u32 s{sMT}, s{sMT}, s{sWAVE}")
    tr_lane(vLA, vLB0, vLB1, vA, vRINV)
    p(f"""
    v_lshrrev_b32 v{vT1}, 5, v0
    v_and_b32 v{vT0}, 31, v0
    v_bfe_u32 v{vA}, v0, 1, 3
    v_xor_b32 v{vA}, v{vT1}, v{vA}
    s_lshl_b32 s{sTMP}, s{sWAVE}, 12
    s_add_u32 s{sTMP}, s{sTMP}, {WAB}
    v_lshl_add_u32 v{vRINV}, v{vT0}, 7, s{sTMP}
    v_lshlrev_b32 v{vL16}, 4, v0
    """)
    for sp in range(4):
        p(f"v_xor_b32 v{vXA+sp}, {2*sp}, v{vA}")
        p(f"v_lshl_add_u32 v{vXA+sp}, v{vXA+sp}, 4, v{vRINV}")
    p(f"""
    v_and_b32 v{vA}, 15, v0
    v_bfe_u32 v{vRINV}, v0, 4, 1
    v_mov_b32 v{vCF}, 0x3f803f80
    v_cmp_eq_u32 vcc, v{vA}, v{vRINV}
    v_cndmask_b32 v{ONEc}, 0, v{vCF}, vcc
    v_mov_b32 v{ONEc+1}, v{ONEc}
    v_mov_b32 v{ONEc+2}, v{ONEc}
    v_mov_b32 v{ONEc+3}, v{ONEc}
    v_add_u32 v{vCF}, {CFA}, v{vL16}
    s_mul_i32 s{sT}, s{sG}, 3
    s_lshl_b32 s{sTMP}, s{sWAVE}, 10
    s_add_u32 s{sTMP}, s{sTMP}, {VSC}
    v_lshl_add_u32 v{vSW}, v{vT0}, 4, s{sTMP}
    v_and_b32 v{vA}, 3, v0
    v_lshl_add_u32 v{vSR}, v{vA}, 2, v{vSW}
    s_lshl_b32 s{sTMP}, s{sWAVE}, 11
    s_add_u32 s{sTMP}, s{sTMP}, {STQ}
    v_add_u32 v{vVW}, s{sTMP}, v{vL16}
    s_lshl_b32 s{sHEAD}, s{sJ}, 1
    s_and_b32 s{sTMP}, s{sI}, 1
    s_add_u32 s{sHEAD}, s{sHEAD}, s{sTMP}
    s_lshr_b32 s{sQB}, s{sI}, 1
    """)
    p(f"""
    s_add_u32 s{sTMP}, s{sHEAD}, 16
    s_mul_i32 s{sTMP}, s{sTMP}, 43
    s_lshr_b32 s{sTMP}, s{sTMP}, 7
    s_lshl_b32 s{sTMP}, s{sTMP}, 8
    v_mov_b32 v{vPL}, s{sTMP}
    s_lshl_b32 s{sTMP2}, s{sWAVE}, 6
    s_add_u32 s{sTMP}, s{sTMP}, s{sTMP2}
    v_and_b32 v{vA}, 15, v0
    s_mov_b64 exec, 0xffff
    v_lshl_add_u32 v{vPL}, v{vA}, 2, s{sTMP}
    s_add_u32 s{sTMP}, s{sHEAD}, 32
    s_mul_i32 s{sTMP}, s{sTMP}, 43
    s_lshr_b32 s{sTMP}, s{sTMP}, 7
    s_lshl_b32 s{sTMP}, s{sTMP}, 8
    s_add_u32 s{sTMP}, s{sTMP}, s{sTMP2}
    s_mov_b32 exec_lo, 0xffff0000
    v_lshl_add_u32 v{vPL}, v{vA}, 2, s{sTMP}
    s_mul_i32 s{sTMP}, s{sHEAD}, 43
    s_lshr_b32 s{sTMP}, s{sTMP}, 7
    s_lshl_b32 s{sTMP}, s{sTMP}, 8
    s_lshl_b32 s{sTMP2}, s{sQB}, 4
    s_add_u32 s{sTMP}, s{sTMP}, s{sTMP2}
    s_mov_b32 exec_lo, 0
    s_mov_b32 exec_hi, 15
    v_lshl_add_u32 v{vPL}, v{vA}, 2, s{sTMP}
    s_mov_b64 exec, -1
    v_add_u32 v{vPL}, {FQ}, v{vPL}
    """)

    seq = []
    for st in range(7):
        for sp in range(4):
            for j in range(3):
                seq.append((st, 4 * st + sp, j))
    for ph in range(2):
        for hs in range(2):
            for sp in range(14):
                for j in range(2):
                    seq.append((7 + 2 * ph + hs, 14 * hs + sp, 3 + 2 * ph + j))
    NA = 84

    def rdw(n):
        st, s, j = seq[n]
        b = WF + 4 * (n % NW)
        if st < 7:
            va, off, d = vC0, (s & 3) * 16 * 192 + 64 * j, 4 * 192
        else:
            va, off, d = (vC0 if (j - 3) % 2 == 0 else vC1), (s % 14) * 16 * 128, 4 * 128
        return [I(f"ds_read_b64_tr_b16 {vr(b,2)}, v{va} offset:{off}"),
                I(f"ds_read_b64_tr_b16 {vr(b+2,2)}, v{va} offset:{off+d}")]

    def mfma(n):
        st, s, j = seq[n]
        acc = vr(accs[j], 16)
        return I(f"{MF} {acc}, {vr(WF+4*(n%NW),4)}, {ar(X+4*s,4)}, {'0' if s == 0 else acc}")

    def enter(st):
        base = (st % 5) * SLOT
        o = [I("s_waitcnt lgkmcnt(0)"), I("s_barrier")] if st <= 7 or st == 9 else []
        if st < 7:
            o.append(I(f"v_add_u32 v{vC0}, {base}, v{vLA}"))
            for sp in range(4):
                o.append(I(f"v_add_u32 v{vXC}, {base}, v{vXA+sp}"))
                o.append(I(f"ds_read_b128 {ar(X+4*(4*st+sp),4)}, v{vXC}"))
        elif st < 11:
            o.append(I(f"v_add_u32 v{vC0}, {base}, v{vLB0}"))
            o.append(I(f"v_add_u32 v{vC1}, {base}, v{vLB1}"))
        return o

    def stats(st):
        f = {}
        for sp in range(4):
            s_ = 4 * st + sp
            x = ar(X + 4 * s_, 4)
            f[3 * sp] = [I(f"{MF} {vr(GR,16)}, {x}, {x}, {'0' if s_ == 0 else vr(GR,16)}")]
            f[3 * sp + 1] = [I(f"{M16} {vr(SX,4)}, {vr(ONEc,4)}, {x}, {'0' if s_ == 0 else vr(SX,4)}")]
        return f

    AH = NW - 1

    def stream(n0, n1, fill, rs, limit):
        out = []
        q = rs.setdefault("q", [])
        RL = int(E("RL", "3"))

        def refill(n):
            while rs["next"] <= min(n + AH, limit - 1):
                m = rs["next"]
                if seq[m][0] != rs["stage"]:
                    en = enter(seq[m][0])
                    if en[0].kind == "valu":
                        q.extend(("rd", m, [x]) for x in en)
                    else:
                        q.append(("bar", m, en))
                    rs["stage"] = seq[m][0]
                for x in rdw(m):
                    q.append(("rd", m, [x]))
                rs["next"] = m + 1

        def drain(n, budget):
            rs["slot"] = rs.get("slot", 0) + 1
            while q:
                kind, m, ins = q[0]
                must = m <= n + 2
                if kind == "bar":
                    if rs["slot"] < rs["last_at"] + 2 and not must:
                        break
                    q.pop(0)
                    k = [i for i, x in enumerate(ins) if x.op == "s_barrier"][0] + 1
                    while k < len(ins) and ins[k].kind != "valu":
                        k += 1
                    out.extend(ins[:k])
                    rest = ins[k:]
                    q[:0] = [("rd", m, [x]) for x in rest]
                    budget -= 1
                    continue
                if budget <= 0 and not must:
                    break
                q.pop(0)
                out.extend(ins)
                if ins[0].kind == "ds":
                    budget -= 2 if "b128" in ins[0].op else 1
                    rs["last_at"] = rs["slot"]

        for n in range(n0, n1):
            out.append(mfma(n))
            refill(n)
            drain(n, RL)
            if fill and (n - n0) in fill:
                for x in fill[n - n0]:
                    out.append(x)
                    if x.kind == "mfma":
                        drain(n, RL if x.passes == 8 else 1)
        return out

    rs = {"next": 0, "stage": 0, "last_at": -9}
    p.add(enter(0))
    stamp(p, 1)
    for m in range(AH):
        p.add(rdw(m))
    rs["next"] = AH
    for st in range(7):
        if st == 4:
            p(f"v_mov_b32 v{vT0}, 0")
            p(f"global_load_dword v{vT1}, v{vT0}, s[54:55] sc0 sc1")
        f = stats(st)
        if st < 6:
            b0 = 13 - AH
            f = {b0: f[0] + f[1], b0 + 1: f[3] + f[4], b0 + 2: f[6] + f[7], b0 + 3: f[9] + f[10]}
        if st == 6:
            f = {0: f[0] + f[1], 1: f[3] + f[4], 2: f[6] + f[7], 3: f[9] + f[10]}
            ex = []
            for q in range(4):
                ex += [f"s_mov_b32 exec_lo, {0xF << (8*q):#x}", f"s_mov_b32 exec_hi, {0xF0 << (8*q):#x}",
                       f"ds_write_b128 v{vSW}, {vr(GR+4*q,4)}"]
            ex += ["s_mov_b64 exec, 0xffff",
                   f"ds_write_b32 v{vSW}, v{SX} offset:512",
                   f"ds_write_b32 v{vSW}, v{SX+1} offset:768",
                   "s_mov_b64 exec, -1",
                   f"ds_read_b32 v{ST+4}, v{vSR}",
                   f"ds_read_b32 v{ST}, v{vSW} offset:512"]
            f[7] = [I(x) for x in ex]
        if E("NOST") and st < 6:
            f = None
        p.add(stream(12 * st, 12 * st + (12 if st < 6 else 9), f, rs, NA))
    T = ST
    fin = [I(x.strip()) for x in f"""
    v_mul_f32 v{T}, {f32bits(1.0/448.0):#x}, v{T}
    v_mul_f32 v{T+4}, {f32bits(1.0/448.0):#x}, v{T+4}
    v_fma_f32 v{T+4}, -v{T}, v{T}, v{T+4}
    v_cvt_pk_bf16_f32 v{T+1}, -v{T}, -v{T}
    v_max_f32 v{T+4}, 0, v{T+4}
    v_and_b32 v{T+2}, 0xffff, v{T+1}
    v_cvt_pk_bf16_f32 v{T+4}, v{T+4}, v{T+4}
    v_accvgpr_write_b32 a{XM}, v{T+1}
    v_and_b32 v{T+4}, 0xffff0000, v{T+4}
    v_accvgpr_write_b32 a{XM+1}, v{T+2}
    v_add_f32 v{T+4}, {f32bits(1e-5):#x}, v{T+4}
    v_accvgpr_write_b32 a{XM+2}, v{T+1}
    v_cvt_pk_bf16_f32 v{T+4}, v{T+4}, v{T+4}
    v_accvgpr_write_b32 a{XM+3}, v{T+2}
    v_and_b32 v{T+4}, 0xffff0000, v{T+4}
    v_sqrt_f32 v{T+4}, v{T+4}
    v_mov_b32 v{T}, {EPA}
    v_cvt_pk_bf16_f32 v{T+4}, v{T+4}, v{T+4}
    v_and_b32 v{T+4}, 0xffff0000, v{T+4}
    v_rcp_f32 v{vRINV}, v{T+4}
    v_readfirstlane_b32 s{sEP}, v{vT1}
    """.strip().split("\n")]
    p.add(fin)
    p(f"""
    s_cmp_lg_u32 s{sEP}, 0
    s_cbranch_scc1 K_GEX
    """)
    p.add(opt([f"s_mov_b32 s{sCNT}, {POLL_MAX}",
               "K_GE:",
               f"global_load_dword v{vT1}, v{vT0}, s[54:55] sc0 sc1",
               f"s_sub_u32 s{sCNT}, s{sCNT}, 1",
               f"s_cmp_eq_u32 s{sCNT}, 0",
               "s_waitcnt vmcnt(0)",
               "s_cbranch_scc1 K_GEX",
               f"v_readfirstlane_b32 s{sEP}, v{vT1}",
               "s_sleep 4",
               f"s_cmp_eq_u32 s{sEP}, 0",
               "s_cbranch_scc1 K_GE"]))
    p(f"""
    K_GEX:
    ds_write_b32 v{T}, v{vT1}
    s_cmp_ge_u32 s{sG}, 14
    s_cbranch_scc1 K_SHORT
    """)
    p.flush()
    tr_s, rs_s, hist_s = p.tr.copy(), dict(rs, q=list(rs["q"])), list(p.out[-60:])
    p.add(stream(NA - 3, NA, None, rs, len(seq)))
    stamp(p, 2)
    stamp(p, 1, "B")
    c = (28 ** -0.5) * 1.4426950408889634

    def epi(j, packed=False):
        qkv = j < 3
        acc = accs[j]
        cf = [CFt, 120, 124][j % 3]
        g0 = [I(f"ds_read_b128 {ar(cf,4)}, v{vCF} offset:{1024*j}")]
        g1 = [I(f"{MF} {vr(acc,16)}, {ar(cf,4)}, {ar(XM,4)}, {vr(acc,16)}")]
        g2 = []
        sc = vRINV
        if qkv:
            sc = vA
            g2 += [I(x) for x in [
                f"s_cmp_lt_u32 s{sT}, {16-j}",
                f"s_cselect_b32 s{sTMP}, {f32bits(c):#x}, 1.0",
                f"v_mul_f32 v{vA}, s{sTMP}, v{vRINV}"]]
        off = 8192 * j if qkv else (STH1 - STQ if j < 5 else STH2 - STQ) + 8192 * ((j - 3) & 1)
        for i in range(8):
            if packed:
                e2 = sc & ~1
                sel = "op_sel_hi:[1,0]" if sc == e2 else "op_sel:[0,1]"
                g2.append(I(f"v_pk_mul_f32 {vr(acc+2*i,2)}, {vr(acc+2*i,2)}, {vr(e2,2)} {sel}"))
            else:
                g2.append(I(f"v_mul_f32 v{acc+2*i}, v{sc}, v{acc+2*i}"))
                g2.append(I(f"v_mul_f32 v{acc+2*i+1}, v{sc}, v{acc+2*i+1}"))
            g2.append(I(f"v_cvt_pk_bf16_f32 v{acc+i}, v{acc+2*i}, v{acc+2*i+1}"))
            if i & 3 == 3:
                o = off + 1024 * (i >> 2)
                va = vVW if o < 65536 else vVR
                g2.append(I(f"ds_write_b128 v{va}, {vr(acc+i-3,4)} offset:{o if o < 65536 else o - 32768}", tag="stg"))
        return g0, g1, g2

    def plan(tiles, start, span):
        fill = {}

        def put(i, l):
            fill.setdefault(i, []).extend(l)
        e = [epi(j) for j in tiles]
        put(start, e[0][0] + e[1][0])
        put(start + 2, e[0][1])
        put(start + 3, e[1][1])
        if len(e) > 2:
            put(start + 3, e[2][0])
            put(start + 6, e[2][1])
        allv = [x for g in e for x in g[2]]
        b2 = start + 4
        for i, x in enumerate(allv):
            put(b2 + (i * (span - 4)) // len(allv), [x])
        return fill

    S = [48, 64]
    P = [80, 88]
    O0 = 96
    KR = 48
    Q = 0
    KV = [32, 48]
    OA = 64

    def att_loads():
        o = [f"s_lshl_b32 s{sKV0}, s{sHEAD}, 18",
             f"s_add_u32 s{sKV0}, s{sKV0}, {KVF}",
             f"buffer_load_dwordx4 {vr(KR,4)}, v{vL16}, s[{sWS}:{sWS+3}], s{sKV0} offen sc1",
             f"buffer_load_dwordx4 {vr(KR+4,4)}, v{vL16}, s[{sWS}:{sWS+3}], s{sKV0} offen offset:1024 sc1",
             f"s_lshl_b32 s{sTMP}, s{sHEAD}, 6",
             f"s_lshl_b32 s{sTMP2}, s{sQB}, 2",
             f"s_add_u32 s{sTMP}, s{sTMP}, s{sTMP2}"]
        for u in range(4):
            o += [f"s_xor_b32 s{sTMP2}, s{sWAVE}, {u}",
                  f"s_add_u32 s{sTMP2}, s{sTMP2}, s{sTMP}",
                  f"s_lshl_b32 s{sTMP2}, s{sTMP2}, 11",
                  f"buffer_load_dwordx4 {ar(Q+8*u,4)}, v{vL16}, s[{sWS}:{sWS+3}], s{sTMP2} offen sc1",
                  f"buffer_load_dwordx4 {ar(Q+8*u+4,4)}, v{vL16}, s[{sWS}:{sWS+3}], s{sTMP2} offen offset:1024 sc1"]
        o += [f"s_lshl_b32 s{sTMP}, s{sWAVE}, 16",
              f"s_add_u32 s{sKV}, s{sKV0}, s{sTMP}",
              f"s_add_u32 s{sKV2}, s{sKV}, 4096"]
        for j in range(4):
            o.append(f"buffer_load_dwordx4 {ar(KV[0]+4*j,4)}, v{vL16}, s[{sWS}:{sWS+3}], s{sKV} offen offset:{1024*j} sc1")
        for j in range(2):
            o.append(f"buffer_load_dwordx4 {ar(KV[1]+4*j,4)}, v{vL16}, s[{sWS}:{sWS+3}], s{sKV2} offen offset:{1024*j} sc1")
        return [I(x) for x in o]

    def poll_opt(name, sleep):
        o = [I(f"v_cmp_ne_u32 vcc, s{sEP}, v{vT1}"), I("s_nop 1"), I(f"s_cbranch_vccz {name}X")]
        o += opt([f"s_mov_b32 s{sCNT}, {POLL_MAX}",
                  f"{name}:",
                  f"s_sleep {sleep}",
                  f"buffer_load_dword v{vT1}, v{vPL}, s[{sWS}:{sWS+3}], 0 offen sc1",
                  f"s_sub_u32 s{sCNT}, s{sCNT}, 1",
                  f"s_cmp_eq_u32 s{sCNT}, 0",
                  "s_waitcnt vmcnt(0)",
                  f"s_cbranch_scc1 {name}X",
                  f"v_cmp_ne_u32 vcc, s{sEP}, v{vT1}",
                  "s_nop 1",
                  f"s_cbranch_vccnz {name}"])
        o += [I(f"{name}X:")]
        return o

    HSPAN, PPOS, CPOS = int(E("HSPAN", "30")), int(E("PPOS", "30")), int(E("CPOS", "42"))
    p(f"v_add_u32 v{vVR}, 32768, v{vVW}")

    def qkv_epilogue():
        e = [epi(j, True) for j in range(3)]
        p.add(e[0][0] + e[1][0] + e[2][0] + e[0][1] + e[1][1] + e[2][1] + e[0][2] + e[1][2] + e[2][2])
        p("s_waitcnt lgkmcnt(0)")
        p("s_barrier")

    qkv_epilogue()
    stamp(p, 1, "C")
    p.add(stream(NA, NA + 56, None, rs, len(seq)))
    stamp(p, 2, "C")
    fc = plan([3, 4], 0, HSPAN)
    fc.setdefault(HSPAN + 2, []).extend([I("@wait stg"), I("s_barrier")])
    fc.setdefault(PPOS, []).append(I(f"buffer_load_dword v{vT1}, v{vPL}, s[{sWS}:{sWS+3}], 0 offen sc1"))
    ds = (lambda i: [I(f"s_memtime s[{66+4*i}:{67+4*i}]"), I("s_waitcnt lgkmcnt(0)")]) if STAMP and E("DIAG") == "C" else (lambda i: [])
    fc.setdefault(CPOS, []).extend(ds(3) + poll_opt("K_PQ1", E("SLQ", "12")) + ds(4))
    al = att_loads()
    for i, x in enumerate(al):
        fc.setdefault(CPOS + (i * (55 - CPOS)) // len(al), []).append(x)
    e = [epi(j) for j in (5, 6)]
    fc.setdefault(52, []).extend(e[0][0] + e[1][0])
    p.add(stream(NA + 56, NA + 112, fc, rs, len(seq)))
    stamp(p, 3)
    stamp(p, 5, "C")
    RD = [64, 80, 96, 112]

    def refmm():
        o = []
        for u in range(4):
            d = RD[u]
            o.append(I(f"{MF} {vr(d,16)}, {vr(KR,4)}, {ar(Q+8*u,4)}, 0"))
            o.append(I(f"{MF} {vr(d,16)}, {vr(KR+4,4)}, {ar(Q+8*u+4,4)}, {vr(d,16)}"))
        return o

    p.add(e[0][1] + e[1][1])
    p.add(interleave(refmm(), e[0][2] + e[1][2]))
    p("""
    s_waitcnt lgkmcnt(0)
    s_barrier
    s_branch K_ATT
    """)
    p.flush()
    tr_att = p.tr.copy()

    p.tr = tr_s
    p("K_SHORT:")
    p.add(stream(NA - 3, NA, None, rs_s, NA))
    p("s_waitcnt lgkmcnt(0)")
    p("s_barrier")
    stamp(p, 2)
    qkv_epilogue()
    p("s_barrier")
    stamp(p, 3)
    seq2 = add_waits(p.cur, p.tr)
    p.out += pad_hazards(seq2, hist_s)
    p.cur = []
    p(f"s_sleep {E('SLS0', '30')}")
    poll(p, "K_PQ2", vT1, vPL, sWS, "0", sEP, sCNT, E("SLS", "10"))
    p.add(att_loads())
    p.add(refmm())
    p("s_nop 7")
    p.flush()

    p.tr = tr_att

    def Oacc(u):
        return vr(O0, 16) if u == 0 else ar(OA + 16 * (u - 1), 16)

    vA1, vA2, vA3, vRA, vEP = 2, 3, 4, 5, 6
    vAs = [None, vA1, vA2, vA3]
    p(f"""
    K_ATT:
    s_setprio 2
    s_mov_b32 s{sKVR}, s{sWS}
    s_mov_b32 s{sKVR+1}, s{sWS+1}
    s_add_u32 s{sKVR+2}, s{sKV}, 65536
    s_mov_b32 s{sKVR+3}, 0x00020000
    v_mov_b32 v{vEP}, s{sEP}
    """)
    for u in range(1, 4):
        p(f"""
        s_xor_b32 s{sTMP}, s{sWAVE}, {u}
        s_mul_i32 s{sTMP}, s{sTMP}, 3
        s_add_u32 s{sTMP}, s{sTMP}, {u-1}
        s_lshl_b32 s{sTMP}, s{sTMP}, 12
        v_add_u32 v{vAs[u]}, s{sTMP}, v{vL16}
        """)
    p(f"""
    s_mul_i32 s{sTMP}, s{sWAVE}, {3*4096}
    v_add_u32 v{vRA}, s{sTMP}, v{vL16}
    s_mov_b32 s{sCNT}, 8
    """)
    M, M2, PC = 24, 28, 40

    def rowmax(m, d):
        p(f"v_max3_f32 v{m}, v{d}, v{d+1}, v{d+2}")
        for r in range(3, 15, 2):
            p(f"v_max3_f32 v{m}, v{m}, v{d+r}, v{d+r+1}")
        p(f"v_max_f32 v{m}, v{m}, v{d+15}")

    def put_ref(units, add):
        for u in units:
            p(f"v_mov_b32 v{M2+u}, v{M+u}")
        for u in units:
            p(f"v_permlane32_swap_b32 v{M+u}, v{M2+u}")
        for u in units:
            m, a, b, cc = M + u, M2 + u, PC + u, PC + 4 + u
            p(f"""
            v_max_f32 v{m}, v{m}, v{a}
            v_sub_f32 v{a}, {f32bits(-add):#x}, v{m}
            v_and_b32 v{b}, 0xffff0000, v{a}
            v_sub_f32 v{a}, v{a}, v{b}
            v_and_b32 v{cc}, 0xffff0000, v{a}
            v_sub_f32 v{a}, v{a}, v{cc}
            v_lshrrev_b32 v{b}, 16, v{b}
            v_or_b32 v{b}, v{b}, v{cc}
            v_lshrrev_b32 v{a}, 16, v{a}
            """)
        p("s_mov_b32 exec_lo, 0")
        for u in units:
            p(f"v_accvgpr_write_b32 a{Q+8*u+6}, v{PC+u}")
            p(f"v_accvgpr_write_b32 a{Q+8*u+7}, v{M2+u}")
        p("s_mov_b32 exec_lo, -1")

    for u in range(4):
        rowmax(M + u, RD[u])
    put_ref(range(4), REF_OFF)

    def qk(n_u, kb, sbuf):
        k = KV[kb]
        return [I(f"{MF} {vr(S[sbuf],16)}, {ar(k,4)}, {ar(Q+8*n_u,4)}, 0"),
                I(f"{MF} {vr(S[sbuf],16)}, {ar(k+4,4)}, {ar(Q+8*n_u+4,4)}, {vr(S[sbuf],16)}")]

    def pv(u, vb, pbuf):
        v = KV[vb] + 8
        return [I(f"{MF} {Oacc(u)}, {ar(v,4)}, {vr(P[pbuf],4)}, {Oacc(u)}"),
                I(f"{MF} {Oacc(u)}, {ar(v+4,4)}, {vr(P[pbuf]+4,4)}, {Oacc(u)}")]

    def softmax(sb):
        s, pp = S[sb], P[sb]
        v = []
        for i in range(8):
            v.append(I(f"v_exp_f32 v{s+2*i}, v{s+2*i}"))
            v.append(I(f"v_exp_f32 v{s+2*i+1}, v{s+2*i+1}"))
            if i >= 1:
                v.append(I(f"v_cvt_pk_bf16_f32 v{pp+i-1}, v{s+2*i-2}, v{s+2*i-1}"))
        v.append(I(f"v_cvt_pk_bf16_f32 v{pp+7}, v{s+14}, v{s+15}"))
        return v

    def cost(i):
        return 8 if i.is_trans() else 4

    def slot(tb, u):
        nu = (u + 1) & 3
        pu = (u - 1) & 3
        mf = qk(nu, tb if u < 3 else 1 - tb, (u + 1) & 1) + pv(pu, tb if u > 0 else 1 - tb, (u - 1) & 1)
        ld = []
        if u == 0:
            so = sKV2 if tb == 0 else sKV
            ld += [I(f"buffer_load_dwordx4 {ar(KV[1-tb]+8+4*j,4)}, v{vL16}, s[{sKVR}:{sKVR+3}], s{so} offen offset:{2048+1024*j} sc1") for j in range(2)]
        if u == 2:
            so = sKV if tb == 0 else sKV2
            ld += [I(f"buffer_load_dwordx4 {ar(KV[tb]+4*j,4)}, v{vL16}, s[{sKVR}:{sKVR+3}], s{so} offen offset:{1024*j} sc1") for j in range(2)]
        va = softmax(u & 1)
        total = sum(cost(i) for i in va)
        out = []
        k = 0
        acc = 0
        for j, m in enumerate(mf):
            out.append(m)
            tgt = total * (j + 1) / len(mf)
            while k < len(va) and acc + cost(va[k]) / 2 <= tgt:
                out.append(va[k]); acc += cost(va[k]); k += 1
        out += va[k:]
        idx = max(i for i, x in enumerate(out) if x.kind == "mfma")
        if ld:
            out = out[:idx + 1] + interleave(out[idx + 1:], ld)
        return out

    stamp(p, 4)
    p.add(qk(0, 0, 0))
    for i in range(48):
        p(f"v_accvgpr_write_b32 a{OA+i}, 0")
    for i in range(8):
        p(f"v_accvgpr_write_b32 a{KV[1]+8+i}, 0")
    for i in range(0, 16, 2):
        p(f"v_mov_b64 {vr(O0+i,2)}, 0")
    for i in range(0, 8, 2):
        p(f"v_mov_b64 {vr(P[1]+i,2)}, 0")
    body = [I(".p2align 6"), I("K_LOOP:")]
    for tb in range(2):
        for u in range(4):
            if u == 1:
                so = sKV if tb == 0 else sKV2
                body.append(I(f"s_add_u32 s{so}, s{so}, 8192"))
            if tb == 1 and u == 3:
                body.append(I(f"s_sub_u32 s{sCNT}, s{sCNT}, 1"))
                body.append(I(f"s_cmp_lg_u32 s{sCNT}, 0"))
            body += slot(tb, u)
    body += [I("s_cbranch_scc1 K_LOOP")]
    p.loop(body)
    stamp(p, 5)
    p.add(pv(3, 1, 1))
    for u in range(1, 4):
        for q in range(4):
            p(f"ds_write_b128 v{vAs[u]}, {ar(OA+16*(u-1)+4*q,4)} offset:{1024*q}")
    p(f"""
    s_lshl_b32 s{sTMP2}, s{sQB}, 2
    s_add_u32 s{sTMP2}, s{sTMP2}, s{sWAVE}
    s_lshl_b32 s{sTMP}, s{sTMP2}, 15
    s_lshl_b32 s{sTMP3}, s{sHEAD}, 11
    s_add_u32 s{sTMP}, s{sTMP}, s{sTMP3}
    s_add_u32 s{sTMP}, s{sTMP}, {OF}
    s_lshl_b32 s{sTMP3}, s{sTMP2}, 4
    s_add_u32 s{sTMP3}, s{sTMP3}, s{sHEAD}
    s_lshl_b32 s{sTMP3}, s{sTMP3}, 2
    s_add_u32 s{sTMP3}, s{sTMP3}, {FO}
    s_lshl_b32 s{sTMP2}, s{sWAVE}, 2
    s_add_u32 s{sTMP2}, s{sTMP2}, {EPA+16}
    v_mov_b32 v16, s{sTMP2}
    v_and_b32 v17, 3, v0
    v_lshlrev_b32 v17, 2, v17
    v_add_u32 v17, {EPA+16}, v17
    ds_write_b32 v16, v{vEP}
    s_mov_b32 s{sKV}, {POLL_MAX*16}
    """)
    p.flush()
    p(f"""
    K_AW:
    ds_read_b32 v18, v17
    s_sub_u32 s{sKV}, s{sKV}, 1
    s_cmp_eq_u32 s{sKV}, 0
    s_waitcnt lgkmcnt(0)
    s_cbranch_scc1 K_AWX
    v_cmp_ne_u32 vcc, s{sEP}, v18
    s_nop 1
    s_cbranch_vccnz K_AW
    K_AWX:
    """)
    p.flush()
    stamp(p, 6)
    R = 48
    for i in range(3):
        for q in range(4):
            p(f"ds_read_b128 {vr(R+16*i+4*q,4)}, v{vRA} offset:{4096*i+1024*q}")
    for i in range(3):
        for r in range(0, 16, 2):
            p(f"v_pk_add_f32 {vr(O0+r,2)}, {vr(O0+r,2)}, {vr(R+16*i+r,2)}")
    p("K_NORM:")
    l, l2, ri, mx, PK = 16, 17, 18, 20, 32
    p(f"""
    v_mov_b32 v{l}, v{O0+12}
    v_mov_b32 v{l2}, v{O0+12}
    v_permlane32_swap_b32 v{l}, v{l2}
    v_rcp_f32 v{ri}, v{l2}
    """)
    for r in range(0, 16, 2):
        p(f"v_pk_mul_f32 {vr(O0+r,2)}, {vr(O0+r,2)}, {vr(ri,2)} op_sel_hi:[1,0]")
    for i in range(8):
        p(f"v_cvt_pk_bf16_f32 v{PK+i}, v{O0+2*i}, v{O0+2*i+1}")
    p(f"""
    buffer_store_dwordx4 {vr(PK,4)}, v{vL16}, s[{sWS}:{sWS+3}], s{sTMP} offen sc1
    buffer_store_dwordx4 {vr(PK+4,4)}, v{vL16}, s[{sWS}:{sWS+3}], s{sTMP} offen offset:1024 sc1
    """)
    for r in range(0, 16, 2):
        p(f"v_pk_add_f32 {vr(O0+r,2)}, {vr(O0+r,2)}, {vr(O0+r,2)} neg_lo:[0,1] neg_hi:[0,1]")
    for r in (8, 4, 2):
        for k in range(0, r, 2):
            p(f"v_pk_add_f32 {vr(O0+k,2)}, {vr(O0+k,2)}, {vr(O0+r+k,2)}")
    p(f"""
    v_add_f32 v{mx}, v{O0}, v{O0+1}
    v_add_f32 v{mx}, v{mx}, v{l2}
    v_cmp_ngt_f32 vcc, {f32bits(L_LIMIT):#x}, v{mx}
    s_cmp_eq_u32 s{sCNT}, 0
    s_cselect_b64 vcc, vcc, 0
    s_cbranch_vccnz K_SLOW
    s_mov_b64 exec, 1
    s_waitcnt vmcnt(0)
    buffer_store_dword v{vEP}, v{vL16}, s[{sWS}:{sWS+3}], s{sTMP3} offen sc1
    s_mov_b64 exec, -1
    """)
    stamp_out(p, 7, sWS, sWAVE, 2, 3)
    p("s_endpgm")
    p.flush()
    p.tr = Tracker()
    p(f"""
    K_SLOW:
    s_waitcnt vmcnt(0) lgkmcnt(0)
    s_mov_b32 exec_lo, 0
    v_accvgpr_write_b32 a{Q+6}, 0
    v_accvgpr_write_b32 a{Q+7}, 0
    s_mov_b32 exec_lo, -1
    v_mov_b32 v{M}, 0xff800000
    s_mov_b32 s{sKV}, s{sKV0}
    s_mov_b32 s{sCNT}, 64
    """)
    body = [I("K_S1:")]
    body += [I(f"buffer_load_dwordx4 {ar(KV[0]+4*j,4)}, v{vL16}, s[{sWS}:{sWS+3}], s{sKV} offen offset:{1024*j} sc1") for j in range(2)]
    body += qk(0, 0, 0)
    body += [I(f"v_max3_f32 v{M}, v{M}, v{S[0]+r}, v{S[0]+r+1}") for r in range(0, 16, 2)]
    body += [I(f"s_add_u32 s{sKV}, s{sKV}, 4096"), I(f"s_sub_u32 s{sCNT}, s{sCNT}, 1"), I(f"s_cmp_lg_u32 s{sCNT}, 0"), I("s_cbranch_scc1 K_S1")]
    p.loop(body)
    put_ref([0], 0.0)
    for i in range(16):
        p(f"v_mov_b32 v{O0+i}, 0")
    p(f"""
    s_mov_b32 s{sKV}, s{sKV0}
    s_mov_b32 s{sCNT}, 64
    """)
    body = [I("K_S2:")]
    body += [I(f"buffer_load_dwordx4 {ar(KV[0]+4*j,4)}, v{vL16}, s[{sWS}:{sWS+3}], s{sKV} offen offset:{1024*j} sc1") for j in range(4)]
    body += qk(0, 0, 0) + softmax(0) + pv(0, 0, 0)
    body += [I(f"s_add_u32 s{sKV}, s{sKV}, 4096"), I(f"s_sub_u32 s{sCNT}, s{sCNT}, 1"), I(f"s_cmp_lg_u32 s{sCNT}, 0"), I("s_cbranch_scc1 K_S2")]
    p.loop(body)
    p(f"""
    s_mov_b32 s{sCNT}, 1
    s_nop 7
    s_nop 7
    s_branch K_NORM
    """)
    p.flush()

    p.tr = Tracker()
    vOA3, vX, vOB, hLA, hLB, hCW, ONE, CS, F = 8, 12, 14, 16, 17, 19, 20, 24, 40
    hL16 = 1
    p("K_HELPER:")
    stamp(p, 0)
    srd(p, sX, 40, XB)
    srd(p, sW, 42, WQKVB)
    p(f"""
    s_sub_u32 s{sWAVE}, s{sWAVE}, 4
    s_add_u32 s{sXO}, s{sMT}, s{sWAVE}
    s_mul_i32 s{sXO}, s{sXO}, 28672
    v_lshrrev_b32 v4, 3, v0
    v_mul_u32_u24 v7, 896, v4
    v_lshrrev_b32 v5, 4, v0
    v_and_b32 v6, 7, v0
    v_xor_b32 v6, v5, v6
    v_lshl_add_u32 v{vX}, v6, 4, v7
    v_xor_b32 v6, 4, v6
    v_lshl_add_u32 v{vX+1}, v6, 4, v7
    s_mul_i32 s{sOA}, s{sG}, 168
    s_mul_i32 s{sTMP}, s{sWAVE}, {16*2688}
    s_add_u32 s{sOA}, s{sOA}, s{sTMP}
    s_lshl_b32 s{sM0}, s{sWAVE}, 12
    s_mul_i32 s{sTMP3}, s{sWAVE}, 3072
    """)

    def dma(st):
        base = (st % 5) * SLOT
        o = []
        if st < 7:
            for g in range(4):
                o.append([f"s_add_u32 m0, s{sM0}, {base+WAB+1024*g}",
                          f"s_add_u32 s{sTMP}, s{sXO}, {8*896*g+128*st}",
                          f"buffer_load_dwordx4 v{vX+(g&1)}, s[{sX}:{sX+3}], s{sTMP} offen lds"])
            for d in range(3):
                o.append([f"s_add_u32 m0, s{sTMP3}, {base+1024*d}",
                          f"s_add_u32 s{sTMP}, s{sOA}, {64*2688*st}",
                          f"buffer_load_dwordx4 v{vOA3+d}, s[{sW}:{sW+3}], s{sTMP} offen lds"])
        else:
            ph, hs = divmod(st - 7, 2)
            for d in range(7):
                o.append([f"s_add_u32 m0, s{sT}, {base+1024*d}",
                          f"s_add_u32 s{sTMP}, s{sOB}, {(224*hs+8*d)*3584+128*ph}",
                          f"buffer_load_dwordx4 v{vOB}, s[{sW2}:{sW2+3}], s{sTMP} offen lds"])
        return [(st, g) for g in o]

    dq = [g for st in range(11) for g in dma(st)]

    def issue(n, maxst=10):
        for _ in range(n):
            if dq and dq[0][0] <= maxst:
                st, g = dq.pop(0)
                p("\n".join(g), tag=f"st{st}")

    issue(4)
    for d in range(3):
        p(f"""
        v_add_u32 v1, {64*d}, v0
        v_mul_u32_u24 v2, 5462, v1
        v_lshrrev_b32 v2, 16, v2
        v_mul_u32_u24 v3, 12, v2
        v_sub_u32 v1, v1, v3
        v_lshrrev_b32 v3, 2, v1
        v_and_b32 v1, 3, v1
        v_lshlrev_b32 v1, 4, v1
        v_mad_u32_u24 v1, v3, 56, v1
        v_mul_u32_u24 v2, 2688, v2
        v_add_u32 v{vOA3+d}, v1, v2
        """)
    issue(10)
    srd(p, sWS, 46, WS_BYTES)
    srd(p, sW2, 48, W1B)
    tr_lane(hLA, hLB, hLB + 1, 1, 2)
    p(f"""
    s_mul_i32 s{sTMP}, s{sWAVE}, {16*192}
    v_add_u32 v{hLA}, s{sTMP}, v{hLA}
    v_bfe_u32 v1, v0, 2, 1
    v_bfe_u32 v2, v0, 4, 1
    v_xor_b32 v1, v1, v2
    v_and_b32 v3, 3, v0
    v_lshlrev_b32 v3, 4, v3
    v_lshl_add_u32 v3, v1, 6, v3
    v_mul_u32_u24 v4, 3584, v4
    v_add_u32 v{vOB}, v4, v3
    v_and_b32 v1, 15, v0
    v_mov_b32 v3, 0x3f803f80
    v_cmp_eq_u32 vcc, v1, v2
    v_cndmask_b32 v{ONE}, 0, v3, vcc
    v_mov_b32 v{ONE+1}, v{ONE}
    v_mov_b32 v{ONE+2}, v{ONE}
    v_mov_b32 v{ONE+3}, v{ONE}
    s_lshl_b32 s{sOB}, s{sG}, 8
    s_mul_i32 s{sTMP}, s{sWAVE}, {56*3584}
    s_add_u32 s{sOB}, s{sOB}, s{sTMP}
    s_mul_i32 s{sT}, s{sWAVE}, 7168
    s_lshr_b32 s{sTMP}, s{sWAVE}, 1
    s_lshl_b32 s{sTMP}, s{sTMP}, 9
    s_and_b32 s{sTMP2}, s{sWAVE}, 1
    s_lshl_b32 s{sTMP2}, s{sTMP2}, 3
    s_add_u32 s{sTMP}, s{sTMP}, s{sTMP2}
    s_add_u32 s{sTMP}, s{sTMP}, {CFA}
    v_lshl_add_u32 v{hCW}, v0, 4, s{sTMP}
    v_lshlrev_b32 v{hL16}, 4, v0
    s_setprio {E("HP", "2")}
    s_add_u32 s{sTMP}, s2, s{sWAVE}
    s_cmp_lg_u32 s{sTMP}, 0
    s_cbranch_scc1 K_NOEP
    """)
    p.add(opt([f"s_memrealtime s[60:61]",
               "s_waitcnt lgkmcnt(0)",
               "s_or_b32 s60, s60, 1",
               "v_mov_b32 v2, 0",
               "v_mov_b32 v3, s60",
               "s_mov_b64 exec, 1",
               "global_store_dword v2, v3, s[54:55] sc0 sc1",
               "s_mov_b64 exec, -1"]))
    p("K_NOEP:")

    def publish(tiles, j0):
        for t in range(tiles):
            for r in range(2):
                c0 = CS + 4 * t + r
                a, b2, c2 = F + 8 * t + 4 * r, F + 8 * t + 4 * r + 1, F + 8 * t + 4 * r + 2
                p(f"""
                v_and_b32 v{a}, 0xffff0000, v{c0}
                v_sub_f32 v{b2}, v{c0}, v{a}
                v_and_b32 v{c2}, 0xffff0000, v{b2}
                v_sub_f32 v{b2}, v{b2}, v{c2}
                v_lshrrev_b32 v{a}, 16, v{a}
                v_or_b32 v{a}, v{a}, v{c2}
                v_lshrrev_b32 v{b2}, 16, v{b2}
                """)
        p("s_mov_b64 exec, 0xffff")
        for t in range(tiles):
            for r in range(2):
                p(f"ds_write_b64 v{hCW}, {vr(F+8*t+4*r,2)} offset:{1024*(j0+t)+256*r}")
        p("s_mov_b64 exec, -1")

    def colsum_a(st, between=None):
        if E("NOCS") and st < 6:
            if between:
                between()
            return
        p(f"v_add_u32 v2, {(st % 5) * SLOT}, v{hLA}")
        for j in range(3):
            p(f"ds_read_b64_tr_b16 {vr(F+4*j,2)}, v2 offset:{64*j}")
            p(f"ds_read_b64_tr_b16 {vr(F+4*j+2,2)}, v2 offset:{64*j+4*192}")
        if between:
            between()
        for j in range(3):
            p(f"{M16} {vr(CS+4*j,4)}, {vr(ONE,4)}, {vr(F+4*j,4)}, {'0' if st == 0 else vr(CS+4*j,4)}")
        if st == 6:
            publish(3, 0)

    def colsum_b(ph):
        s0, s1 = ((7 + 2 * ph) % 5) * SLOT, ((8 + 2 * ph) % 5) * SLOT
        p(f"""
        s_mul_i32 s{sTMP}, s{sWAVE}, {7*2048}
        s_cmp_lt_u32 s{sWAVE}, 2
        s_mov_b32 s{sTMP2}, {(s1 - SLOT) & 0xffffffff}
        s_cselect_b32 s{sTMP2}, {s0}, s{sTMP2}
        s_add_u32 s{sTMP}, s{sTMP}, s{sTMP2}
        v_add_u32 v2, s{sTMP}, v{hLB}
        v_add_u32 v3, s{sTMP}, v{hLB+1}
        """)
        mm = []
        for i in range(7):
            for t in range(2):
                b = F + 8 * i + 4 * t
                p(f"ds_read_b64_tr_b16 {vr(b,2)}, v{2+t} offset:{2048*i}")
                p(f"ds_read_b64_tr_b16 {vr(b+2,2)}, v{2+t} offset:{2048*i+512}")
                mm.append(f"{M16} {vr(CS+4*t,4)}, {vr(ONE,4)}, {vr(b,4)}, {'0' if i == 0 else vr(CS+4*t,4)}")
                if len(mm) > 6:
                    p(mm.pop(0))
        for m in mm:
            p(m)
        publish(2, 3 + 2 * ph)

    def bar(*sts):
        if sts:
            p("@wait " + " ".join(f"st{x}" for x in sts))
        p("s_waitcnt lgkmcnt(0)")
        p("s_barrier")

    D = 100
    hSR, hVR, hMA, hOA, hEP = 124, 125, 126, 127, 15

    def out_setup():
        p(f"""
        s_lshl_b32 s{sTMP}, s{sWAVE}, 11
        s_add_u32 s{sTMP}, s{sTMP}, {STQ}
        v_add_u32 v{hSR}, s{sTMP}, v{hL16}
        v_bfe_u32 v2, v0, 4, 1
        v_lshl_add_u32 v{hVR}, v2, 10, s{sTMP}
        v_lshrrev_b32 v2, 5, v0
        v_lshl_add_u32 v{hVR}, v2, 6, v{hVR}
        v_bfe_u32 v2, v0, 2, 2
        v_lshl_add_u32 v{hVR}, v2, 4, v{hVR}
        v_and_b32 v2, 1, v0
        v_lshl_add_u32 v{hVR}, v2, 9, v{hVR}
        v_bfe_u32 v2, v0, 1, 1
        v_lshl_add_u32 v{hVR}, v2, 3, v{hVR}
        v_and_b32 v2, 31, v0
        v_cmp_gt_u32 vcc, 28, v2
        v_cndmask_b32 v{hMA}, 0, -1, vcc
        v_mov_b32 v3, 0x3f803f80
        v_cmp_eq_u32 vcc, 28, v2
        v_cndmask_b32 v{hOA}, 0, v3, vcc
        s_add_u32 s{sCNT}, s{sMT}, s{sWAVE}
        """)

    def out_qkv(tag):
        p(f"""
        v_mov_b32 v2, {EPA}
        ds_read_b32 v{hEP}, v2
        s_mul_i32 s{sTY}, s{sG}, 3
        """)
        for j in range(3):
            d = D + 8 * j
            p(f"""
            s_cmp_ge_u32 s{sTY}, {32-j}
            s_cbranch_scc1 K_RV{j}{tag}
            """)
            p.add(opt([f"ds_read_b128 {vr(d,4)}, v{hSR} offset:{8192*j}",
                       f"ds_read_b128 {vr(d+4,4)}, v{hSR} offset:{8192*j+1024}",
                       f"s_branch K_RW{j}{tag}"]))
            p(f"K_RV{j}{tag}:")
            p.add(opt([f"ds_read_b64_tr_b16 {vr(d+2*k,2)}, v{hVR} offset:{8192*j+128*k}" for k in range(4)]))
            p(f"K_RW{j}{tag}:")
        p("s_waitcnt lgkmcnt(0)")
        for j in range(3):
            d = D + 8 * j
            p(f"""
            s_add_u32 s{sTMP}, s{sTY}, {j}
            s_lshr_b32 s{sTMP2}, s{sTMP}, 4
            s_and_b32 s{sTMP}, s{sTMP}, 15
            s_lshl_b32 s{sTMP}, s{sTMP}, 6
            s_add_u32 s{sTMP}, s{sTMP}, s{sCNT}
            s_lshl_b32 s{sST}, s{sTMP}, 11
            s_lshl_b32 s{sTMP}, s{sTMP}, 12
            s_add_u32 s{sTMP}, s{sTMP}, {KVF}
            s_cmp_eq_u32 s{sTMP2}, 0
            s_cselect_b32 s{sST}, s{sST}, s{sTMP}
            s_cselect_b32 s{sTMP}, 0, 0x3f803f80
            s_cselect_b32 s{sEP}, 0, 0x3f80
            s_cmp_eq_u32 s{sTMP2}, 2
            s_cbranch_scc1 K_FV{j}{tag}
            """)
            p.add(opt(["s_mov_b32 exec_lo, 0",
                       f"v_mov_b32 v{d+6}, s{sTMP}",
                       f"v_mov_b32 v{d+7}, s{sEP}",
                       "s_mov_b32 exec_lo, -1",
                       f"s_branch K_FW{j}{tag}"]))
            p(f"K_FV{j}{tag}:")
            p.add(opt([f"v_and_or_b32 v{d+i}, v{d+i}, v{hMA}, v{hOA}" for i in range(8)] + [f"s_add_u32 s{sST}, s{sST}, 2048"]))
            p(f"""
            K_FW{j}{tag}:
            buffer_store_dwordx4 {vr(d,4)}, v{hL16}, s[{sWS}:{sWS+3}], s{sST} offen sc1
            buffer_store_dwordx4 {vr(d+4,4)}, v{hL16}, s[{sWS}:{sWS+3}], s{sST} offen offset:1024 sc1
            """)

    def hflag(instrs):
        p(instrs)
        p(f"""
        s_mov_b64 exec, 1
        s_waitcnt vmcnt(0)
        buffer_store_dword v{hEP}, v{hL16}, s[{sWS}:{sWS+3}], s{sTMP} offen sc1
        s_mov_b64 exec, -1
        """)

    fq = f"""
        s_lshl_b32 s{sTMP}, s{sG}, 6
        s_add_u32 s{sTMP}, s{sTMP}, s{sCNT}
        s_lshl_b32 s{sTMP}, s{sTMP}, 2
        s_add_u32 s{sTMP}, s{sTMP}, {FQ}
        """

    fh = f"""
        s_lshl_b32 s{sTMP}, s{sCNT}, 4
        s_add_u32 s{sTMP}, s{sTMP}, s{sG}
        s_lshl_b32 s{sTMP}, s{sTMP}, 2
        s_add_u32 s{sTMP}, s{sTMP}, {FH}
        """

    def out_h(k):
        base = (STH1 if k == 0 else STH2) - STQ
        p(f"v_add_u32 v2, {base}, v{hSR}")
        for t in range(2):
            for i in range(2):
                p(f"ds_read_b128 {vr(D+8*t+4*i,4)}, v2 offset:{8192*t+1024*i}")
        p(f"""
        s_mul_i32 s{sST}, s{sCNT}, 114688
        s_lshl_b32 s{sTMP}, s{sG}, 13
        s_add_u32 s{sST}, s{sST}, s{sTMP}
        s_add_u32 s{sST}, s{sST}, {HF + 4096*k}
        """)
        for q in range(4):
            for i in range(4):
                p(f"v_pk_max_i16 v{D+4*q+i}, v{D+4*q+i}, 0")
            p(f"buffer_store_dwordx4 {vr(D+4*q,4)}, v{hL16}, s[{sWS}:{sWS+3}], s{sST} offen offset:{1024*q} sc1")

    NI = int(E("NI", "9"))
    bar(0)
    KSPLIT = 4
    for k in range(KSPLIT):
        colsum_a(k, lambda: issue(NI, 6))
        bar(k + 1)
    assert dq[0][0] == 7
    p(f"""
    s_cmp_ge_u32 s{sG}, 14
    s_cbranch_scc1 K_HTR
    """)
    p.flush()
    tr_h, hist_h = p.tr.copy(), list(p.out[-60:])
    for k in range(KSPLIT, 7):
        colsum_a(k, lambda: issue(10, k + 4))
        if k < 6:
            bar(k + 1)
    bar(7, 8)
    issue(10)
    assert not dq
    out_setup()
    stamp(p, 1, "C")
    bar()
    stamp(p, 2, "C")
    out_qkv("")
    stamp(p, 3, "C")
    colsum_b(0)
    bar(9, 10)
    stamp(p, 4, "C")
    hflag(fq)
    stamp(p, 5, "C")
    colsum_b(1)
    bar()
    out_h(0)
    stamp(p, 6, "C")
    bar()
    out_h(1)
    hflag(fh)
    p("s_branch K_GEMM")
    p.flush()

    sU, sSL = sOA, sT

    def relayout_load(src_off_reg):
        for d in range(14):
            if d % 4 == 0:
                p(f"s_add_u32 m0, s{sSL}, {1024*d}")
                p(f"s_add_u32 s{sTMP}, s{src_off_reg}, {1024*d}")
            p(f"buffer_load_dwordx4 v{hL16}, s[{sW}:{sW+3}], s{sTMP} offen offset:{1024*(d%4)} lds", tag="rl")

    def relayout_store(dst_reg, stride, zero_reg=None):
        p(f"""
        v_lshrrev_b32 v2, 5, v0
        v_lshlrev_b32 v3, 2, v2
        v_bfe_u32 v2, v0, 2, 2
        v_add_u32 v3, v3, v2
        v_mul_u32_u24 v3, 896, v3
        v_bfe_u32 v2, v0, 4, 1
        v_lshl_add_u32 v3, v2, 5, v3
        v_and_b32 v2, 3, v0
        v_lshl_add_u32 v3, v2, 3, v3
        v_add_u32 v3, s{sSL}, v3
        v_mov_b32 v2, {EPA}
        s_waitcnt vmcnt(0)
        ds_read_b32 v4, v2
        """)
        for t in range(14):
            p(f"ds_read_b64_tr_b16 {vr(F+4*t,2)}, v3 offset:{64*t}")
            p(f"ds_read_b64_tr_b16 {vr(F+4*t+2,2)}, v3 offset:{64*t+8*896}")
        if zero_reg is not None:
            p("s_waitcnt lgkmcnt(0)")
            p("s_mov_b32 exec_lo, 0")
            p(f"s_mov_b32 exec_hi, s{zero_reg}")
            for t in range(14):
                p(f"v_mov_b32 v{F+4*t+2}, 0")
                p(f"v_mov_b32 v{F+4*t+3}, 0")
            p("s_mov_b64 exec, -1")
        for t in range(14):
            p(f"buffer_store_dwordx4 {vr(F+4*t,4)}, v{hL16}, s[{sWS}:{sWS+3}], s{dst_reg} offen sc1")
            p(f"s_add_u32 s{dst_reg}, s{dst_reg}, {stride}")
        p(f"""
        s_lshl_b32 s{sTMP}, s{sU}, 2
        s_add_u32 s{sTMP}, s{sTMP}, {FW}
        s_mov_b64 exec, 1
        s_waitcnt vmcnt(0) lgkmcnt(0)
        buffer_store_dword v4, v{hL16}, s[{sWS}:{sWS+3}], s{sTMP} offen sc1
        s_mov_b64 exec, -1
        """)

    p.tr = tr_h
    p("K_HTR:")
    for k in range(KSPLIT, 4):
        colsum_a(k)
        bar(k + 1)
    srd(p, sW, 50, W2B)
    p(f"""
    s_sub_u32 s{sU}, s{sG}, 14
    s_lshl_b32 s{sU}, s{sU}, 6
    s_add_u32 s{sU}, s{sU}, s{sMT}
    s_add_u32 s{sU}, s{sU}, s{sWAVE}
    s_mul_i32 s{sSL}, s{sWAVE}, 14336
    s_add_u32 s{sSL}, s{sSL}, {2*SLOT}
    s_mul_i32 s{sTMP3}, s{sU}, {16*896}
    """)
    relayout_load(sTMP3)
    for k in range(max(4, KSPLIT), 7):
        colsum_a(k)
        if k < 6:
            bar(k + 1)
    bar()
    out_setup()
    bar()
    out_qkv("s")
    p("s_barrier")
    hflag(fq)
    hflag(fh)
    p(f"""
    s_cmp_ge_u32 s{sU}, 112
    s_cbranch_scc1 K_GEMM
    s_lshl_b32 s{sTMP3}, s{sU}, 10
    s_add_u32 s{sTMP3}, s{sTMP3}, {W2F}
    """)
    seq2 = add_waits(p.cur, p.tr)
    p.out += pad_hazards(seq2, hist_h)
    p.cur = []
    relayout_store(sTMP3, 114688)
    p("s_branch K_GEMM")
    p.flush()
    p.tr = Tracker()
    p(f"""
    K_HWO:
    s_cmp_lg_u32 s{sG}, 7
    s_cbranch_scc1 K_END
    s_cmp_ge_u32 s{sWAVE}, 2
    s_cbranch_scc1 K_END
    """)
    srd(p, sW, 44, WOB)
    p(f"""
    s_lshr_b32 s{sU}, s{sMT}, 1
    s_add_u32 s{sU}, s{sU}, s{sWAVE}
    s_lshr_b32 s{sTMP3}, s{sMT}, 2
    s_mul_i32 s{sTMP3}, s{sTMP3}, {28*896}
    s_mul_i32 s{sTMP}, s{sWAVE}, {16*896}
    s_add_u32 s{sTMP3}, s{sTMP3}, s{sTMP}
    s_mul_i32 s{sSL}, s{sWAVE}, 14336
    s_add_u32 s{sSL}, s{sSL}, {2*SLOT}
    """)
    relayout_load(sTMP3)
    p(f"""
    s_lshl_b32 s{sTMP3}, s{sU}, 10
    s_add_u32 s{sTMP3}, s{sTMP3}, {WOF}
    s_add_u32 s{sU}, s{sU}, 128
    s_sub_u32 s{sTMP2}, 0, s{sWAVE}
    """)
    relayout_store(sTMP3, 32768, sTMP2)
    p("s_endpgm")
    p.flush()

    p.tr = Tracker()
    sOUT = sW2
    sA0, sA1, sB0, sB1, sNT, sMP, sNP = sXO, sOA, sOB, sT, sTY, sHEAD, sQB
    AC0 = 8
    Gv = [24, 40, 56, 72, 88, 104]
    Ga = [112]
    WO = 48
    XR = 120
    NBUF = 7

    def Gbuf(b, off, n):
        return vr(Gv[b] + off, n) if b < 6 else ar(Ga[b - 6] + off, n)

    def Gacc(u):
        return vr(AC0, 16) if u == 0 else ar(16 * (u - 1), 16)

    vXO, vA1, vA2, vA3, vRA, vF = 2, 3, 4, 5, 6, 7
    p(f"""
    K_GEMM:
    s_setprio 0
    s_lshr_b32 s{sNP}, s{sI}, 2
    s_cmp_ge_u32 s{sNP}, 7
    s_cbranch_scc1 K_HWO
    """)
    stamp(p, 1)
    p(f"""
    v_mov_b32 v2, {EPA}
    ds_read_b32 v3, v2
    s_lshl_b32 s{sMP}, s{sJ}, 2
    s_and_b32 s{sTMP}, s{sI}, 3
    s_add_u32 s{sMP}, s{sMP}, s{sTMP}
    s_lshr_b32 s{sTMP}, s{sWAVE}, 1
    s_lshl_b32 s{sMT}, s{sMP}, 1
    s_add_u32 s{sMT}, s{sMT}, s{sTMP}
    s_and_b32 s{sTMP}, s{sWAVE}, 1
    s_lshl_b32 s{sNT}, s{sNP}, 1
    s_add_u32 s{sNT}, s{sNT}, s{sTMP}
    s_mul_i32 s{sTMP}, s{sWAVE}, {28*1024}
    s_mul_i32 s{sA0}, s{sNT}, 114688
    s_xor_b32 s{sTMP2}, s{sNT}, 1
    s_mul_i32 s{sA1}, s{sTMP2}, 114688
    s_mul_i32 s{sB0}, s{sMT}, 114688
    s_xor_b32 s{sTMP2}, s{sMT}, 1
    s_mul_i32 s{sB1}, s{sTMP2}, 114688
    s_add_u32 s{sTMP2}, s{sTMP}, {W2F}
    s_add_u32 s{sA0}, s{sA0}, s{sTMP2}
    s_add_u32 s{sA1}, s{sA1}, s{sTMP2}
    s_add_u32 s{sTMP2}, s{sTMP}, {HF}
    s_add_u32 s{sB0}, s{sB0}, s{sTMP2}
    s_add_u32 s{sB1}, s{sB1}, s{sTMP2}
    v_readfirstlane_b32 s{sEP}, v3
    """)
    p(f"""
    v_and_b32 v{vF}, 31, v0
    v_mul_u32_u24 v{vF}, 896, v{vF}
    v_lshrrev_b32 v{vRA}, 5, v0
    v_lshl_add_u32 v{vA1}, v{vRA}, 3, v{vF}
    s_mul_i32 s{sTMP3}, s{sMT}, 28672
    s_lshl_b32 s{sTMP2}, s{sNT}, 6
    s_add_u32 s{sTMP3}, s{sTMP3}, s{sTMP2}
    """)
    for q in range(4):
        p(f"buffer_load_dwordx2 {vr(XR+2*q,2)}, v{vA1}, s[{sX}:{sX+3}], s{sTMP3} offen offset:{16*q}")
    p(f"v_lshl_add_u32 v{vXO}, v{vRA}, 4, v{vF}")
    for i in range(48):
        p(f"v_accvgpr_write_b32 a{i}, 0")
    vAs = [None, vA1, vA2, vA3]
    for u in range(1, 4):
        p(f"""
        s_xor_b32 s{sTMP2}, s{sWAVE}, {u}
        s_mul_i32 s{sTMP2}, s{sTMP2}, 3
        s_add_u32 s{sTMP2}, s{sTMP2}, {u-1+12}
        s_lshl_b32 s{sTMP2}, s{sTMP2}, 12
        v_add_u32 v{vAs[u]}, s{sTMP2}, v{hL16}
        """)
    p(f"""
    s_mul_i32 s{sTMP2}, s{sWAVE}, {3*4096}
    s_add_u32 s{sTMP2}, s{sTMP2}, {48*1024}
    v_add_u32 v{vRA}, s{sTMP2}, v{hL16}
    """)
    for i in range(8):
        p(f"v_lshlrev_b32 v{AC0+2*i}, 16, v{XR+i}")
        p(f"v_and_b32 v{AC0+2*i+1}, 0xffff0000, v{XR+i}")
    srd(p, sOUT, 52, XB)
    G0 = Gv[0]
    p(f"""
    v_mov_b32 v{G0}, {EPA+4}
    v_mov_b32 v{G0+1}, s{sEP}
    s_cmp_lg_u32 s{sWAVE}, 0
    s_cbranch_scc1 K_PL
    v_and_b32 v{vF}, 7, v0
    s_lshl_b32 s{sTMP}, s{sMP}, 7
    s_add_u32 s{sTMP}, s{sTMP}, {FH}
    v_lshl_add_u32 v{vF}, v{vF}, 4, s{sTMP}
    s_mov_b64 exec, 0xfffffff
    v_add_u32 v{vF}, {FW}, v{hL16}
    s_mov_b64 exec, -1
    s_mov_b32 s{sCNT}, {POLL_MAX}
    """)
    p.flush()
    p(f"""
    K_PH:
    buffer_load_dwordx4 {vr(XR,4)}, v{vF}, s[{sWS}:{sWS+3}], 0 offen sc1
    s_sub_u32 s{sCNT}, s{sCNT}, 1
    s_cmp_eq_u32 s{sCNT}, 0
    s_waitcnt vmcnt(0)
    s_cbranch_scc1 K_PHX
    v_xor_b32 v{XR}, s{sEP}, v{XR}
    v_xor_b32 v{XR+1}, s{sEP}, v{XR+1}
    v_xor_b32 v{XR+2}, s{sEP}, v{XR+2}
    v_xor_b32 v{XR+3}, s{sEP}, v{XR+3}
    v_or3_b32 v{XR}, v{XR}, v{XR+1}, v{XR+2}
    v_or_b32 v{XR}, v{XR}, v{XR+3}
    v_cmp_ne_u32 vcc, 0, v{XR}
    s_nop 1
    s_cbranch_vccz K_PHX
    s_sleep {E("SLH", "8")}
    s_branch K_PH
    K_PHX:
    ds_write_b32 v{G0}, v{G0+1}
    s_branch K_PLX
    K_PL:
    s_mov_b32 s{sCNT}, {POLL_MAX*4}
    K_PL1:
    s_sleep 4
    ds_read_b32 v{G0+2}, v{G0}
    s_sub_u32 s{sCNT}, s{sCNT}, 1
    s_cmp_eq_u32 s{sCNT}, 0
    s_waitcnt lgkmcnt(0)
    s_cbranch_scc1 K_PLX
    v_cmp_ne_u32 vcc, s{sEP}, v{G0+2}
    s_nop 1
    s_cbranch_vccnz K_PL1
    K_PLX:
    s_waitcnt lgkmcnt(0)
    """)
    p.flush()
    stamp(p, 2)
    so = [sA0, sA1, sB0, sB1]

    def gload(k):
        b = k % NBUF
        o = [I(f"buffer_load_dwordx4 {Gbuf(b,4*j,4)}, v{hL16}, s[{sWS}:{sWS+3}], s{so[j]} offen offset:{1024*(b%4)} sc1") for j in range(4)]
        if b == 3 or b == 6:
            o += [I(f"s_add_u32 s{r}, s{r}, {4096 if b == 3 else 3072}") for r in so]
        return o

    def gmm(b):
        return [I(f"{MF} {Gacc(u)}, {Gbuf(b,4*(u&1),4)}, {Gbuf(b,8+4*(u>>1),4)}, {Gacc(u)}") for u in (1, 2, 3, 0)]

    for k in range(NBUF):
        p.add(gload(k))
    p(f"s_mov_b32 s{sCNT}, 3")
    body = [I("K_GL:")]
    for b in range(NBUF):
        body += ([I("s_waitcnt vmcnt(24)")] if E("GX") == "nomf" else gmm(b)) + ([] if E("GX") == "nold" else gload(b))
    body += [I(f"s_sub_u32 s{sCNT}, s{sCNT}, 1"), I(f"s_cmp_lg_u32 s{sCNT}, 0"), I("s_cbranch_scc1 K_GL")]
    p.loop(body)
    p(f"""
    s_lshl_b32 s{sTMP}, s{sWAVE}, 13
    s_lshl_b32 s{sA0}, s{sNT}, 15
    s_add_u32 s{sA0}, s{sA0}, s{sTMP}
    s_add_u32 s{sA0}, s{sA0}, {WOF}
    s_xor_b32 s{sA1}, s{sA0}, 0x8000
    s_lshl_b32 s{sB0}, s{sMT}, 15
    s_add_u32 s{sB0}, s{sB0}, s{sTMP}
    s_add_u32 s{sB0}, s{sB0}, {OF}
    s_xor_b32 s{sB1}, s{sB0}, 0x8000
    """)
    p(f"""
    v_and_b32 v{vF}, 7, v0
    s_lshl_b32 s{sTMP}, s{sWAVE}, 5
    s_add_u32 s{sTMP}, s{sTMP}, {FW + 128*4}
    v_lshl_add_u32 v{vF}, v{vF}, 2, s{sTMP}
    buffer_load_dword v{XR}, v{vF}, s[{sWS}:{sWS+3}], 0 offen sc1
    """)
    for b in range(NBUF):
        p.add(gmm(b))
    p(f"""
    v_cmp_ne_u32 vcc, s{sEP}, v{XR}
    s_nop 1
    s_cbranch_vccz K_PWOX
    """)
    poll(p, "K_PWO", XR, vF, sWS, "0", sEP, sCNT, 24)
    for s in range(8):
        if s == 4:
            for r in (sA0, sA1):
                p(f"s_add_u32 s{r}, s{r}, 4096")
        for j in range(2):
            p(f"buffer_load_dwordx4 {ar(WO+8*s+4*j,4)}, v{hL16}, s[{sWS}:{sWS+3}], s{so[j]} offen offset:{1024*(s%4)} sc1")
    stamp(p, 3)
    p(f"""
    s_cmp_lg_u32 s{sWAVE}, 0
    s_cbranch_scc1 K_POX
    v_and_b32 v{vF}, 3, v0
    v_lshlrev_b32 v{vF}, 2, v{vF}
    v_add_u32 v{vF}, {EPA+16}, v{vF}
    s_mov_b32 s{sCNT}, {POLL_MAX*4}
    """)
    p.flush()
    keep = p.tr.copy()
    p(f"""
    K_PA:
    s_sleep 4
    ds_read_b32 v{XR}, v{vF}
    s_sub_u32 s{sCNT}, s{sCNT}, 1
    s_cmp_eq_u32 s{sCNT}, 0
    s_waitcnt lgkmcnt(0)
    s_cbranch_scc1 K_PAX
    v_cmp_ne_u32 vcc, s{sEP}, v{XR}
    s_nop 1
    s_cbranch_vccnz K_PA
    K_PAX:
    v_and_b32 v{vF}, 31, v0
    v_lshlrev_b32 v{vF}, 2, v{vF}
    s_lshl_b32 s{sTMP}, s{sMP}, 7
    s_add_u32 s{sTMP}, s{sTMP}, {FO}
    """)
    stamp(p, 4)
    p(f"s_sleep {E('SL0', '24')}")
    poll(p, "K_PO", XR, vF, sWS, f"s{sTMP}", sEP, sCNT, E("SL1", "6"))
    p.tr = keep
    p("s_barrier")
    stamp(p, 5)
    OFv = Gv[0]
    for s in range(8):
        if s == 4:
            for r in (sB0, sB1):
                p(f"s_add_u32 s{r}, s{r}, 4096")
        for j in range(2):
            p(f"buffer_load_dwordx4 {vr(OFv+8*s+4*j,4)}, v{hL16}, s[{sWS}:{sWS+3}], s{so[2+j]} offen offset:{1024*(s%4)} sc1")
    for s in range(8):
        for u in (1, 2, 3, 0):
            p(f"{MF} {Gacc(u)}, {ar(WO+8*s+4*(u&1),4)}, {vr(OFv+8*s+4*(u>>1),4)}, {Gacc(u)}")
    stamp(p, 6)
    for u in range(1, 4):
        for q in range(4):
            p(f"ds_write_b128 v{vAs[u]}, {ar(16*(u-1)+4*q,4)} offset:{1024*q}")
    p("s_waitcnt lgkmcnt(0)")
    p("s_barrier")
    R = Gv[0]
    for i in range(3):
        for q in range(4):
            p(f"ds_read_b128 {vr(R+16*i+4*q,4)}, v{vRA} offset:{4096*i+1024*q}")
    for i in range(3):
        for r in range(0, 16, 2):
            p(f"v_pk_add_f32 {vr(AC0+r,2)}, {vr(AC0+r,2)}, {vr(R+16*i+r,2)}")
    PK = XR
    for i in range(8):
        p(f"v_cvt_pk_bf16_f32 v{PK+i}, v{AC0+2*i}, v{AC0+2*i+1}")
    for qq in range(2):
        p(f"v_permlane32_swap_b32 v{PK+4*qq}, v{PK+4*qq+2}")
        p(f"v_permlane32_swap_b32 v{PK+4*qq+1}, v{PK+4*qq+3}")
    for qq in range(2):
        p(f"buffer_store_dwordx4 {vr(PK+4*qq,4)}, v{vXO}, s[{sOUT}:{sOUT+3}], s{sTMP3} offen offset:{32*qq}")
    stamp_out(p, 7, sWS, sWAVE, 2, 3, wave_add=4)
    p("K_END:")
    p("s_endpgm")
    return p.text()


HEADER = f"""; Kernarg layout for this problem (72 bytes, ptrs only, base s[0:1]):
; @launch grid=(256,1,1) block=(512,1,1) lds={LDS_BYTES}
.amdgcn_target "amdgcn-amd-amdhsa--gfx950"
.text
.globl {NAME}_kernel
.p2align 8
.type {NAME}_kernel,@function
{NAME}_kernel:
"""

KD = f"""
.section .rodata,"a"
.p2align 6
.amdhsa_kernel {NAME}_kernel
  .amdhsa_next_free_vgpr 256
  .amdhsa_next_free_sgpr {{ns}}
  .amdhsa_accum_offset 128
  .amdhsa_group_segment_fixed_size 0
  .amdhsa_kernarg_size 72
  .amdhsa_user_sgpr_count 2
  .amdhsa_user_sgpr_kernarg_segment_ptr 1
  .amdhsa_system_sgpr_workgroup_id_x 1
.end_amdhsa_kernel
"""


def main():
    global STAMP
    STAMP = len(sys.argv) > 2 and sys.argv[2] == "stamp"
    txt = HEADER + gen() + KD.format(ns=100 if STAMP else 64)
    out = sys.argv[1] if len(sys.argv) > 1 else f"cdna_kernels/{NAME}.s"
    open(out, "w").write(txt)
    print("wrote", out, len(txt), "bytes")


if __name__ == "__main__":
    main()
```

```python
import sys, struct, os
from asmgen import *

NAME = "parallel_sum__mha_block__dense_activation_relu__prompt"
E = os.environ.get

QF = 0
KVF = 2 << 20
HF = 6 << 20
W2F = 13 << 20
WOF = 15 << 20
OF = 16 << 20
FLG = 18 << 20
FQ = FLG
FH = FLG + 4096
FW = FLG + 8192
FO = FLG + 12288
WS_BYTES = 19 << 20

XB = 2048 * 448 * 2
WQKVB = 448 * 1344 * 2
WOB = 448 * 448 * 2
W1B = 448 * 1792 * 2
W2B = 1792 * 448 * 2

MF = "v_mfma_f32_32x32x16_bf16"
M16 = "v_mfma_f32_16x16x32_bf16"

SLOT = 28672
WAB = 64 * 192
CFA = 5 * SLOT
VSC = CFA + 7168
EPA = VSC + 4096
STQ, STH1, STH2 = 1 * SLOT, 2 * SLOT, 3 * SLOT
LDS_BYTES = EPA + 64
REF_OFF = 90.0
L_LIMIT = 2.0 ** 50
POLL_MAX = 0x40000


def f32bits(x):
    return struct.unpack("<I", struct.pack("<f", x))[0]


def vr(b, n):
    return f"v[{b}:{b+n-1}]"


def ar(b, n):
    return f"a[{b}:{b+n-1}]"


def srd(p, d, base, nbytes):
    p(f"""
    s_mov_b32 s{d}, s{base}
    s_and_b32 s{d+1}, s{base+1}, 0xffff
    s_mov_b32 s{d+2}, {nbytes}
    s_mov_b32 s{d+3}, 0x00020000
    """)


STAMP = False
STAMP_BASE = 32 << 20


def stamp(p, i, diag=None):
    if E("DIAG") and i > 0 and i < 7 and diag != E("DIAG"):
        return
    if not E("DIAG") and diag:
        return
    if STAMP:
        p(f"s_memrealtime s[{64+4*i}:{65+4*i}]")
        p(f"s_memtime s[{66+4*i}:{67+4*i}]")
        p("s_waitcnt lgkmcnt(0)")


def stamp_out(p, n, sWS, sWAVE, vtmp=1, vtmp2=2, wave_add=0):
    if not STAMP:
        return
    p("s_waitcnt vmcnt(0) lgkmcnt(0)")
    stamp(p, n)
    p(f"v_mov_b32 v{vtmp}, 0")
    for i in range(n + 1):
        p(f"v_writelane_b32 v{vtmp}, s{64+4*i}, {i}")
        p(f"v_writelane_b32 v{vtmp}, s{66+4*i}, {16+i}")
    p(f"""
    s_lshl_b32 s62, s2, 3
    s_add_u32 s62, s62, s{sWAVE}
    s_add_u32 s62, s62, {wave_add}
    s_lshl_b32 s62, s62, 8
    s_add_u32 s62, s62, {STAMP_BASE}
    v_lshlrev_b32 v{vtmp2}, 2, v0
    s_mov_b32 s{sWS+2}, {64 << 20}
    buffer_store_dword v{vtmp}, v{vtmp2}, s[{sWS}:{sWS+3}], s62 offen
    """)


def spin(p, where, sEP):
    if E("SPIN") != where:
        return
    uid = spin.n = getattr(spin, "n", 0) + 1
    p.flush()
    p(f"""
    SPB{uid}:
    s_sleep 1
    s_memrealtime s[60:61]
    s_waitcnt lgkmcnt(0)
    s_sub_u32 s60, s60, s{sEP}
    s_cmp_lt_u32 s60, {E("SPINX", "6000")}
    s_cbranch_scc1 SPB{uid}
    """)
    p.flush()


def poll(p, name, vdst, vaddr, sWS, soff, sEP, sCNT, sleep):
    p.flush()
    p(f"""
    s_mov_b32 s{sCNT}, {POLL_MAX}
    {name}:
    buffer_load_dword v{vdst}, v{vaddr}, s[{sWS}:{sWS+3}], {soff} offen sc1
    s_sub_u32 s{sCNT}, s{sCNT}, 1
    s_cmp_eq_u32 s{sCNT}, 0
    s_waitcnt vmcnt(0)
    s_cbranch_scc1 {name}X
    v_cmp_ne_u32 vcc, s{sEP}, v{vdst}
    s_nop 1
    s_cbranch_vccz {name}X
    s_sleep {sleep}
    s_branch {name}
    {name}X:
    """)
    p.flush()


def gen():
    p = Prog()
    sX, sW, sW2, sWS, sKVR = 4, 8, 12, 16, 56
    (sWAVE, sMT, sG, sTMP, sTMP2, sTMP3, sST, sTY, sM0, sXO, sT, sONE, sOA, sOB, sEP, sCNT,
     sJ, sI, sHEAD, sQB) = range(20, 40)
    sKV, sKV2, sKV0 = sXO, sOA, sOB
    sVS, sVT = sM0, sONE
    p(f"""
    s_cmp_ge_u32 s2, 256
    s_cbranch_scc1 K_END
    s_load_dwordx4 s[40:43], s[0:1], 0
    s_load_dwordx2 s[44:45], s[0:1], 16
    s_load_dwordx8 s[48:55], s[0:1], 32
    s_load_dwordx2 s[46:47], s[0:1], 64
    v_lshrrev_b32 v1, 6, v0
    v_and_b32 v0, 63, v0
    v_readfirstlane_b32 s{sWAVE}, v1
    s_and_b32 s{sJ}, s2, 7
    s_lshr_b32 s{sI}, s2, 3
    s_lshr_b32 s{sMT}, s{sJ}, 1
    s_lshl_b32 s{sMT}, s{sMT}, 2
    s_and_b32 s{sTMP}, s{sI}, 3
    s_add_u32 s{sMT}, s{sMT}, s{sTMP}
    s_lshl_b32 s{sMT}, s{sMT}, 2
    s_and_b32 s{sG}, s{sJ}, 1
    s_lshl_b32 s{sG}, s{sG}, 3
    s_lshr_b32 s{sTMP}, s{sI}, 2
    s_add_u32 s{sG}, s{sG}, s{sTMP}
    s_cmp_ge_u32 s{sWAVE}, 4
    s_waitcnt lgkmcnt(0)
    s_cbranch_scc1 K_HELPER
    """)
    stamp(p, 0)
    srd(p, sWS, 46, WS_BYTES)

    def tr_lane(dstA, dstB0, dstB1, t0, t1):
        p(f"""
        v_lshrrev_b32 v{t0}, 5, v0
        v_lshlrev_b32 v{t0}, 3, v{t0}
        v_bfe_u32 v{t1}, v0, 2, 2
        v_add_u32 v{t0}, v{t0}, v{t1}
        v_bfe_u32 v{t1}, v0, 4, 1
        v_lshlrev_b32 v{dstB0}, 5, v{t1}
        v_and_b32 v{t1}, 3, v0
        v_lshl_add_u32 v{dstB0}, v{t1}, 3, v{dstB0}
        v_mul_u32_u24 v{dstA}, 192, v{t0}
        v_add_u32 v{dstA}, v{dstA}, v{dstB0}
        v_lshl_add_u32 v{dstB0}, v{t0}, 7, v{dstB0}
        v_bfe_u32 v{t1}, v0, 3, 1
        v_lshl_add_u32 v{dstB0}, v{t1}, 6, v{dstB0}
        v_xor_b32 v{dstB1}, 64, v{dstB0}
        """)

    X = 0
    CFt, XM = 112, 116
    accs = [16, 32, 48, 64, 80, 16, 32]
    NW = int(E('NW', '8'))
    WF = 96
    GR, SX, ONEc, vXA, vLA, vXC, vSW, vSR = 64, 80, 84, 88, 92, 93, 94, 95
    ST = 64
    vL16, vLB0, vLB1, vC0, vC1, vCF, vA, vRINV, vVW, vVR, vMA, vOA, vT0, vT1, vPL = range(1, 16)
    p(f"s_add_u32 s{sMT}, s{sMT}, s{sWAVE}")
    tr_lane(vLA, vLB0, vLB1, vA, vRINV)
    p(f"""
    v_lshrrev_b32 v{vT1}, 5, v0
    v_and_b32 v{vT0}, 31, v0
    v_bfe_u32 v{vA}, v0, 1, 3
    v_xor_b32 v{vA}, v{vT1}, v{vA}
    s_lshl_b32 s{sTMP}, s{sWAVE}, 12
    s_add_u32 s{sTMP}, s{sTMP}, {WAB}
    v_lshl_add_u32 v{vRINV}, v{vT0}, 7, s{sTMP}
    v_lshlrev_b32 v{vL16}, 4, v0
    """)
    for sp in range(4):
        p(f"v_xor_b32 v{vXA+sp}, {2*sp}, v{vA}")
        p(f"v_lshl_add_u32 v{vXA+sp}, v{vXA+sp}, 4, v{vRINV}")
    p(f"""
    v_and_b32 v{vA}, 15, v0
    v_bfe_u32 v{vRINV}, v0, 4, 1
    v_mov_b32 v{vCF}, 0x3f803f80
    v_cmp_eq_u32 vcc, v{vA}, v{vRINV}
    v_cndmask_b32 v{ONEc}, 0, v{vCF}, vcc
    v_mov_b32 v{ONEc+1}, v{ONEc}
    v_mov_b32 v{ONEc+2}, v{ONEc}
    v_mov_b32 v{ONEc+3}, v{ONEc}
    v_add_u32 v{vCF}, {CFA}, v{vL16}
    s_mul_i32 s{sT}, s{sG}, 3
    s_lshl_b32 s{sTMP}, s{sWAVE}, 10
    s_add_u32 s{sTMP}, s{sTMP}, {VSC}
    v_lshl_add_u32 v{vSW}, v{vT0}, 4, s{sTMP}
    v_and_b32 v{vA}, 3, v0
    v_lshl_add_u32 v{vSR}, v{vA}, 2, v{vSW}
    s_lshl_b32 s{sTMP}, s{sWAVE}, 11
    s_add_u32 s{sTMP}, s{sTMP}, {STQ}
    v_add_u32 v{vVW}, s{sTMP}, v{vL16}
    s_lshl_b32 s{sHEAD}, s{sJ}, 1
    s_and_b32 s{sTMP}, s{sI}, 1
    s_add_u32 s{sHEAD}, s{sHEAD}, s{sTMP}
    s_lshr_b32 s{sQB}, s{sI}, 1
    """)
    p(f"""
    s_add_u32 s{sTMP}, s{sHEAD}, 16
    s_mul_i32 s{sTMP}, s{sTMP}, 43
    s_lshr_b32 s{sTMP}, s{sTMP}, 7
    s_lshl_b32 s{sTMP}, s{sTMP}, 8
    v_mov_b32 v{vPL}, s{sTMP}
    s_lshl_b32 s{sTMP2}, s{sWAVE}, 6
    s_add_u32 s{sTMP}, s{sTMP}, s{sTMP2}
    v_and_b32 v{vA}, 15, v0
    s_mov_b64 exec, 0xffff
    v_lshl_add_u32 v{vPL}, v{vA}, 2, s{sTMP}
    s_add_u32 s{sTMP}, s{sHEAD}, 32
    s_mul_i32 s{sTMP}, s{sTMP}, 43
    s_lshr_b32 s{sTMP}, s{sTMP}, 7
    s_lshl_b32 s{sTMP}, s{sTMP}, 8
    s_add_u32 s{sTMP}, s{sTMP}, s{sTMP2}
    s_mov_b32 exec_lo, 0xffff0000
    v_lshl_add_u32 v{vPL}, v{vA}, 2, s{sTMP}
    s_mul_i32 s{sTMP}, s{sHEAD}, 43
    s_lshr_b32 s{sTMP}, s{sTMP}, 7
    s_lshl_b32 s{sTMP}, s{sTMP}, 8
    s_lshl_b32 s{sTMP2}, s{sQB}, 4
    s_add_u32 s{sTMP}, s{sTMP}, s{sTMP2}
    s_mov_b32 exec_lo, 0
    s_mov_b32 exec_hi, 15
    v_lshl_add_u32 v{vPL}, v{vA}, 2, s{sTMP}
    s_mov_b64 exec, -1
    v_add_u32 v{vPL}, {FQ}, v{vPL}
    """)

    seq = []
    for st in range(7):
        for sp in range(4):
            for j in range(3):
                seq.append((st, 4 * st + sp, j))
    for ph in range(2):
        for hs in range(2):
            for sp in range(14):
                for j in range(2):
                    seq.append((7 + 2 * ph + hs, 14 * hs + sp, 3 + 2 * ph + j))
    NA = 84

    def rdw(n):
        st, s, j = seq[n]
        b = WF + 4 * (n % NW)
        if st < 7:
            va, off, d = vC0, (s & 3) * 16 * 192 + 64 * j, 4 * 192
        else:
            va, off, d = (vC0 if (j - 3) % 2 == 0 else vC1), (s % 14) * 16 * 128, 4 * 128
        return [I(f"ds_read_b64_tr_b16 {vr(b,2)}, v{va} offset:{off}"),
                I(f"ds_read_b64_tr_b16 {vr(b+2,2)}, v{va} offset:{off+d}")]

    def mfma(n):
        st, s, j = seq[n]
        acc = vr(accs[j], 16)
        return I(f"{MF} {acc}, {vr(WF+4*(n%NW),4)}, {ar(X+4*s,4)}, {'0' if s == 0 else acc}")

    def enter(st):
        base = (st % 5) * SLOT
        o = [I("s_waitcnt lgkmcnt(0)"), I("s_barrier")] if st <= 7 or st == 9 else []
        if st < 7:
            o.append(I(f"v_add_u32 v{vC0}, {base}, v{vLA}"))
            for sp in range(4):
                o.append(I(f"v_add_u32 v{vXC}, {base}, v{vXA+sp}"))
                o.append(I(f"ds_read_b128 {ar(X+4*(4*st+sp),4)}, v{vXC}"))
        elif st < 11:
            o.append(I(f"v_add_u32 v{vC0}, {base}, v{vLB0}"))
            o.append(I(f"v_add_u32 v{vC1}, {base}, v{vLB1}"))
        return o

    def stats(st):
        f = {}
        for sp in range(4):
            s_ = 4 * st + sp
            x = ar(X + 4 * s_, 4)
            f[3 * sp] = [I(f"{MF} {vr(GR,16)}, {x}, {x}, {'0' if s_ == 0 else vr(GR,16)}")]
            f[3 * sp + 1] = [I(f"{M16} {vr(SX,4)}, {vr(ONEc,4)}, {x}, {'0' if s_ == 0 else vr(SX,4)}")]
        return f

    AH = NW - 1

    def stream(n0, n1, fill, rs, limit):
        out = []
        q = rs.setdefault("q", [])
        RL = int(E("RL", "3"))

        def refill(n):
            while rs["next"] <= min(n + AH, limit - 1):
                m = rs["next"]
                if seq[m][0] != rs["stage"]:
                    en = enter(seq[m][0])
                    if en[0].kind == "valu":
                        q.extend(("rd", m, [x]) for x in en)
                    else:
                        q.append(("bar", m, en))
                    rs["stage"] = seq[m][0]
                for x in rdw(m):
                    q.append(("rd", m, [x]))
                rs["next"] = m + 1

        def drain(n, budget):
            rs["slot"] = rs.get("slot", 0) + 1
            while q:
                kind, m, ins = q[0]
                must = m <= n + 2
                if kind == "bar":
                    if rs["slot"] < rs["last_at"] + 2 and not must:
                        break
                    q.pop(0)
                    k = [i for i, x in enumerate(ins) if x.op == "s_barrier"][0] + 1
                    while k < len(ins) and ins[k].kind != "valu":
                        k += 1
                    out.extend(ins[:k])
                    rest = ins[k:]
                    q[:0] = [("rd", m, [x]) for x in rest]
                    budget -= 1
                    continue
                if budget <= 0 and not must:
                    break
                q.pop(0)
                out.extend(ins)
                if ins[0].kind == "ds":
                    budget -= 2 if "b128" in ins[0].op else 1
                    rs["last_at"] = rs["slot"]

        for n in range(n0, n1):
            out.append(mfma(n))
            refill(n)
            drain(n, RL)
            if fill and (n - n0) in fill:
                for x in fill[n - n0]:
                    out.append(x)
                    if x.kind == "mfma":
                        drain(n, RL if x.passes == 8 else 1)
        return out

    rs = {"next": 0, "stage": 0, "last_at": -9}
    p.add(enter(0))
    stamp(p, 1)
    for m in range(AH):
        p.add(rdw(m))
    rs["next"] = AH
    for st in range(7):
        if st == 4:
            p(f"v_mov_b32 v{vT0}, 0")
            p(f"global_load_dword v{vT1}, v{vT0}, s[54:55] sc0 sc1")
        f = stats(st)
        if st < 6:
            b0 = 13 - AH
            f = {b0: f[0] + f[1], b0 + 1: f[3] + f[4], b0 + 2: f[6] + f[7], b0 + 3: f[9] + f[10]}
        if st == 6:
            f = {0: f[0] + f[1], 1: f[3] + f[4], 2: f[6] + f[7], 3: f[9] + f[10]}
            ex = []
            for q in range(4):
                ex += [f"s_mov_b32 exec_lo, {0xF << (8*q):#x}", f"s_mov_b32 exec_hi, {0xF0 << (8*q):#x}",
                       f"ds_write_b128 v{vSW}, {vr(GR+4*q,4)}"]
            ex += ["s_mov_b64 exec, 0xffff",
                   f"ds_write_b32 v{vSW}, v{SX} offset:512",
                   f"ds_write_b32 v{vSW}, v{SX+1} offset:768",
                   "s_mov_b64 exec, -1",
                   f"ds_read_b32 v{ST+4}, v{vSR}",
                   f"ds_read_b32 v{ST}, v{vSW} offset:512"]
            f[7] = [I(x) for x in ex]
        if E("NOST") and st < 6:
            f = None
        p.add(stream(12 * st, 12 * st + (12 if st < 6 else 9), f, rs, NA))
    T = ST
    fin = [I(x.strip()) for x in f"""
    v_mul_f32 v{T}, {f32bits(1.0/448.0):#x}, v{T}
    v_mul_f32 v{T+4}, {f32bits(1.0/448.0):#x}, v{T+4}
    v_fma_f32 v{T+4}, -v{T}, v{T}, v{T+4}
    v_cvt_pk_bf16_f32 v{T+1}, -v{T}, -v{T}
    v_max_f32 v{T+4}, 0, v{T+4}
    v_and_b32 v{T+2}, 0xffff, v{T+1}
    v_cvt_pk_bf16_f32 v{T+4}, v{T+4}, v{T+4}
    v_accvgpr_write_b32 a{XM}, v{T+1}
    v_and_b32 v{T+4}, 0xffff0000, v{T+4}
    v_accvgpr_write_b32 a{XM+1}, v{T+2}
    v_add_f32 v{T+4}, {f32bits(1e-5):#x}, v{T+4}
    v_accvgpr_write_b32 a{XM+2}, v{T+1}
    v_cvt_pk_bf16_f32 v{T+4}, v{T+4}, v{T+4}
    v_accvgpr_write_b32 a{XM+3}, v{T+2}
    v_and_b32 v{T+4}, 0xffff0000, v{T+4}
    v_sqrt_f32 v{T+4}, v{T+4}
    v_mov_b32 v{T}, {EPA}
    v_cvt_pk_bf16_f32 v{T+4}, v{T+4}, v{T+4}
    v_and_b32 v{T+4}, 0xffff0000, v{T+4}
    v_rcp_f32 v{vRINV}, v{T+4}
    v_readfirstlane_b32 s{sEP}, v{vT1}
    """.strip().split("\n")]
    p.add(fin)
    p(f"""
    s_cmp_lg_u32 s{sEP}, 0
    s_cbranch_scc1 K_GEX
    """)
    p.add(opt([f"s_mov_b32 s{sCNT}, {POLL_MAX}",
               "K_GE:",
               f"global_load_dword v{vT1}, v{vT0}, s[54:55] sc0 sc1",
               f"s_sub_u32 s{sCNT}, s{sCNT}, 1",
               f"s_cmp_eq_u32 s{sCNT}, 0",
               "s_waitcnt vmcnt(0)",
               "s_cbranch_scc1 K_GEX",
               f"v_readfirstlane_b32 s{sEP}, v{vT1}",
               "s_sleep 4",
               f"s_cmp_eq_u32 s{sEP}, 0",
               "s_cbranch_scc1 K_GE"]))
    p(f"""
    K_GEX:
    ds_write_b32 v{T}, v{vT1}
    """)
    spin(p, "a", sEP)
    p(f"""
    s_cmp_ge_u32 s{sG}, 14
    s_cbranch_scc1 K_SHORT
    """)
    p.flush()
    tr_s, rs_s, hist_s = p.tr.copy(), dict(rs, q=list(rs["q"])), list(p.out[-60:])
    p.add(stream(NA - 3, NA, None, rs, len(seq)))
    stamp(p, 2)
    stamp(p, 1, "B")
    c = (28 ** -0.5) * 1.4426950408889634

    def epi(j, packed=False):
        qkv = j < 3
        acc = accs[j]
        cf = [CFt, 120, 124][j % 3]
        g0 = [I(f"ds_read_b128 {ar(cf,4)}, v{vCF} offset:{1024*j}")]
        g1 = [I(f"{MF} {vr(acc,16)}, {ar(cf,4)}, {ar(XM,4)}, {vr(acc,16)}")]
        g2 = []
        sc = vRINV
        if qkv:
            sc = vA
            g2 += [I(x) for x in [
                f"s_cmp_lt_u32 s{sT}, {16-j}",
                f"s_cselect_b32 s{sTMP}, {f32bits(c):#x}, 1.0",
                f"v_mul_f32 v{vA}, s{sTMP}, v{vRINV}"]]
        off = 8192 * j if qkv else (STH1 - STQ if j < 5 else STH2 - STQ) + 8192 * ((j - 3) & 1)
        for i in range(8):
            if packed:
                e2 = sc & ~1
                sel = "op_sel_hi:[1,0]" if sc == e2 else "op_sel:[0,1]"
                g2.append(I(f"v_pk_mul_f32 {vr(acc+2*i,2)}, {vr(acc+2*i,2)}, {vr(e2,2)} {sel}"))
            else:
                g2.append(I(f"v_mul_f32 v{acc+2*i}, v{sc}, v{acc+2*i}"))
                g2.append(I(f"v_mul_f32 v{acc+2*i+1}, v{sc}, v{acc+2*i+1}"))
            g2.append(I(f"v_cvt_pk_bf16_f32 v{acc+i}, v{acc+2*i}, v{acc+2*i+1}"))
            if i & 3 == 3:
                o = off + 1024 * (i >> 2)
                va = vVW if o < 65536 else vVR
                g2.append(I(f"ds_write_b128 v{va}, {vr(acc+i-3,4)} offset:{o if o < 65536 else o - 32768}", tag="stg"))
        return g0, g1, g2

    def plan(tiles, start, span):
        fill = {}

        def put(i, l):
            fill.setdefault(i, []).extend(l)
        e = [epi(j) for j in tiles]
        put(start, e[0][0] + e[1][0])
        put(start + 2, e[0][1])
        put(start + 3, e[1][1])
        if len(e) > 2:
            put(start + 3, e[2][0])
            put(start + 6, e[2][1])
        allv = [x for g in e for x in g[2]]
        b2 = start + 4
        for i, x in enumerate(allv):
            put(b2 + (i * (span - 4)) // len(allv), [x])
        return fill

    S = [48, 64]
    P = [80, 88]
    O0 = 96
    KR = 48
    Q = 0
    KV = [32, 48]
    OA = 64

    def att_loads():
        o = [f"s_lshl_b32 s{sKV0}, s{sHEAD}, 18",
             f"s_add_u32 s{sKV0}, s{sKV0}, {KVF}",
             f"buffer_load_dwordx4 {vr(KR,4)}, v{vL16}, s[{sWS}:{sWS+3}], s{sKV0} offen sc1",
             f"buffer_load_dwordx4 {vr(KR+4,4)}, v{vL16}, s[{sWS}:{sWS+3}], s{sKV0} offen offset:1024 sc1",
             f"s_lshl_b32 s{sTMP}, s{sHEAD}, 6",
             f"s_lshl_b32 s{sTMP2}, s{sQB}, 2",
             f"s_add_u32 s{sTMP}, s{sTMP}, s{sTMP2}"]
        for u in range(4):
            o += [f"s_xor_b32 s{sTMP2}, s{sWAVE}, {u}",
                  f"s_add_u32 s{sTMP2}, s{sTMP2}, s{sTMP}",
                  f"s_lshl_b32 s{sTMP2}, s{sTMP2}, 11",
                  f"buffer_load_dwordx4 {ar(Q+8*u,4)}, v{vL16}, s[{sWS}:{sWS+3}], s{sTMP2} offen sc1",
                  f"buffer_load_dwordx4 {ar(Q+8*u+4,4)}, v{vL16}, s[{sWS}:{sWS+3}], s{sTMP2} offen offset:1024 sc1"]
        o += [f"s_lshl_b32 s{sTMP}, s{sWAVE}, 16",
              f"s_add_u32 s{sKV}, s{sKV0}, s{sTMP}",
              f"s_add_u32 s{sKV2}, s{sKV}, 4096"]
        for j in range(4):
            o.append(f"buffer_load_dwordx4 {ar(KV[0]+4*j,4)}, v{vL16}, s[{sWS}:{sWS+3}], s{sKV} offen offset:{1024*j} sc1")
        for j in range(2):
            o.append(f"buffer_load_dwordx4 {ar(KV[1]+4*j,4)}, v{vL16}, s[{sWS}:{sWS+3}], s{sKV2} offen offset:{1024*j} sc1")
        return [I(x) for x in o]

    def poll_opt(name, sleep):
        o = [I(f"v_cmp_ne_u32 vcc, s{sEP}, v{vT1}"), I("s_nop 1"), I(f"s_cbranch_vccz {name}X")]
        o += opt([f"s_mov_b32 s{sCNT}, {POLL_MAX}",
                  f"{name}:",
                  f"s_sleep {sleep}",
                  f"buffer_load_dword v{vT1}, v{vPL}, s[{sWS}:{sWS+3}], 0 offen sc1",
                  f"s_sub_u32 s{sCNT}, s{sCNT}, 1",
                  f"s_cmp_eq_u32 s{sCNT}, 0",
                  "s_waitcnt vmcnt(0)",
                  f"s_cbranch_scc1 {name}X",
                  f"v_cmp_ne_u32 vcc, s{sEP}, v{vT1}",
                  "s_nop 1",
                  f"s_cbranch_vccnz {name}"])
        o += [I(f"{name}X:")]
        return o

    HSPAN, PPOS, CPOS = int(E("HSPAN", "30")), int(E("PPOS", "30")), int(E("CPOS", "42"))
    p(f"v_add_u32 v{vVR}, 32768, v{vVW}")

    def qkv_epilogue():
        e = [epi(j, True) for j in range(3)]
        p.add(e[0][0] + e[1][0] + e[2][0] + e[0][1] + e[1][1] + e[2][1] + e[0][2] + e[1][2] + e[2][2])
        p("s_waitcnt lgkmcnt(0)")
        p("s_barrier")

    qkv_epilogue()
    stamp(p, 1, "C")
    p.add(stream(NA, NA + 56, None, rs, len(seq)))
    stamp(p, 2, "C")
    fc = plan([3, 4], 0, HSPAN)
    fc.setdefault(HSPAN + 2, []).extend([I("@wait stg"), I("s_barrier")])
    fc.setdefault(PPOS, []).append(I(f"buffer_load_dword v{vT1}, v{vPL}, s[{sWS}:{sWS+3}], 0 offen sc1"))
    ds = (lambda i: [I(f"s_memtime s[{66+4*i}:{67+4*i}]"), I("s_waitcnt lgkmcnt(0)")]) if STAMP and E("DIAG") == "C" else (lambda i: [])
    fc.setdefault(CPOS, []).extend(ds(3) + poll_opt("K_PQ1", E("SLQ", "12")) + ds(4))
    al = att_loads()
    for i, x in enumerate(al):
        fc.setdefault(CPOS + (i * (55 - CPOS)) // len(al), []).append(x)
    e = [epi(j) for j in (5, 6)]
    fc.setdefault(52, []).extend(e[0][0] + e[1][0])
    p.add(stream(NA + 56, NA + 112, fc, rs, len(seq)))
    stamp(p, 3)
    stamp(p, 5, "C")
    RD = [64, 80, 96, 112]

    def refmm():
        o = []
        for u in range(4):
            d = RD[u]
            o.append(I(f"{MF} {vr(d,16)}, {vr(KR,4)}, {ar(Q+8*u,4)}, 0"))
            o.append(I(f"{MF} {vr(d,16)}, {vr(KR+4,4)}, {ar(Q+8*u+4,4)}, {vr(d,16)}"))
        return o

    p.add(e[0][1] + e[1][1])
    p.add(interleave(refmm(), e[0][2] + e[1][2]))
    p("""
    s_waitcnt lgkmcnt(0)
    s_barrier
    s_branch K_ATT
    """)
    p.flush()
    tr_att = p.tr.copy()

    p.tr = tr_s
    p("K_SHORT:")
    p.add(stream(NA - 3, NA, None, rs_s, NA))
    p("s_waitcnt lgkmcnt(0)")
    p("s_barrier")
    stamp(p, 2)
    qkv_epilogue()
    p("s_barrier")
    stamp(p, 3)
    seq2 = add_waits(p.cur, p.tr)
    p.out += pad_hazards(seq2, hist_s)
    p.cur = []
    p(f"s_sleep {E('SLS0', '30')}")
    poll(p, "K_PQ2", vT1, vPL, sWS, "0", sEP, sCNT, E("SLS", "10"))
    p.add(att_loads())
    p.add(refmm())
    p("s_nop 7")
    p.flush()

    p.tr = tr_att

    def Oacc(u):
        return vr(O0, 16) if u == 0 else ar(OA + 16 * (u - 1), 16)

    vA1, vA2, vA3, vRA, vEP = 2, 3, 4, 5, 6
    vAs = [None, vA1, vA2, vA3]
    p(f"""
    K_ATT:
    s_setprio 2
    s_mov_b32 s{sKVR}, s{sWS}
    s_mov_b32 s{sKVR+1}, s{sWS+1}
    s_add_u32 s{sKVR+2}, s{sKV}, 65536
    s_mov_b32 s{sKVR+3}, 0x00020000
    v_mov_b32 v{vEP}, s{sEP}
    """)
    for u in range(1, 4):
        p(f"""
        s_xor_b32 s{sTMP}, s{sWAVE}, {u}
        s_mul_i32 s{sTMP}, s{sTMP}, 3
        s_add_u32 s{sTMP}, s{sTMP}, {u-1}
        s_lshl_b32 s{sTMP}, s{sTMP}, 12
        v_add_u32 v{vAs[u]}, s{sTMP}, v{vL16}
        """)
    p(f"""
    s_mul_i32 s{sTMP}, s{sWAVE}, {3*4096}
    v_add_u32 v{vRA}, s{sTMP}, v{vL16}
    s_mov_b32 s{sCNT}, 8
    """)
    M, M2, PC = 24, 28, 40

    def rowmax(m, d):
        p(f"v_max3_f32 v{m}, v{d}, v{d+1}, v{d+2}")
        for r in range(3, 15, 2):
            p(f"v_max3_f32 v{m}, v{m}, v{d+r}, v{d+r+1}")
        p(f"v_max_f32 v{m}, v{m}, v{d+15}")

    def put_ref(units, add):
        for u in units:
            p(f"v_mov_b32 v{M2+u}, v{M+u}")
        for u in units:
            p(f"v_permlane32_swap_b32 v{M+u}, v{M2+u}")
        for u in units:
            m, a, b, cc = M + u, M2 + u, PC + u, PC + 4 + u
            p(f"""
            v_max_f32 v{m}, v{m}, v{a}
            v_sub_f32 v{a}, {f32bits(-add):#x}, v{m}
            v_and_b32 v{b}, 0xffff0000, v{a}
            v_sub_f32 v{a}, v{a}, v{b}
            v_and_b32 v{cc}, 0xffff0000, v{a}
            v_sub_f32 v{a}, v{a}, v{cc}
            v_lshrrev_b32 v{b}, 16, v{b}
            v_or_b32 v{b}, v{b}, v{cc}
            v_lshrrev_b32 v{a}, 16, v{a}
            """)
        p("s_mov_b32 exec_lo, 0")
        for u in units:
            p(f"v_accvgpr_write_b32 a{Q+8*u+6}, v{PC+u}")
            p(f"v_accvgpr_write_b32 a{Q+8*u+7}, v{M2+u}")
        p("s_mov_b32 exec_lo, -1")

    for u in range(4):
        rowmax(M + u, RD[u])
    put_ref(range(4), REF_OFF)

    def qk(n_u, kb, sbuf):
        k = KV[kb]
        return [I(f"{MF} {vr(S[sbuf],16)}, {ar(k,4)}, {ar(Q+8*n_u,4)}, 0"),
                I(f"{MF} {vr(S[sbuf],16)}, {ar(k+4,4)}, {ar(Q+8*n_u+4,4)}, {vr(S[sbuf],16)}")]

    def pv(u, vb, pbuf):
        v = KV[vb] + 8
        return [I(f"{MF} {Oacc(u)}, {ar(v,4)}, {vr(P[pbuf],4)}, {Oacc(u)}"),
                I(f"{MF} {Oacc(u)}, {ar(v+4,4)}, {vr(P[pbuf]+4,4)}, {Oacc(u)}")]

    def softmax(sb):
        s, pp = S[sb], P[sb]
        v = []
        for i in range(8):
            v.append(I(f"v_exp_f32 v{s+2*i}, v{s+2*i}"))
            v.append(I(f"v_exp_f32 v{s+2*i+1}, v{s+2*i+1}"))
            if i >= 1:
                v.append(I(f"v_cvt_pk_bf16_f32 v{pp+i-1}, v{s+2*i-2}, v{s+2*i-1}"))
        v.append(I(f"v_cvt_pk_bf16_f32 v{pp+7}, v{s+14}, v{s+15}"))
        return v

    def cost(i):
        return 8 if i.is_trans() else 4

    def slot(tb, u):
        nu = (u + 1) & 3
        pu = (u - 1) & 3
        mf = qk(nu, tb if u < 3 else 1 - tb, (u + 1) & 1) + pv(pu, tb if u > 0 else 1 - tb, (u - 1) & 1)
        ld = []
        if u == 0:
            so = sKV2 if tb == 0 else sKV
            ld += [I(f"buffer_load_dwordx4 {ar(KV[1-tb]+8+4*j,4)}, v{vL16}, s[{sKVR}:{sKVR+3}], s{so} offen offset:{2048+1024*j} sc1") for j in range(2)]
        if u == 2:
            so = sKV if tb == 0 else sKV2
            ld += [I(f"buffer_load_dwordx4 {ar(KV[tb]+4*j,4)}, v{vL16}, s[{sKVR}:{sKVR+3}], s{so} offen offset:{1024*j} sc1") for j in range(2)]
        va = softmax(u & 1)
        total = sum(cost(i) for i in va)
        out = []
        k = 0
        acc = 0
        for j, m in enumerate(mf):
            out.append(m)
            tgt = total * (j + 1) / len(mf)
            while k < len(va) and acc + cost(va[k]) / 2 <= tgt:
                out.append(va[k]); acc += cost(va[k]); k += 1
        out += va[k:]
        idx = max(i for i, x in enumerate(out) if x.kind == "mfma")
        if ld:
            out = out[:idx + 1] + interleave(out[idx + 1:], ld)
        return out

    stamp(p, 4)
    spin(p, "att", sEP)
    p.add(qk(0, 0, 0))
    for i in range(48):
        p(f"v_accvgpr_write_b32 a{OA+i}, 0")
    for i in range(8):
        p(f"v_accvgpr_write_b32 a{KV[1]+8+i}, 0")
    for i in range(0, 16, 2):
        p(f"v_mov_b64 {vr(O0+i,2)}, 0")
    for i in range(0, 8, 2):
        p(f"v_mov_b64 {vr(P[1]+i,2)}, 0")
    body = [I(".p2align 6"), I("K_LOOP:")]
    for tb in range(2):
        for u in range(4):
            if u == 1:
                so = sKV if tb == 0 else sKV2
                body.append(I(f"s_add_u32 s{so}, s{so}, 8192"))
            if tb == 1 and u == 3:
                body.append(I(f"s_sub_u32 s{sCNT}, s{sCNT}, 1"))
                body.append(I(f"s_cmp_lg_u32 s{sCNT}, 0"))
            body += slot(tb, u)
    body += [I("s_cbranch_scc1 K_LOOP")]
    p.loop(body)
    stamp(p, 5)
    spin(p, "tail", sEP)
    p.add(pv(3, 1, 1))
    for u in range(1, 4):
        for q in range(4):
            p(f"ds_write_b128 v{vAs[u]}, {ar(OA+16*(u-1)+4*q,4)} offset:{1024*q}")
    p(f"""
    s_lshl_b32 s{sTMP2}, s{sQB}, 2
    s_add_u32 s{sTMP2}, s{sTMP2}, s{sWAVE}
    s_lshl_b32 s{sTMP}, s{sTMP2}, 15
    s_lshl_b32 s{sTMP3}, s{sHEAD}, 11
    s_add_u32 s{sTMP}, s{sTMP}, s{sTMP3}
    s_add_u32 s{sTMP}, s{sTMP}, {OF}
    s_lshl_b32 s{sTMP3}, s{sTMP2}, 4
    s_add_u32 s{sTMP3}, s{sTMP3}, s{sHEAD}
    s_lshl_b32 s{sTMP3}, s{sTMP3}, 2
    s_add_u32 s{sTMP3}, s{sTMP3}, {FO}
    s_lshl_b32 s{sTMP2}, s{sWAVE}, 2
    s_add_u32 s{sTMP2}, s{sTMP2}, {EPA+16}
    v_mov_b32 v16, s{sTMP2}
    v_and_b32 v17, 3, v0
    v_lshlrev_b32 v17, 2, v17
    v_add_u32 v17, {EPA+16}, v17
    ds_write_b32 v16, v{vEP}
    s_mov_b32 s{sKV}, {POLL_MAX*16}
    """)
    p.flush()
    p(f"""
    K_AW:
    ds_read_b32 v18, v17
    s_sub_u32 s{sKV}, s{sKV}, 1
    s_cmp_eq_u32 s{sKV}, 0
    s_waitcnt lgkmcnt(0)
    s_cbranch_scc1 K_AWX
    v_cmp_ne_u32 vcc, s{sEP}, v18
    s_nop 1
    s_cbranch_vccnz K_AW
    K_AWX:
    """)
    p.flush()
    stamp(p, 6)
    R = 48
    for i in range(3):
        for q in range(4):
            p(f"ds_read_b128 {vr(R+16*i+4*q,4)}, v{vRA} offset:{4096*i+1024*q}")
    for i in range(3):
        for r in range(0, 16, 2):
            p(f"v_pk_add_f32 {vr(O0+r,2)}, {vr(O0+r,2)}, {vr(R+16*i+r,2)}")
    p("K_NORM:")
    l, l2, ri, mx, PK = 16, 17, 18, 20, 32
    p(f"""
    v_mov_b32 v{l}, v{O0+12}
    v_mov_b32 v{l2}, v{O0+12}
    v_permlane32_swap_b32 v{l}, v{l2}
    v_rcp_f32 v{ri}, v{l2}
    """)
    for r in range(0, 16, 2):
        p(f"v_pk_mul_f32 {vr(O0+r,2)}, {vr(O0+r,2)}, {vr(ri,2)} op_sel_hi:[1,0]")
    for i in range(8):
        p(f"v_cvt_pk_bf16_f32 v{PK+i}, v{O0+2*i}, v{O0+2*i+1}")
    p(f"""
    buffer_store_dwordx4 {vr(PK,4)}, v{vL16}, s[{sWS}:{sWS+3}], s{sTMP} offen sc1
    buffer_store_dwordx4 {vr(PK+4,4)}, v{vL16}, s[{sWS}:{sWS+3}], s{sTMP} offen offset:1024 sc1
    """)
    for r in range(0, 16, 2):
        p(f"v_pk_add_f32 {vr(O0+r,2)}, {vr(O0+r,2)}, {vr(O0+r,2)} neg_lo:[0,1] neg_hi:[0,1]")
    for r in (8, 4, 2):
        for k in range(0, r, 2):
            p(f"v_pk_add_f32 {vr(O0+k,2)}, {vr(O0+k,2)}, {vr(O0+r+k,2)}")
    p(f"""
    v_add_f32 v{mx}, v{O0}, v{O0+1}
    v_add_f32 v{mx}, v{mx}, v{l2}
    v_cmp_ngt_f32 vcc, {f32bits(L_LIMIT):#x}, v{mx}
    s_cmp_eq_u32 s{sCNT}, 0
    s_cselect_b64 vcc, vcc, 0
    s_cbranch_vccnz K_SLOW
    s_mov_b64 exec, 1
    s_waitcnt vmcnt(0)
    buffer_store_dword v{vEP}, v{vL16}, s[{sWS}:{sWS+3}], s{sTMP3} offen sc1
    s_mov_b64 exec, -1
    """)
    stamp_out(p, 7, sWS, sWAVE, 2, 3)
    p("s_endpgm")
    p.flush()
    p.tr = Tracker()
    p(f"""
    K_SLOW:
    s_waitcnt vmcnt(0) lgkmcnt(0)
    s_mov_b32 exec_lo, 0
    v_accvgpr_write_b32 a{Q+6}, 0
    v_accvgpr_write_b32 a{Q+7}, 0
    s_mov_b32 exec_lo, -1
    v_mov_b32 v{M}, 0xff800000
    s_mov_b32 s{sKV}, s{sKV0}
    s_mov_b32 s{sCNT}, 64
    """)
    body = [I("K_S1:")]
    body += [I(f"buffer_load_dwordx4 {ar(KV[0]+4*j,4)}, v{vL16}, s[{sWS}:{sWS+3}], s{sKV} offen offset:{1024*j} sc1") for j in range(2)]
    body += qk(0, 0, 0)
    body += [I(f"v_max3_f32 v{M}, v{M}, v{S[0]+r}, v{S[0]+r+1}") for r in range(0, 16, 2)]
    body += [I(f"s_add_u32 s{sKV}, s{sKV}, 4096"), I(f"s_sub_u32 s{sCNT}, s{sCNT}, 1"), I(f"s_cmp_lg_u32 s{sCNT}, 0"), I("s_cbranch_scc1 K_S1")]
    p.loop(body)
    put_ref([0], 0.0)
    for i in range(16):
        p(f"v_mov_b32 v{O0+i}, 0")
    p(f"""
    s_mov_b32 s{sKV}, s{sKV0}
    s_mov_b32 s{sCNT}, 64
    """)
    body = [I("K_S2:")]
    body += [I(f"buffer_load_dwordx4 {ar(KV[0]+4*j,4)}, v{vL16}, s[{sWS}:{sWS+3}], s{sKV} offen offset:{1024*j} sc1") for j in range(4)]
    body += qk(0, 0, 0) + softmax(0) + pv(0, 0, 0)
    body += [I(f"s_add_u32 s{sKV}, s{sKV}, 4096"), I(f"s_sub_u32 s{sCNT}, s{sCNT}, 1"), I(f"s_cmp_lg_u32 s{sCNT}, 0"), I("s_cbranch_scc1 K_S2")]
    p.loop(body)
    p(f"""
    s_mov_b32 s{sCNT}, 1
    s_nop 7
    s_nop 7
    s_branch K_NORM
    """)
    p.flush()

    p.tr = Tracker()
    vOA3, vX, vOB, hLA, hLB, hCW, ONE, CS, F = 8, 12, 14, 16, 17, 19, 20, 24, 40
    hL16 = 1
    p("K_HELPER:")
    stamp(p, 0)
    srd(p, sX, 40, XB)
    srd(p, sW, 42, WQKVB)
    p(f"""
    s_sub_u32 s{sWAVE}, s{sWAVE}, 4
    s_add_u32 s{sXO}, s{sMT}, s{sWAVE}
    s_mul_i32 s{sXO}, s{sXO}, 28672
    v_lshrrev_b32 v4, 3, v0
    v_mul_u32_u24 v7, 896, v4
    v_lshrrev_b32 v5, 4, v0
    v_and_b32 v6, 7, v0
    v_xor_b32 v6, v5, v6
    v_lshl_add_u32 v{vX}, v6, 4, v7
    v_xor_b32 v6, 4, v6
    v_lshl_add_u32 v{vX+1}, v6, 4, v7
    s_mul_i32 s{sOA}, s{sG}, 168
    s_mul_i32 s{sTMP}, s{sWAVE}, {16*2688}
    s_add_u32 s{sOA}, s{sOA}, s{sTMP}
    s_lshl_b32 s{sM0}, s{sWAVE}, 12
    s_mul_i32 s{sTMP3}, s{sWAVE}, 3072
    """)

    def dma(st):
        base = (st % 5) * SLOT
        o = []
        if st < 7:
            for g in range(4):
                o.append([f"s_add_u32 m0, s{sM0}, {base+WAB+1024*g}",
                          f"s_add_u32 s{sTMP}, s{sXO}, {8*896*g+128*st}",
                          f"buffer_load_dwordx4 v{vX+(g&1)}, s[{sX}:{sX+3}], s{sTMP} offen lds"])
            for d in range(3):
                o.append([f"s_add_u32 m0, s{sTMP3}, {base+1024*d}",
                          f"s_add_u32 s{sTMP}, s{sOA}, {64*2688*st}",
                          f"buffer_load_dwordx4 v{vOA3+d}, s[{sW}:{sW+3}], s{sTMP} offen lds"])
        else:
            ph, hs = divmod(st - 7, 2)
            for d in range(7):
                o.append([f"s_add_u32 m0, s{sT}, {base+1024*d}",
                          f"s_add_u32 s{sTMP}, s{sOB}, {(224*hs+8*d)*3584+128*ph}",
                          f"buffer_load_dwordx4 v{vOB}, s[{sW2}:{sW2+3}], s{sTMP} offen lds"])
        return [(st, g) for g in o]

    dq = [g for st in range(11) for g in dma(st)]

    def issue(n, maxst=10):
        for _ in range(n):
            if dq and dq[0][0] <= maxst:
                st, g = dq.pop(0)
                p("\n".join(g), tag=f"st{st}")

    issue(4)
    for d in range(3):
        p(f"""
        v_add_u32 v1, {64*d}, v0
        v_mul_u32_u24 v2, 5462, v1
        v_lshrrev_b32 v2, 16, v2
        v_mul_u32_u24 v3, 12, v2
        v_sub_u32 v1, v1, v3
        v_lshrrev_b32 v3, 2, v1
        v_and_b32 v1, 3, v1
        v_lshlrev_b32 v1, 4, v1
        v_mad_u32_u24 v1, v3, 56, v1
        v_mul_u32_u24 v2, 2688, v2
        v_add_u32 v{vOA3+d}, v1, v2
        """)
    issue(10)
    srd(p, sWS, 46, WS_BYTES)
    srd(p, sW2, 48, W1B)
    tr_lane(hLA, hLB, hLB + 1, 1, 2)
    p(f"""
    s_mul_i32 s{sTMP}, s{sWAVE}, {16*192}
    v_add_u32 v{hLA}, s{sTMP}, v{hLA}
    v_bfe_u32 v1, v0, 2, 1
    v_bfe_u32 v2, v0, 4, 1
    v_xor_b32 v1, v1, v2
    v_and_b32 v3, 3, v0
    v_lshlrev_b32 v3, 4, v3
    v_lshl_add_u32 v3, v1, 6, v3
    v_mul_u32_u24 v4, 3584, v4
    v_add_u32 v{vOB}, v4, v3
    v_and_b32 v1, 15, v0
    v_mov_b32 v3, 0x3f803f80
    v_cmp_eq_u32 vcc, v1, v2
    v_cndmask_b32 v{ONE}, 0, v3, vcc
    v_mov_b32 v{ONE+1}, v{ONE}
    v_mov_b32 v{ONE+2}, v{ONE}
    v_mov_b32 v{ONE+3}, v{ONE}
    s_lshl_b32 s{sOB}, s{sG}, 8
    s_mul_i32 s{sTMP}, s{sWAVE}, {56*3584}
    s_add_u32 s{sOB}, s{sOB}, s{sTMP}
    s_mul_i32 s{sT}, s{sWAVE}, 7168
    s_lshr_b32 s{sTMP}, s{sWAVE}, 1
    s_lshl_b32 s{sTMP}, s{sTMP}, 9
    s_and_b32 s{sTMP2}, s{sWAVE}, 1
    s_lshl_b32 s{sTMP2}, s{sTMP2}, 3
    s_add_u32 s{sTMP}, s{sTMP}, s{sTMP2}
    s_add_u32 s{sTMP}, s{sTMP}, {CFA}
    v_lshl_add_u32 v{hCW}, v0, 4, s{sTMP}
    v_lshlrev_b32 v{hL16}, 4, v0
    s_setprio {E("HP", "2")}
    s_add_u32 s{sTMP}, s2, s{sWAVE}
    s_cmp_lg_u32 s{sTMP}, 0
    s_cbranch_scc1 K_NOEP
    """)
    p.add(opt([f"s_memrealtime s[60:61]",
               "s_waitcnt lgkmcnt(0)",
               "s_or_b32 s60, s60, 1",
               "v_mov_b32 v2, 0",
               "v_mov_b32 v3, s60",
               "s_mov_b64 exec, 1",
               "global_store_dword v2, v3, s[54:55] sc0 sc1",
               "s_mov_b64 exec, -1"]))
    p("K_NOEP:")

    def publish(tiles, j0):
        for t in range(tiles):
            for r in range(2):
                c0 = CS + 4 * t + r
                a, b2, c2 = F + 8 * t + 4 * r, F + 8 * t + 4 * r + 1, F + 8 * t + 4 * r + 2
                p(f"""
                v_and_b32 v{a}, 0xffff0000, v{c0}
                v_sub_f32 v{b2}, v{c0}, v{a}
                v_and_b32 v{c2}, 0xffff0000, v{b2}
                v_sub_f32 v{b2}, v{b2}, v{c2}
                v_lshrrev_b32 v{a}, 16, v{a}
                v_or_b32 v{a}, v{a}, v{c2}
                v_lshrrev_b32 v{b2}, 16, v{b2}
                """)
        p("s_mov_b64 exec, 0xffff")
        for t in range(tiles):
            for r in range(2):
                p(f"ds_write_b64 v{hCW}, {vr(F+8*t+4*r,2)} offset:{1024*(j0+t)+256*r}")
        p("s_mov_b64 exec, -1")

    def colsum_a(st, between=None):
        if E("NOCS") and st < 6:
            if between:
                between()
            return
        p(f"v_add_u32 v2, {(st % 5) * SLOT}, v{hLA}")
        for j in range(3):
            p(f"ds_read_b64_tr_b16 {vr(F+4*j,2)}, v2 offset:{64*j}")
            p(f"ds_read_b64_tr_b16 {vr(F+4*j+2,2)}, v2 offset:{64*j+4*192}")
        if between:
            between()
        for j in range(3):
            p(f"{M16} {vr(CS+4*j,4)}, {vr(ONE,4)}, {vr(F+4*j,4)}, {'0' if st == 0 else vr(CS+4*j,4)}")
        if st == 6:
            publish(3, 0)

    def colsum_b(ph):
        s0, s1 = ((7 + 2 * ph) % 5) * SLOT, ((8 + 2 * ph) % 5) * SLOT
        p(f"""
        s_mul_i32 s{sTMP}, s{sWAVE}, {7*2048}
        s_cmp_lt_u32 s{sWAVE}, 2
        s_mov_b32 s{sTMP2}, {(s1 - SLOT) & 0xffffffff}
        s_cselect_b32 s{sTMP2}, {s0}, s{sTMP2}
        s_add_u32 s{sTMP}, s{sTMP}, s{sTMP2}
        v_add_u32 v2, s{sTMP}, v{hLB}
        v_add_u32 v3, s{sTMP}, v{hLB+1}
        """)
        mm = []
        for i in range(7):
            for t in range(2):
                b = F + 8 * i + 4 * t
                p(f"ds_read_b64_tr_b16 {vr(b,2)}, v{2+t} offset:{2048*i}")
                p(f"ds_read_b64_tr_b16 {vr(b+2,2)}, v{2+t} offset:{2048*i+512}")
                mm.append(f"{M16} {vr(CS+4*t,4)}, {vr(ONE,4)}, {vr(b,4)}, {'0' if i == 0 else vr(CS+4*t,4)}")
                if len(mm) > 6:
                    p(mm.pop(0))
        for m in mm:
            p(m)
        publish(2, 3 + 2 * ph)

    def bar(*sts):
        if sts:
            p("@wait " + " ".join(f"st{x}" for x in sts))
        p("s_waitcnt lgkmcnt(0)")
        p("s_barrier")

    D = 100
    hSR, hVR, hMA, hOA, hEP = 124, 125, 126, 127, 15

    def out_setup():
        p(f"""
        s_lshl_b32 s{sTMP}, s{sWAVE}, 11
        s_add_u32 s{sTMP}, s{sTMP}, {STQ}
        v_add_u32 v{hSR}, s{sTMP}, v{hL16}
        v_bfe_u32 v2, v0, 4, 1
        v_lshl_add_u32 v{hVR}, v2, 10, s{sTMP}
        v_lshrrev_b32 v2, 5, v0
        v_lshl_add_u32 v{hVR}, v2, 6, v{hVR}
        v_bfe_u32 v2, v0, 2, 2
        v_lshl_add_u32 v{hVR}, v2, 4, v{hVR}
        v_and_b32 v2, 1, v0
        v_lshl_add_u32 v{hVR}, v2, 9, v{hVR}
        v_bfe_u32 v2, v0, 1, 1
        v_lshl_add_u32 v{hVR}, v2, 3, v{hVR}
        v_and_b32 v2, 31, v0
        v_cmp_gt_u32 vcc, 28, v2
        v_cndmask_b32 v{hMA}, 0, -1, vcc
        v_mov_b32 v3, 0x3f803f80
        v_cmp_eq_u32 vcc, 28, v2
        v_cndmask_b32 v{hOA}, 0, v3, vcc
        s_add_u32 s{sCNT}, s{sMT}, s{sWAVE}
        """)

    def out_qkv(tag):
        p(f"""
        v_mov_b32 v2, {EPA}
        ds_read_b32 v{hEP}, v2
        s_mul_i32 s{sTY}, s{sG}, 3
        """)
        for j in range(3):
            d = D + 8 * j
            p(f"""
            s_cmp_ge_u32 s{sTY}, {32-j}
            s_cbranch_scc1 K_RV{j}{tag}
            """)
            p.add(opt([f"ds_read_b128 {vr(d,4)}, v{hSR} offset:{8192*j}",
                       f"ds_read_b128 {vr(d+4,4)}, v{hSR} offset:{8192*j+1024}",
                       f"s_branch K_RW{j}{tag}"]))
            p(f"K_RV{j}{tag}:")
            p.add(opt([f"ds_read_b64_tr_b16 {vr(d+2*k,2)}, v{hVR} offset:{8192*j+128*k}" for k in range(4)]))
            p(f"K_RW{j}{tag}:")
        p("s_waitcnt lgkmcnt(0)")
        for j in range(3):
            d = D + 8 * j
            p(f"""
            s_add_u32 s{sTMP}, s{sTY}, {j}
            s_lshr_b32 s{sTMP2}, s{sTMP}, 4
            s_and_b32 s{sTMP}, s{sTMP}, 15
            s_lshl_b32 s{sTMP}, s{sTMP}, 6
            s_add_u32 s{sTMP}, s{sTMP}, s{sCNT}
            s_lshl_b32 s{sST}, s{sTMP}, 11
            s_lshl_b32 s{sTMP}, s{sTMP}, 12
            s_add_u32 s{sTMP}, s{sTMP}, {KVF}
            s_cmp_eq_u32 s{sTMP2}, 0
            s_cselect_b32 s{sST}, s{sST}, s{sTMP}
            s_cselect_b32 s{sTMP}, 0, 0x3f803f80
            s_cselect_b32 s{sEP}, 0, 0x3f80
            s_cmp_eq_u32 s{sTMP2}, 2
            s_cbranch_scc1 K_FV{j}{tag}
            """)
            p.add(opt(["s_mov_b32 exec_lo, 0",
                       f"v_mov_b32 v{d+6}, s{sTMP}",
                       f"v_mov_b32 v{d+7}, s{sEP}",
                       "s_mov_b32 exec_lo, -1",
                       f"s_branch K_FW{j}{tag}"]))
            p(f"K_FV{j}{tag}:")
            p.add(opt([f"v_and_or_b32 v{d+i}, v{d+i}, v{hMA}, v{hOA}" for i in range(8)] + [f"s_add_u32 s{sST}, s{sST}, 2048"]))
            p(f"""
            K_FW{j}{tag}:
            buffer_store_dwordx4 {vr(d,4)}, v{hL16}, s[{sWS}:{sWS+3}], s{sST} offen sc1
            buffer_store_dwordx4 {vr(d+4,4)}, v{hL16}, s[{sWS}:{sWS+3}], s{sST} offen offset:1024 sc1
            """)

    def hflag(instrs):
        p(instrs)
        p(f"""
        s_mov_b64 exec, 1
        s_waitcnt vmcnt(0)
        buffer_store_dword v{hEP}, v{hL16}, s[{sWS}:{sWS+3}], s{sTMP} offen sc1
        s_mov_b64 exec, -1
        """)

    fq = f"""
        s_lshl_b32 s{sTMP}, s{sG}, 6
        s_add_u32 s{sTMP}, s{sTMP}, s{sCNT}
        s_lshl_b32 s{sTMP}, s{sTMP}, 2
        s_add_u32 s{sTMP}, s{sTMP}, {FQ}
        """

    fh = f"""
        s_lshl_b32 s{sTMP}, s{sCNT}, 4
        s_add_u32 s{sTMP}, s{sTMP}, s{sG}
        s_lshl_b32 s{sTMP}, s{sTMP}, 2
        s_add_u32 s{sTMP}, s{sTMP}, {FH}
        """

    def out_h(k):
        base = (STH1 if k == 0 else STH2) - STQ
        p(f"v_add_u32 v2, {base}, v{hSR}")
        for t in range(2):
            for i in range(2):
                p(f"ds_read_b128 {vr(D+8*t+4*i,4)}, v2 offset:{8192*t+1024*i}")
        p(f"""
        s_mul_i32 s{sST}, s{sCNT}, 114688
        s_lshl_b32 s{sTMP}, s{sG}, 13
        s_add_u32 s{sST}, s{sST}, s{sTMP}
        s_add_u32 s{sST}, s{sST}, {HF + 4096*k}
        """)
        for q in range(4):
            for i in range(4):
                p(f"v_pk_max_i16 v{D+4*q+i}, v{D+4*q+i}, 0")
            p(f"buffer_store_dwordx4 {vr(D+4*q,4)}, v{hL16}, s[{sWS}:{sWS+3}], s{sST} offen offset:{1024*q} sc1")

    NI = int(E("NI", "9"))
    bar(0)
    KSPLIT = 4
    for k in range(KSPLIT):
        colsum_a(k, lambda: issue(NI, 6))
        bar(k + 1)
    assert dq[0][0] == 7
    p(f"""
    s_cmp_ge_u32 s{sG}, 14
    s_cbranch_scc1 K_HTR
    """)
    p.flush()
    tr_h, hist_h = p.tr.copy(), list(p.out[-60:])
    for k in range(KSPLIT, 7):
        colsum_a(k, lambda: issue(10, k + 4))
        if k < 6:
            bar(k + 1)
    bar(7, 8)
    issue(10)
    assert not dq
    out_setup()
    stamp(p, 1, "C")
    bar()
    stamp(p, 2, "C")
    out_qkv("")
    stamp(p, 3, "C")
    colsum_b(0)
    bar(9, 10)
    stamp(p, 4, "C")
    hflag(fq)
    stamp(p, 5, "C")
    colsum_b(1)
    bar()
    out_h(0)
    stamp(p, 6, "C")
    bar()
    out_h(1)
    hflag(fh)
    p("s_branch K_GEMM")
    p.flush()

    sU, sSL = sOA, sT

    def relayout_load(src_off_reg):
        for d in range(14):
            if d % 4 == 0:
                p(f"s_add_u32 m0, s{sSL}, {1024*d}")
                p(f"s_add_u32 s{sTMP}, s{src_off_reg}, {1024*d}")
            p(f"buffer_load_dwordx4 v{hL16}, s[{sW}:{sW+3}], s{sTMP} offen offset:{1024*(d%4)} lds", tag="rl")

    def relayout_store(dst_reg, stride, zero_reg=None):
        p(f"""
        v_lshrrev_b32 v2, 5, v0
        v_lshlrev_b32 v3, 2, v2
        v_bfe_u32 v2, v0, 2, 2
        v_add_u32 v3, v3, v2
        v_mul_u32_u24 v3, 896, v3
        v_bfe_u32 v2, v0, 4, 1
        v_lshl_add_u32 v3, v2, 5, v3
        v_and_b32 v2, 3, v0
        v_lshl_add_u32 v3, v2, 3, v3
        v_add_u32 v3, s{sSL}, v3
        v_mov_b32 v2, {EPA}
        s_waitcnt vmcnt(0)
        ds_read_b32 v4, v2
        """)
        for t in range(14):
            p(f"ds_read_b64_tr_b16 {vr(F+4*t,2)}, v3 offset:{64*t}")
            p(f"ds_read_b64_tr_b16 {vr(F+4*t+2,2)}, v3 offset:{64*t+8*896}")
        if zero_reg is not None:
            p("s_waitcnt lgkmcnt(0)")
            p("s_mov_b32 exec_lo, 0")
            p(f"s_mov_b32 exec_hi, s{zero_reg}")
            for t in range(14):
                p(f"v_mov_b32 v{F+4*t+2}, 0")
                p(f"v_mov_b32 v{F+4*t+3}, 0")
            p("s_mov_b64 exec, -1")
        for t in range(14):
            p(f"buffer_store_dwordx4 {vr(F+4*t,4)}, v{hL16}, s[{sWS}:{sWS+3}], s{dst_reg} offen sc1")
            p(f"s_add_u32 s{dst_reg}, s{dst_reg}, {stride}")
        p(f"""
        s_lshl_b32 s{sTMP}, s{sU}, 2
        s_add_u32 s{sTMP}, s{sTMP}, {FW}
        s_mov_b64 exec, 1
        s_waitcnt vmcnt(0) lgkmcnt(0)
        buffer_store_dword v4, v{hL16}, s[{sWS}:{sWS+3}], s{sTMP} offen sc1
        s_mov_b64 exec, -1
        """)

    p.tr = tr_h
    p("K_HTR:")
    for k in range(KSPLIT, 4):
        colsum_a(k)
        bar(k + 1)
    srd(p, sW, 50, W2B)
    p(f"""
    s_sub_u32 s{sU}, s{sG}, 14
    s_lshl_b32 s{sU}, s{sU}, 6
    s_add_u32 s{sU}, s{sU}, s{sMT}
    s_add_u32 s{sU}, s{sU}, s{sWAVE}
    s_mul_i32 s{sSL}, s{sWAVE}, 14336
    s_add_u32 s{sSL}, s{sSL}, {2*SLOT}
    s_mul_i32 s{sTMP3}, s{sU}, {16*896}
    """)
    relayout_load(sTMP3)
    for k in range(max(4, KSPLIT), 7):
        colsum_a(k)
        if k < 6:
            bar(k + 1)
    bar()
    out_setup()
    bar()
    out_qkv("s")
    p("s_barrier")
    hflag(fq)
    hflag(fh)
    p(f"""
    s_cmp_ge_u32 s{sU}, 112
    s_cbranch_scc1 K_GEMM
    s_lshl_b32 s{sTMP3}, s{sU}, 10
    s_add_u32 s{sTMP3}, s{sTMP3}, {W2F}
    """)
    seq2 = add_waits(p.cur, p.tr)
    p.out += pad_hazards(seq2, hist_h)
    p.cur = []
    relayout_store(sTMP3, 114688)
    p("s_branch K_GEMM")
    p.flush()
    p.tr = Tracker()
    p(f"""
    K_HWO:
    s_cmp_lg_u32 s{sG}, 7
    s_cbranch_scc1 K_END
    s_cmp_ge_u32 s{sWAVE}, 2
    s_cbranch_scc1 K_END
    """)
    srd(p, sW, 44, WOB)
    p(f"""
    s_lshr_b32 s{sU}, s{sMT}, 1
    s_add_u32 s{sU}, s{sU}, s{sWAVE}
    s_lshr_b32 s{sTMP3}, s{sMT}, 2
    s_mul_i32 s{sTMP3}, s{sTMP3}, {28*896}
    s_mul_i32 s{sTMP}, s{sWAVE}, {16*896}
    s_add_u32 s{sTMP3}, s{sTMP3}, s{sTMP}
    s_mul_i32 s{sSL}, s{sWAVE}, 14336
    s_add_u32 s{sSL}, s{sSL}, {2*SLOT}
    """)
    relayout_load(sTMP3)
    p(f"""
    s_lshl_b32 s{sTMP3}, s{sU}, 10
    s_add_u32 s{sTMP3}, s{sTMP3}, {WOF}
    s_add_u32 s{sU}, s{sU}, 128
    s_sub_u32 s{sTMP2}, 0, s{sWAVE}
    """)
    relayout_store(sTMP3, 32768, sTMP2)
    p("s_endpgm")
    p.flush()

    p.tr = Tracker()
    sOUT = sW2
    sA0, sA1, sB0, sB1, sNT, sMP, sNP = sXO, sOA, sOB, sT, sTY, sHEAD, sQB
    AC0 = 8
    Gv = [24, 40, 56, 72, 88, 104]
    Ga = [112]
    WO = 48
    XR = 120
    NBUF = 7

    def Gbuf(b, off, n):
        return vr(Gv[b] + off, n) if b < 6 else ar(Ga[b - 6] + off, n)

    def Gacc(u):
        return vr(AC0, 16) if u == 0 else ar(16 * (u - 1), 16)

    vXO, vA1, vA2, vA3, vRA, vF = 2, 3, 4, 5, 6, 7
    p(f"""
    K_GEMM:
    s_setprio 0
    s_lshr_b32 s{sNP}, s{sI}, 2
    s_cmp_ge_u32 s{sNP}, 7
    s_cbranch_scc1 K_HWO
    """)
    stamp(p, 1)
    p(f"""
    v_mov_b32 v2, {EPA}
    ds_read_b32 v3, v2
    s_lshl_b32 s{sMP}, s{sJ}, 2
    s_and_b32 s{sTMP}, s{sI}, 3
    s_add_u32 s{sMP}, s{sMP}, s{sTMP}
    s_lshr_b32 s{sTMP}, s{sWAVE}, 1
    s_lshl_b32 s{sMT}, s{sMP}, 1
    s_add_u32 s{sMT}, s{sMT}, s{sTMP}
    s_and_b32 s{sTMP}, s{sWAVE}, 1
    s_lshl_b32 s{sNT}, s{sNP}, 1
    s_add_u32 s{sNT}, s{sNT}, s{sTMP}
    s_mul_i32 s{sTMP}, s{sWAVE}, {28*1024}
    s_mul_i32 s{sA0}, s{sNT}, 114688
    s_xor_b32 s{sTMP2}, s{sNT}, 1
    s_mul_i32 s{sA1}, s{sTMP2}, 114688
    s_mul_i32 s{sB0}, s{sMT}, 114688
    s_xor_b32 s{sTMP2}, s{sMT}, 1
    s_mul_i32 s{sB1}, s{sTMP2}, 114688
    s_add_u32 s{sTMP2}, s{sTMP}, {W2F}
    s_add_u32 s{sA0}, s{sA0}, s{sTMP2}
    s_add_u32 s{sA1}, s{sA1}, s{sTMP2}
    s_add_u32 s{sTMP2}, s{sTMP}, {HF}
    s_add_u32 s{sB0}, s{sB0}, s{sTMP2}
    s_add_u32 s{sB1}, s{sB1}, s{sTMP2}
    v_readfirstlane_b32 s{sEP}, v3
    """)
    p(f"""
    v_and_b32 v{vF}, 31, v0
    v_mul_u32_u24 v{vF}, 896, v{vF}
    v_lshrrev_b32 v{vRA}, 5, v0
    v_lshl_add_u32 v{vA1}, v{vRA}, 3, v{vF}
    s_mul_i32 s{sTMP3}, s{sMT}, 28672
    s_lshl_b32 s{sTMP2}, s{sNT}, 6
    s_add_u32 s{sTMP3}, s{sTMP3}, s{sTMP2}
    """)
    for q in range(4):
        p(f"buffer_load_dwordx2 {vr(XR+2*q,2)}, v{vA1}, s[{sX}:{sX+3}], s{sTMP3} offen offset:{16*q}")
    p(f"v_lshl_add_u32 v{vXO}, v{vRA}, 4, v{vF}")
    for i in range(48):
        p(f"v_accvgpr_write_b32 a{i}, 0")
    vAs = [None, vA1, vA2, vA3]
    for u in range(1, 4):
        p(f"""
        s_xor_b32 s{sTMP2}, s{sWAVE}, {u}
        s_mul_i32 s{sTMP2}, s{sTMP2}, 3
        s_add_u32 s{sTMP2}, s{sTMP2}, {u-1+12}
        s_lshl_b32 s{sTMP2}, s{sTMP2}, 12
        v_add_u32 v{vAs[u]}, s{sTMP2}, v{hL16}
        """)
    p(f"""
    s_mul_i32 s{sTMP2}, s{sWAVE}, {3*4096}
    s_add_u32 s{sTMP2}, s{sTMP2}, {48*1024}
    v_add_u32 v{vRA}, s{sTMP2}, v{hL16}
    """)
    for i in range(8):
        p(f"v_lshlrev_b32 v{AC0+2*i}, 16, v{XR+i}")
        p(f"v_and_b32 v{AC0+2*i+1}, 0xffff0000, v{XR+i}")
    srd(p, sOUT, 52, XB)
    G0 = Gv[0]
    p(f"""
    v_mov_b32 v{G0}, {EPA+4}
    v_mov_b32 v{G0+1}, s{sEP}
    s_cmp_lg_u32 s{sWAVE}, 0
    s_cbranch_scc1 K_PL
    v_and_b32 v{vF}, 7, v0
    s_lshl_b32 s{sTMP}, s{sMP}, 7
    s_add_u32 s{sTMP}, s{sTMP}, {FH}
    v_lshl_add_u32 v{vF}, v{vF}, 4, s{sTMP}
    s_mov_b64 exec, 0xfffffff
    v_add_u32 v{vF}, {FW}, v{hL16}
    s_mov_b64 exec, -1
    s_mov_b32 s{sCNT}, {POLL_MAX}
    """)
    p.flush()
    p(f"""
    K_PH:
    buffer_load_dwordx4 {vr(XR,4)}, v{vF}, s[{sWS}:{sWS+3}], 0 offen sc1
    s_sub_u32 s{sCNT}, s{sCNT}, 1
    s_cmp_eq_u32 s{sCNT}, 0
    s_waitcnt vmcnt(0)
    s_cbranch_scc1 K_PHX
    v_xor_b32 v{XR}, s{sEP}, v{XR}
    v_xor_b32 v{XR+1}, s{sEP}, v{XR+1}
    v_xor_b32 v{XR+2}, s{sEP}, v{XR+2}
    v_xor_b32 v{XR+3}, s{sEP}, v{XR+3}
    v_or3_b32 v{XR}, v{XR}, v{XR+1}, v{XR+2}
    v_or_b32 v{XR}, v{XR}, v{XR+3}
    v_cmp_ne_u32 vcc, 0, v{XR}
    s_nop 1
    s_cbranch_vccz K_PHX
    s_sleep {E("SLH", "8")}
    s_branch K_PH
    K_PHX:
    ds_write_b32 v{G0}, v{G0+1}
    s_branch K_PLX
    K_PL:
    s_mov_b32 s{sCNT}, {POLL_MAX*4}
    K_PL1:
    s_sleep 4
    ds_read_b32 v{G0+2}, v{G0}
    s_sub_u32 s{sCNT}, s{sCNT}, 1
    s_cmp_eq_u32 s{sCNT}, 0
    s_waitcnt lgkmcnt(0)
    s_cbranch_scc1 K_PLX
    v_cmp_ne_u32 vcc, s{sEP}, v{G0+2}
    s_nop 1
    s_cbranch_vccnz K_PL1
    K_PLX:
    s_waitcnt lgkmcnt(0)
    """)
    p.flush()
    stamp(p, 2)
    spin(p, "att", sEP)
    so = [sA0, sA1, sB0, sB1]

    def gload(k):
        b = k % NBUF
        o = [I(f"buffer_load_dwordx4 {Gbuf(b,4*j,4)}, v{hL16}, s[{sWS}:{sWS+3}], s{so[j]} offen offset:{1024*(b%4)} sc1") for j in range(4)]
        if b == 3 or b == 6:
            o += [I(f"s_add_u32 s{r}, s{r}, {4096 if b == 3 else 3072}") for r in so]
        return o

    def gmm(b):
        return [I(f"{MF} {Gacc(u)}, {Gbuf(b,4*(u&1),4)}, {Gbuf(b,8+4*(u>>1),4)}, {Gacc(u)}") for u in (1, 2, 3, 0)]

    for k in range(NBUF):
        p.add(gload(k))
    p(f"s_mov_b32 s{sCNT}, 3")
    body = [I("K_GL:")]
    for b in range(NBUF):
        body += ([I("s_waitcnt vmcnt(24)")] if E("GX") == "nomf" else gmm(b)) + ([] if E("GX") == "nold" else gload(b))
    body += [I(f"s_sub_u32 s{sCNT}, s{sCNT}, 1"), I(f"s_cmp_lg_u32 s{sCNT}, 0"), I("s_cbranch_scc1 K_GL")]
    p.loop(body)
    p(f"""
    s_lshl_b32 s{sTMP}, s{sWAVE}, 13
    s_lshl_b32 s{sA0}, s{sNT}, 15
    s_add_u32 s{sA0}, s{sA0}, s{sTMP}
    s_add_u32 s{sA0}, s{sA0}, {WOF}
    s_xor_b32 s{sA1}, s{sA0}, 0x8000
    s_lshl_b32 s{sB0}, s{sMT}, 15
    s_add_u32 s{sB0}, s{sB0}, s{sTMP}
    s_add_u32 s{sB0}, s{sB0}, {OF}
    s_xor_b32 s{sB1}, s{sB0}, 0x8000
    """)
    p(f"""
    v_and_b32 v{vF}, 7, v0
    s_lshl_b32 s{sTMP}, s{sWAVE}, 5
    s_add_u32 s{sTMP}, s{sTMP}, {FW + 128*4}
    v_lshl_add_u32 v{vF}, v{vF}, 2, s{sTMP}
    buffer_load_dword v{XR}, v{vF}, s[{sWS}:{sWS+3}], 0 offen sc1
    """)
    for b in range(NBUF):
        p.add(gmm(b))
    p(f"""
    v_cmp_ne_u32 vcc, s{sEP}, v{XR}
    s_nop 1
    s_cbranch_vccz K_PWOX
    """)
    poll(p, "K_PWO", XR, vF, sWS, "0", sEP, sCNT, 24)
    for s in range(8):
        if s == 4:
            for r in (sA0, sA1):
                p(f"s_add_u32 s{r}, s{r}, 4096")
        for j in range(2):
            p(f"buffer_load_dwordx4 {ar(WO+8*s+4*j,4)}, v{hL16}, s[{sWS}:{sWS+3}], s{so[j]} offen offset:{1024*(s%4)} sc1")
    stamp(p, 3)
    p(f"""
    s_cmp_lg_u32 s{sWAVE}, 0
    s_cbranch_scc1 K_POX
    v_and_b32 v{vF}, 3, v0
    v_lshlrev_b32 v{vF}, 2, v{vF}
    v_add_u32 v{vF}, {EPA+16}, v{vF}
    s_mov_b32 s{sCNT}, {POLL_MAX*4}
    """)
    p.flush()
    keep = p.tr.copy()
    p(f"""
    K_PA:
    s_sleep 4
    ds_read_b32 v{XR}, v{vF}
    s_sub_u32 s{sCNT}, s{sCNT}, 1
    s_cmp_eq_u32 s{sCNT}, 0
    s_waitcnt lgkmcnt(0)
    s_cbranch_scc1 K_PAX
    v_cmp_ne_u32 vcc, s{sEP}, v{XR}
    s_nop 1
    s_cbranch_vccnz K_PA
    K_PAX:
    v_and_b32 v{vF}, 31, v0
    v_lshlrev_b32 v{vF}, 2, v{vF}
    s_lshl_b32 s{sTMP}, s{sMP}, 7
    s_add_u32 s{sTMP}, s{sTMP}, {FO}
    """)
    stamp(p, 4)
    p(f"s_sleep {E('SL0', '24')}")
    poll(p, "K_PO", XR, vF, sWS, f"s{sTMP}", sEP, sCNT, E("SL1", "6"))
    p.tr = keep
    p("s_barrier")
    stamp(p, 5)
    OFv = Gv[0]
    for s in range(8):
        if s == 4:
            for r in (sB0, sB1):
                p(f"s_add_u32 s{r}, s{r}, 4096")
        for j in range(2):
            p(f"buffer_load_dwordx4 {vr(OFv+8*s+4*j,4)}, v{hL16}, s[{sWS}:{sWS+3}], s{so[2+j]} offen offset:{1024*(s%4)} sc1")
    for s in range(8):
        for u in (1, 2, 3, 0):
            p(f"{MF} {Gacc(u)}, {ar(WO+8*s+4*(u&1),4)}, {vr(OFv+8*s+4*(u>>1),4)}, {Gacc(u)}")
    stamp(p, 6)
    for u in range(1, 4):
        for q in range(4):
            p(f"ds_write_b128 v{vAs[u]}, {ar(16*(u-1)+4*q,4)} offset:{1024*q}")
    p("s_waitcnt lgkmcnt(0)")
    p("s_barrier")
    R = Gv[0]
    for i in range(3):
        for q in range(4):
            p(f"ds_read_b128 {vr(R+16*i+4*q,4)}, v{vRA} offset:{4096*i+1024*q}")
    for i in range(3):
        for r in range(0, 16, 2):
            p(f"v_pk_add_f32 {vr(AC0+r,2)}, {vr(AC0+r,2)}, {vr(R+16*i+r,2)}")
    PK = XR
    for i in range(8):
        p(f"v_cvt_pk_bf16_f32 v{PK+i}, v{AC0+2*i}, v{AC0+2*i+1}")
    for qq in range(2):
        p(f"v_permlane32_swap_b32 v{PK+4*qq}, v{PK+4*qq+2}")
        p(f"v_permlane32_swap_b32 v{PK+4*qq+1}, v{PK+4*qq+3}")
    for qq in range(2):
        p(f"buffer_store_dwordx4 {vr(PK+4*qq,4)}, v{vXO}, s[{sOUT}:{sOUT+3}], s{sTMP3} offen offset:{32*qq}")
    spin(p, "end", sEP)
    stamp_out(p, 7, sWS, sWAVE, 2, 3, wave_add=4)
    p("K_END:")
    p("s_endpgm")
    return p.text()


HEADER = f"""; Kernarg layout for this problem (72 bytes, ptrs only, base s[0:1]):
; @launch grid=(256,1,1) block=(512,1,1) lds={LDS_BYTES}
.amdgcn_target "amdgcn-amd-amdhsa--gfx950"
.text
.globl {NAME}_kernel
.p2align 8
.type {NAME}_kernel,@function
{NAME}_kernel:
"""

KD = f"""
.section .rodata,"a"
.p2align 6
.amdhsa_kernel {NAME}_kernel
  .amdhsa_next_free_vgpr 256
  .amdhsa_next_free_sgpr {{ns}}
  .amdhsa_accum_offset 128
  .amdhsa_group_segment_fixed_size 0
  .amdhsa_kernarg_size 72
  .amdhsa_user_sgpr_count 2
  .amdhsa_user_sgpr_kernarg_segment_ptr 1
  .amdhsa_system_sgpr_workgroup_id_x 1
.end_amdhsa_kernel
"""


def main():
    global STAMP
    STAMP = len(sys.argv) > 2 and sys.argv[2] == "stamp"
    txt = HEADER + gen() + KD.format(ns=100 if STAMP else 64)
    out = sys.argv[1] if len(sys.argv) > 1 else f"cdna_kernels/{NAME}.s"
    open(out, "w").write(txt)
    print("wrote", out, len(txt), "bytes")


if __name__ == "__main__":
    main()
```

```python
import sys, struct, os
from asmgen import *

NAME = "parallel_sum__mha_block__dense_activation_relu__prompt"
E = os.environ.get

QF = 0
KVF = 2 << 20
HF = 6 << 20
W2F = 13 << 20
WOF = 15 << 20
OF = 16 << 20
FLG = 18 << 20
FQ = FLG
FH = FLG + 4096
FW = FLG + 8192
FO = FLG + 12288
WS_BYTES = 19 << 20

XB = 2048 * 448 * 2
WQKVB = 448 * 1344 * 2
WOB = 448 * 448 * 2
W1B = 448 * 1792 * 2
W2B = 1792 * 448 * 2

MF = "v_mfma_f32_32x32x16_bf16"
M16 = "v_mfma_f32_16x16x32_bf16"

SLOT = 28672
WAB = 64 * 192
CFA = 5 * SLOT
VSC = CFA + 7168
EPA = VSC + 4096
STQ, STH1, STH2 = 1 * SLOT, 2 * SLOT, 3 * SLOT
LDS_BYTES = EPA + 64
REF_OFF = 90.0
L_LIMIT = 2.0 ** 50
POLL_MAX = 0x40000


def f32bits(x):
    return struct.unpack("<I", struct.pack("<f", x))[0]


def vr(b, n):
    return f"v[{b}:{b+n-1}]"


def ar(b, n):
    return f"a[{b}:{b+n-1}]"


def srd(p, d, base, nbytes):
    p(f"""
    s_mov_b32 s{d}, s{base}
    s_and_b32 s{d+1}, s{base+1}, 0xffff
    s_mov_b32 s{d+2}, {nbytes}
    s_mov_b32 s{d+3}, 0x00020000
    """)


STAMP = False
STAMP_BASE = 32 << 20


def stamp(p, i, diag=None):
    if E("DIAG") and i > 0 and i < 7 and diag != E("DIAG"):
        return
    if not E("DIAG") and diag:
        return
    if STAMP:
        p(f"s_memrealtime s[{64+4*i}:{65+4*i}]")
        p(f"s_memtime s[{66+4*i}:{67+4*i}]")
        p("s_waitcnt lgkmcnt(0)")


def stamp_out(p, n, sWS, sWAVE, vtmp=1, vtmp2=2, wave_add=0):
    if not STAMP:
        return
    p("s_waitcnt vmcnt(0) lgkmcnt(0)")
    stamp(p, n)
    p(f"v_mov_b32 v{vtmp}, 0")
    for i in range(n + 1):
        p(f"v_writelane_b32 v{vtmp}, s{64+4*i}, {i}")
        p(f"v_writelane_b32 v{vtmp}, s{66+4*i}, {16+i}")
    p(f"""
    s_lshl_b32 s62, s2, 3
    s_add_u32 s62, s62, s{sWAVE}
    s_add_u32 s62, s62, {wave_add}
    s_lshl_b32 s62, s62, 8
    s_add_u32 s62, s62, {STAMP_BASE}
    v_lshlrev_b32 v{vtmp2}, 2, v0
    s_mov_b32 s{sWS+2}, {64 << 20}
    buffer_store_dword v{vtmp}, v{vtmp2}, s[{sWS}:{sWS+3}], s62 offen
    """)


def spin(p, where, sEP):
    if E("SPIN") != where:
        return
    uid = spin.n = getattr(spin, "n", 0) + 1
    p.flush()
    p(f"""
    SPB{uid}:
    s_sleep 1
    s_memrealtime s[60:61]
    s_waitcnt lgkmcnt(0)
    s_sub_u32 s60, s60, s{sEP}
    s_cmp_lt_u32 s60, {E("SPINX", "6000")}
    s_cbranch_scc1 SPB{uid}
    """)
    p.flush()


def poll(p, name, vdst, vaddr, sWS, soff, sEP, sCNT, sleep):
    p.flush()
    p(f"""
    s_mov_b32 s{sCNT}, {POLL_MAX}
    {name}:
    buffer_load_dword v{vdst}, v{vaddr}, s[{sWS}:{sWS+3}], {soff} offen sc1
    s_sub_u32 s{sCNT}, s{sCNT}, 1
    s_cmp_eq_u32 s{sCNT}, 0
    s_waitcnt vmcnt(0)
    s_cbranch_scc1 {name}X
    v_cmp_ne_u32 vcc, s{sEP}, v{vdst}
    s_nop 1
    s_cbranch_vccz {name}X
    s_sleep {sleep}
    s_branch {name}
    {name}X:
    """)
    p.flush()


def gen():
    p = Prog()
    sX, sW, sW2, sWS, sKVR = 4, 8, 12, 16, 56
    (sWAVE, sMT, sG, sTMP, sTMP2, sTMP3, sST, sTY, sM0, sXO, sT, sONE, sOA, sOB, sEP, sCNT,
     sJ, sI, sHEAD, sQB) = range(20, 40)
    sKV, sKV2, sKV0 = sXO, sOA, sOB
    sVS, sVT = sM0, sONE
    p(f"""
    s_cmp_ge_u32 s2, 256
    s_cbranch_scc1 K_END
    s_load_dwordx4 s[40:43], s[0:1], 0
    s_load_dwordx2 s[44:45], s[0:1], 16
    s_load_dwordx8 s[48:55], s[0:1], 32
    s_load_dwordx2 s[46:47], s[0:1], 64
    v_lshrrev_b32 v1, 6, v0
    v_and_b32 v0, 63, v0
    v_readfirstlane_b32 s{sWAVE}, v1
    s_and_b32 s{sJ}, s2, 7
    s_lshr_b32 s{sI}, s2, 3
    s_lshr_b32 s{sMT}, s{sJ}, 1
    s_lshl_b32 s{sMT}, s{sMT}, 2
    s_and_b32 s{sTMP}, s{sI}, 3
    s_add_u32 s{sMT}, s{sMT}, s{sTMP}
    s_lshl_b32 s{sMT}, s{sMT}, 2
    s_and_b32 s{sG}, s{sJ}, 1
    s_lshl_b32 s{sG}, s{sG}, 3
    s_lshr_b32 s{sTMP}, s{sI}, 2
    s_add_u32 s{sG}, s{sG}, s{sTMP}
    s_cmp_ge_u32 s{sWAVE}, 4
    s_waitcnt lgkmcnt(0)
    s_cbranch_scc1 K_HELPER
    """)
    stamp(p, 0)
    srd(p, sWS, 46, WS_BYTES)

    def tr_lane(dstA, dstB0, dstB1, t0, t1):
        p(f"""
        v_lshrrev_b32 v{t0}, 5, v0
        v_lshlrev_b32 v{t0}, 3, v{t0}
        v_bfe_u32 v{t1}, v0, 2, 2
        v_add_u32 v{t0}, v{t0}, v{t1}
        v_bfe_u32 v{t1}, v0, 4, 1
        v_lshlrev_b32 v{dstB0}, 5, v{t1}
        v_and_b32 v{t1}, 3, v0
        v_lshl_add_u32 v{dstB0}, v{t1}, 3, v{dstB0}
        v_mul_u32_u24 v{dstA}, 192, v{t0}
        v_add_u32 v{dstA}, v{dstA}, v{dstB0}
        v_lshl_add_u32 v{dstB0}, v{t0}, 7, v{dstB0}
        v_bfe_u32 v{t1}, v0, 3, 1
        v_lshl_add_u32 v{dstB0}, v{t1}, 6, v{dstB0}
        v_xor_b32 v{dstB1}, 64, v{dstB0}
        """)

    X = 0
    CFt, XM = 112, 116
    accs = [16, 32, 48, 64, 80, 16, 32]
    NW = int(E('NW', '8'))
    WF = 96
    GR, SX, ONEc, vXA, vLA, vXC, vSW, vSR = 64, 80, 84, 88, 92, 93, 94, 95
    ST = 64
    vL16, vLB0, vLB1, vC0, vC1, vCF, vA, vRINV, vVW, vVR, vMA, vOA, vT0, vT1, vPL = range(1, 16)
    p(f"s_add_u32 s{sMT}, s{sMT}, s{sWAVE}")
    tr_lane(vLA, vLB0, vLB1, vA, vRINV)
    p(f"""
    v_lshrrev_b32 v{vT1}, 5, v0
    v_and_b32 v{vT0}, 31, v0
    v_bfe_u32 v{vA}, v0, 1, 3
    v_xor_b32 v{vA}, v{vT1}, v{vA}
    s_lshl_b32 s{sTMP}, s{sWAVE}, 12
    s_add_u32 s{sTMP}, s{sTMP}, {WAB}
    v_lshl_add_u32 v{vRINV}, v{vT0}, 7, s{sTMP}
    v_lshlrev_b32 v{vL16}, 4, v0
    """)
    for sp in range(4):
        p(f"v_xor_b32 v{vXA+sp}, {2*sp}, v{vA}")
        p(f"v_lshl_add_u32 v{vXA+sp}, v{vXA+sp}, 4, v{vRINV}")
    p(f"""
    v_and_b32 v{vA}, 15, v0
    v_bfe_u32 v{vRINV}, v0, 4, 1
    v_mov_b32 v{vCF}, 0x3f803f80
    v_cmp_eq_u32 vcc, v{vA}, v{vRINV}
    v_cndmask_b32 v{ONEc}, 0, v{vCF}, vcc
    v_mov_b32 v{ONEc+1}, v{ONEc}
    v_mov_b32 v{ONEc+2}, v{ONEc}
    v_mov_b32 v{ONEc+3}, v{ONEc}
    v_add_u32 v{vCF}, {CFA}, v{vL16}
    s_mul_i32 s{sT}, s{sG}, 3
    s_lshl_b32 s{sTMP}, s{sWAVE}, 10
    s_add_u32 s{sTMP}, s{sTMP}, {VSC}
    v_lshl_add_u32 v{vSW}, v{vT0}, 4, s{sTMP}
    v_and_b32 v{vA}, 3, v0
    v_lshl_add_u32 v{vSR}, v{vA}, 2, v{vSW}
    s_lshl_b32 s{sTMP}, s{sWAVE}, 11
    s_add_u32 s{sTMP}, s{sTMP}, {STQ}
    v_add_u32 v{vVW}, s{sTMP}, v{vL16}
    s_lshl_b32 s{sHEAD}, s{sJ}, 1
    s_and_b32 s{sTMP}, s{sI}, 1
    s_add_u32 s{sHEAD}, s{sHEAD}, s{sTMP}
    s_lshr_b32 s{sQB}, s{sI}, 1
    """)
    p(f"""
    s_add_u32 s{sTMP}, s{sHEAD}, 16
    s_mul_i32 s{sTMP}, s{sTMP}, 43
    s_lshr_b32 s{sTMP}, s{sTMP}, 7
    s_lshl_b32 s{sTMP}, s{sTMP}, 8
    v_mov_b32 v{vPL}, s{sTMP}
    s_lshl_b32 s{sTMP2}, s{sWAVE}, 6
    s_add_u32 s{sTMP}, s{sTMP}, s{sTMP2}
    v_and_b32 v{vA}, 15, v0
    s_mov_b64 exec, 0xffff
    v_lshl_add_u32 v{vPL}, v{vA}, 2, s{sTMP}
    s_add_u32 s{sTMP}, s{sHEAD}, 32
    s_mul_i32 s{sTMP}, s{sTMP}, 43
    s_lshr_b32 s{sTMP}, s{sTMP}, 7
    s_lshl_b32 s{sTMP}, s{sTMP}, 8
    s_add_u32 s{sTMP}, s{sTMP}, s{sTMP2}
    s_mov_b32 exec_lo, 0xffff0000
    v_lshl_add_u32 v{vPL}, v{vA}, 2, s{sTMP}
    s_mul_i32 s{sTMP}, s{sHEAD}, 43
    s_lshr_b32 s{sTMP}, s{sTMP}, 7
    s_lshl_b32 s{sTMP}, s{sTMP}, 8
    s_lshl_b32 s{sTMP2}, s{sQB}, 4
    s_add_u32 s{sTMP}, s{sTMP}, s{sTMP2}
    s_mov_b32 exec_lo, 0
    s_mov_b32 exec_hi, 15
    v_lshl_add_u32 v{vPL}, v{vA}, 2, s{sTMP}
    s_mov_b64 exec, -1
    v_add_u32 v{vPL}, {FQ}, v{vPL}
    """)

    seq = []
    for st in range(7):
        for sp in range(4):
            for j in range(3):
                seq.append((st, 4 * st + sp, j))
    for ph in range(2):
        for hs in range(2):
            for sp in range(14):
                for j in range(2):
                    seq.append((7 + 2 * ph + hs, 14 * hs + sp, 3 + 2 * ph + j))
    NA = 84

    def rdw(n):
        st, s, j = seq[n]
        b = WF + 4 * (n % NW)
        if st < 7:
            va, off, d = vC0, (s & 3) * 16 * 192 + 64 * j, 4 * 192
        else:
            va, off, d = (vC0 if (j - 3) % 2 == 0 else vC1), (s % 14) * 16 * 128, 4 * 128
        return [I(f"ds_read_b64_tr_b16 {vr(b,2)}, v{va} offset:{off}"),
                I(f"ds_read_b64_tr_b16 {vr(b+2,2)}, v{va} offset:{off+d}")]

    def mfma(n):
        st, s, j = seq[n]
        acc = vr(accs[j], 16)
        return I(f"{MF} {acc}, {vr(WF+4*(n%NW),4)}, {ar(X+4*s,4)}, {'0' if s == 0 else acc}")

    def enter(st):
        base = (st % 5) * SLOT
        o = [I("s_waitcnt lgkmcnt(0)"), I("s_barrier")] if st <= 7 or st == 9 else []
        if st < 7:
            o.append(I(f"v_add_u32 v{vC0}, {base}, v{vLA}"))
            for sp in range(4):
                o.append(I(f"v_add_u32 v{vXC}, {base}, v{vXA+sp}"))
                o.append(I(f"ds_read_b128 {ar(X+4*(4*st+sp),4)}, v{vXC}"))
        elif st < 11:
            o.append(I(f"v_add_u32 v{vC0}, {base}, v{vLB0}"))
            o.append(I(f"v_add_u32 v{vC1}, {base}, v{vLB1}"))
        return o

    def stats(st):
        f = {}
        for sp in range(4):
            s_ = 4 * st + sp
            x = ar(X + 4 * s_, 4)
            f[3 * sp] = [I(f"{MF} {vr(GR,16)}, {x}, {x}, {'0' if s_ == 0 else vr(GR,16)}")]
            f[3 * sp + 1] = [I(f"{M16} {vr(SX,4)}, {vr(ONEc,4)}, {x}, {'0' if s_ == 0 else vr(SX,4)}")]
        return f

    AH = NW - 1

    def stream(n0, n1, fill, rs, limit):
        out = []
        q = rs.setdefault("q", [])
        RL = int(E("RL", "3"))

        def refill(n):
            while rs["next"] <= min(n + AH, limit - 1):
                m = rs["next"]
                if seq[m][0] != rs["stage"]:
                    en = enter(seq[m][0])
                    if en[0].kind == "valu":
                        q.extend(("rd", m, [x]) for x in en)
                    else:
                        q.append(("bar", m, en))
                    rs["stage"] = seq[m][0]
                for x in rdw(m):
                    q.append(("rd", m, [x]))
                rs["next"] = m + 1

        def drain(n, budget):
            rs["slot"] = rs.get("slot", 0) + 1
            while q:
                kind, m, ins = q[0]
                must = m <= n + 2
                if kind == "bar":
                    if rs["slot"] < rs["last_at"] + 2 and not must:
                        break
                    q.pop(0)
                    k = [i for i, x in enumerate(ins) if x.op == "s_barrier"][0] + 1
                    while k < len(ins) and ins[k].kind != "valu":
                        k += 1
                    out.extend(ins[:k])
                    rest = ins[k:]
                    q[:0] = [("rd", m, [x]) for x in rest]
                    budget -= 1
                    continue
                if budget <= 0 and not must:
                    break
                q.pop(0)
                out.extend(ins)
                if ins[0].kind == "ds":
                    budget -= 2 if "b128" in ins[0].op else 1
                    rs["last_at"] = rs["slot"]

        for n in range(n0, n1):
            out.append(mfma(n))
            refill(n)
            drain(n, RL)
            if fill and (n - n0) in fill:
                for x in fill[n - n0]:
                    out.append(x)
                    if x.kind == "mfma":
                        drain(n, RL if x.passes == 8 else 1)
        return out

    rs = {"next": 0, "stage": 0, "last_at": -9}
    p.add(enter(0))
    stamp(p, 1)
    for m in range(AH):
        p.add(rdw(m))
    rs["next"] = AH
    for st in range(7):
        if st == 4:
            p(f"v_mov_b32 v{vT0}, 0")
            p(f"global_load_dword v{vT1}, v{vT0}, s[54:55] sc0 sc1")
        f = stats(st)
        if st < 6:
            b0 = 13 - AH
            f = {b0: f[0] + f[1], b0 + 1: f[3] + f[4], b0 + 2: f[6] + f[7], b0 + 3: f[9] + f[10]}
        if st == 6:
            f = {0: f[0] + f[1], 1: f[3] + f[4], 2: f[6] + f[7], 3: f[9] + f[10]}
            ex = []
            for q in range(4):
                ex += [f"s_mov_b32 exec_lo, {0xF << (8*q):#x}", f"s_mov_b32 exec_hi, {0xF0 << (8*q):#x}",
                       f"ds_write_b128 v{vSW}, {vr(GR+4*q,4)}"]
            ex += ["s_mov_b64 exec, 0xffff",
                   f"ds_write_b32 v{vSW}, v{SX} offset:512",
                   f"ds_write_b32 v{vSW}, v{SX+1} offset:768",
                   "s_mov_b64 exec, -1",
                   f"ds_read_b32 v{ST+4}, v{vSR}",
                   f"ds_read_b32 v{ST}, v{vSW} offset:512"]
            f[7] = [I(x) for x in ex]
        if E("NOST") and st < 6:
            f = None
        p.add(stream(12 * st, 12 * st + (12 if st < 6 else 9), f, rs, NA))
    T = ST
    fin = [I(x.strip()) for x in f"""
    v_mul_f32 v{T}, {f32bits(1.0/448.0):#x}, v{T}
    v_mul_f32 v{T+4}, {f32bits(1.0/448.0):#x}, v{T+4}
    v_fma_f32 v{T+4}, -v{T}, v{T}, v{T+4}
    v_cvt_pk_bf16_f32 v{T+1}, -v{T}, -v{T}
    v_max_f32 v{T+4}, 0, v{T+4}
    v_and_b32 v{T+2}, 0xffff, v{T+1}
    v_cvt_pk_bf16_f32 v{T+4}, v{T+4}, v{T+4}
    v_accvgpr_write_b32 a{XM}, v{T+1}
    v_and_b32 v{T+4}, 0xffff0000, v{T+4}
    v_accvgpr_write_b32 a{XM+1}, v{T+2}
    v_add_f32 v{T+4}, {f32bits(1e-5):#x}, v{T+4}
    v_accvgpr_write_b32 a{XM+2}, v{T+1}
    v_cvt_pk_bf16_f32 v{T+4}, v{T+4}, v{T+4}
    v_accvgpr_write_b32 a{XM+3}, v{T+2}
    v_and_b32 v{T+4}, 0xffff0000, v{T+4}
    v_sqrt_f32 v{T+4}, v{T+4}
    v_mov_b32 v{T}, {EPA}
    v_cvt_pk_bf16_f32 v{T+4}, v{T+4}, v{T+4}
    v_and_b32 v{T+4}, 0xffff0000, v{T+4}
    v_rcp_f32 v{vRINV}, v{T+4}
    v_readfirstlane_b32 s{sEP}, v{vT1}
    """.strip().split("\n")]
    p.add(fin)
    p(f"""
    s_cmp_lg_u32 s{sEP}, 0
    s_cbranch_scc1 K_GEX
    """)
    p.add(opt([f"s_mov_b32 s{sCNT}, {POLL_MAX}",
               "K_GE:",
               f"global_load_dword v{vT1}, v{vT0}, s[54:55] sc0 sc1",
               f"s_sub_u32 s{sCNT}, s{sCNT}, 1",
               f"s_cmp_eq_u32 s{sCNT}, 0",
               "s_waitcnt vmcnt(0)",
               "s_cbranch_scc1 K_GEX",
               f"v_readfirstlane_b32 s{sEP}, v{vT1}",
               "s_sleep 4",
               f"s_cmp_eq_u32 s{sEP}, 0",
               "s_cbranch_scc1 K_GE"]))
    p(f"""
    K_GEX:
    ds_write_b32 v{T}, v{vT1}
    """)
    spin(p, "a", sEP)
    p(f"""
    s_cmp_ge_u32 s{sG}, 14
    s_cbranch_scc1 K_SHORT
    """)
    p.flush()
    tr_s, rs_s, hist_s = p.tr.copy(), dict(rs, q=list(rs["q"])), list(p.out[-60:])
    p.add(stream(NA - 3, NA, None, rs, len(seq)))
    stamp(p, 2)
    stamp(p, 1, "B")
    c = (28 ** -0.5) * 1.4426950408889634

    def epi(j, packed=False):
        qkv = j < 3
        acc = accs[j]
        cf = [CFt, 120, 124][j % 3]
        g0 = [I(f"ds_read_b128 {ar(cf,4)}, v{vCF} offset:{1024*j}")]
        g1 = [I(f"{MF} {vr(acc,16)}, {ar(cf,4)}, {ar(XM,4)}, {vr(acc,16)}")]
        g2 = []
        sc = vRINV
        if qkv:
            sc = vA
            g2 += [I(x) for x in [
                f"s_cmp_lt_u32 s{sT}, {16-j}",
                f"s_cselect_b32 s{sTMP}, {f32bits(c):#x}, 1.0",
                f"v_mul_f32 v{vA}, s{sTMP}, v{vRINV}"]]
        off = 8192 * j if qkv else (STH1 - STQ if j < 5 else STH2 - STQ) + 8192 * ((j - 3) & 1)
        for i in range(8):
            if packed:
                e2 = sc & ~1
                sel = "op_sel_hi:[1,0]" if sc == e2 else "op_sel:[0,1]"
                g2.append(I(f"v_pk_mul_f32 {vr(acc+2*i,2)}, {vr(acc+2*i,2)}, {vr(e2,2)} {sel}"))
            else:
                g2.append(I(f"v_mul_f32 v{acc+2*i}, v{sc}, v{acc+2*i}"))
                g2.append(I(f"v_mul_f32 v{acc+2*i+1}, v{sc}, v{acc+2*i+1}"))
            g2.append(I(f"v_cvt_pk_bf16_f32 v{acc+i}, v{acc+2*i}, v{acc+2*i+1}"))
            if i & 3 == 3:
                o = off + 1024 * (i >> 2)
                va = vVW if o < 65536 else vVR
                g2.append(I(f"ds_write_b128 v{va}, {vr(acc+i-3,4)} offset:{o if o < 65536 else o - 32768}", tag="stg"))
        return g0, g1, g2

    def plan(tiles, start, span):
        fill = {}

        def put(i, l):
            fill.setdefault(i, []).extend(l)
        e = [epi(j) for j in tiles]
        put(start, e[0][0] + e[1][0])
        put(start + 2, e[0][1])
        put(start + 3, e[1][1])
        if len(e) > 2:
            put(start + 3, e[2][0])
            put(start + 6, e[2][1])
        allv = [x for g in e for x in g[2]]
        b2 = start + 4
        for i, x in enumerate(allv):
            put(b2 + (i * (span - 4)) // len(allv), [x])
        return fill

    S = [48, 64]
    P = [80, 88]
    O0 = 96
    KR = 48
    Q = 0
    KV = [32, 48]
    OA = 64

    def att_loads():
        o = [f"s_lshl_b32 s{sKV0}, s{sHEAD}, 18",
             f"s_add_u32 s{sKV0}, s{sKV0}, {KVF}",
             f"buffer_load_dwordx4 {vr(KR,4)}, v{vL16}, s[{sWS}:{sWS+3}], s{sKV0} offen sc1",
             f"buffer_load_dwordx4 {vr(KR+4,4)}, v{vL16}, s[{sWS}:{sWS+3}], s{sKV0} offen offset:1024 sc1",
             f"s_lshl_b32 s{sTMP}, s{sHEAD}, 6",
             f"s_lshl_b32 s{sTMP2}, s{sQB}, 2",
             f"s_add_u32 s{sTMP}, s{sTMP}, s{sTMP2}"]
        for u in range(4):
            o += [f"s_xor_b32 s{sTMP2}, s{sWAVE}, {u}",
                  f"s_add_u32 s{sTMP2}, s{sTMP2}, s{sTMP}",
                  f"s_lshl_b32 s{sTMP2}, s{sTMP2}, 11",
                  f"buffer_load_dwordx4 {ar(Q+8*u,4)}, v{vL16}, s[{sWS}:{sWS+3}], s{sTMP2} offen sc1",
                  f"buffer_load_dwordx4 {ar(Q+8*u+4,4)}, v{vL16}, s[{sWS}:{sWS+3}], s{sTMP2} offen offset:1024 sc1"]
        o += [f"s_lshl_b32 s{sTMP}, s{sWAVE}, 16",
              f"s_add_u32 s{sKV}, s{sKV0}, s{sTMP}",
              f"s_add_u32 s{sKV2}, s{sKV}, 4096"]
        for j in range(4):
            o.append(f"buffer_load_dwordx4 {ar(KV[0]+4*j,4)}, v{vL16}, s[{sWS}:{sWS+3}], s{sKV} offen offset:{1024*j} sc1")
        for j in range(2):
            o.append(f"buffer_load_dwordx4 {ar(KV[1]+4*j,4)}, v{vL16}, s[{sWS}:{sWS+3}], s{sKV2} offen offset:{1024*j} sc1")
        return [I(x) for x in o]

    def poll_opt(name, sleep):
        o = [I(f"v_cmp_ne_u32 vcc, s{sEP}, v{vT1}"), I("s_nop 1"), I(f"s_cbranch_vccz {name}X")]
        o += opt([f"s_mov_b32 s{sCNT}, {POLL_MAX}",
                  f"{name}:",
                  f"s_sleep {sleep}",
                  f"buffer_load_dword v{vT1}, v{vPL}, s[{sWS}:{sWS+3}], 0 offen sc1",
                  f"s_sub_u32 s{sCNT}, s{sCNT}, 1",
                  f"s_cmp_eq_u32 s{sCNT}, 0",
                  "s_waitcnt vmcnt(0)",
                  f"s_cbranch_scc1 {name}X",
                  f"v_cmp_ne_u32 vcc, s{sEP}, v{vT1}",
                  "s_nop 1",
                  f"s_cbranch_vccnz {name}"])
        o += [I(f"{name}X:")]
        return o

    HSPAN, PPOS, CPOS = int(E("HSPAN", "30")), int(E("PPOS", "30")), int(E("CPOS", "42"))
    p(f"v_add_u32 v{vVR}, 32768, v{vVW}")

    def qkv_epilogue():
        e = [epi(j, True) for j in range(3)]
        p.add(e[0][0] + e[1][0] + e[2][0] + e[0][1] + e[1][1] + e[2][1] + e[0][2] + e[1][2] + e[2][2])
        p("s_waitcnt lgkmcnt(0)")
        p("s_barrier")

    qkv_epilogue()
    stamp(p, 1, "C")
    p.add(stream(NA, NA + 56, None, rs, len(seq)))
    stamp(p, 2, "C")
    fc = plan([3, 4], 0, HSPAN)
    fc.setdefault(HSPAN + 2, []).extend([I("@wait stg"), I("s_barrier")])
    fc.setdefault(PPOS, []).append(I(f"buffer_load_dword v{vT1}, v{vPL}, s[{sWS}:{sWS+3}], 0 offen sc1"))
    ds = (lambda i: [I(f"s_memtime s[{66+4*i}:{67+4*i}]"), I("s_waitcnt lgkmcnt(0)")]) if STAMP and E("DIAG") == "C" else (lambda i: [])
    fc.setdefault(CPOS, []).extend(ds(3) + poll_opt("K_PQ1", E("SLQ", "12")) + ds(4))
    al = att_loads()
    for i, x in enumerate(al):
        fc.setdefault(CPOS + (i * (55 - CPOS)) // len(al), []).append(x)
    e = [epi(j) for j in (5, 6)]
    fc.setdefault(52, []).extend(e[0][0] + e[1][0])
    p.add(stream(NA + 56, NA + 112, fc, rs, len(seq)))
    stamp(p, 3)
    stamp(p, 5, "C")
    RD = [64, 80, 96, 112]

    def refmm():
        o = []
        for u in range(4):
            d = RD[u]
            o.append(I(f"{MF} {vr(d,16)}, {vr(KR,4)}, {ar(Q+8*u,4)}, 0"))
            o.append(I(f"{MF} {vr(d,16)}, {vr(KR+4,4)}, {ar(Q+8*u+4,4)}, {vr(d,16)}"))
        return o

    p.add(e[0][1] + e[1][1])
    p.add(interleave(refmm(), e[0][2] + e[1][2]))
    p("""
    s_waitcnt lgkmcnt(0)
    s_barrier
    s_branch K_ATT
    """)
    p.flush()
    tr_att = p.tr.copy()

    p.tr = tr_s
    p("K_SHORT:")
    p.add(stream(NA - 3, NA, None, rs_s, NA))
    p("s_waitcnt lgkmcnt(0)")
    p("s_barrier")
    stamp(p, 2)
    qkv_epilogue()
    p("s_barrier")
    stamp(p, 3)
    seq2 = add_waits(p.cur, p.tr)
    p.out += pad_hazards(seq2, hist_s)
    p.cur = []
    p(f"s_sleep {E('SLS0', '30')}")
    poll(p, "K_PQ2", vT1, vPL, sWS, "0", sEP, sCNT, E("SLS", "10"))
    p.add(att_loads())
    p.add(refmm())
    p("s_nop 7")
    p.flush()

    p.tr = tr_att

    def Oacc(u):
        return vr(O0, 16) if u == 0 else ar(OA + 16 * (u - 1), 16)

    vA1, vA2, vA3, vRA, vEP = 2, 3, 4, 5, 6
    vAs = [None, vA1, vA2, vA3]
    p(f"""
    K_ATT:
    s_setprio {E("AP", "2")}
    s_mov_b32 s{sKVR}, s{sWS}
    s_mov_b32 s{sKVR+1}, s{sWS+1}
    s_add_u32 s{sKVR+2}, s{sKV}, 65536
    s_mov_b32 s{sKVR+3}, 0x00020000
    v_mov_b32 v{vEP}, s{sEP}
    """)
    for u in range(1, 4):
        p(f"""
        s_xor_b32 s{sTMP}, s{sWAVE}, {u}
        s_mul_i32 s{sTMP}, s{sTMP}, 3
        s_add_u32 s{sTMP}, s{sTMP}, {u-1}
        s_lshl_b32 s{sTMP}, s{sTMP}, 12
        v_add_u32 v{vAs[u]}, s{sTMP}, v{vL16}
        """)
    p(f"""
    s_mul_i32 s{sTMP}, s{sWAVE}, {3*4096}
    v_add_u32 v{vRA}, s{sTMP}, v{vL16}
    s_mov_b32 s{sCNT}, 8
    """)
    M, M2, PC = 24, 28, 40

    def rowmax(m, d):
        p(f"v_max3_f32 v{m}, v{d}, v{d+1}, v{d+2}")
        for r in range(3, 15, 2):
            p(f"v_max3_f32 v{m}, v{m}, v{d+r}, v{d+r+1}")
        p(f"v_max_f32 v{m}, v{m}, v{d+15}")

    def put_ref(units, add):
        for u in units:
            p(f"v_mov_b32 v{M2+u}, v{M+u}")
        for u in units:
            p(f"v_permlane32_swap_b32 v{M+u}, v{M2+u}")
        for u in units:
            m, a, b, cc = M + u, M2 + u, PC + u, PC + 4 + u
            p(f"""
            v_max_f32 v{m}, v{m}, v{a}
            v_sub_f32 v{a}, {f32bits(-add):#x}, v{m}
            v_and_b32 v{b}, 0xffff0000, v{a}
            v_sub_f32 v{a}, v{a}, v{b}
            v_and_b32 v{cc}, 0xffff0000, v{a}
            v_sub_f32 v{a}, v{a}, v{cc}
            v_lshrrev_b32 v{b}, 16, v{b}
            v_or_b32 v{b}, v{b}, v{cc}
            v_lshrrev_b32 v{a}, 16, v{a}
            """)
        p("s_mov_b32 exec_lo, 0")
        for u in units:
            p(f"v_accvgpr_write_b32 a{Q+8*u+6}, v{PC+u}")
            p(f"v_accvgpr_write_b32 a{Q+8*u+7}, v{M2+u}")
        p("s_mov_b32 exec_lo, -1")

    for u in range(4):
        rowmax(M + u, RD[u])
    put_ref(range(4), REF_OFF)

    def qk(n_u, kb, sbuf):
        k = KV[kb]
        return [I(f"{MF} {vr(S[sbuf],16)}, {ar(k,4)}, {ar(Q+8*n_u,4)}, 0"),
                I(f"{MF} {vr(S[sbuf],16)}, {ar(k+4,4)}, {ar(Q+8*n_u+4,4)}, {vr(S[sbuf],16)}")]

    def pv(u, vb, pbuf):
        v = KV[vb] + 8
        return [I(f"{MF} {Oacc(u)}, {ar(v,4)}, {vr(P[pbuf],4)}, {Oacc(u)}"),
                I(f"{MF} {Oacc(u)}, {ar(v+4,4)}, {vr(P[pbuf]+4,4)}, {Oacc(u)}")]

    def softmax(sb):
        s, pp = S[sb], P[sb]
        v = []
        for i in range(8):
            v.append(I(f"v_exp_f32 v{s+2*i}, v{s+2*i}"))
            v.append(I(f"v_exp_f32 v{s+2*i+1}, v{s+2*i+1}"))
            if i >= 1:
                v.append(I(f"v_cvt_pk_bf16_f32 v{pp+i-1}, v{s+2*i-2}, v{s+2*i-1}"))
        v.append(I(f"v_cvt_pk_bf16_f32 v{pp+7}, v{s+14}, v{s+15}"))
        return v

    def cost(i):
        return 8 if i.is_trans() else 4

    def slot(tb, u):
        nu = (u + 1) & 3
        pu = (u - 1) & 3
        mf = qk(nu, tb if u < 3 else 1 - tb, (u + 1) & 1) + pv(pu, tb if u > 0 else 1 - tb, (u - 1) & 1)
        ld = []
        if u == 0:
            so = sKV2 if tb == 0 else sKV
            ld += [I(f"buffer_load_dwordx4 {ar(KV[1-tb]+8+4*j,4)}, v{vL16}, s[{sKVR}:{sKVR+3}], s{so} offen offset:{2048+1024*j} sc1") for j in range(2)]
        if u == 2:
            so = sKV if tb == 0 else sKV2
            ld += [I(f"buffer_load_dwordx4 {ar(KV[tb]+4*j,4)}, v{vL16}, s[{sKVR}:{sKVR+3}], s{so} offen offset:{1024*j} sc1") for j in range(2)]
        va = softmax(u & 1)
        total = sum(cost(i) for i in va)
        out = []
        k = 0
        acc = 0
        for j, m in enumerate(mf):
            out.append(m)
            tgt = total * (j + 1) / len(mf)
            while k < len(va) and acc + cost(va[k]) / 2 <= tgt:
                out.append(va[k]); acc += cost(va[k]); k += 1
        out += va[k:]
        idx = max(i for i, x in enumerate(out) if x.kind == "mfma")
        if ld:
            out = out[:idx + 1] + interleave(out[idx + 1:], ld)
        return out

    stamp(p, 4)
    spin(p, "att", sEP)
    p.add(qk(0, 0, 0))
    for i in range(48):
        p(f"v_accvgpr_write_b32 a{OA+i}, 0")
    for i in range(8):
        p(f"v_accvgpr_write_b32 a{KV[1]+8+i}, 0")
    for i in range(0, 16, 2):
        p(f"v_mov_b64 {vr(O0+i,2)}, 0")
    for i in range(0, 8, 2):
        p(f"v_mov_b64 {vr(P[1]+i,2)}, 0")
    body = [I(".p2align 6"), I("K_LOOP:")]
    for tb in range(2):
        for u in range(4):
            if u == 1:
                so = sKV if tb == 0 else sKV2
                body.append(I(f"s_add_u32 s{so}, s{so}, 8192"))
            if tb == 1 and u == 3:
                body.append(I(f"s_sub_u32 s{sCNT}, s{sCNT}, 1"))
                body.append(I(f"s_cmp_lg_u32 s{sCNT}, 0"))
            body += slot(tb, u)
    body += [I("s_cbranch_scc1 K_LOOP")]
    p.loop(body)
    stamp(p, 5)
    spin(p, "tail", sEP)
    p.add(pv(3, 1, 1))
    for u in range(1, 4):
        for q in range(4):
            p(f"ds_write_b128 v{vAs[u]}, {ar(OA+16*(u-1)+4*q,4)} offset:{1024*q}")
    p(f"""
    s_lshl_b32 s{sTMP2}, s{sQB}, 2
    s_add_u32 s{sTMP2}, s{sTMP2}, s{sWAVE}
    s_lshl_b32 s{sTMP}, s{sTMP2}, 15
    s_lshl_b32 s{sTMP3}, s{sHEAD}, 11
    s_add_u32 s{sTMP}, s{sTMP}, s{sTMP3}
    s_add_u32 s{sTMP}, s{sTMP}, {OF}
    s_lshl_b32 s{sTMP3}, s{sTMP2}, 4
    s_add_u32 s{sTMP3}, s{sTMP3}, s{sHEAD}
    s_lshl_b32 s{sTMP3}, s{sTMP3}, 2
    s_add_u32 s{sTMP3}, s{sTMP3}, {FO}
    s_lshl_b32 s{sTMP2}, s{sWAVE}, 2
    s_add_u32 s{sTMP2}, s{sTMP2}, {EPA+16}
    v_mov_b32 v16, s{sTMP2}
    v_and_b32 v17, 3, v0
    v_lshlrev_b32 v17, 2, v17
    v_add_u32 v17, {EPA+16}, v17
    ds_write_b32 v16, v{vEP}
    s_mov_b32 s{sKV}, {POLL_MAX*16}
    """)
    p.flush()
    p(f"""
    K_AW:
    ds_read_b32 v18, v17
    s_sub_u32 s{sKV}, s{sKV}, 1
    s_cmp_eq_u32 s{sKV}, 0
    s_waitcnt lgkmcnt(0)
    s_cbranch_scc1 K_AWX
    v_cmp_ne_u32 vcc, s{sEP}, v18
    s_nop 1
    s_cbranch_vccnz K_AW
    K_AWX:
    """)
    p.flush()
    stamp(p, 6)
    R = 48
    for i in range(3):
        for q in range(4):
            p(f"ds_read_b128 {vr(R+16*i+4*q,4)}, v{vRA} offset:{4096*i+1024*q}")
    for i in range(3):
        for r in range(0, 16, 2):
            p(f"v_pk_add_f32 {vr(O0+r,2)}, {vr(O0+r,2)}, {vr(R+16*i+r,2)}")
    p("K_NORM:")
    l, l2, ri, mx, PK = 16, 17, 18, 20, 32
    p(f"""
    v_mov_b32 v{l}, v{O0+12}
    v_mov_b32 v{l2}, v{O0+12}
    v_permlane32_swap_b32 v{l}, v{l2}
    v_rcp_f32 v{ri}, v{l2}
    """)
    for r in range(0, 16, 2):
        p(f"v_pk_mul_f32 {vr(O0+r,2)}, {vr(O0+r,2)}, {vr(ri,2)} op_sel_hi:[1,0]")
    for i in range(8):
        p(f"v_cvt_pk_bf16_f32 v{PK+i}, v{O0+2*i}, v{O0+2*i+1}")
    p(f"""
    buffer_store_dwordx4 {vr(PK,4)}, v{vL16}, s[{sWS}:{sWS+3}], s{sTMP} offen sc1
    buffer_store_dwordx4 {vr(PK+4,4)}, v{vL16}, s[{sWS}:{sWS+3}], s{sTMP} offen offset:1024 sc1
    """)
    for r in range(0, 16, 2):
        p(f"v_pk_add_f32 {vr(O0+r,2)}, {vr(O0+r,2)}, {vr(O0+r,2)} neg_lo:[0,1] neg_hi:[0,1]")
    for r in (8, 4, 2):
        for k in range(0, r, 2):
            p(f"v_pk_add_f32 {vr(O0+k,2)}, {vr(O0+k,2)}, {vr(O0+r+k,2)}")
    p(f"""
    v_add_f32 v{mx}, v{O0}, v{O0+1}
    v_add_f32 v{mx}, v{mx}, v{l2}
    v_cmp_ngt_f32 vcc, {f32bits(L_LIMIT):#x}, v{mx}
    s_cmp_eq_u32 s{sCNT}, 0
    s_cselect_b64 vcc, vcc, 0
    s_cbranch_vccnz K_SLOW
    s_mov_b64 exec, 1
    s_waitcnt vmcnt(0)
    buffer_store_dword v{vEP}, v{vL16}, s[{sWS}:{sWS+3}], s{sTMP3} offen sc1
    s_mov_b64 exec, -1
    """)
    stamp_out(p, 7, sWS, sWAVE, 2, 3)
    p("s_endpgm")
    p.flush()
    p.tr = Tracker()
    p(f"""
    K_SLOW:
    s_waitcnt vmcnt(0) lgkmcnt(0)
    s_mov_b32 exec_lo, 0
    v_accvgpr_write_b32 a{Q+6}, 0
    v_accvgpr_write_b32 a{Q+7}, 0
    s_mov_b32 exec_lo, -1
    v_mov_b32 v{M}, 0xff800000
    s_mov_b32 s{sKV}, s{sKV0}
    s_mov_b32 s{sCNT}, 64
    """)
    body = [I("K_S1:")]
    body += [I(f"buffer_load_dwordx4 {ar(KV[0]+4*j,4)}, v{vL16}, s[{sWS}:{sWS+3}], s{sKV} offen offset:{1024*j} sc1") for j in range(2)]
    body += qk(0, 0, 0)
    body += [I(f"v_max3_f32 v{M}, v{M}, v{S[0]+r}, v{S[0]+r+1}") for r in range(0, 16, 2)]
    body += [I(f"s_add_u32 s{sKV}, s{sKV}, 4096"), I(f"s_sub_u32 s{sCNT}, s{sCNT}, 1"), I(f"s_cmp_lg_u32 s{sCNT}, 0"), I("s_cbranch_scc1 K_S1")]
    p.loop(body)
    put_ref([0], 0.0)
    for i in range(16):
        p(f"v_mov_b32 v{O0+i}, 0")
    p(f"""
    s_mov_b32 s{sKV}, s{sKV0}
    s_mov_b32 s{sCNT}, 64
    """)
    body = [I("K_S2:")]
    body += [I(f"buffer_load_dwordx4 {ar(KV[0]+4*j,4)}, v{vL16}, s[{sWS}:{sWS+3}], s{sKV} offen offset:{1024*j} sc1") for j in range(4)]
    body += qk(0, 0, 0) + softmax(0) + pv(0, 0, 0)
    body += [I(f"s_add_u32 s{sKV}, s{sKV}, 4096"), I(f"s_sub_u32 s{sCNT}, s{sCNT}, 1"), I(f"s_cmp_lg_u32 s{sCNT}, 0"), I("s_cbranch_scc1 K_S2")]
    p.loop(body)
    p(f"""
    s_mov_b32 s{sCNT}, 1
    s_nop 7
    s_nop 7
    s_branch K_NORM
    """)
    p.flush()

    p.tr = Tracker()
    vOA3, vX, vOB, hLA, hLB, hCW, ONE, CS, F = 8, 12, 14, 16, 17, 19, 20, 24, 40
    hL16 = 1
    p("K_HELPER:")
    stamp(p, 0)
    srd(p, sX, 40, XB)
    srd(p, sW, 42, WQKVB)
    p(f"""
    s_sub_u32 s{sWAVE}, s{sWAVE}, 4
    s_add_u32 s{sXO}, s{sMT}, s{sWAVE}
    s_mul_i32 s{sXO}, s{sXO}, 28672
    v_lshrrev_b32 v4, 3, v0
    v_mul_u32_u24 v7, 896, v4
    v_lshrrev_b32 v5, 4, v0
    v_and_b32 v6, 7, v0
    v_xor_b32 v6, v5, v6
    v_lshl_add_u32 v{vX}, v6, 4, v7
    v_xor_b32 v6, 4, v6
    v_lshl_add_u32 v{vX+1}, v6, 4, v7
    s_mul_i32 s{sOA}, s{sG}, 168
    s_mul_i32 s{sTMP}, s{sWAVE}, {16*2688}
    s_add_u32 s{sOA}, s{sOA}, s{sTMP}
    s_lshl_b32 s{sM0}, s{sWAVE}, 12
    s_mul_i32 s{sTMP3}, s{sWAVE}, 3072
    """)

    def dma(st):
        base = (st % 5) * SLOT
        o = []
        if st < 7:
            for g in range(4):
                o.append([f"s_add_u32 m0, s{sM0}, {base+WAB+1024*g}",
                          f"s_add_u32 s{sTMP}, s{sXO}, {8*896*g+128*st}",
                          f"buffer_load_dwordx4 v{vX+(g&1)}, s[{sX}:{sX+3}], s{sTMP} offen lds"])
            for d in range(3):
                o.append([f"s_add_u32 m0, s{sTMP3}, {base+1024*d}",
                          f"s_add_u32 s{sTMP}, s{sOA}, {64*2688*st}",
                          f"buffer_load_dwordx4 v{vOA3+d}, s[{sW}:{sW+3}], s{sTMP} offen lds"])
        else:
            ph, hs = divmod(st - 7, 2)
            for d in range(7):
                o.append([f"s_add_u32 m0, s{sT}, {base+1024*d}",
                          f"s_add_u32 s{sTMP}, s{sOB}, {(224*hs+8*d)*3584+128*ph}",
                          f"buffer_load_dwordx4 v{vOB}, s[{sW2}:{sW2+3}], s{sTMP} offen lds"])
        return [(st, g) for g in o]

    dq = [g for st in range(11) for g in dma(st)]

    def issue(n, maxst=10):
        for _ in range(n):
            if dq and dq[0][0] <= maxst:
                st, g = dq.pop(0)
                p("\n".join(g), tag=f"st{st}")

    issue(4)
    for d in range(3):
        p(f"""
        v_add_u32 v1, {64*d}, v0
        v_mul_u32_u24 v2, 5462, v1
        v_lshrrev_b32 v2, 16, v2
        v_mul_u32_u24 v3, 12, v2
        v_sub_u32 v1, v1, v3
        v_lshrrev_b32 v3, 2, v1
        v_and_b32 v1, 3, v1
        v_lshlrev_b32 v1, 4, v1
        v_mad_u32_u24 v1, v3, 56, v1
        v_mul_u32_u24 v2, 2688, v2
        v_add_u32 v{vOA3+d}, v1, v2
        """)
    issue(10)
    srd(p, sWS, 46, WS_BYTES)
    srd(p, sW2, 48, W1B)
    tr_lane(hLA, hLB, hLB + 1, 1, 2)
    p(f"""
    s_mul_i32 s{sTMP}, s{sWAVE}, {16*192}
    v_add_u32 v{hLA}, s{sTMP}, v{hLA}
    v_bfe_u32 v1, v0, 2, 1
    v_bfe_u32 v2, v0, 4, 1
    v_xor_b32 v1, v1, v2
    v_and_b32 v3, 3, v0
    v_lshlrev_b32 v3, 4, v3
    v_lshl_add_u32 v3, v1, 6, v3
    v_mul_u32_u24 v4, 3584, v4
    v_add_u32 v{vOB}, v4, v3
    v_and_b32 v1, 15, v0
    v_mov_b32 v3, 0x3f803f80
    v_cmp_eq_u32 vcc, v1, v2
    v_cndmask_b32 v{ONE}, 0, v3, vcc
    v_mov_b32 v{ONE+1}, v{ONE}
    v_mov_b32 v{ONE+2}, v{ONE}
    v_mov_b32 v{ONE+3}, v{ONE}
    s_lshl_b32 s{sOB}, s{sG}, 8
    s_mul_i32 s{sTMP}, s{sWAVE}, {56*3584}
    s_add_u32 s{sOB}, s{sOB}, s{sTMP}
    s_mul_i32 s{sT}, s{sWAVE}, 7168
    s_lshr_b32 s{sTMP}, s{sWAVE}, 1
    s_lshl_b32 s{sTMP}, s{sTMP}, 9
    s_and_b32 s{sTMP2}, s{sWAVE}, 1
    s_lshl_b32 s{sTMP2}, s{sTMP2}, 3
    s_add_u32 s{sTMP}, s{sTMP}, s{sTMP2}
    s_add_u32 s{sTMP}, s{sTMP}, {CFA}
    v_lshl_add_u32 v{hCW}, v0, 4, s{sTMP}
    v_lshlrev_b32 v{hL16}, 4, v0
    s_setprio {E("HP", "2")}
    s_add_u32 s{sTMP}, s2, s{sWAVE}
    s_cmp_lg_u32 s{sTMP}, 0
    s_cbranch_scc1 K_NOEP
    """)
    p.add(opt([f"s_memrealtime s[60:61]",
               "s_waitcnt lgkmcnt(0)",
               "s_or_b32 s60, s60, 1",
               "v_mov_b32 v2, 0",
               "v_mov_b32 v3, s60",
               "s_mov_b64 exec, 1",
               "global_store_dword v2, v3, s[54:55] sc0 sc1",
               "s_mov_b64 exec, -1"]))
    p("K_NOEP:")

    def publish(tiles, j0):
        for t in range(tiles):
            for r in range(2):
                c0 = CS + 4 * t + r
                a, b2, c2 = F + 8 * t + 4 * r, F + 8 * t + 4 * r + 1, F + 8 * t + 4 * r + 2
                p(f"""
                v_and_b32 v{a}, 0xffff0000, v{c0}
                v_sub_f32 v{b2}, v{c0}, v{a}
                v_and_b32 v{c2}, 0xffff0000, v{b2}
                v_sub_f32 v{b2}, v{b2}, v{c2}
                v_lshrrev_b32 v{a}, 16, v{a}
                v_or_b32 v{a}, v{a}, v{c2}
                v_lshrrev_b32 v{b2}, 16, v{b2}
                """)
        p("s_mov_b64 exec, 0xffff")
        for t in range(tiles):
            for r in range(2):
                p(f"ds_write_b64 v{hCW}, {vr(F+8*t+4*r,2)} offset:{1024*(j0+t)+256*r}")
        p("s_mov_b64 exec, -1")

    def colsum_a(st, between=None):
        if E("NOCS") and st < 6:
            if between:
                between()
            return
        p(f"v_add_u32 v2, {(st % 5) * SLOT}, v{hLA}")
        for j in range(3):
            p(f"ds_read_b64_tr_b16 {vr(F+4*j,2)}, v2 offset:{64*j}")
            p(f"ds_read_b64_tr_b16 {vr(F+4*j+2,2)}, v2 offset:{64*j+4*192}")
        if between:
            between()
        for j in range(3):
            p(f"{M16} {vr(CS+4*j,4)}, {vr(ONE,4)}, {vr(F+4*j,4)}, {'0' if st == 0 else vr(CS+4*j,4)}")
        if st == 6:
            publish(3, 0)

    def colsum_b(ph):
        s0, s1 = ((7 + 2 * ph) % 5) * SLOT, ((8 + 2 * ph) % 5) * SLOT
        p(f"""
        s_mul_i32 s{sTMP}, s{sWAVE}, {7*2048}
        s_cmp_lt_u32 s{sWAVE}, 2
        s_mov_b32 s{sTMP2}, {(s1 - SLOT) & 0xffffffff}
        s_cselect_b32 s{sTMP2}, {s0}, s{sTMP2}
        s_add_u32 s{sTMP}, s{sTMP}, s{sTMP2}
        v_add_u32 v2, s{sTMP}, v{hLB}
        v_add_u32 v3, s{sTMP}, v{hLB+1}
        """)
        mm = []
        for i in range(7):
            for t in range(2):
                b = F + 8 * i + 4 * t
                p(f"ds_read_b64_tr_b16 {vr(b,2)}, v{2+t} offset:{2048*i}")
                p(f"ds_read_b64_tr_b16 {vr(b+2,2)}, v{2+t} offset:{2048*i+512}")
                mm.append(f"{M16} {vr(CS+4*t,4)}, {vr(ONE,4)}, {vr(b,4)}, {'0' if i == 0 else vr(CS+4*t,4)}")
                if len(mm) > 6:
                    p(mm.pop(0))
        for m in mm:
            p(m)
        publish(2, 3 + 2 * ph)

    def bar(*sts):
        if sts:
            p("@wait " + " ".join(f"st{x}" for x in sts))
        p("s_waitcnt lgkmcnt(0)")
        p("s_barrier")

    D = 100
    hSR, hVR, hMA, hOA, hEP = 124, 125, 126, 127, 15

    def out_setup():
        p(f"""
        s_lshl_b32 s{sTMP}, s{sWAVE}, 11
        s_add_u32 s{sTMP}, s{sTMP}, {STQ}
        v_add_u32 v{hSR}, s{sTMP}, v{hL16}
        v_bfe_u32 v2, v0, 4, 1
        v_lshl_add_u32 v{hVR}, v2, 10, s{sTMP}
        v_lshrrev_b32 v2, 5, v0
        v_lshl_add_u32 v{hVR}, v2, 6, v{hVR}
        v_bfe_u32 v2, v0, 2, 2
        v_lshl_add_u32 v{hVR}, v2, 4, v{hVR}
        v_and_b32 v2, 1, v0
        v_lshl_add_u32 v{hVR}, v2, 9, v{hVR}
        v_bfe_u32 v2, v0, 1, 1
        v_lshl_add_u32 v{hVR}, v2, 3, v{hVR}
        v_and_b32 v2, 31, v0
        v_cmp_gt_u32 vcc, 28, v2
        v_cndmask_b32 v{hMA}, 0, -1, vcc
        v_mov_b32 v3, 0x3f803f80
        v_cmp_eq_u32 vcc, 28, v2
        v_cndmask_b32 v{hOA}, 0, v3, vcc
        s_add_u32 s{sCNT}, s{sMT}, s{sWAVE}
        """)

    def out_qkv(tag):
        p(f"""
        v_mov_b32 v2, {EPA}
        ds_read_b32 v{hEP}, v2
        s_mul_i32 s{sTY}, s{sG}, 3
        """)
        for j in range(3):
            d = D + 8 * j
            p(f"""
            s_cmp_ge_u32 s{sTY}, {32-j}
            s_cbranch_scc1 K_RV{j}{tag}
            """)
            p.add(opt([f"ds_read_b128 {vr(d,4)}, v{hSR} offset:{8192*j}",
                       f"ds_read_b128 {vr(d+4,4)}, v{hSR} offset:{8192*j+1024}",
                       f"s_branch K_RW{j}{tag}"]))
            p(f"K_RV{j}{tag}:")
            p.add(opt([f"ds_read_b64_tr_b16 {vr(d+2*k,2)}, v{hVR} offset:{8192*j+128*k}" for k in range(4)]))
            p(f"K_RW{j}{tag}:")
        p("s_waitcnt lgkmcnt(0)")
        for j in range(3):
            d = D + 8 * j
            p(f"""
            s_add_u32 s{sTMP}, s{sTY}, {j}
            s_lshr_b32 s{sTMP2}, s{sTMP}, 4
            s_and_b32 s{sTMP}, s{sTMP}, 15
            s_lshl_b32 s{sTMP}, s{sTMP}, 6
            s_add_u32 s{sTMP}, s{sTMP}, s{sCNT}
            s_lshl_b32 s{sST}, s{sTMP}, 11
            s_lshl_b32 s{sTMP}, s{sTMP}, 12
            s_add_u32 s{sTMP}, s{sTMP}, {KVF}
            s_cmp_eq_u32 s{sTMP2}, 0
            s_cselect_b32 s{sST}, s{sST}, s{sTMP}
            s_cselect_b32 s{sTMP}, 0, 0x3f803f80
            s_cselect_b32 s{sEP}, 0, 0x3f80
            s_cmp_eq_u32 s{sTMP2}, 2
            s_cbranch_scc1 K_FV{j}{tag}
            """)
            p.add(opt(["s_mov_b32 exec_lo, 0",
                       f"v_mov_b32 v{d+6}, s{sTMP}",
                       f"v_mov_b32 v{d+7}, s{sEP}",
                       "s_mov_b32 exec_lo, -1",
                       f"s_branch K_FW{j}{tag}"]))
            p(f"K_FV{j}{tag}:")
            p.add(opt([f"v_and_or_b32 v{d+i}, v{d+i}, v{hMA}, v{hOA}" for i in range(8)] + [f"s_add_u32 s{sST}, s{sST}, 2048"]))
            p(f"""
            K_FW{j}{tag}:
            buffer_store_dwordx4 {vr(d,4)}, v{hL16}, s[{sWS}:{sWS+3}], s{sST} offen sc1
            buffer_store_dwordx4 {vr(d+4,4)}, v{hL16}, s[{sWS}:{sWS+3}], s{sST} offen offset:1024 sc1
            """)

    def hflag(instrs):
        p(instrs)
        p(f"""
        s_mov_b64 exec, 1
        s_waitcnt vmcnt(0)
        buffer_store_dword v{hEP}, v{hL16}, s[{sWS}:{sWS+3}], s{sTMP} offen sc1
        s_mov_b64 exec, -1
        """)

    fq = f"""
        s_lshl_b32 s{sTMP}, s{sG}, 6
        s_add_u32 s{sTMP}, s{sTMP}, s{sCNT}
        s_lshl_b32 s{sTMP}, s{sTMP}, 2
        s_add_u32 s{sTMP}, s{sTMP}, {FQ}
        """

    fh = f"""
        s_lshl_b32 s{sTMP}, s{sCNT}, 4
        s_add_u32 s{sTMP}, s{sTMP}, s{sG}
        s_lshl_b32 s{sTMP}, s{sTMP}, 2
        s_add_u32 s{sTMP}, s{sTMP}, {FH}
        """

    def out_h(k):
        base = (STH1 if k == 0 else STH2) - STQ
        p(f"v_add_u32 v2, {base}, v{hSR}")
        for t in range(2):
            for i in range(2):
                p(f"ds_read_b128 {vr(D+8*t+4*i,4)}, v2 offset:{8192*t+1024*i}")
        p(f"""
        s_mul_i32 s{sST}, s{sCNT}, 114688
        s_lshl_b32 s{sTMP}, s{sG}, 13
        s_add_u32 s{sST}, s{sST}, s{sTMP}
        s_add_u32 s{sST}, s{sST}, {HF + 4096*k}
        """)
        for q in range(4):
            for i in range(4):
                p(f"v_pk_max_i16 v{D+4*q+i}, v{D+4*q+i}, 0")
            p(f"buffer_store_dwordx4 {vr(D+4*q,4)}, v{hL16}, s[{sWS}:{sWS+3}], s{sST} offen offset:{1024*q} sc1")

    NI = int(E("NI", "9"))
    bar(0)
    KSPLIT = 4
    for k in range(KSPLIT):
        colsum_a(k, lambda: issue(NI, 6))
        bar(k + 1)
    assert dq[0][0] == 7
    p(f"""
    s_cmp_ge_u32 s{sG}, 14
    s_cbranch_scc1 K_HTR
    """)
    p.flush()
    tr_h, hist_h = p.tr.copy(), list(p.out[-60:])
    for k in range(KSPLIT, 7):
        colsum_a(k, lambda: issue(10, k + 4))
        if k < 6:
            bar(k + 1)
    bar(7, 8)
    issue(10)
    assert not dq
    out_setup()
    stamp(p, 1, "C")
    bar()
    stamp(p, 2, "C")
    out_qkv("")
    stamp(p, 3, "C")
    colsum_b(0)
    bar(9, 10)
    stamp(p, 4, "C")
    hflag(fq)
    stamp(p, 5, "C")
    colsum_b(1)
    bar()
    out_h(0)
    stamp(p, 6, "C")
    bar()
    out_h(1)
    hflag(fh)
    p("s_branch K_GEMM")
    p.flush()

    sU, sSL = sOA, sT

    def relayout_load(src_off_reg):
        for d in range(14):
            if d % 4 == 0:
                p(f"s_add_u32 m0, s{sSL}, {1024*d}")
                p(f"s_add_u32 s{sTMP}, s{src_off_reg}, {1024*d}")
            p(f"buffer_load_dwordx4 v{hL16}, s[{sW}:{sW+3}], s{sTMP} offen offset:{1024*(d%4)} lds", tag="rl")

    def relayout_store(dst_reg, stride, zero_reg=None):
        p(f"""
        v_lshrrev_b32 v2, 5, v0
        v_lshlrev_b32 v3, 2, v2
        v_bfe_u32 v2, v0, 2, 2
        v_add_u32 v3, v3, v2
        v_mul_u32_u24 v3, 896, v3
        v_bfe_u32 v2, v0, 4, 1
        v_lshl_add_u32 v3, v2, 5, v3
        v_and_b32 v2, 3, v0
        v_lshl_add_u32 v3, v2, 3, v3
        v_add_u32 v3, s{sSL}, v3
        v_mov_b32 v2, {EPA}
        s_waitcnt vmcnt(0)
        ds_read_b32 v4, v2
        """)
        for t in range(14):
            p(f"ds_read_b64_tr_b16 {vr(F+4*t,2)}, v3 offset:{64*t}")
            p(f"ds_read_b64_tr_b16 {vr(F+4*t+2,2)}, v3 offset:{64*t+8*896}")
        if zero_reg is not None:
            p("s_waitcnt lgkmcnt(0)")
            p("s_mov_b32 exec_lo, 0")
            p(f"s_mov_b32 exec_hi, s{zero_reg}")
            for t in range(14):
                p(f"v_mov_b32 v{F+4*t+2}, 0")
                p(f"v_mov_b32 v{F+4*t+3}, 0")
            p("s_mov_b64 exec, -1")
        for t in range(14):
            p(f"buffer_store_dwordx4 {vr(F+4*t,4)}, v{hL16}, s[{sWS}:{sWS+3}], s{dst_reg} offen sc1")
            p(f"s_add_u32 s{dst_reg}, s{dst_reg}, {stride}")
        p(f"""
        s_lshl_b32 s{sTMP}, s{sU}, 2
        s_add_u32 s{sTMP}, s{sTMP}, {FW}
        s_mov_b64 exec, 1
        s_waitcnt vmcnt(0) lgkmcnt(0)
        buffer_store_dword v4, v{hL16}, s[{sWS}:{sWS+3}], s{sTMP} offen sc1
        s_mov_b64 exec, -1
        """)

    p.tr = tr_h
    p("K_HTR:")
    for k in range(KSPLIT, 4):
        colsum_a(k)
        bar(k + 1)
    srd(p, sW, 50, W2B)
    p(f"""
    s_sub_u32 s{sU}, s{sG}, 14
    s_lshl_b32 s{sU}, s{sU}, 6
    s_add_u32 s{sU}, s{sU}, s{sMT}
    s_add_u32 s{sU}, s{sU}, s{sWAVE}
    s_mul_i32 s{sSL}, s{sWAVE}, 14336
    s_add_u32 s{sSL}, s{sSL}, {2*SLOT}
    s_mul_i32 s{sTMP3}, s{sU}, {16*896}
    """)
    relayout_load(sTMP3)
    for k in range(max(4, KSPLIT), 7):
        colsum_a(k)
        if k < 6:
            bar(k + 1)
    bar()
    out_setup()
    bar()
    out_qkv("s")
    p("s_barrier")
    hflag(fq)
    hflag(fh)
    p(f"""
    s_cmp_ge_u32 s{sU}, 112
    s_cbranch_scc1 K_GEMM
    s_lshl_b32 s{sTMP3}, s{sU}, 10
    s_add_u32 s{sTMP3}, s{sTMP3}, {W2F}
    """)
    seq2 = add_waits(p.cur, p.tr)
    p.out += pad_hazards(seq2, hist_h)
    p.cur = []
    relayout_store(sTMP3, 114688)
    p("s_branch K_GEMM")
    p.flush()
    p.tr = Tracker()
    p(f"""
    K_HWO:
    s_cmp_lg_u32 s{sG}, 7
    s_cbranch_scc1 K_END
    s_cmp_ge_u32 s{sWAVE}, 2
    s_cbranch_scc1 K_END
    """)
    srd(p, sW, 44, WOB)
    p(f"""
    s_lshr_b32 s{sU}, s{sMT}, 1
    s_add_u32 s{sU}, s{sU}, s{sWAVE}
    s_lshr_b32 s{sTMP3}, s{sMT}, 2
    s_mul_i32 s{sTMP3}, s{sTMP3}, {28*896}
    s_mul_i32 s{sTMP}, s{sWAVE}, {16*896}
    s_add_u32 s{sTMP3}, s{sTMP3}, s{sTMP}
    s_mul_i32 s{sSL}, s{sWAVE}, 14336
    s_add_u32 s{sSL}, s{sSL}, {2*SLOT}
    """)
    relayout_load(sTMP3)
    p(f"""
    s_lshl_b32 s{sTMP3}, s{sU}, 10
    s_add_u32 s{sTMP3}, s{sTMP3}, {WOF}
    s_add_u32 s{sU}, s{sU}, 128
    s_sub_u32 s{sTMP2}, 0, s{sWAVE}
    """)
    relayout_store(sTMP3, 32768, sTMP2)
    p("s_endpgm")
    p.flush()

    p.tr = Tracker()
    sOUT = sW2
    sA0, sA1, sB0, sB1, sNT, sMP, sNP = sXO, sOA, sOB, sT, sTY, sHEAD, sQB
    AC0 = 8
    Gv = [24, 40, 56, 72, 88, 104]
    Ga = [112]
    WO = 48
    XR = 120
    NBUF = int(E('NBUF', '2'))

    def Gbuf(b, off, n):
        return vr(Gv[b] + off, n) if b < 6 else ar(Ga[b - 6] + off, n)

    def Gacc(u):
        return vr(AC0, 16) if u == 0 else ar(16 * (u - 1), 16)

    vXO, vA1, vA2, vA3, vRA, vF = 2, 3, 4, 5, 6, 7
    p(f"""
    K_GEMM:
    s_setprio {E("GP", "0")}
    s_lshr_b32 s{sNP}, s{sI}, 2
    s_cmp_ge_u32 s{sNP}, 7
    s_cbranch_scc1 K_HWO
    """)
    stamp(p, 1)
    p(f"""
    v_mov_b32 v2, {EPA}
    ds_read_b32 v3, v2
    s_lshl_b32 s{sMP}, s{sJ}, 2
    s_and_b32 s{sTMP}, s{sI}, 3
    s_add_u32 s{sMP}, s{sMP}, s{sTMP}
    s_lshr_b32 s{sTMP}, s{sWAVE}, 1
    s_lshl_b32 s{sMT}, s{sMP}, 1
    s_add_u32 s{sMT}, s{sMT}, s{sTMP}
    s_and_b32 s{sTMP}, s{sWAVE}, 1
    s_lshl_b32 s{sNT}, s{sNP}, 1
    s_add_u32 s{sNT}, s{sNT}, s{sTMP}
    s_mul_i32 s{sTMP}, s{sWAVE}, {28*1024}
    s_mul_i32 s{sA0}, s{sNT}, 114688
    s_xor_b32 s{sTMP2}, s{sNT}, 1
    s_mul_i32 s{sA1}, s{sTMP2}, 114688
    s_mul_i32 s{sB0}, s{sMT}, 114688
    s_xor_b32 s{sTMP2}, s{sMT}, 1
    s_mul_i32 s{sB1}, s{sTMP2}, 114688
    s_add_u32 s{sTMP2}, s{sTMP}, {W2F}
    s_add_u32 s{sA0}, s{sA0}, s{sTMP2}
    s_add_u32 s{sA1}, s{sA1}, s{sTMP2}
    s_add_u32 s{sTMP2}, s{sTMP}, {HF}
    s_add_u32 s{sB0}, s{sB0}, s{sTMP2}
    s_add_u32 s{sB1}, s{sB1}, s{sTMP2}
    v_readfirstlane_b32 s{sEP}, v3
    """)
    p(f"""
    v_and_b32 v{vF}, 31, v0
    v_mul_u32_u24 v{vF}, 896, v{vF}
    v_lshrrev_b32 v{vRA}, 5, v0
    v_lshl_add_u32 v{vA1}, v{vRA}, 3, v{vF}
    s_mul_i32 s{sTMP3}, s{sMT}, 28672
    s_lshl_b32 s{sTMP2}, s{sNT}, 6
    s_add_u32 s{sTMP3}, s{sTMP3}, s{sTMP2}
    """)
    for q in range(4):
        p(f"buffer_load_dwordx2 {vr(XR+2*q,2)}, v{vA1}, s[{sX}:{sX+3}], s{sTMP3} offen offset:{16*q}")
    p(f"v_lshl_add_u32 v{vXO}, v{vRA}, 4, v{vF}")
    for i in range(48):
        p(f"v_accvgpr_write_b32 a{i}, 0")
    vAs = [None, vA1, vA2, vA3]
    for u in range(1, 4):
        p(f"""
        s_xor_b32 s{sTMP2}, s{sWAVE}, {u}
        s_mul_i32 s{sTMP2}, s{sTMP2}, 3
        s_add_u32 s{sTMP2}, s{sTMP2}, {u-1+12}
        s_lshl_b32 s{sTMP2}, s{sTMP2}, 12
        v_add_u32 v{vAs[u]}, s{sTMP2}, v{hL16}
        """)
    p(f"""
    s_mul_i32 s{sTMP2}, s{sWAVE}, {3*4096}
    s_add_u32 s{sTMP2}, s{sTMP2}, {48*1024}
    v_add_u32 v{vRA}, s{sTMP2}, v{hL16}
    """)
    for i in range(8):
        p(f"v_lshlrev_b32 v{AC0+2*i}, 16, v{XR+i}")
        p(f"v_and_b32 v{AC0+2*i+1}, 0xffff0000, v{XR+i}")
    srd(p, sOUT, 52, XB)
    G0 = Gv[0]
    p(f"""
    v_mov_b32 v{G0}, {EPA+4}
    v_mov_b32 v{G0+1}, s{sEP}
    s_cmp_lg_u32 s{sWAVE}, 0
    s_cbranch_scc1 K_PL
    v_and_b32 v{vF}, 7, v0
    s_lshl_b32 s{sTMP}, s{sMP}, 7
    s_add_u32 s{sTMP}, s{sTMP}, {FH}
    v_lshl_add_u32 v{vF}, v{vF}, 4, s{sTMP}
    s_mov_b64 exec, 0xfffffff
    v_add_u32 v{vF}, {FW}, v{hL16}
    s_mov_b64 exec, -1
    s_mov_b32 s{sCNT}, {POLL_MAX}
    """)
    p.flush()
    p(f"""
    K_PH:
    buffer_load_dwordx4 {vr(XR,4)}, v{vF}, s[{sWS}:{sWS+3}], 0 offen sc1
    s_sub_u32 s{sCNT}, s{sCNT}, 1
    s_cmp_eq_u32 s{sCNT}, 0
    s_waitcnt vmcnt(0)
    s_cbranch_scc1 K_PHX
    v_xor_b32 v{XR}, s{sEP}, v{XR}
    v_xor_b32 v{XR+1}, s{sEP}, v{XR+1}
    v_xor_b32 v{XR+2}, s{sEP}, v{XR+2}
    v_xor_b32 v{XR+3}, s{sEP}, v{XR+3}
    v_or3_b32 v{XR}, v{XR}, v{XR+1}, v{XR+2}
    v_or_b32 v{XR}, v{XR}, v{XR+3}
    v_cmp_ne_u32 vcc, 0, v{XR}
    s_nop 1
    s_cbranch_vccz K_PHX
    s_sleep {E("SLH", "8")}
    s_branch K_PH
    K_PHX:
    ds_write_b32 v{G0}, v{G0+1}
    s_branch K_PLX
    K_PL:
    s_mov_b32 s{sCNT}, {POLL_MAX*4}
    K_PL1:
    s_sleep {E('LSL', '4')}
    ds_read_b32 v{G0+2}, v{G0}
    s_sub_u32 s{sCNT}, s{sCNT}, 1
    s_cmp_eq_u32 s{sCNT}, 0
    s_waitcnt lgkmcnt(0)
    s_cbranch_scc1 K_PLX
    v_cmp_ne_u32 vcc, s{sEP}, v{G0+2}
    s_nop 1
    s_cbranch_vccnz K_PL1
    K_PLX:
    s_waitcnt lgkmcnt(0)
    """)
    p.flush()
    stamp(p, 2)
    spin(p, "att", sEP)
    so = [sA0, sA1, sB0, sB1]

    def gload(k):
        b = k % NBUF
        o = [I(f"buffer_load_dwordx4 {Gbuf(b,4*j,4)}, v{hL16}, s[{sWS}:{sWS+3}], s{so[j]} offen offset:{1024*(b%4)} sc1") for j in range(4)]
        if b == 3 or b == NBUF - 1:
            o += [I(f"s_add_u32 s{r}, s{r}, {1024 * (b % 4 + 1)}") for r in so]
        return o

    def gmm(b):
        return [I(f"{MF} {Gacc(u)}, {Gbuf(b,4*(u&1),4)}, {Gbuf(b,8+4*(u>>1),4)}, {Gacc(u)}") for u in (1, 2, 3, 0)]

    for k in range(NBUF - (1 if E("GX") == "il" else 0)):
        p.add(gload(k))
    p(f"s_mov_b32 s{sCNT}, {28 // NBUF - 1}")
    body = [I("K_GL:")]
    for b in range(NBUF):
        if E("GX") == "il":
            m, l = gmm(b), gload((b - 1) % NBUF)
            for i in range(4):
                body += [m[i], l[i]]
            body += l[4:]
        else:
            body += gmm(b) + gload(b)
        if E("GSL"):
            body.append(I(f"s_sleep {E('GSL')}"))
    body += [I(f"s_sub_u32 s{sCNT}, s{sCNT}, 1"), I(f"s_cmp_lg_u32 s{sCNT}, 0"), I("s_cbranch_scc1 K_GL")]
    p.loop(body)
    if E("GX") == "il":
        p.add(gload(NBUF - 1))
    p(f"""
    s_lshl_b32 s{sTMP}, s{sWAVE}, 13
    s_lshl_b32 s{sA0}, s{sNT}, 15
    s_add_u32 s{sA0}, s{sA0}, s{sTMP}
    s_add_u32 s{sA0}, s{sA0}, {WOF}
    s_xor_b32 s{sA1}, s{sA0}, 0x8000
    s_lshl_b32 s{sB0}, s{sMT}, 15
    s_add_u32 s{sB0}, s{sB0}, s{sTMP}
    s_add_u32 s{sB0}, s{sB0}, {OF}
    s_xor_b32 s{sB1}, s{sB0}, 0x8000
    """)
    p(f"""
    v_and_b32 v{vF}, 7, v0
    s_lshl_b32 s{sTMP}, s{sWAVE}, 5
    s_add_u32 s{sTMP}, s{sTMP}, {FW + 128*4}
    v_lshl_add_u32 v{vF}, v{vF}, 2, s{sTMP}
    buffer_load_dword v{XR}, v{vF}, s[{sWS}:{sWS+3}], 0 offen sc1
    """)
    for b in range(NBUF):
        p.add(gmm(b))
    p(f"""
    v_cmp_ne_u32 vcc, s{sEP}, v{XR}
    s_nop 1
    s_cbranch_vccz K_PWOX
    """)
    poll(p, "K_PWO", XR, vF, sWS, "0", sEP, sCNT, 24)
    for s in range(8):
        if s == 4:
            for r in (sA0, sA1):
                p(f"s_add_u32 s{r}, s{r}, 4096")
        for j in range(2):
            p(f"buffer_load_dwordx4 {ar(WO+8*s+4*j,4)}, v{hL16}, s[{sWS}:{sWS+3}], s{so[j]} offen offset:{1024*(s%4)} sc1")
    stamp(p, 3)
    p(f"""
    s_cmp_lg_u32 s{sWAVE}, 0
    s_cbranch_scc1 K_POX
    v_and_b32 v{vF}, 3, v0
    v_lshlrev_b32 v{vF}, 2, v{vF}
    v_add_u32 v{vF}, {EPA+16}, v{vF}
    s_mov_b32 s{sCNT}, {POLL_MAX*4}
    """)
    p.flush()
    keep = p.tr.copy()
    p(f"""
    K_PA:
    s_sleep {E('LSL', '4')}
    ds_read_b32 v{XR}, v{vF}
    s_sub_u32 s{sCNT}, s{sCNT}, 1
    s_cmp_eq_u32 s{sCNT}, 0
    s_waitcnt lgkmcnt(0)
    s_cbranch_scc1 K_PAX
    v_cmp_ne_u32 vcc, s{sEP}, v{XR}
    s_nop 1
    s_cbranch_vccnz K_PA
    K_PAX:
    v_and_b32 v{vF}, 31, v0
    v_lshlrev_b32 v{vF}, 2, v{vF}
    s_lshl_b32 s{sTMP}, s{sMP}, 7
    s_add_u32 s{sTMP}, s{sTMP}, {FO}
    """)
    stamp(p, 4)
    p(f"s_sleep {E('SL0', '24')}")
    poll(p, "K_PO", XR, vF, sWS, f"s{sTMP}", sEP, sCNT, E("SL1", "6"))
    p.tr = keep
    p("s_barrier")
    stamp(p, 5)
    OFv = Gv[0]
    for s in range(8):
        if s == 4:
            for r in (sB0, sB1):
                p(f"s_add_u32 s{r}, s{r}, 4096")
        for j in range(2):
            p(f"buffer_load_dwordx4 {vr(OFv+8*s+4*j,4)}, v{hL16}, s[{sWS}:{sWS+3}], s{so[2+j]} offen offset:{1024*(s%4)} sc1")
    for s in range(8):
        for u in (1, 2, 3, 0):
            p(f"{MF} {Gacc(u)}, {ar(WO+8*s+4*(u&1),4)}, {vr(OFv+8*s+4*(u>>1),4)}, {Gacc(u)}")
    stamp(p, 6)
    for u in range(1, 4):
        for q in range(4):
            p(f"ds_write_b128 v{vAs[u]}, {ar(16*(u-1)+4*q,4)} offset:{1024*q}")
    p("s_waitcnt lgkmcnt(0)")
    p("s_barrier")
    R = Gv[0]
    for i in range(3):
        for q in range(4):
            p(f"ds_read_b128 {vr(R+16*i+4*q,4)}, v{vRA} offset:{4096*i+1024*q}")
    for i in range(3):
        for r in range(0, 16, 2):
            p(f"v_pk_add_f32 {vr(AC0+r,2)}, {vr(AC0+r,2)}, {vr(R+16*i+r,2)}")
    PK = XR
    for i in range(8):
        p(f"v_cvt_pk_bf16_f32 v{PK+i}, v{AC0+2*i}, v{AC0+2*i+1}")
    for qq in range(2):
        p(f"v_permlane32_swap_b32 v{PK+4*qq}, v{PK+4*qq+2}")
        p(f"v_permlane32_swap_b32 v{PK+4*qq+1}, v{PK+4*qq+3}")
    for qq in range(2):
        p(f"buffer_store_dwordx4 {vr(PK+4*qq,4)}, v{vXO}, s[{sOUT}:{sOUT+3}], s{sTMP3} offen offset:{32*qq}")
    spin(p, "end", sEP)
    stamp_out(p, 7, sWS, sWAVE, 2, 3, wave_add=4)
    p("K_END:")
    p("s_endpgm")
    return p.text()


HEADER = f"""; Kernarg layout for this problem (72 bytes, ptrs only, base s[0:1]):
; @launch grid=(256,1,1) block=(512,1,1) lds={LDS_BYTES}
.amdgcn_target "amdgcn-amd-amdhsa--gfx950"
.text
.globl {NAME}_kernel
.p2align 8
.type {NAME}_kernel,@function
{NAME}_kernel:
"""

KD = f"""
.section .rodata,"a"
.p2align 6
.amdhsa_kernel {NAME}_kernel
  .amdhsa_next_free_vgpr 256
  .amdhsa_next_free_sgpr {{ns}}
  .amdhsa_accum_offset 128
  .amdhsa_group_segment_fixed_size 0
  .amdhsa_kernarg_size 72
  .amdhsa_user_sgpr_count 2
  .amdhsa_user_sgpr_kernarg_segment_ptr 1
  .amdhsa_system_sgpr_workgroup_id_x 1
.end_amdhsa_kernel
"""


def main():
    global STAMP
    STAMP = len(sys.argv) > 2 and sys.argv[2] == "stamp"
    txt = HEADER + gen() + KD.format(ns=100 if STAMP else 64)
    out = sys.argv[1] if len(sys.argv) > 1 else f"cdna_kernels/{NAME}.s"
    open(out, "w").write(txt)
    print("wrote", out, len(txt), "bytes")


if __name__ == "__main__":
    main()
```

```python
import sys, struct, os
from asmgen import *

NAME = "parallel_sum__mha_block__dense_activation_relu__prompt"
E = os.environ.get

QF = 0
KVF = 2 << 20
HF = 6 << 20
W2F = 13 << 20
WOF = 15 << 20
OF = 16 << 20
FLG = 18 << 20
FQ = FLG
FH = FLG + 4096
FW = FLG + 8192
FO = FLG + 12288
WS_BYTES = 19 << 20

XB = 2048 * 448 * 2
WQKVB = 448 * 1344 * 2
WOB = 448 * 448 * 2
W1B = 448 * 1792 * 2
W2B = 1792 * 448 * 2

MF = "v_mfma_f32_32x32x16_bf16"
M16 = "v_mfma_f32_16x16x32_bf16"

SLOT = 28672
WAB = 64 * 192
CFA = 5 * SLOT
VSC = CFA + 7168
EPA = VSC + 4096
STQ, STH1, STH2 = 1 * SLOT, 2 * SLOT, 3 * SLOT
LDS_BYTES = EPA + 64
REF_OFF = 90.0
L_LIMIT = 2.0 ** 110
POLL_MAX = 0x40000


def f32bits(x):
    return struct.unpack("<I", struct.pack("<f", x))[0]


def vr(b, n):
    return f"v[{b}:{b+n-1}]"


def ar(b, n):
    return f"v[{128+b}:{128+b+n-1}]"


def srd(p, d, base, nbytes):
    p(f"""
    s_mov_b32 s{d}, s{base}
    s_and_b32 s{d+1}, s{base+1}, 0xffff
    s_mov_b32 s{d+2}, {nbytes}
    s_mov_b32 s{d+3}, 0x00020000
    """)


STAMP = False
STAMP_BASE = 32 << 20


def stamp(p, i, diag=None):
    if E("DIAG") and i > 0 and i < 7 and diag != E("DIAG"):
        return
    if not E("DIAG") and diag:
        return
    if STAMP:
        p(f"s_memrealtime s[{64+4*i}:{65+4*i}]")
        p(f"s_memtime s[{66+4*i}:{67+4*i}]")
        p("s_waitcnt lgkmcnt(0)")


def stamp_out(p, n, sWS, sWAVE, vtmp=1, vtmp2=2, wave_add=0):
    if not STAMP:
        return
    p("s_waitcnt vmcnt(0) lgkmcnt(0)")
    stamp(p, n)
    p(f"v_mov_b32 v{vtmp}, 0")
    for i in range(n + 1):
        p(f"v_writelane_b32 v{vtmp}, s{64+4*i}, {i}")
        p(f"v_writelane_b32 v{vtmp}, s{66+4*i}, {16+i}")
    p(f"""
    s_lshl_b32 s62, s2, 3
    s_add_u32 s62, s62, s{sWAVE}
    s_add_u32 s62, s62, {wave_add}
    s_lshl_b32 s62, s62, 8
    s_add_u32 s62, s62, {STAMP_BASE}
    v_lshlrev_b32 v{vtmp2}, 2, v0
    s_mov_b32 s{sWS+2}, {64 << 20}
    buffer_store_dword v{vtmp}, v{vtmp2}, s[{sWS}:{sWS+3}], s62 offen
    """)


def spin(p, where, sEP):
    if E("SPIN") != where:
        return
    uid = spin.n = getattr(spin, "n", 0) + 1
    p.flush()
    p(f"""
    SPB{uid}:
    s_sleep 1
    s_memrealtime s[60:61]
    s_waitcnt lgkmcnt(0)
    s_sub_u32 s60, s60, s{sEP}
    s_cmp_lt_u32 s60, {E("SPINX", "6000")}
    s_cbranch_scc1 SPB{uid}
    """)
    p.flush()


def poll(p, name, vdst, vaddr, sWS, soff, sEP, sCNT, sleep):
    p.flush()
    p(f"""
    s_mov_b32 s{sCNT}, {POLL_MAX}
    {name}:
    s_sleep {sleep}
    buffer_load_dword v{vdst}, v{vaddr}, s[{sWS}:{sWS+3}], {soff} offen sc1
    s_sub_u32 s{sCNT}, s{sCNT}, 1
    s_cmp_eq_u32 s{sCNT}, 0
    s_waitcnt vmcnt(0)
    s_cbranch_scc1 {name}X
    v_cmp_ne_u32 vcc, s{sEP}, v{vdst}
    s_nop 1
    s_cbranch_vccnz {name}
    {name}X:
    """)
    p.flush()


def gen():
    p = Prog()
    sX, sW, sW2, sWS, sKVR = 4, 8, 12, 16, 56
    (sWAVE, sMT, sG, sTMP, sTMP2, sTMP3, sST, sTY, sM0, sXO, sT, sONE, sOA, sOB, sEP, sCNT,
     sJ, sI, sHEAD, sQB) = range(20, 40)
    sKV, sKV2, sKV0 = sXO, sOA, sOB
    sVS, sVT = sM0, sONE
    p(f"""
    s_cmp_ge_u32 s2, 256
    s_cbranch_scc1 K_END
    s_load_dwordx4 s[40:43], s[0:1], 0
    s_load_dwordx2 s[44:45], s[0:1], 16
    s_load_dwordx8 s[48:55], s[0:1], 32
    s_load_dwordx2 s[46:47], s[0:1], 64
    v_lshrrev_b32 v1, 6, v0
    v_and_b32 v0, 63, v0
    v_readfirstlane_b32 s{sWAVE}, v1
    s_and_b32 s{sJ}, s2, 7
    s_lshr_b32 s{sI}, s2, 3
    s_lshr_b32 s{sMT}, s{sJ}, 1
    s_lshl_b32 s{sMT}, s{sMT}, 2
    s_and_b32 s{sTMP}, s{sI}, 3
    s_add_u32 s{sMT}, s{sMT}, s{sTMP}
    s_lshl_b32 s{sMT}, s{sMT}, 2
    s_and_b32 s{sG}, s{sJ}, 1
    s_lshl_b32 s{sG}, s{sG}, 3
    s_lshr_b32 s{sTMP}, s{sI}, 2
    s_add_u32 s{sG}, s{sG}, s{sTMP}
    s_cmp_ge_u32 s{sWAVE}, 4
    s_waitcnt lgkmcnt(0)
    s_cbranch_scc1 K_HELPER
    """)
    stamp(p, 0)
    srd(p, sWS, 46, WS_BYTES)

    def tr_lane(dstA, dstB0, dstB1, t0, t1):
        p(f"""
        v_lshrrev_b32 v{t0}, 5, v0
        v_lshlrev_b32 v{t0}, 3, v{t0}
        v_bfe_u32 v{t1}, v0, 2, 2
        v_add_u32 v{t0}, v{t0}, v{t1}
        v_bfe_u32 v{t1}, v0, 4, 1
        v_lshlrev_b32 v{dstB0}, 5, v{t1}
        v_and_b32 v{t1}, 3, v0
        v_lshl_add_u32 v{dstB0}, v{t1}, 3, v{dstB0}
        v_mul_u32_u24 v{dstA}, 192, v{t0}
        v_add_u32 v{dstA}, v{dstA}, v{dstB0}
        v_lshl_add_u32 v{dstB0}, v{t0}, 7, v{dstB0}
        v_bfe_u32 v{t1}, v0, 3, 1
        v_lshl_add_u32 v{dstB0}, v{t1}, 6, v{dstB0}
        v_xor_b32 v{dstB1}, 64, v{dstB0}
        """)

    X = 0
    CFt, XM = 112, 116
    accs = [16, 32, 48, 64, 80, 16, 32]
    NW = int(E('NW', '8'))
    WF = 96
    GR, SX, ONEc, vXA, vLA, vXC, vSW, vSR = 64, 80, 84, 88, 92, 93, 94, 95
    ST = 72
    vL16, vLB0, vLB1, vC0, vC1, vCF, vA, vRINV, vVW, vVR, vMA, vOA, vT0, vT1, vPL = range(1, 16)
    p(f"s_add_u32 s{sMT}, s{sMT}, s{sWAVE}")
    tr_lane(vLA, vLB0, vLB1, vA, vRINV)
    p(f"""
    v_lshrrev_b32 v{vT1}, 5, v0
    v_and_b32 v{vT0}, 31, v0
    v_bfe_u32 v{vA}, v0, 1, 3
    v_xor_b32 v{vA}, v{vT1}, v{vA}
    s_lshl_b32 s{sTMP}, s{sWAVE}, 12
    s_add_u32 s{sTMP}, s{sTMP}, {WAB}
    v_lshl_add_u32 v{vRINV}, v{vT0}, 7, s{sTMP}
    v_lshlrev_b32 v{vL16}, 4, v0
    """)
    for sp in range(4):
        p(f"v_xor_b32 v{vXA+sp}, {2*sp}, v{vA}")
        p(f"v_lshl_add_u32 v{vXA+sp}, v{vXA+sp}, 4, v{vRINV}")
    p(f"""
    v_and_b32 v{vA}, 15, v0
    v_bfe_u32 v{vRINV}, v0, 4, 1
    v_mov_b32 v{vCF}, 0x3f803f80
    v_cmp_eq_u32 vcc, v{vA}, v{vRINV}
    v_cndmask_b32 v{ONEc}, 0, v{vCF}, vcc
    v_mov_b32 v{ONEc+1}, v{ONEc}
    v_mov_b32 v{ONEc+2}, v{ONEc}
    v_mov_b32 v{ONEc+3}, v{ONEc}
    v_add_u32 v{vCF}, {CFA}, v{vL16}
    v_mov_b64 {vr(GR,2)}, 0
    v_mov_b64 {vr(GR+2,2)}, 0
    v_mov_b64 {vr(GR+4,2)}, 0
    v_mov_b64 {vr(GR+6,2)}, 0
    s_mov_b32 s{sONE}, 0x3f803f80
    s_mul_i32 s{sT}, s{sG}, 3
    s_lshl_b32 s{sTMP}, s{sWAVE}, 10
    s_add_u32 s{sTMP}, s{sTMP}, {VSC}
    v_lshl_add_u32 v{vSW}, v{vT0}, 4, s{sTMP}
    v_and_b32 v{vA}, 3, v0
    v_lshl_add_u32 v{vSR}, v{vA}, 2, v{vSW}
    s_lshl_b32 s{sTMP}, s{sWAVE}, 11
    s_add_u32 s{sTMP}, s{sTMP}, {STQ}
    v_add_u32 v{vVW}, s{sTMP}, v{vL16}
    s_lshl_b32 s{sHEAD}, s{sJ}, 1
    s_and_b32 s{sTMP}, s{sI}, 1
    s_add_u32 s{sHEAD}, s{sHEAD}, s{sTMP}
    s_lshr_b32 s{sQB}, s{sI}, 1
    """)
    p(f"""
    s_add_u32 s{sTMP}, s{sHEAD}, 16
    s_mul_i32 s{sTMP}, s{sTMP}, 43
    s_lshr_b32 s{sTMP}, s{sTMP}, 7
    s_lshl_b32 s{sTMP}, s{sTMP}, 8
    v_mov_b32 v{vPL}, s{sTMP}
    s_lshl_b32 s{sTMP2}, s{sWAVE}, 6
    s_add_u32 s{sTMP}, s{sTMP}, s{sTMP2}
    v_and_b32 v{vA}, 15, v0
    s_mov_b64 exec, 0xffff
    v_lshl_add_u32 v{vPL}, v{vA}, 2, s{sTMP}
    s_add_u32 s{sTMP}, s{sHEAD}, 32
    s_mul_i32 s{sTMP}, s{sTMP}, 43
    s_lshr_b32 s{sTMP}, s{sTMP}, 7
    s_lshl_b32 s{sTMP}, s{sTMP}, 8
    s_add_u32 s{sTMP}, s{sTMP}, s{sTMP2}
    s_mov_b32 exec_lo, 0xffff0000
    v_lshl_add_u32 v{vPL}, v{vA}, 2, s{sTMP}
    s_mul_i32 s{sTMP}, s{sHEAD}, 43
    s_lshr_b32 s{sTMP}, s{sTMP}, 7
    s_lshl_b32 s{sTMP}, s{sTMP}, 8
    s_lshl_b32 s{sTMP2}, s{sQB}, 4
    s_add_u32 s{sTMP}, s{sTMP}, s{sTMP2}
    s_mov_b32 exec_lo, 0
    s_mov_b32 exec_hi, 15
    v_lshl_add_u32 v{vPL}, v{vA}, 2, s{sTMP}
    s_mov_b64 exec, -1
    v_add_u32 v{vPL}, {FQ}, v{vPL}
    """)

    seq = []
    for st in range(7):
        for sp in range(4):
            for j in range(3):
                seq.append((st, 4 * st + sp, j))
    for ph in range(2):
        for hs in range(2):
            for sp in range(14):
                for j in range(2):
                    seq.append((7 + 2 * ph + hs, 14 * hs + sp, 3 + 2 * ph + j))
    NA = 84

    def rdw(n):
        st, s, j = seq[n]
        b = WF + 4 * (n % NW)
        if st < 7:
            va, off, d = vC0, (s & 3) * 16 * 192 + 64 * j, 4 * 192
        else:
            va, off, d = (vC0 if (j - 3) % 2 == 0 else vC1), (s % 14) * 16 * 128, 4 * 128
        return [I(f"ds_read_b64_tr_b16 {vr(b,2)}, v{va} offset:{off}"),
                I(f"ds_read_b64_tr_b16 {vr(b+2,2)}, v{va} offset:{off+d}")]

    def mfma(n):
        st, s, j = seq[n]
        acc = vr(accs[j], 16)
        return I(f"{MF} {acc}, {vr(WF+4*(n%NW),4)}, {ar(X+4*s,4)}, {'0' if s == 0 else acc}")

    def enter(st):
        base = (st % 5) * SLOT
        o = [I("s_waitcnt lgkmcnt(0)"), I("s_barrier")] if st <= 7 else []
        if st < 7:
            o.append(I(f"v_add_u32 v{vC0}, {base}, v{vLA}"))
            for sp in range(4):
                o.append(I(f"v_add_u32 v{vXC}, {base}, v{vXA+sp}"))
                o.append(I(f"ds_read_b128 {ar(X+4*(4*st+sp),4)}, v{vXC}"))
        elif st < 11:
            o.append(I(f"v_add_u32 v{vC0}, {base}, v{vLB0}"))
            o.append(I(f"v_add_u32 v{vC1}, {base}, v{vLB1}"))
        return o

    def stats(st):
        mm, va = [], []
        for sp in range(4):
            s_ = 4 * st + sp
            mm.append(I(f"{M16} {vr(SX,4)}, {vr(ONEc,4)}, {ar(X+4*s_,4)}, {'0' if s_ == 0 else vr(SX,4)}"))
            for d in range(4):
                x, e = 128 + X + 4 * s_ + d, GR + 4 + 2 * (d & 1)
                va += [I(f"v_lshlrev_b32 v{e}, 16, v{x}"),
                       I(f"v_and_b32 v{e+1}, 0xffff0000, v{x}"),
                       I(f"v_fmac_f32 v{GR+2*(d&1)}, v{e}, v{e}"),
                       I(f"v_fmac_f32 v{GR+2*(d&1)+1}, v{e+1}, v{e+1}")]
        return mm, va

    AH = NW - 1

    def stream(n0, n1, fill, rs, limit):
        out = []
        q = rs.setdefault("q", [])
        RL = int(E("RL", "4"))

        def refill(n):
            while rs["next"] <= min(n + AH, limit - 1):
                m = rs["next"]
                if seq[m][0] != rs["stage"]:
                    en = enter(seq[m][0])
                    if en[0].kind == "valu":
                        q.extend(("rd", m, [x]) for x in en)
                    else:
                        q.append(("bar", m, en))
                    rs["stage"] = seq[m][0]
                for x in rdw(m):
                    q.append(("rd", m, [x]))
                rs["next"] = m + 1

        def drain(n, budget):
            rs["slot"] = rs.get("slot", 0) + 1
            while q:
                kind, m, ins = q[0]
                must = m <= n + 2
                if kind == "bar":
                    if rs["slot"] < rs["last_at"] + 2 and not must:
                        break
                    q.pop(0)
                    k = [i for i, x in enumerate(ins) if x.op == "s_barrier"][0] + 1
                    while k < len(ins) and ins[k].kind != "valu":
                        k += 1
                    out.extend(ins[:k])
                    rest = ins[k:]
                    q[:0] = [("rd", m, [x]) for x in rest]
                    budget -= 1
                    continue
                if budget <= 0 and not must:
                    break
                q.pop(0)
                out.extend(ins)
                if ins[0].kind == "ds":
                    budget -= 2 if "b128" in ins[0].op else 1
                    rs["last_at"] = rs["slot"]

        for n in range(n0, n1):
            out.append(mfma(n))
            refill(n)
            drain(n, RL)
            if fill and (n - n0) in fill:
                for x in fill[n - n0]:
                    out.append(x)
                    if x.kind == "mfma":
                        drain(n, RL if x.passes == 8 else 1)
        return out

    rs = {"next": 0, "stage": 0, "last_at": -9}
    p.add(enter(0))
    stamp(p, 1)
    for m in range(AH):
        p.add(rdw(m))
    rs["next"] = AH
    for st in range(7):
        if st == 4:
            p(f"v_mov_b32 v{vT0}, 0")
            p(f"global_load_dword v{vT1}, v{vT0}, s[54:55] sc0 sc1")
        n = 12 if st < 6 else 9
        dots = []
        for r in range(16):
            x = 128 + X + 16 * st + r
            dots.append(I(f"v_dot2c_f32_bf16 v{GR+(r&3)}, s{sONE}, v{x}"))
            dots.append(I(f"v_dot2c_f32_bf16 v{GR+4+(r&3)}, v{x}, v{x}"))
        p.add(stream(12 * st, 12 * st + n, {n - 1: dots}, rs, NA))
    T = ST
    fin = [I(x.strip()) for x in f"""
    v_add_f32 v{GR}, v{GR}, v{GR+1}
    v_add_f32 v{GR+4}, v{GR+4}, v{GR+5}
    v_add_f32 v{GR+2}, v{GR+2}, v{GR+3}
    v_add_f32 v{GR+6}, v{GR+6}, v{GR+7}
    v_add_f32 v{T}, v{GR}, v{GR+2}
    v_add_f32 v{T+4}, v{GR+4}, v{GR+6}
    v_mov_b32 v{T+1}, v{T}
    v_mov_b32 v{T+5}, v{T+4}
    v_permlane32_swap_b32 v{T}, v{T+1}
    v_permlane32_swap_b32 v{T+4}, v{T+5}
    v_add_f32 v{T}, v{T}, v{T+1}
    v_add_f32 v{T+4}, v{T+4}, v{T+5}
    v_mul_f32 v{T}, {f32bits(1.0/448.0):#x}, v{T}
    v_mul_f32 v{T+4}, {f32bits(1.0/448.0):#x}, v{T+4}
    v_fma_f32 v{T+4}, -v{T}, v{T}, v{T+4}
    v_cvt_pk_bf16_f32 v{T+1}, -v{T}, -v{T}
    v_max_f32 v{T+4}, 0, v{T+4}
    v_and_b32 v{T+2}, 0xffff, v{T+1}
    v_cvt_pk_bf16_f32 v{T+4}, v{T+4}, v{T+4}
    v_mov_b32 v{128+(XM)}, v{T+1}
    v_and_b32 v{T+4}, 0xffff0000, v{T+4}
    v_mov_b32 v{128+(XM+1)}, v{T+2}
    v_add_f32 v{T+4}, {f32bits(1e-5):#x}, v{T+4}
    v_mov_b32 v{128+(XM+2)}, v{T+1}
    v_cvt_pk_bf16_f32 v{T+4}, v{T+4}, v{T+4}
    v_mov_b32 v{128+(XM+3)}, v{T+2}
    v_and_b32 v{T+4}, 0xffff0000, v{T+4}
    v_sqrt_f32 v{T+4}, v{T+4}
    v_mov_b32 v{T}, {EPA}
    v_cvt_pk_bf16_f32 v{T+4}, v{T+4}, v{T+4}
    v_and_b32 v{T+4}, 0xffff0000, v{T+4}
    v_rcp_f32 v{vRINV}, v{T+4}
    v_readfirstlane_b32 s{sEP}, v{vT1}
    """.strip().split("\n")]
    p.add(fin)
    p(f"""
    s_cmp_lg_u32 s{sEP}, 0
    s_cbranch_scc1 K_GEX
    """)
    p.add(opt([f"s_mov_b32 s{sCNT}, {POLL_MAX}",
               "K_GE:",
               f"global_load_dword v{vT1}, v{vT0}, s[54:55] sc0 sc1",
               f"s_sub_u32 s{sCNT}, s{sCNT}, 1",
               f"s_cmp_eq_u32 s{sCNT}, 0",
               "s_waitcnt vmcnt(0)",
               "s_cbranch_scc1 K_GEX",
               f"v_readfirstlane_b32 s{sEP}, v{vT1}",
               "s_sleep 4",
               f"s_cmp_eq_u32 s{sEP}, 0",
               "s_cbranch_scc1 K_GE"]))
    p(f"""
    K_GEX:
    ds_write_b32 v{T}, v{vT1}
    """)
    spin(p, "a", sEP)
    p(f"""
    s_cmp_ge_u32 s{sG}, 14
    s_cbranch_scc1 K_SHORT
    """)
    p.flush()
    tr_s, rs_s, hist_s = p.tr.copy(), dict(rs, q=list(rs["q"])), list(p.out[-60:])
    p.add(stream(NA - 3, NA, None, rs, len(seq)))
    stamp(p, 2)
    stamp(p, 1, "B")
    c = (28 ** -0.5) * 1.4426950408889634

    def epi(j, packed=False):
        qkv = j < 3
        acc = accs[j]
        cf = [CFt, 120, 124][j % 3]
        g0 = [I(f"ds_read_b128 {ar(cf,4)}, v{vCF} offset:{1024*j}")]
        g1 = [I(f"{MF} {vr(acc,16)}, {ar(cf,4)}, {ar(XM,4)}, {vr(acc,16)}")]
        g2 = []
        sc = vRINV
        if qkv:
            sc = vA
            g2 += [I(x) for x in [
                f"s_cmp_lt_u32 s{sT}, {16-j}",
                f"s_cselect_b32 s{sTMP}, {f32bits(c):#x}, 1.0",
                f"v_mul_f32 v{vA}, s{sTMP}, v{vRINV}"]]
        off = 8192 * j if qkv else (STH1 - STQ if j < 5 else STH2 - STQ) + 8192 * ((j - 3) & 1)
        for i in range(8):
            if packed:
                e2 = sc & ~1
                sel = "op_sel_hi:[1,0]" if sc == e2 else "op_sel:[0,1]"
                g2.append(I(f"v_pk_mul_f32 {vr(acc+2*i,2)}, {vr(acc+2*i,2)}, {vr(e2,2)} {sel}"))
            else:
                g2.append(I(f"v_mul_f32 v{acc+2*i}, v{sc}, v{acc+2*i}"))
                g2.append(I(f"v_mul_f32 v{acc+2*i+1}, v{sc}, v{acc+2*i+1}"))
            g2.append(I(f"v_cvt_pk_bf16_f32 v{acc+i}, v{acc+2*i}, v{acc+2*i+1}"))
            if i & 3 == 3:
                o = off + 1024 * (i >> 2)
                va = vVW if o < 65536 else vVR
                g2.append(I(f"ds_write_b128 v{va}, {vr(acc+i-3,4)} offset:{o if o < 65536 else o - 32768}", tag="stg"))
        return g0, g1, g2

    def plan(tiles, start, span):
        fill = {}

        def put(i, l):
            fill.setdefault(i, []).extend(l)
        e = [epi(j) for j in tiles]
        put(start, e[0][0] + e[1][0])
        put(start + 2, e[0][1])
        put(start + 3, e[1][1])
        if len(e) > 2:
            put(start + 3, e[2][0])
            put(start + 6, e[2][1])
        allv = [x for g in e for x in g[2]]
        b2 = start + 4
        for i, x in enumerate(allv):
            put(b2 + (i * (span - 4)) // len(allv), [x])
        return fill

    S = [48, 64]
    P = [80, 88]
    O0 = 96
    KR = 48
    Q = 0
    KV = [32, 48]
    OA = 64

    def att_loads():
        o = [f"s_lshl_b32 s{sKV0}, s{sHEAD}, 18",
             f"s_add_u32 s{sKV0}, s{sKV0}, {KVF}",
             f"buffer_load_dwordx4 {vr(KR,4)}, v{vL16}, s[{sWS}:{sWS+3}], s{sKV0} offen sc1",
             f"buffer_load_dwordx4 {vr(KR+4,4)}, v{vL16}, s[{sWS}:{sWS+3}], s{sKV0} offen offset:1024 sc1",
             f"s_lshl_b32 s{sTMP}, s{sHEAD}, 6",
             f"s_lshl_b32 s{sTMP2}, s{sQB}, 2",
             f"s_add_u32 s{sTMP}, s{sTMP}, s{sTMP2}"]
        for u in range(4):
            o += [f"s_xor_b32 s{sTMP2}, s{sWAVE}, {(u+1)&3}",
                  f"s_add_u32 s{sTMP2}, s{sTMP2}, s{sTMP}",
                  f"s_lshl_b32 s{sTMP2}, s{sTMP2}, 11",
                  f"buffer_load_dwordx4 {ar(Q+8*u,4)}, v{vL16}, s[{sWS}:{sWS+3}], s{sTMP2} offen sc1",
                  f"buffer_load_dwordx4 {ar(Q+8*u+4,4)}, v{vL16}, s[{sWS}:{sWS+3}], s{sTMP2} offen offset:1024 sc1"]
        o += [f"s_lshl_b32 s{sTMP}, s{sWAVE}, 16",
              f"s_add_u32 s{sKV}, s{sKV0}, s{sTMP}",
              f"s_add_u32 s{sKV2}, s{sKV}, 4096"]
        for j in range(4):
            o.append(f"buffer_load_dwordx4 {ar(KV[0]+4*j,4)}, v{vL16}, s[{sWS}:{sWS+3}], s{sKV} offen offset:{1024*j} sc1")
        for j in range(2):
            o.append(f"buffer_load_dwordx4 {ar(KV[1]+4*j,4)}, v{vL16}, s[{sWS}:{sWS+3}], s{sKV2} offen offset:{1024*j} sc1")
        return [I(x) for x in o]

    def poll_opt(name, sleep):
        o = [I(f"v_cmp_ne_u32 vcc, s{sEP}, v{vT1}"), I("s_nop 1"), I(f"s_cbranch_vccz {name}X")]
        o += opt([f"s_mov_b32 s{sCNT}, {POLL_MAX}",
                  f"{name}:",
                  f"s_sleep {sleep}",
                  f"buffer_load_dword v{vT1}, v{vPL}, s[{sWS}:{sWS+3}], 0 offen sc1",
                  f"s_sub_u32 s{sCNT}, s{sCNT}, 1",
                  f"s_cmp_eq_u32 s{sCNT}, 0",
                  "s_waitcnt vmcnt(0)",
                  f"s_cbranch_scc1 {name}X",
                  f"v_cmp_ne_u32 vcc, s{sEP}, v{vT1}",
                  "s_nop 1",
                  f"s_cbranch_vccnz {name}"])
        o += [I(f"{name}X:")]
        return o

    HSPAN, PPOS, CPOS = int(E("HSPAN", "30")), int(E("PPOS", "30")), int(E("CPOS", "42"))
    p(f"v_add_u32 v{vVR}, 32768, v{vVW}")

    def qkv_epilogue():
        e = [epi(j, True) for j in range(3)]
        p.add(e[0][0] + e[1][0] + e[2][0] + e[0][1] + e[1][1] + e[2][1] + e[0][2] + e[1][2] + e[2][2])
        p("s_waitcnt lgkmcnt(0)")
        p("s_barrier")

    qkv_epilogue()
    stamp(p, 1, "C")
    p.add(stream(NA, NA + 56, None, rs, len(seq)))
    stamp(p, 2, "C")
    fc = plan([3, 4], 1, HSPAN)
    fc.setdefault(0, []).append(I("s_barrier"))
    fc.setdefault(HSPAN + 3, []).extend([I("@wait stg"), I("s_barrier")])
    fc.setdefault(PPOS, []).append(I(f"buffer_load_dword v{vT1}, v{vPL}, s[{sWS}:{sWS+3}], 0 offen sc1"))
    ds = (lambda i: [I(f"s_memtime s[{66+4*i}:{67+4*i}]"), I("s_waitcnt lgkmcnt(0)")]) if STAMP and E("DIAG") == "C" else (lambda i: [])
    fc.setdefault(CPOS, []).extend(ds(3) + poll_opt("K_PQ1", E("SLQ", "12")) + ds(4))
    if STAMP and E("DIAG") == "D":
        dd = lambda i: [I(f"s_memtime s[{66+4*i}:{67+4*i}]"), I("s_waitcnt lgkmcnt(0)")]
        fc.setdefault(0, [])[:0] = dd(1)
        fc.setdefault(16, []).extend(dd(2))
        fc.setdefault(HSPAN + 1, []).extend(dd(3))
        fc.setdefault(HSPAN + 3, []).extend(dd(4))
        fc.setdefault(CPOS - 1, []).extend(dd(5))
        fc.setdefault(CPOS, []).extend(dd(6))
    al = att_loads()
    for i, x in enumerate(al):
        fc.setdefault(CPOS + (i * (min(55, CPOS + int(E("LSPAN", "13"))) - CPOS)) // len(al), []).append(x)
    e = [epi(j) for j in (5, 6)]
    fc.setdefault(52, []).extend(e[0][0] + e[1][0])
    p.add(stream(NA + 56, NA + 112, fc, rs, len(seq)))
    stamp(p, 3)
    stamp(p, 5, "C")
    RD = [64, 80, 96, 112]

    def refmm():
        o = []
        for u in range(4):
            d = RD[u]
            o.append(I(f"{MF} {vr(d,16)}, {vr(KR,4)}, {ar(Q+8*u,4)}, 0"))
            o.append(I(f"{MF} {vr(d,16)}, {vr(KR+4,4)}, {ar(Q+8*u+4,4)}, {vr(d,16)}"))
        return o

    p.add(e[0][1] + e[1][1])
    p.add(interleave(refmm(), e[0][2] + e[1][2]))
    p("""
    s_waitcnt lgkmcnt(0)
    s_barrier
    s_branch K_ATT
    """)
    p.flush()
    tr_att = p.tr.copy()

    p.tr = tr_s
    p("K_SHORT:")
    p.add(stream(NA - 3, NA, None, rs_s, NA))
    p("s_waitcnt lgkmcnt(0)")
    p("s_barrier")
    stamp(p, 2)
    qkv_epilogue()
    p("s_barrier")
    stamp(p, 3)
    seq2 = add_waits(p.cur, p.tr)
    p.out += pad_hazards(seq2, hist_s)
    p.cur = []
    poll(p, "K_PQ2", vT1, vPL, sWS, "0", sEP, sCNT, E("SLS", "10"))
    p.add(att_loads())
    p.add(refmm())
    p("s_nop 7")
    p.flush()

    p.tr = tr_att

    def Oacc(u):
        return vr(O0, 16) if u == 3 else ar(OA + 16 * u, 16)

    vA1, vA2, vA3, vRA, vEP = 2, 3, 4, 5, 6
    vAs = [None, vA1, vA2, vA3]
    p(f"""
    K_ATT:
    s_setprio {E("AP", "2")}
    s_mov_b32 s{sKVR}, s{sWS}
    s_mov_b32 s{sKVR+1}, s{sWS+1}
    s_add_u32 s{sKVR+2}, s{sKV}, 65536
    s_mov_b32 s{sKVR+3}, 0x00020000
    v_mov_b32 v{vEP}, s{sEP}
    """)
    for u in range(1, 4):
        p(f"""
        s_xor_b32 s{sTMP}, s{sWAVE}, {u}
        s_mul_i32 s{sTMP}, s{sTMP}, 3
        s_add_u32 s{sTMP}, s{sTMP}, {u-1}
        s_lshl_b32 s{sTMP}, s{sTMP}, 12
        v_add_u32 v{vAs[u]}, s{sTMP}, v{vL16}
        """)
    p(f"""
    s_mul_i32 s{sTMP}, s{sWAVE}, {3*4096}
    v_add_u32 v{vRA}, s{sTMP}, v{vL16}
    s_mov_b32 s{sCNT}, 8
    """)
    M, M2, PC = 24, 28, 40

    def rowmax(m, d):
        p(f"v_max3_f32 v{m}, v{d}, v{d+1}, v{d+2}")
        for r in range(3, 15, 2):
            p(f"v_max3_f32 v{m}, v{m}, v{d+r}, v{d+r+1}")
        p(f"v_max_f32 v{m}, v{m}, v{d+15}")

    def put_ref(units, add):
        for u in units:
            p(f"v_mov_b32 v{M2+u}, v{M+u}")
        for u in units:
            p(f"v_permlane32_swap_b32 v{M+u}, v{M2+u}")
        for u in units:
            m, a, b, cc = M + u, M2 + u, PC + u, PC + 4 + u
            p(f"""
            v_max_f32 v{m}, v{m}, v{a}
            v_sub_f32 v{a}, {f32bits(-add):#x}, v{m}
            v_and_b32 v{b}, 0xffff0000, v{a}
            v_sub_f32 v{a}, v{a}, v{b}
            v_and_b32 v{cc}, 0xffff0000, v{a}
            v_sub_f32 v{a}, v{a}, v{cc}
            v_lshrrev_b32 v{b}, 16, v{b}
            v_or_b32 v{b}, v{b}, v{cc}
            v_lshrrev_b32 v{a}, 16, v{a}
            """)
        p("s_mov_b32 exec_lo, 0")
        for u in units:
            p(f"v_mov_b32 v{128+(Q+8*u+6)}, v{PC+u}")
            p(f"v_mov_b32 v{128+(Q+8*u+7)}, v{M2+u}")
        p("s_mov_b32 exec_lo, -1")

    for u in range(4):
        rowmax(M + u, RD[u])
    put_ref(range(4), REF_OFF)

    def qk(n_u, kb, sbuf):
        k = KV[kb]
        return [I(f"{MF} {vr(S[sbuf],16)}, {ar(k,4)}, {ar(Q+8*n_u,4)}, 0"),
                I(f"{MF} {vr(S[sbuf],16)}, {ar(k+4,4)}, {ar(Q+8*n_u+4,4)}, {vr(S[sbuf],16)}")]

    def pv(u, vb, pbuf):
        v = KV[vb] + 8
        return [I(f"{MF} {Oacc(u)}, {ar(v,4)}, {vr(P[pbuf],4)}, {Oacc(u)}"),
                I(f"{MF} {Oacc(u)}, {ar(v+4,4)}, {vr(P[pbuf]+4,4)}, {Oacc(u)}")]

    def softmax(sb):
        s, pp = S[sb], P[sb]
        v = []
        for i in range(8):
            v.append(I(f"v_exp_f32 v{s+2*i}, v{s+2*i}"))
            v.append(I(f"v_exp_f32 v{s+2*i+1}, v{s+2*i+1}"))
            if i >= 1:
                v.append(I(f"v_cvt_pk_bf16_f32 v{pp+i-1}, v{s+2*i-2}, v{s+2*i-1}"))
        v.append(I(f"v_cvt_pk_bf16_f32 v{pp+7}, v{s+14}, v{s+15}"))
        return v

    def cost(i):
        return 8 if i.is_trans() else 4

    def slot(tb, u):
        nu = (u + 1) & 3
        pu = (u - 1) & 3
        mf = qk(nu, tb if u < 3 else 1 - tb, (u + 1) & 1) + pv(pu, tb if u > 0 else 1 - tb, (u - 1) & 1)
        ld = []
        if u == 0:
            so = sKV2 if tb == 0 else sKV
            ld += [I(f"buffer_load_dwordx4 {ar(KV[1-tb]+8+4*j,4)}, v{vL16}, s[{sKVR}:{sKVR+3}], s{so} offen offset:{2048+1024*j} sc1") for j in range(2)]
        if u == 2:
            so = sKV if tb == 0 else sKV2
            ld += [I(f"buffer_load_dwordx4 {ar(KV[tb]+4*j,4)}, v{vL16}, s[{sKVR}:{sKVR+3}], s{so} offen offset:{1024*j} sc1") for j in range(2)]
        va = softmax(u & 1)
        total = sum(cost(i) for i in va)
        out = []
        k = 0
        acc = 0
        for j, m in enumerate(mf):
            out.append(m)
            tgt = total * (j + 1) / len(mf)
            while k < len(va) and acc + cost(va[k]) / 2 <= tgt:
                out.append(va[k]); acc += cost(va[k]); k += 1
        out += va[k:]
        idx = max(i for i, x in enumerate(out) if x.kind == "mfma")
        if ld:
            out = out[:idx + 1] + interleave(out[idx + 1:], ld)
        return out

    stamp(p, 4)
    spin(p, "att", sEP)
    p.add(qk(0, 0, 0))
    for i in range(0, 48, 2):
        p(f"v_mov_b64 {ar(OA+i,2)}, 0")
    for i in range(0, 8, 2):
        p(f"v_mov_b64 {ar(KV[1]+8+i,2)}, 0")
    for i in range(0, 16, 2):
        p(f"v_mov_b64 {vr(O0+i,2)}, 0")
    for i in range(0, 8, 2):
        p(f"v_mov_b64 {vr(P[1]+i,2)}, 0")
    body = [I(".p2align 6"), I("K_LOOP:")]
    for tb in range(2):
        for u in range(4):
            if u == 1:
                so = sKV if tb == 0 else sKV2
                body.append(I(f"s_add_u32 s{so}, s{so}, 8192"))
            if tb == 1 and u == 3:
                body.append(I(f"s_sub_u32 s{sCNT}, s{sCNT}, 1"))
                body.append(I(f"s_cmp_lg_u32 s{sCNT}, 0"))
            body += slot(tb, u)
    body += [I("s_cbranch_scc1 K_LOOP")]
    p.loop(body)
    stamp(p, 5)
    spin(p, "tail", sEP)
    p.add(pv(3, 1, 1))
    for u in range(1, 4):
        for q in range(4):
            p(f"ds_write_b128 v{vAs[u]}, {ar(OA+16*(u-1)+4*q,4)} offset:{1024*q}")
    p(f"""
    s_lshl_b32 s{sTMP2}, s{sQB}, 2
    s_add_u32 s{sTMP2}, s{sTMP2}, s{sWAVE}
    s_lshl_b32 s{sTMP}, s{sTMP2}, 15
    s_lshl_b32 s{sTMP3}, s{sHEAD}, 11
    s_add_u32 s{sTMP}, s{sTMP}, s{sTMP3}
    s_add_u32 s{sTMP}, s{sTMP}, {OF}
    s_lshl_b32 s{sTMP3}, s{sTMP2}, 4
    s_add_u32 s{sTMP3}, s{sTMP3}, s{sHEAD}
    s_lshl_b32 s{sTMP3}, s{sTMP3}, 2
    s_add_u32 s{sTMP3}, s{sTMP3}, {FO}
    s_lshl_b32 s{sTMP2}, s{sWAVE}, 2
    s_add_u32 s{sTMP2}, s{sTMP2}, {EPA+16}
    v_mov_b32 v16, s{sTMP2}
    v_and_b32 v17, 3, v0
    v_lshlrev_b32 v17, 2, v17
    v_add_u32 v17, {EPA+16}, v17
    ds_write_b32 v16, v{vEP}
    s_mov_b32 s{sKV}, {POLL_MAX*16}
    """)
    p.flush()
    p(f"""
    K_AW:
    ds_read_b32 v18, v17
    s_sub_u32 s{sKV}, s{sKV}, 1
    s_cmp_eq_u32 s{sKV}, 0
    s_waitcnt lgkmcnt(0)
    s_cbranch_scc1 K_AWX
    v_cmp_ne_u32 vcc, s{sEP}, v18
    s_nop 1
    s_cbranch_vccnz K_AW
    K_AWX:
    """)
    p.flush()
    stamp(p, 6)
    R = 48
    for i in range(3):
        for q in range(4):
            p(f"ds_read_b128 {vr(R+16*i+4*q,4)}, v{vRA} offset:{4096*i+1024*q}")
    for i in range(3):
        for r in range(0, 16, 2):
            p(f"v_pk_add_f32 {vr(O0+r,2)}, {vr(O0+r,2)}, {vr(R+16*i+r,2)}")
    p("K_NORM:")
    l, l2, ri, mx, PK = 16, 17, 18, 20, 32
    p(f"""
    v_mov_b32 v{l}, v{O0+12}
    v_mov_b32 v{l2}, v{O0+12}
    v_permlane32_swap_b32 v{l}, v{l2}
    v_rcp_f32 v{ri}, v{l2}
    """)
    for r in range(0, 16, 2):
        p(f"v_pk_mul_f32 {vr(O0+r,2)}, {vr(O0+r,2)}, {vr(ri,2)} op_sel_hi:[1,0]")
    for i in range(8):
        p(f"v_cvt_pk_bf16_f32 v{PK+i}, v{O0+2*i}, v{O0+2*i+1}")
    p(f"""
    buffer_store_dwordx4 {vr(PK,4)}, v{vL16}, s[{sWS}:{sWS+3}], s{sTMP} offen sc1
    buffer_store_dwordx4 {vr(PK+4,4)}, v{vL16}, s[{sWS}:{sWS+3}], s{sTMP} offen offset:1024 sc1
    """)
    for r in range(0, 16, 2):
        p(f"v_pk_add_f32 {vr(O0+r,2)}, {vr(O0+r,2)}, {vr(O0+r,2)} neg_lo:[0,1] neg_hi:[0,1]")
    for r in (8, 4, 2):
        for k in range(0, r, 2):
            p(f"v_pk_add_f32 {vr(O0+k,2)}, {vr(O0+k,2)}, {vr(O0+r+k,2)}")
    p(f"""
    v_add_f32 v{mx}, v{O0}, v{O0+1}
    v_add_f32 v{mx}, v{mx}, v{l2}
    v_cmp_ngt_f32 vcc, {f32bits(L_LIMIT):#x}, v{mx}
    s_cmp_eq_u32 s{sCNT}, 0
    s_cselect_b64 vcc, vcc, 0
    s_cbranch_vccnz K_SLOW
    s_mov_b64 exec, 1
    s_waitcnt vmcnt(0)
    buffer_store_dword v{vEP}, v{vL16}, s[{sWS}:{sWS+3}], s{sTMP3} offen sc1
    s_mov_b64 exec, -1
    """)
    stamp_out(p, 7, sWS, sWAVE, 2, 3)
    p("s_endpgm")
    p.flush()
    p.tr = Tracker()
    p(f"""
    K_SLOW:
    s_waitcnt vmcnt(0) lgkmcnt(0)
    s_mov_b32 exec_lo, 0
    v_mov_b32 v{128+(Q+30)}, 0
    v_mov_b32 v{128+(Q+31)}, 0
    s_mov_b32 exec_lo, -1
    v_mov_b32 v{M+3}, 0xff800000
    s_mov_b32 s{sKV}, s{sKV0}
    s_mov_b32 s{sCNT}, 64
    """)
    body = [I("K_S1:")]
    body += [I(f"buffer_load_dwordx4 {ar(KV[0]+4*j,4)}, v{vL16}, s[{sWS}:{sWS+3}], s{sKV} offen offset:{1024*j} sc1") for j in range(2)]
    body += qk(3, 0, 0)
    body += [I(f"v_max3_f32 v{M+3}, v{M+3}, v{S[0]+r}, v{S[0]+r+1}") for r in range(0, 16, 2)]
    body += [I(f"s_add_u32 s{sKV}, s{sKV}, 4096"), I(f"s_sub_u32 s{sCNT}, s{sCNT}, 1"), I(f"s_cmp_lg_u32 s{sCNT}, 0"), I("s_cbranch_scc1 K_S1")]
    p.loop(body)
    put_ref([3], 0.0)
    for i in range(16):
        p(f"v_mov_b32 v{O0+i}, 0")
    p(f"""
    s_mov_b32 s{sKV}, s{sKV0}
    s_mov_b32 s{sCNT}, 64
    """)
    body = [I("K_S2:")]
    body += [I(f"buffer_load_dwordx4 {ar(KV[0]+4*j,4)}, v{vL16}, s[{sWS}:{sWS+3}], s{sKV} offen offset:{1024*j} sc1") for j in range(4)]
    body += qk(3, 0, 0) + softmax(0) + pv(3, 0, 0)
    body += [I(f"s_add_u32 s{sKV}, s{sKV}, 4096"), I(f"s_sub_u32 s{sCNT}, s{sCNT}, 1"), I(f"s_cmp_lg_u32 s{sCNT}, 0"), I("s_cbranch_scc1 K_S2")]
    p.loop(body)
    p(f"""
    s_mov_b32 s{sCNT}, 1
    s_nop 7
    s_nop 7
    s_branch K_NORM
    """)
    p.flush()

    p.tr = Tracker()
    vOA3, vX, vOB, hLA, hLB, hCW, ONE, CS, F = 8, 12, 14, 16, 17, 19, 20, 24, 40
    hL16 = 1
    p("K_HELPER:")
    stamp(p, 0)
    srd(p, sX, 40, XB)
    srd(p, sW, 42, WQKVB)
    p(f"""
    s_sub_u32 s{sWAVE}, s{sWAVE}, 4
    s_add_u32 s{sXO}, s{sMT}, s{sWAVE}
    s_mul_i32 s{sXO}, s{sXO}, 28672
    v_lshrrev_b32 v4, 3, v0
    v_mul_u32_u24 v7, 896, v4
    v_lshrrev_b32 v5, 4, v0
    v_and_b32 v6, 7, v0
    v_xor_b32 v6, v5, v6
    v_lshl_add_u32 v{vX}, v6, 4, v7
    v_xor_b32 v6, 4, v6
    v_lshl_add_u32 v{vX+1}, v6, 4, v7
    s_mul_i32 s{sOA}, s{sG}, 168
    s_mul_i32 s{sTMP}, s{sWAVE}, {16*2688}
    s_add_u32 s{sOA}, s{sOA}, s{sTMP}
    s_lshl_b32 s{sM0}, s{sWAVE}, 12
    s_mul_i32 s{sTMP3}, s{sWAVE}, 3072
    """)

    def dma(st):
        base = (st % 5) * SLOT
        o = []
        if st < 7:
            for g in range(4):
                o.append([f"s_add_u32 m0, s{sM0}, {base+WAB+1024*g}",
                          f"s_add_u32 s{sTMP}, s{sXO}, {8*896*g+128*st}",
                          f"buffer_load_dwordx4 v{vX+(g&1)}, s[{sX}:{sX+3}], s{sTMP} offen lds"])
            for d in range(3):
                o.append([f"s_add_u32 m0, s{sTMP3}, {base+1024*d}",
                          f"s_add_u32 s{sTMP}, s{sOA}, {64*2688*st}",
                          f"buffer_load_dwordx4 v{vOA3+d}, s[{sW}:{sW+3}], s{sTMP} offen lds"])
        else:
            ph, hs = divmod(st - 7, 2)
            for d in range(7):
                o.append([f"s_add_u32 m0, s{sT}, {base+1024*d}",
                          f"s_add_u32 s{sTMP}, s{sOB}, {(224*hs+8*d)*3584+128*ph}",
                          f"buffer_load_dwordx4 v{vOB}, s[{sW2}:{sW2+3}], s{sTMP} offen lds"])
        return [(st, g) for g in o]

    dq = [g for st in range(11) for g in dma(st)]

    def issue(n, maxst=10):
        for _ in range(n):
            if dq and dq[0][0] <= maxst:
                st, g = dq.pop(0)
                p("\n".join(g), tag=f"st{st}")

    issue(4)
    for d in range(3):
        p(f"""
        v_add_u32 v1, {64*d}, v0
        v_mul_u32_u24 v2, 5462, v1
        v_lshrrev_b32 v2, 16, v2
        v_mul_u32_u24 v3, 12, v2
        v_sub_u32 v1, v1, v3
        v_lshrrev_b32 v3, 2, v1
        v_and_b32 v1, 3, v1
        v_lshlrev_b32 v1, 4, v1
        v_mad_u32_u24 v1, v3, 56, v1
        v_mul_u32_u24 v2, 2688, v2
        v_add_u32 v{vOA3+d}, v1, v2
        """)
    issue(10)
    srd(p, sWS, 46, WS_BYTES)
    srd(p, sW2, 48, W1B)
    tr_lane(hLA, hLB, hLB + 1, 1, 2)
    p(f"""
    s_mul_i32 s{sTMP}, s{sWAVE}, {16*192}
    v_add_u32 v{hLA}, s{sTMP}, v{hLA}
    v_bfe_u32 v1, v0, 2, 1
    v_bfe_u32 v2, v0, 4, 1
    v_xor_b32 v1, v1, v2
    v_and_b32 v3, 3, v0
    v_lshlrev_b32 v3, 4, v3
    v_lshl_add_u32 v3, v1, 6, v3
    v_mul_u32_u24 v4, 3584, v4
    v_add_u32 v{vOB}, v4, v3
    v_and_b32 v1, 15, v0
    v_mov_b32 v3, 0x3f803f80
    v_cmp_eq_u32 vcc, v1, v2
    v_cndmask_b32 v{ONE}, 0, v3, vcc
    v_mov_b32 v{ONE+1}, v{ONE}
    v_mov_b32 v{ONE+2}, v{ONE}
    v_mov_b32 v{ONE+3}, v{ONE}
    s_lshl_b32 s{sOB}, s{sG}, 8
    s_mul_i32 s{sTMP}, s{sWAVE}, {56*3584}
    s_add_u32 s{sOB}, s{sOB}, s{sTMP}
    s_mul_i32 s{sT}, s{sWAVE}, 7168
    s_lshr_b32 s{sTMP}, s{sWAVE}, 1
    s_lshl_b32 s{sTMP}, s{sTMP}, 9
    s_and_b32 s{sTMP2}, s{sWAVE}, 1
    s_lshl_b32 s{sTMP2}, s{sTMP2}, 3
    s_add_u32 s{sTMP}, s{sTMP}, s{sTMP2}
    s_add_u32 s{sTMP}, s{sTMP}, {CFA}
    v_lshl_add_u32 v{hCW}, v0, 4, s{sTMP}
    v_lshlrev_b32 v{hL16}, 4, v0
    s_setprio {E("HP", "2")}
    s_add_u32 s{sTMP}, s2, s{sWAVE}
    s_cmp_lg_u32 s{sTMP}, 0
    s_cbranch_scc1 K_NOEP
    """)
    p.add(opt([f"s_memrealtime s[60:61]",
               "s_waitcnt lgkmcnt(0)",
               "s_or_b32 s60, s60, 1",
               "v_mov_b32 v2, 0",
               "v_mov_b32 v3, s60",
               "s_mov_b64 exec, 1",
               "global_store_dword v2, v3, s[54:55] sc0 sc1",
               "s_mov_b64 exec, -1"]))
    p("K_NOEP:")

    def publish(tiles, j0):
        for t in range(tiles):
            for r in range(2):
                c0 = CS + 4 * t + r
                a, b2, c2 = F + 8 * t + 4 * r, F + 8 * t + 4 * r + 1, F + 8 * t + 4 * r + 2
                p(f"""
                v_and_b32 v{a}, 0xffff0000, v{c0}
                v_sub_f32 v{b2}, v{c0}, v{a}
                v_and_b32 v{c2}, 0xffff0000, v{b2}
                v_sub_f32 v{b2}, v{b2}, v{c2}
                v_lshrrev_b32 v{a}, 16, v{a}
                v_or_b32 v{a}, v{a}, v{c2}
                v_lshrrev_b32 v{b2}, 16, v{b2}
                """)
        p("s_mov_b64 exec, 0xffff")
        for t in range(tiles):
            for r in range(2):
                p(f"ds_write_b64 v{hCW}, {vr(F+8*t+4*r,2)} offset:{1024*(j0+t)+256*r}")
        p("s_mov_b64 exec, -1")

    def colsum_a(st, between=None):
        if E("NOCS") and st < 6:
            if between:
                between()
            return
        p(f"v_add_u32 v2, {(st % 5) * SLOT}, v{hLA}")
        for j in range(3):
            p(f"ds_read_b64_tr_b16 {vr(F+4*j,2)}, v2 offset:{64*j}")
            p(f"ds_read_b64_tr_b16 {vr(F+4*j+2,2)}, v2 offset:{64*j+4*192}")
        if between:
            between()
        for j in range(3):
            p(f"{M16} {vr(CS+4*j,4)}, {vr(ONE,4)}, {vr(F+4*j,4)}, {'0' if st == 0 else vr(CS+4*j,4)}")
        if st == 6:
            publish(3, 0)

    def colsum_b(ph):
        s0, s1 = ((7 + 2 * ph) % 5) * SLOT, ((8 + 2 * ph) % 5) * SLOT
        p(f"""
        s_mul_i32 s{sTMP}, s{sWAVE}, {7*2048}
        s_cmp_lt_u32 s{sWAVE}, 2
        s_mov_b32 s{sTMP2}, {(s1 - SLOT) & 0xffffffff}
        s_cselect_b32 s{sTMP2}, {s0}, s{sTMP2}
        s_add_u32 s{sTMP}, s{sTMP}, s{sTMP2}
        v_add_u32 v2, s{sTMP}, v{hLB}
        v_add_u32 v3, s{sTMP}, v{hLB+1}
        """)
        mm = []
        for i in range(7):
            for t in range(2):
                b = F + 8 * i + 4 * t
                p(f"ds_read_b64_tr_b16 {vr(b,2)}, v{2+t} offset:{2048*i}")
                p(f"ds_read_b64_tr_b16 {vr(b+2,2)}, v{2+t} offset:{2048*i+512}")
                mm.append(f"{M16} {vr(CS+4*t,4)}, {vr(ONE,4)}, {vr(b,4)}, {'0' if i == 0 else vr(CS+4*t,4)}")
                if len(mm) > 6:
                    p(mm.pop(0))
        for m in mm:
            p(m)
        publish(2, 3 + 2 * ph)

    def bar(*sts):
        if sts:
            p("@wait " + " ".join(f"st{x}" for x in sts))
        p("s_waitcnt lgkmcnt(0)")
        p("s_barrier")

    D = 100
    hSR, hVR, hMA, hOA, hEP = 124, 125, 126, 127, 15

    def out_setup():
        p(f"""
        s_lshl_b32 s{sTMP}, s{sWAVE}, 11
        s_add_u32 s{sTMP}, s{sTMP}, {STQ}
        v_add_u32 v{hSR}, s{sTMP}, v{hL16}
        v_bfe_u32 v2, v0, 4, 1
        v_lshl_add_u32 v{hVR}, v2, 10, s{sTMP}
        v_lshrrev_b32 v2, 5, v0
        v_lshl_add_u32 v{hVR}, v2, 6, v{hVR}
        v_bfe_u32 v2, v0, 2, 2
        v_lshl_add_u32 v{hVR}, v2, 4, v{hVR}
        v_and_b32 v2, 1, v0
        v_lshl_add_u32 v{hVR}, v2, 9, v{hVR}
        v_bfe_u32 v2, v0, 1, 1
        v_lshl_add_u32 v{hVR}, v2, 3, v{hVR}
        v_and_b32 v2, 31, v0
        v_cmp_gt_u32 vcc, 28, v2
        v_cndmask_b32 v{hMA}, 0, -1, vcc
        v_mov_b32 v3, 0x3f803f80
        v_cmp_eq_u32 vcc, 28, v2
        v_cndmask_b32 v{hOA}, 0, v3, vcc
        s_add_u32 s{sCNT}, s{sMT}, s{sWAVE}
        """)

    def out_qkv(tag):
        p(f"""
        v_mov_b32 v2, {EPA}
        ds_read_b32 v{hEP}, v2
        s_mul_i32 s{sTY}, s{sG}, 3
        """)
        for j in range(3):
            d = D + 8 * j
            p(f"""
            s_cmp_ge_u32 s{sTY}, {32-j}
            s_cbranch_scc1 K_RV{j}{tag}
            """)
            p.add(opt([f"ds_read_b128 {vr(d,4)}, v{hSR} offset:{8192*j}",
                       f"ds_read_b128 {vr(d+4,4)}, v{hSR} offset:{8192*j+1024}",
                       f"s_branch K_RW{j}{tag}"]))
            p(f"K_RV{j}{tag}:")
            p.add(opt([f"ds_read_b64_tr_b16 {vr(d+2*k,2)}, v{hVR} offset:{8192*j+128*k}" for k in range(4)]))
            p(f"K_RW{j}{tag}:")
        p("s_waitcnt lgkmcnt(0)")
        for j in range(3):
            d = D + 8 * j
            p(f"""
            s_add_u32 s{sTMP}, s{sTY}, {j}
            s_lshr_b32 s{sTMP2}, s{sTMP}, 4
            s_and_b32 s{sTMP}, s{sTMP}, 15
            s_lshl_b32 s{sTMP}, s{sTMP}, 6
            s_add_u32 s{sTMP}, s{sTMP}, s{sCNT}
            s_lshl_b32 s{sST}, s{sTMP}, 11
            s_lshl_b32 s{sTMP}, s{sTMP}, 12
            s_add_u32 s{sTMP}, s{sTMP}, {KVF}
            s_cmp_eq_u32 s{sTMP2}, 0
            s_cselect_b32 s{sST}, s{sST}, s{sTMP}
            s_cselect_b32 s{sTMP}, 0, 0x3f803f80
            s_cselect_b32 s{sEP}, 0, 0x3f80
            s_cmp_eq_u32 s{sTMP2}, 2
            s_cbranch_scc1 K_FV{j}{tag}
            """)
            p.add(opt(["s_mov_b32 exec_lo, 0",
                       f"v_mov_b32 v{d+6}, s{sTMP}",
                       f"v_mov_b32 v{d+7}, s{sEP}",
                       "s_mov_b32 exec_lo, -1",
                       f"s_branch K_FW{j}{tag}"]))
            p(f"K_FV{j}{tag}:")
            p.add(opt([f"v_and_or_b32 v{d+i}, v{d+i}, v{hMA}, v{hOA}" for i in range(8)] + [f"s_add_u32 s{sST}, s{sST}, 2048"]))
            p(f"""
            K_FW{j}{tag}:
            buffer_store_dwordx4 {vr(d,4)}, v{hL16}, s[{sWS}:{sWS+3}], s{sST} offen sc1
            buffer_store_dwordx4 {vr(d+4,4)}, v{hL16}, s[{sWS}:{sWS+3}], s{sST} offen offset:1024 sc1
            """)

    def hflag(instrs, younger=0):
        p(instrs)
        p(f"""
        s_mov_b64 exec, 1
        s_waitcnt vmcnt({younger})
        buffer_store_dword v{hEP}, v{hL16}, s[{sWS}:{sWS+3}], s{sTMP} offen sc1
        s_mov_b64 exec, -1
        """)

    fq = f"""
        s_lshl_b32 s{sTMP}, s{sG}, 6
        s_add_u32 s{sTMP}, s{sTMP}, s{sCNT}
        s_lshl_b32 s{sTMP}, s{sTMP}, 2
        s_add_u32 s{sTMP}, s{sTMP}, {FQ}
        """

    fh = f"""
        s_lshl_b32 s{sTMP}, s{sCNT}, 4
        s_add_u32 s{sTMP}, s{sTMP}, s{sG}
        s_lshl_b32 s{sTMP}, s{sTMP}, 2
        s_add_u32 s{sTMP}, s{sTMP}, {FH}
        """

    def out_h(k):
        base = (STH1 if k == 0 else STH2) - STQ
        p(f"v_add_u32 v2, {base}, v{hSR}")
        for t in range(2):
            for i in range(2):
                p(f"ds_read_b128 {vr(D+8*t+4*i,4)}, v2 offset:{8192*t+1024*i}")
        p(f"""
        s_mul_i32 s{sST}, s{sCNT}, 114688
        s_lshl_b32 s{sTMP}, s{sG}, 13
        s_add_u32 s{sST}, s{sST}, s{sTMP}
        s_add_u32 s{sST}, s{sST}, {HF + 4096*k}
        """)
        for q in range(4):
            for i in range(4):
                p(f"v_pk_max_i16 v{D+4*q+i}, v{D+4*q+i}, 0")
            p(f"buffer_store_dwordx4 {vr(D+4*q,4)}, v{hL16}, s[{sWS}:{sWS+3}], s{sST} offen offset:{1024*q} sc1")

    NI = [int(x) for x in E("NI", "9,9,9,9,10,10,10").split(",")]
    bar(0)
    KSPLIT = 0
    while dq[0][0] < 7:
        k = KSPLIT
        colsum_a(k, lambda: issue(NI[k], min(6, k + 4)))
        bar(k + 1)
        KSPLIT += 1
    p(f"""
    s_cmp_ge_u32 s{sG}, 14
    s_cbranch_scc1 K_HTR
    """)
    p.flush()
    tr_h, hist_h = p.tr.copy(), list(p.out[-60:])
    for k in range(KSPLIT, 7):
        colsum_a(k, lambda: issue(NI[k], k + 4))
        if k < 6:
            bar(k + 1)
    assert dq == [] or dq[0][0] > 8
    bar(7, 8)
    issue(14)
    out_setup()
    stamp(p, 1, "C")
    bar(9, 10)
    stamp(p, 2, "C")
    out_qkv("")
    stamp(p, 3, "C")
    colsum_b(0)
    if E("FO", "1") == "1":
        hflag(fq)
        bar()
    else:
        bar()
        hflag(fq)
    stamp(p, 5, "C")
    colsum_b(1)
    bar()
    out_h(0)
    stamp(p, 6, "C")
    bar()
    out_h(1)
    hflag(fh)
    p("s_branch K_GEMM")
    p.flush()

    sU, sSL = sOA, sT

    def relayout_load(src_off_reg):
        for d in range(14):
            if d % 4 == 0:
                p(f"s_add_u32 m0, s{sSL}, {1024*d}")
                p(f"s_add_u32 s{sTMP}, s{src_off_reg}, {1024*d}")
            p(f"buffer_load_dwordx4 v{hL16}, s[{sW}:{sW+3}], s{sTMP} offen offset:{1024*(d%4)} lds", tag="rl")

    def relayout_store(dst_reg, stride, zero_reg=None):
        p(f"""
        v_lshrrev_b32 v2, 5, v0
        v_lshlrev_b32 v3, 2, v2
        v_bfe_u32 v2, v0, 2, 2
        v_add_u32 v3, v3, v2
        v_mul_u32_u24 v3, 896, v3
        v_bfe_u32 v2, v0, 4, 1
        v_lshl_add_u32 v3, v2, 5, v3
        v_and_b32 v2, 3, v0
        v_lshl_add_u32 v3, v2, 3, v3
        v_add_u32 v3, s{sSL}, v3
        v_mov_b32 v2, {EPA}
        s_waitcnt vmcnt(0)
        ds_read_b32 v4, v2
        """)
        for t in range(14):
            p(f"ds_read_b64_tr_b16 {vr(F+4*t,2)}, v3 offset:{64*t}")
            p(f"ds_read_b64_tr_b16 {vr(F+4*t+2,2)}, v3 offset:{64*t+8*896}")
        if zero_reg is not None:
            p("s_waitcnt lgkmcnt(0)")
            p("s_mov_b32 exec_lo, 0")
            p(f"s_mov_b32 exec_hi, s{zero_reg}")
            for t in range(14):
                p(f"v_mov_b32 v{F+4*t+2}, 0")
                p(f"v_mov_b32 v{F+4*t+3}, 0")
            p("s_mov_b64 exec, -1")
        for t in range(14):
            p(f"buffer_store_dwordx4 {vr(F+4*t,4)}, v{hL16}, s[{sWS}:{sWS+3}], s{dst_reg} offen sc1")
            p(f"s_add_u32 s{dst_reg}, s{dst_reg}, {stride}")
        p(f"""
        s_lshl_b32 s{sTMP}, s{sU}, 2
        s_add_u32 s{sTMP}, s{sTMP}, {FW}
        s_mov_b64 exec, 1
        s_waitcnt vmcnt(0) lgkmcnt(0)
        buffer_store_dword v4, v{hL16}, s[{sWS}:{sWS+3}], s{sTMP} offen sc1
        s_mov_b64 exec, -1
        """)

    p.tr = tr_h
    p("K_HTR:")
    for k in range(KSPLIT, 4):
        colsum_a(k)
        bar(k + 1)
    srd(p, sW, 50, W2B)
    p(f"""
    s_sub_u32 s{sU}, s{sG}, 14
    s_lshl_b32 s{sU}, s{sU}, 6
    s_add_u32 s{sU}, s{sU}, s{sMT}
    s_add_u32 s{sU}, s{sU}, s{sWAVE}
    s_mul_i32 s{sSL}, s{sWAVE}, 14336
    s_add_u32 s{sSL}, s{sSL}, {2*SLOT}
    s_mul_i32 s{sTMP3}, s{sU}, {16*896}
    """)
    relayout_load(sTMP3)
    for k in range(max(4, KSPLIT), 7):
        colsum_a(k)
        if k < 6:
            bar(k + 1)
    bar()
    out_setup()
    bar()
    out_qkv("s")
    hflag(fq)
    hflag(fh)
    p("s_barrier")
    p(f"""
    s_cmp_ge_u32 s{sU}, 112
    s_cbranch_scc1 K_GEMM
    s_lshl_b32 s{sTMP3}, s{sU}, 10
    s_add_u32 s{sTMP3}, s{sTMP3}, {W2F}
    """)
    seq2 = add_waits(p.cur, p.tr)
    p.out += pad_hazards(seq2, hist_h)
    p.cur = []
    relayout_store(sTMP3, 114688)
    p("s_branch K_GEMM")
    p.flush()
    p.tr = Tracker()
    p(f"""
    K_HWO:
    s_cmp_lg_u32 s{sG}, 7
    s_cbranch_scc1 K_END
    s_cmp_ge_u32 s{sWAVE}, 2
    s_cbranch_scc1 K_END
    """)
    srd(p, sW, 44, WOB)
    p(f"""
    s_lshr_b32 s{sU}, s{sMT}, 1
    s_add_u32 s{sU}, s{sU}, s{sWAVE}
    s_lshr_b32 s{sTMP3}, s{sMT}, 2
    s_mul_i32 s{sTMP3}, s{sTMP3}, {28*896}
    s_mul_i32 s{sTMP}, s{sWAVE}, {16*896}
    s_add_u32 s{sTMP3}, s{sTMP3}, s{sTMP}
    s_mul_i32 s{sSL}, s{sWAVE}, 14336
    s_add_u32 s{sSL}, s{sSL}, {2*SLOT}
    """)
    relayout_load(sTMP3)
    p(f"""
    s_lshl_b32 s{sTMP3}, s{sU}, 10
    s_add_u32 s{sTMP3}, s{sTMP3}, {WOF}
    s_add_u32 s{sU}, s{sU}, 128
    s_sub_u32 s{sTMP2}, 0, s{sWAVE}
    """)
    relayout_store(sTMP3, 32768, sTMP2)
    p("s_endpgm")
    p.flush()

    p.tr = Tracker()
    sOUT = sW2
    sA0, sA1, sB0, sB1, sNT, sMP, sNP = sXO, sOA, sOB, sT, sTY, sHEAD, sQB
    AC0 = 8
    Gv = [24, 40, 56, 72, 88, 104]
    Ga = [112]
    WO = 48
    XR = 120
    NBUF = int(E('NBUF', '2'))

    def Gbuf(b, off, n):
        return vr(Gv[b] + off, n) if b < 6 else ar(Ga[b - 6] + off, n)

    def Gacc(u):
        return vr(AC0, 16) if u == 0 else ar(16 * (u - 1), 16)

    vXO, vA1, vA2, vA3, vRA, vF = 2, 3, 4, 5, 6, 7
    p(f"""
    K_GEMM:
    s_setprio {E("GP", "0")}
    s_lshr_b32 s{sNP}, s{sI}, 2
    s_cmp_ge_u32 s{sNP}, 7
    s_cbranch_scc1 K_HWO
    """)
    stamp(p, 1)
    p(f"""
    v_mov_b32 v2, {EPA}
    ds_read_b32 v3, v2
    s_lshl_b32 s{sMP}, s{sJ}, 2
    s_and_b32 s{sTMP}, s{sI}, 3
    s_add_u32 s{sMP}, s{sMP}, s{sTMP}
    s_lshr_b32 s{sTMP}, s{sWAVE}, 1
    s_lshl_b32 s{sMT}, s{sMP}, 1
    s_add_u32 s{sMT}, s{sMT}, s{sTMP}
    s_and_b32 s{sTMP}, s{sWAVE}, 1
    s_lshl_b32 s{sNT}, s{sNP}, 1
    s_add_u32 s{sNT}, s{sNT}, s{sTMP}
    s_mul_i32 s{sTMP}, s{sWAVE}, {28*1024}
    s_mul_i32 s{sA0}, s{sNT}, 114688
    s_xor_b32 s{sTMP2}, s{sNT}, 1
    s_mul_i32 s{sA1}, s{sTMP2}, 114688
    s_mul_i32 s{sB0}, s{sMT}, 114688
    s_xor_b32 s{sTMP2}, s{sMT}, 1
    s_mul_i32 s{sB1}, s{sTMP2}, 114688
    s_add_u32 s{sTMP2}, s{sTMP}, {W2F}
    s_add_u32 s{sA0}, s{sA0}, s{sTMP2}
    s_add_u32 s{sA1}, s{sA1}, s{sTMP2}
    s_add_u32 s{sTMP2}, s{sTMP}, {HF}
    s_add_u32 s{sB0}, s{sB0}, s{sTMP2}
    s_add_u32 s{sB1}, s{sB1}, s{sTMP2}
    v_readfirstlane_b32 s{sEP}, v3
    """)
    p(f"""
    v_and_b32 v{vF}, 31, v0
    v_mul_u32_u24 v{vF}, 896, v{vF}
    v_lshrrev_b32 v{vRA}, 5, v0
    v_lshl_add_u32 v{vA1}, v{vRA}, 3, v{vF}
    s_mul_i32 s{sTMP3}, s{sMT}, 28672
    s_lshl_b32 s{sTMP2}, s{sNT}, 6
    s_add_u32 s{sTMP3}, s{sTMP3}, s{sTMP2}
    """)
    for q in range(4):
        p(f"buffer_load_dwordx2 {vr(XR+2*q,2)}, v{vA1}, s[{sX}:{sX+3}], s{sTMP3} offen offset:{16*q}")
    p(f"v_lshl_add_u32 v{vXO}, v{vRA}, 4, v{vF}")
    for i in range(0, 48, 2):
        p(f"v_mov_b64 {ar(i,2)}, 0")
    vAs = [None, vA1, vA2, vA3]
    for u in range(1, 4):
        p(f"""
        s_xor_b32 s{sTMP2}, s{sWAVE}, {u}
        s_mul_i32 s{sTMP2}, s{sTMP2}, 3
        s_add_u32 s{sTMP2}, s{sTMP2}, {u-1+12}
        s_lshl_b32 s{sTMP2}, s{sTMP2}, 12
        v_add_u32 v{vAs[u]}, s{sTMP2}, v{hL16}
        """)
    p(f"""
    s_mul_i32 s{sTMP2}, s{sWAVE}, {3*4096}
    s_add_u32 s{sTMP2}, s{sTMP2}, {48*1024}
    v_add_u32 v{vRA}, s{sTMP2}, v{hL16}
    """)
    for i in range(8):
        p(f"v_lshlrev_b32 v{AC0+2*i}, 16, v{XR+i}")
        p(f"v_and_b32 v{AC0+2*i+1}, 0xffff0000, v{XR+i}")
    srd(p, sOUT, 52, XB)
    G0 = Gv[0]
    p(f"""
    v_mov_b32 v{G0}, {EPA+4}
    v_mov_b32 v{G0+1}, s{sEP}
    s_cmp_lg_u32 s{sWAVE}, 0
    s_cbranch_scc1 K_PL
    v_and_b32 v{vF}, 7, v0
    s_lshl_b32 s{sTMP}, s{sMP}, 7
    s_add_u32 s{sTMP}, s{sTMP}, {FH}
    v_lshl_add_u32 v{vF}, v{vF}, 4, s{sTMP}
    s_mov_b64 exec, 0xfffffff
    v_add_u32 v{vF}, {FW}, v{hL16}
    s_mov_b64 exec, -1
    s_mov_b32 s{sCNT}, {POLL_MAX}
    """)
    p.flush()
    p(f"""
    K_PH:
    buffer_load_dwordx4 {vr(XR,4)}, v{vF}, s[{sWS}:{sWS+3}], 0 offen sc1
    s_sub_u32 s{sCNT}, s{sCNT}, 1
    s_cmp_eq_u32 s{sCNT}, 0
    s_waitcnt vmcnt(0)
    s_cbranch_scc1 K_PHX
    v_xor_b32 v{XR}, s{sEP}, v{XR}
    v_xor_b32 v{XR+1}, s{sEP}, v{XR+1}
    v_xor_b32 v{XR+2}, s{sEP}, v{XR+2}
    v_xor_b32 v{XR+3}, s{sEP}, v{XR+3}
    v_or3_b32 v{XR}, v{XR}, v{XR+1}, v{XR+2}
    v_or_b32 v{XR}, v{XR}, v{XR+3}
    v_cmp_ne_u32 vcc, 0, v{XR}
    s_nop 1
    s_cbranch_vccz K_PHX
    s_sleep {E("SLH", "8")}
    s_branch K_PH
    K_PHX:
    ds_write_b32 v{G0}, v{G0+1}
    s_branch K_PLX
    K_PL:
    s_mov_b32 s{sCNT}, {POLL_MAX*4}
    K_PL1:
    s_sleep {E('LSL', '8')}
    ds_read_b32 v{G0+2}, v{G0}
    s_sub_u32 s{sCNT}, s{sCNT}, 1
    s_cmp_eq_u32 s{sCNT}, 0
    s_waitcnt lgkmcnt(0)
    s_cbranch_scc1 K_PLX
    v_cmp_ne_u32 vcc, s{sEP}, v{G0+2}
    s_nop 1
    s_cbranch_vccnz K_PL1
    K_PLX:
    s_waitcnt lgkmcnt(0)
    """)
    p.flush()
    stamp(p, 2)
    spin(p, "att", sEP)
    so = [sA0, sA1, sB0, sB1]

    def gload(k):
        b = k % NBUF
        o = [I(f"buffer_load_dwordx4 {Gbuf(b,4*j,4)}, v{hL16}, s[{sWS}:{sWS+3}], s{so[j]} offen offset:{1024*(b%4)} sc1") for j in range(4)]
        if b == 3 or b == NBUF - 1:
            o += [I(f"s_add_u32 s{r}, s{r}, {1024 * (b % 4 + 1)}") for r in so]
        return o

    def gmm(b):
        return [I(f"{MF} {Gacc(u)}, {Gbuf(b,4*(u&1),4)}, {Gbuf(b,8+4*(u>>1),4)}, {Gacc(u)}") for u in (1, 2, 3, 0)]

    for k in range(NBUF - (1 if E("GX") == "il" else 0)):
        p.add(gload(k))
    p(f"s_mov_b32 s{sCNT}, {28 // NBUF - 1}")
    body = [I("K_GL:")]
    for b in range(NBUF):
        if E("GX") == "il":
            m, l = gmm(b), gload((b - 1) % NBUF)
            for i in range(4):
                body += [m[i], l[i]]
            body += l[4:]
        else:
            body += gmm(b) + gload(b)
        if E("GSL"):
            body.append(I(f"s_sleep {E('GSL')}"))
    body += [I(f"s_sub_u32 s{sCNT}, s{sCNT}, 1"), I(f"s_cmp_lg_u32 s{sCNT}, 0"), I("s_cbranch_scc1 K_GL")]
    p.loop(body)
    if E("GX") == "il":
        p.add(gload(NBUF - 1))
    p(f"""
    s_lshl_b32 s{sTMP}, s{sWAVE}, 13
    s_lshl_b32 s{sA0}, s{sNT}, 15
    s_add_u32 s{sA0}, s{sA0}, s{sTMP}
    s_add_u32 s{sA0}, s{sA0}, {WOF}
    s_xor_b32 s{sA1}, s{sA0}, 0x8000
    s_lshl_b32 s{sB0}, s{sMT}, 15
    s_add_u32 s{sB0}, s{sB0}, s{sTMP}
    s_add_u32 s{sB0}, s{sB0}, {OF}
    s_xor_b32 s{sB1}, s{sB0}, 0x8000
    """)
    p(f"""
    v_and_b32 v{vF}, 7, v0
    s_lshl_b32 s{sTMP}, s{sWAVE}, 5
    s_add_u32 s{sTMP}, s{sTMP}, {FW + 128*4}
    v_lshl_add_u32 v{vF}, v{vF}, 2, s{sTMP}
    buffer_load_dword v{XR}, v{vF}, s[{sWS}:{sWS+3}], 0 offen sc1
    """)
    for b in range(NBUF):
        p.add(gmm(b))
    p(f"""
    v_cmp_ne_u32 vcc, s{sEP}, v{XR}
    s_nop 1
    s_cbranch_vccz K_PWOX
    """)
    poll(p, "K_PWO", XR, vF, sWS, "0", sEP, sCNT, 24)
    for s in range(8):
        if s == 4:
            for r in (sA0, sA1):
                p(f"s_add_u32 s{r}, s{r}, 4096")
        for j in range(2):
            p(f"buffer_load_dwordx4 {ar(WO+8*s+4*j,4)}, v{hL16}, s[{sWS}:{sWS+3}], s{so[j]} offen offset:{1024*(s%4)} sc1")
    stamp(p, 3)
    p(f"""
    s_cmp_lg_u32 s{sWAVE}, 0
    s_cbranch_scc1 K_POX
    v_and_b32 v{vF}, 3, v0
    v_lshlrev_b32 v{vF}, 2, v{vF}
    v_add_u32 v{vF}, {EPA+16}, v{vF}
    s_mov_b32 s{sCNT}, {POLL_MAX*4}
    """)
    p.flush()
    keep = p.tr.copy()
    p(f"""
    K_PA:
    s_sleep {E('LSL', '8')}
    ds_read_b32 v{XR}, v{vF}
    s_sub_u32 s{sCNT}, s{sCNT}, 1
    s_cmp_eq_u32 s{sCNT}, 0
    s_waitcnt lgkmcnt(0)
    s_cbranch_scc1 K_PAX
    v_cmp_ne_u32 vcc, s{sEP}, v{XR}
    s_nop 1
    s_cbranch_vccnz K_PA
    K_PAX:
    v_and_b32 v{vF}, 31, v0
    v_lshlrev_b32 v{vF}, 2, v{vF}
    s_lshl_b32 s{sTMP}, s{sMP}, 7
    s_add_u32 s{sTMP}, s{sTMP}, {FO}
    """)
    stamp(p, 4)
    poll(p, "K_PO", XR, vF, sWS, f"s{sTMP}", sEP, sCNT, E("SL1", "8"))
    p.tr = keep
    p("s_barrier")
    stamp(p, 5)
    OFv = Gv[0]
    for s in range(8):
        if s == 4:
            for r in (sB0, sB1):
                p(f"s_add_u32 s{r}, s{r}, 4096")
        for j in range(2):
            p(f"buffer_load_dwordx4 {vr(OFv+8*s+4*j,4)}, v{hL16}, s[{sWS}:{sWS+3}], s{so[2+j]} offen offset:{1024*(s%4)} sc1")
    for s in range(8):
        for u in (1, 2, 3, 0):
            p(f"{MF} {Gacc(u)}, {ar(WO+8*s+4*(u&1),4)}, {vr(OFv+8*s+4*(u>>1),4)}, {Gacc(u)}")
    stamp(p, 6)
    for u in range(1, 4):
        for q in range(4):
            p(f"ds_write_b128 v{vAs[u]}, {ar(16*(u-1)+4*q,4)} offset:{1024*q}")
    p("s_waitcnt lgkmcnt(0)")
    p("s_barrier")
    R = Gv[0]
    for i in range(3):
        for q in range(4):
            p(f"ds_read_b128 {vr(R+16*i+4*q,4)}, v{vRA} offset:{4096*i+1024*q}")
    for i in range(3):
        for r in range(0, 16, 2):
            p(f"v_pk_add_f32 {vr(AC0+r,2)}, {vr(AC0+r,2)}, {vr(R+16*i+r,2)}")
    PK = XR
    for i in range(8):
        p(f"v_cvt_pk_bf16_f32 v{PK+i}, v{AC0+2*i}, v{AC0+2*i+1}")
    for qq in range(2):
        p(f"v_permlane32_swap_b32 v{PK+4*qq}, v{PK+4*qq+2}")
        p(f"v_permlane32_swap_b32 v{PK+4*qq+1}, v{PK+4*qq+3}")
    for qq in range(2):
        p(f"buffer_store_dwordx4 {vr(PK+4*qq,4)}, v{vXO}, s[{sOUT}:{sOUT+3}], s{sTMP3} offen offset:{32*qq}")
    spin(p, "end", sEP)
    stamp_out(p, 7, sWS, sWAVE, 2, 3, wave_add=4)
    p("K_END:")
    p("s_endpgm")
    return p.text()


HEADER = f"""; Kernarg layout for this problem (72 bytes, ptrs only, base s[0:1]):
; @launch grid=(256,1,1) block=(512,1,1) lds={LDS_BYTES}
.amdgcn_target "amdgcn-amd-amdhsa--gfx950"
.text
.globl {NAME}_kernel
.p2align 8
.type {NAME}_kernel,@function
{NAME}_kernel:
"""

KD = f"""
.section .rodata,"a"
.p2align 6
.amdhsa_kernel {NAME}_kernel
  .amdhsa_next_free_vgpr 256
  .amdhsa_next_free_sgpr {{ns}}
  .amdhsa_accum_offset 256
  .amdhsa_group_segment_fixed_size 0
  .amdhsa_kernarg_size 72
  .amdhsa_user_sgpr_count 2
  .amdhsa_user_sgpr_kernarg_segment_ptr 1
  .amdhsa_system_sgpr_workgroup_id_x 1
.end_amdhsa_kernel
"""


def main():
    global STAMP
    STAMP = len(sys.argv) > 2 and sys.argv[2] == "stamp"
    txt = HEADER + gen() + KD.format(ns=100 if STAMP else 64)
    out = sys.argv[1] if len(sys.argv) > 1 else f"cdna_kernels/{NAME}.s"
    open(out, "w").write(txt)
    print("wrote", out, len(txt), "bytes")


if __name__ == "__main__":
    main()
```

```python
import sys, struct, os
from asmgen import *

NAME = "parallel_sum__mha_block__dense_activation_relu__prompt"
E = os.environ.get

QF = 0
KVF = 2 << 20
HF = 6 << 20
W2F = 13 << 20
WOF = 15 << 20
OF = 16 << 20
FLG = 18 << 20
FQ = FLG
FH = FLG + 4096
FW = FLG + 8192
FO = FLG + 12288
WS_BYTES = 19 << 20

XB = 2048 * 448 * 2
WQKVB = 448 * 1344 * 2
WOB = 448 * 448 * 2
W1B = 448 * 1792 * 2
W2B = 1792 * 448 * 2

MF = "v_mfma_f32_32x32x16_bf16"
M16 = "v_mfma_f32_16x16x32_bf16"

SLOT = 28672
WAB = 64 * 192
CFA = 5 * SLOT
VSC = CFA + 7168
EPA = VSC + 4096
STQ, STH1, STH2 = 1 * SLOT, 2 * SLOT, 3 * SLOT
LDS_BYTES = EPA + 64
REF_OFF = 90.0
L_LIMIT = 2.0 ** 110
POLL_MAX = 0x40000


def f32bits(x):
    return struct.unpack("<I", struct.pack("<f", x))[0]


def vr(b, n):
    return f"v[{b}:{b+n-1}]"


def ar(b, n):
    return f"v[{128+b}:{128+b+n-1}]"


def srd(p, d, base, nbytes):
    p(f"""
    s_mov_b32 s{d}, s{base}
    s_and_b32 s{d+1}, s{base+1}, 0xffff
    s_mov_b32 s{d+2}, {nbytes}
    s_mov_b32 s{d+3}, 0x00020000
    """)


STAMP = False
STAMP_BASE = 32 << 20


def stamp(p, i, diag=None):
    if E("DIAG") and i > 0 and i < 7 and diag != E("DIAG"):
        return
    if not E("DIAG") and diag:
        return
    if STAMP:
        p(f"s_memrealtime s[{64+4*i}:{65+4*i}]")
        p(f"s_memtime s[{66+4*i}:{67+4*i}]")
        p("s_waitcnt lgkmcnt(0)")


def stamp_out(p, n, sWS, sWAVE, vtmp=1, vtmp2=2, wave_add=0):
    if not STAMP:
        return
    p("s_waitcnt vmcnt(0) lgkmcnt(0)")
    stamp(p, n)
    p(f"v_mov_b32 v{vtmp}, 0")
    for i in range(n + 1):
        p(f"v_writelane_b32 v{vtmp}, s{64+4*i}, {i}")
        p(f"v_writelane_b32 v{vtmp}, s{66+4*i}, {16+i}")
    p(f"""
    s_lshl_b32 s62, s2, 3
    s_add_u32 s62, s62, s{sWAVE}
    s_add_u32 s62, s62, {wave_add}
    s_lshl_b32 s62, s62, 8
    s_add_u32 s62, s62, {STAMP_BASE}
    v_lshlrev_b32 v{vtmp2}, 2, v0
    s_mov_b32 s{sWS+2}, {64 << 20}
    buffer_store_dword v{vtmp}, v{vtmp2}, s[{sWS}:{sWS+3}], s62 offen
    """)


def spin(p, where, sEP):
    if E("SPIN") != where:
        return
    uid = spin.n = getattr(spin, "n", 0) + 1
    p.flush()
    p(f"""
    SPB{uid}:
    s_sleep 1
    s_memrealtime s[60:61]
    s_waitcnt lgkmcnt(0)
    s_sub_u32 s60, s60, s{sEP}
    s_cmp_lt_u32 s60, {E("SPINX", "6000")}
    s_cbranch_scc1 SPB{uid}
    """)
    p.flush()


def poll(p, name, vdst, vaddr, sWS, soff, sEP, sCNT, sleep):
    p.flush()
    p(f"""
    s_mov_b32 s{sCNT}, {POLL_MAX}
    {name}:
    s_sleep {sleep}
    buffer_load_dword v{vdst}, v{vaddr}, s[{sWS}:{sWS+3}], {soff} offen sc1
    s_sub_u32 s{sCNT}, s{sCNT}, 1
    s_cmp_eq_u32 s{sCNT}, 0
    s_waitcnt vmcnt(0)
    s_cbranch_scc1 {name}X
    v_cmp_ne_u32 vcc, s{sEP}, v{vdst}
    s_nop 1
    s_cbranch_vccnz {name}
    {name}X:
    """)
    p.flush()


def gen():
    p = Prog()
    sX, sW, sW2, sWS, sKVR = 4, 8, 12, 16, 56
    (sWAVE, sMT, sG, sTMP, sTMP2, sTMP3, sST, sTY, sM0, sXO, sT, sONE, sOA, sOB, sEP, sCNT,
     sJ, sI, sHEAD, sQB) = range(20, 40)
    sKV, sKV2, sKV0 = sXO, sOA, sOB
    sVS, sVT = sM0, sONE
    p(f"""
    s_cmp_ge_u32 s2, 256
    s_cbranch_scc1 K_END
    s_load_dwordx4 s[40:43], s[0:1], 0
    s_load_dwordx2 s[44:45], s[0:1], 16
    s_load_dwordx8 s[48:55], s[0:1], 32
    s_load_dwordx2 s[46:47], s[0:1], 64
    v_lshrrev_b32 v1, 6, v0
    v_and_b32 v0, 63, v0
    v_readfirstlane_b32 s{sWAVE}, v1
    s_and_b32 s{sJ}, s2, 7
    s_lshr_b32 s{sI}, s2, 3
    s_lshr_b32 s{sMT}, s{sJ}, 1
    s_lshl_b32 s{sMT}, s{sMT}, 2
    s_and_b32 s{sTMP}, s{sI}, 3
    s_add_u32 s{sMT}, s{sMT}, s{sTMP}
    s_lshl_b32 s{sMT}, s{sMT}, 2
    s_and_b32 s{sG}, s{sJ}, 1
    s_lshl_b32 s{sG}, s{sG}, 3
    s_lshr_b32 s{sTMP}, s{sI}, 2
    s_add_u32 s{sG}, s{sG}, s{sTMP}
    s_cmp_ge_u32 s{sWAVE}, 4
    s_cbranch_scc1 K_HELPER
    s_and_b32 s{sTMP}, s{sI}, {E("CPFM", "7")}
    s_cmp_lg_u32 s{sTMP}, 0
    s_cbranch_scc1 K_COMP
    s_getpc_b64 s[60:61]
    K_PC:
    s_sub_u32 s60, s60, K_PC-{NAME}_kernel
    s_subb_u32 s61, s61, 0
    s_lshl_b32 s{sTMP}, s{sWAVE}, 7
    v_lshl_add_u32 v2, v0, 9, s{sTMP}
    v_min_u32 v2, K_LAST-{NAME}_kernel-4, v2
    global_load_dword v12, v2, s[60:61]
    s_branch K_COMP
    """)
    p.flush()
    p.tr.vm = []
    cut1 = len(p.out)
    p("K_COMP:")
    p("s_waitcnt lgkmcnt(0)")
    stamp(p, 0)
    srd(p, sWS, 46, WS_BYTES)

    def tr_lane(dstA, dstB0, dstB1, t0, t1):
        p(f"""
        v_lshrrev_b32 v{t0}, 5, v0
        v_lshlrev_b32 v{t0}, 3, v{t0}
        v_bfe_u32 v{t1}, v0, 2, 2
        v_add_u32 v{t0}, v{t0}, v{t1}
        v_bfe_u32 v{t1}, v0, 4, 1
        v_lshlrev_b32 v{dstB0}, 5, v{t1}
        v_and_b32 v{t1}, 3, v0
        v_lshl_add_u32 v{dstB0}, v{t1}, 3, v{dstB0}
        v_mul_u32_u24 v{dstA}, 192, v{t0}
        v_add_u32 v{dstA}, v{dstA}, v{dstB0}
        v_lshl_add_u32 v{dstB0}, v{t0}, 7, v{dstB0}
        v_bfe_u32 v{t1}, v0, 3, 1
        v_lshl_add_u32 v{dstB0}, v{t1}, 6, v{dstB0}
        v_xor_b32 v{dstB1}, 64, v{dstB0}
        """)

    X = 0
    CFt, XM = 112, 116
    accs = [16, 32, 48, 64, 80, 16, 32]
    NW = int(E('NW', '8'))
    WF = 96
    GR, SX, ONEc, vXA, vLA, vXC, vSW, vSR = 64, 80, 84, 88, 92, 93, 94, 95
    ST = 72
    vL16, vLB0, vLB1, vC0, vC1, vCF, vA, vRINV, vVW, vVR, vMA, vOA, vT0, vT1, vPL = range(1, 16)
    p(f"s_add_u32 s{sMT}, s{sMT}, s{sWAVE}")
    tr_lane(vLA, vLB0, vLB1, vA, vRINV)
    p(f"""
    v_lshrrev_b32 v{vT1}, 5, v0
    v_and_b32 v{vT0}, 31, v0
    v_bfe_u32 v{vA}, v0, 1, 3
    v_xor_b32 v{vA}, v{vT1}, v{vA}
    s_lshl_b32 s{sTMP}, s{sWAVE}, 12
    s_add_u32 s{sTMP}, s{sTMP}, {WAB}
    v_lshl_add_u32 v{vRINV}, v{vT0}, 7, s{sTMP}
    v_lshlrev_b32 v{vL16}, 4, v0
    """)
    for sp in range(4):
        p(f"v_xor_b32 v{vXA+sp}, {2*sp}, v{vA}")
        p(f"v_lshl_add_u32 v{vXA+sp}, v{vXA+sp}, 4, v{vRINV}")
    p(f"""
    v_and_b32 v{vA}, 15, v0
    v_bfe_u32 v{vRINV}, v0, 4, 1
    v_mov_b32 v{vCF}, 0x3f803f80
    v_cmp_eq_u32 vcc, v{vA}, v{vRINV}
    v_cndmask_b32 v{ONEc}, 0, v{vCF}, vcc
    v_mov_b32 v{ONEc+1}, v{ONEc}
    v_mov_b32 v{ONEc+2}, v{ONEc}
    v_mov_b32 v{ONEc+3}, v{ONEc}
    v_add_u32 v{vCF}, {CFA}, v{vL16}
    v_mov_b64 {vr(GR,2)}, 0
    v_mov_b64 {vr(GR+2,2)}, 0
    v_mov_b64 {vr(GR+4,2)}, 0
    v_mov_b64 {vr(GR+6,2)}, 0
    s_mov_b32 s{sONE}, 0x3f803f80
    s_mul_i32 s{sT}, s{sG}, 3
    s_lshl_b32 s{sTMP}, s{sWAVE}, 10
    s_add_u32 s{sTMP}, s{sTMP}, {VSC}
    v_lshl_add_u32 v{vSW}, v{vT0}, 4, s{sTMP}
    v_and_b32 v{vA}, 3, v0
    v_lshl_add_u32 v{vSR}, v{vA}, 2, v{vSW}
    s_lshl_b32 s{sTMP}, s{sWAVE}, 11
    s_add_u32 s{sTMP}, s{sTMP}, {STQ}
    v_add_u32 v{vVW}, s{sTMP}, v{vL16}
    s_lshl_b32 s{sHEAD}, s{sJ}, 1
    s_and_b32 s{sTMP}, s{sI}, 1
    s_add_u32 s{sHEAD}, s{sHEAD}, s{sTMP}
    s_lshr_b32 s{sQB}, s{sI}, 1
    """)
    p(f"""
    s_add_u32 s{sTMP}, s{sHEAD}, 16
    s_mul_i32 s{sTMP}, s{sTMP}, 43
    s_lshr_b32 s{sTMP}, s{sTMP}, 7
    s_lshl_b32 s{sTMP}, s{sTMP}, 8
    v_mov_b32 v{vPL}, s{sTMP}
    s_lshl_b32 s{sTMP2}, s{sWAVE}, 6
    s_add_u32 s{sTMP}, s{sTMP}, s{sTMP2}
    v_and_b32 v{vA}, 15, v0
    s_mov_b64 exec, 0xffff
    v_lshl_add_u32 v{vPL}, v{vA}, 2, s{sTMP}
    s_add_u32 s{sTMP}, s{sHEAD}, 32
    s_mul_i32 s{sTMP}, s{sTMP}, 43
    s_lshr_b32 s{sTMP}, s{sTMP}, 7
    s_lshl_b32 s{sTMP}, s{sTMP}, 8
    s_add_u32 s{sTMP}, s{sTMP}, s{sTMP2}
    s_mov_b32 exec_lo, 0xffff0000
    v_lshl_add_u32 v{vPL}, v{vA}, 2, s{sTMP}
    s_mul_i32 s{sTMP}, s{sHEAD}, 43
    s_lshr_b32 s{sTMP}, s{sTMP}, 7
    s_lshl_b32 s{sTMP}, s{sTMP}, 8
    s_lshl_b32 s{sTMP2}, s{sQB}, 4
    s_add_u32 s{sTMP}, s{sTMP}, s{sTMP2}
    s_mov_b32 exec_lo, 0
    s_mov_b32 exec_hi, 15
    v_lshl_add_u32 v{vPL}, v{vA}, 2, s{sTMP}
    s_mov_b64 exec, -1
    v_add_u32 v{vPL}, {FQ}, v{vPL}
    """)

    seq = []
    for st in range(7):
        for sp in range(4):
            for j in range(3):
                seq.append((st, 4 * st + sp, j))
    for ph in range(2):
        for hs in range(2):
            for sp in range(14):
                for j in range(2):
                    seq.append((7 + 2 * ph + hs, 14 * hs + sp, 3 + 2 * ph + j))
    NA = 84

    def rdw(n):
        st, s, j = seq[n]
        b = WF + 4 * (n % NW)
        if st < 7:
            va, off, d = vC0, (s & 3) * 16 * 192 + 64 * j, 4 * 192
        else:
            va, off, d = (vC0 if (j - 3) % 2 == 0 else vC1), (s % 14) * 16 * 128, 4 * 128
        return [I(f"ds_read_b64_tr_b16 {vr(b,2)}, v{va} offset:{off}"),
                I(f"ds_read_b64_tr_b16 {vr(b+2,2)}, v{va} offset:{off+d}")]

    def mfma(n):
        st, s, j = seq[n]
        acc = vr(accs[j], 16)
        return I(f"{MF} {acc}, {vr(WF+4*(n%NW),4)}, {ar(X+4*s,4)}, {'0' if s == 0 else acc}")

    def enter(st):
        base = (st % 5) * SLOT
        o = [I("s_waitcnt lgkmcnt(0)"), I("s_barrier")] if st <= 7 else []
        if st < 7:
            o.append(I(f"v_add_u32 v{vC0}, {base}, v{vLA}"))
            for sp in range(4):
                o.append(I(f"v_add_u32 v{vXC}, {base}, v{vXA+sp}"))
                o.append(I(f"ds_read_b128 {ar(X+4*(4*st+sp),4)}, v{vXC}"))
        elif st < 11:
            o.append(I(f"v_add_u32 v{vC0}, {base}, v{vLB0}"))
            o.append(I(f"v_add_u32 v{vC1}, {base}, v{vLB1}"))
        return o

    def stats(st):
        mm, va = [], []
        for sp in range(4):
            s_ = 4 * st + sp
            mm.append(I(f"{M16} {vr(SX,4)}, {vr(ONEc,4)}, {ar(X+4*s_,4)}, {'0' if s_ == 0 else vr(SX,4)}"))
            for d in range(4):
                x, e = 128 + X + 4 * s_ + d, GR + 4 + 2 * (d & 1)
                va += [I(f"v_lshlrev_b32 v{e}, 16, v{x}"),
                       I(f"v_and_b32 v{e+1}, 0xffff0000, v{x}"),
                       I(f"v_fmac_f32 v{GR+2*(d&1)}, v{e}, v{e}"),
                       I(f"v_fmac_f32 v{GR+2*(d&1)+1}, v{e+1}, v{e+1}")]
        return mm, va

    AH = NW - 1

    def stream(n0, n1, fill, rs, limit):
        out = []
        q = rs.setdefault("q", [])
        RL = int(E("RL", "4"))

        def refill(n):
            while rs["next"] <= min(n + AH, limit - 1):
                m = rs["next"]
                if seq[m][0] != rs["stage"]:
                    en = enter(seq[m][0])
                    if en[0].kind == "valu":
                        q.extend(("rd", m, [x]) for x in en)
                    else:
                        q.append(("bar", m, en))
                    rs["stage"] = seq[m][0]
                for x in rdw(m):
                    q.append(("rd", m, [x]))
                rs["next"] = m + 1

        def drain(n, budget):
            rs["slot"] = rs.get("slot", 0) + 1
            while q:
                kind, m, ins = q[0]
                must = m <= n + 2
                if kind == "bar":
                    if rs["slot"] < rs["last_at"] + 2 and not must:
                        break
                    q.pop(0)
                    k = [i for i, x in enumerate(ins) if x.op == "s_barrier"][0] + 1
                    while k < len(ins) and ins[k].kind != "valu":
                        k += 1
                    out.extend(ins[:k])
                    rest = ins[k:]
                    q[:0] = [("rd", m, [x]) for x in rest]
                    budget -= 1
                    continue
                if budget <= 0 and not must:
                    break
                q.pop(0)
                out.extend(ins)
                if ins[0].kind == "ds":
                    budget -= 2 if "b128" in ins[0].op else 1
                    rs["last_at"] = rs["slot"]

        for n in range(n0, n1):
            out.append(mfma(n))
            refill(n)
            drain(n, RL)
            if fill and (n - n0) in fill:
                for x in fill[n - n0]:
                    out.append(x)
                    if x.kind == "mfma":
                        drain(n, RL if x.passes == 8 else 1)
        return out

    rs = {"next": 0, "stage": 0, "last_at": -9}
    p.add(enter(0))
    stamp(p, 1)
    for m in range(AH):
        p.add(rdw(m))
    rs["next"] = AH
    for st in range(7):
        if st == 4:
            p(f"v_mov_b32 v{vT0}, 0")
            p(f"global_load_dword v{vT1}, v{vT0}, s[54:55] sc0 sc1")
        n = 12 if st < 6 else 9
        dots = []
        for r in range(16):
            x = 128 + X + 16 * st + r
            dots.append(I(f"v_dot2c_f32_bf16 v{GR+(r&3)}, s{sONE}, v{x}"))
            dots.append(I(f"v_dot2c_f32_bf16 v{GR+4+(r&3)}, v{x}, v{x}"))
        p.add(stream(12 * st, 12 * st + n, {n - 1: dots}, rs, NA))
    T = ST
    fin = [I(x.strip()) for x in f"""
    v_add_f32 v{GR}, v{GR}, v{GR+1}
    v_add_f32 v{GR+4}, v{GR+4}, v{GR+5}
    v_add_f32 v{GR+2}, v{GR+2}, v{GR+3}
    v_add_f32 v{GR+6}, v{GR+6}, v{GR+7}
    v_add_f32 v{T}, v{GR}, v{GR+2}
    v_add_f32 v{T+4}, v{GR+4}, v{GR+6}
    v_mov_b32 v{T+1}, v{T}
    v_mov_b32 v{T+5}, v{T+4}
    v_permlane32_swap_b32 v{T}, v{T+1}
    v_permlane32_swap_b32 v{T+4}, v{T+5}
    v_add_f32 v{T}, v{T}, v{T+1}
    v_add_f32 v{T+4}, v{T+4}, v{T+5}
    v_mul_f32 v{T}, {f32bits(1.0/448.0):#x}, v{T}
    v_mul_f32 v{T+4}, {f32bits(1.0/448.0):#x}, v{T+4}
    v_fma_f32 v{T+4}, -v{T}, v{T}, v{T+4}
    v_cvt_pk_bf16_f32 v{T+1}, -v{T}, -v{T}
    v_max_f32 v{T+4}, 0, v{T+4}
    v_and_b32 v{T+2}, 0xffff, v{T+1}
    v_cvt_pk_bf16_f32 v{T+4}, v{T+4}, v{T+4}
    v_mov_b32 v{128+(XM)}, v{T+1}
    v_and_b32 v{T+4}, 0xffff0000, v{T+4}
    v_mov_b32 v{128+(XM+1)}, v{T+2}
    v_add_f32 v{T+4}, {f32bits(1e-5):#x}, v{T+4}
    v_mov_b32 v{128+(XM+2)}, v{T+1}
    v_cvt_pk_bf16_f32 v{T+4}, v{T+4}, v{T+4}
    v_mov_b32 v{128+(XM+3)}, v{T+2}
    v_and_b32 v{T+4}, 0xffff0000, v{T+4}
    v_sqrt_f32 v{T+4}, v{T+4}
    v_mov_b32 v{T}, {EPA}
    v_cvt_pk_bf16_f32 v{T+4}, v{T+4}, v{T+4}
    v_and_b32 v{T+4}, 0xffff0000, v{T+4}
    v_rcp_f32 v{vRINV}, v{T+4}
    v_readfirstlane_b32 s{sEP}, v{vT1}
    """.strip().split("\n")]
    p.add(fin)
    p(f"""
    s_cmp_lg_u32 s{sEP}, 0
    s_cbranch_scc1 K_GEX
    """)
    p.add(opt([f"s_mov_b32 s{sCNT}, {POLL_MAX}",
               "K_GE:",
               f"global_load_dword v{vT1}, v{vT0}, s[54:55] sc0 sc1",
               f"s_sub_u32 s{sCNT}, s{sCNT}, 1",
               f"s_cmp_eq_u32 s{sCNT}, 0",
               "s_waitcnt vmcnt(0)",
               "s_cbranch_scc1 K_GEX",
               f"v_readfirstlane_b32 s{sEP}, v{vT1}",
               "s_sleep 4",
               f"s_cmp_eq_u32 s{sEP}, 0",
               "s_cbranch_scc1 K_GE"]))
    p(f"""
    K_GEX:
    ds_write_b32 v{T}, v{vT1}
    """)
    spin(p, "a", sEP)
    p(f"""
    s_cmp_ge_u32 s{sG}, 14
    s_cbranch_scc1 K_SHORT
    """)
    p.flush()
    tr_s, rs_s, hist_s = p.tr.copy(), dict(rs, q=list(rs["q"])), list(p.out[-60:])
    p.add(stream(NA - 3, NA, None, rs, len(seq)))
    stamp(p, 2)
    stamp(p, 1, "B")
    c = (28 ** -0.5) * 1.4426950408889634

    def epi(j, packed=False):
        qkv = j < 3
        acc = accs[j]
        cf = [CFt, 120, 124][j % 3]
        g0 = [I(f"ds_read_b128 {ar(cf,4)}, v{vCF} offset:{1024*j}")]
        g1 = [I(f"{MF} {vr(acc,16)}, {ar(cf,4)}, {ar(XM,4)}, {vr(acc,16)}")]
        g2 = []
        sc = vRINV
        if qkv:
            sc = vA
            g2 += [I(x) for x in [
                f"s_cmp_lt_u32 s{sT}, {16-j}",
                f"s_cselect_b32 s{sTMP}, {f32bits(c):#x}, 1.0",
                f"v_mul_f32 v{vA}, s{sTMP}, v{vRINV}"]]
        off = 8192 * j if qkv else (STH1 - STQ if j < 5 else STH2 - STQ) + 8192 * ((j - 3) & 1)
        for i in range(8):
            if packed:
                e2 = sc & ~1
                sel = "op_sel_hi:[1,0]" if sc == e2 else "op_sel:[0,1]"
                g2.append(I(f"v_pk_mul_f32 {vr(acc+2*i,2)}, {vr(acc+2*i,2)}, {vr(e2,2)} {sel}"))
            else:
                g2.append(I(f"v_mul_f32 v{acc+2*i}, v{sc}, v{acc+2*i}"))
                g2.append(I(f"v_mul_f32 v{acc+2*i+1}, v{sc}, v{acc+2*i+1}"))
            g2.append(I(f"v_cvt_pk_bf16_f32 v{acc+i}, v{acc+2*i}, v{acc+2*i+1}"))
            if i & 3 == 3:
                o = off + 1024 * (i >> 2)
                va = vVW if o < 65536 else vVR
                g2.append(I(f"ds_write_b128 v{va}, {vr(acc+i-3,4)} offset:{o if o < 65536 else o - 32768}", tag="stg"))
        return g0, g1, g2

    def plan(tiles, start, span):
        fill = {}

        def put(i, l):
            fill.setdefault(i, []).extend(l)
        e = [epi(j) for j in tiles]
        put(start, e[0][0] + e[1][0])
        put(start + 2, e[0][1])
        put(start + 3, e[1][1])
        if len(e) > 2:
            put(start + 3, e[2][0])
            put(start + 6, e[2][1])
        allv = [x for g in e for x in g[2]]
        b2 = start + 4
        for i, x in enumerate(allv):
            put(b2 + (i * (span - 4)) // len(allv), [x])
        return fill

    S = [48, 64]
    P = [80, 88]
    O0 = 96
    KR = 48
    Q = 0
    KV = [32, 48]
    OA = 64

    def att_loads():
        o = [f"s_lshl_b32 s{sKV0}, s{sHEAD}, 18",
             f"s_add_u32 s{sKV0}, s{sKV0}, {KVF}",
             f"buffer_load_dwordx4 {vr(KR,4)}, v{vL16}, s[{sWS}:{sWS+3}], s{sKV0} offen sc1",
             f"buffer_load_dwordx4 {vr(KR+4,4)}, v{vL16}, s[{sWS}:{sWS+3}], s{sKV0} offen offset:1024 sc1",
             f"s_lshl_b32 s{sTMP}, s{sHEAD}, 6",
             f"s_lshl_b32 s{sTMP2}, s{sQB}, 2",
             f"s_add_u32 s{sTMP}, s{sTMP}, s{sTMP2}"]
        for u in range(4):
            o += [f"s_xor_b32 s{sTMP2}, s{sWAVE}, {(u+1)&3}",
                  f"s_add_u32 s{sTMP2}, s{sTMP2}, s{sTMP}",
                  f"s_lshl_b32 s{sTMP2}, s{sTMP2}, 11",
                  f"buffer_load_dwordx4 {ar(Q+8*u,4)}, v{vL16}, s[{sWS}:{sWS+3}], s{sTMP2} offen sc1",
                  f"buffer_load_dwordx4 {ar(Q+8*u+4,4)}, v{vL16}, s[{sWS}:{sWS+3}], s{sTMP2} offen offset:1024 sc1"]
        o += [f"s_lshl_b32 s{sTMP}, s{sWAVE}, 16",
              f"s_add_u32 s{sKV}, s{sKV0}, s{sTMP}",
              f"s_add_u32 s{sKV2}, s{sKV}, 4096"]
        for j in range(4):
            o.append(f"buffer_load_dwordx4 {ar(KV[0]+4*j,4)}, v{vL16}, s[{sWS}:{sWS+3}], s{sKV} offen offset:{1024*j} sc1")
        for j in range(2):
            o.append(f"buffer_load_dwordx4 {ar(KV[1]+4*j,4)}, v{vL16}, s[{sWS}:{sWS+3}], s{sKV2} offen offset:{1024*j} sc1")
        return [I(x) for x in o]

    def poll_opt(name, sleep):
        o = [I(f"v_cmp_ne_u32 vcc, s{sEP}, v{vT1}"), I("s_nop 1"), I(f"s_cbranch_vccz {name}X")]
        o += opt([f"s_mov_b32 s{sCNT}, {POLL_MAX}",
                  f"{name}:",
                  f"s_sleep {sleep}",
                  f"buffer_load_dword v{vT1}, v{vPL}, s[{sWS}:{sWS+3}], 0 offen sc1",
                  f"s_sub_u32 s{sCNT}, s{sCNT}, 1",
                  f"s_cmp_eq_u32 s{sCNT}, 0",
                  "s_waitcnt vmcnt(0)",
                  f"s_cbranch_scc1 {name}X",
                  f"v_cmp_ne_u32 vcc, s{sEP}, v{vT1}",
                  "s_nop 1",
                  f"s_cbranch_vccnz {name}"])
        o += [I(f"{name}X:")]
        return o

    HSPAN, PPOS, CPOS = int(E("HSPAN", "30")), int(E("PPOS", "30")), int(E("CPOS", "42"))
    p(f"v_add_u32 v{vVR}, 32768, v{vVW}")

    def qkv_epilogue():
        e = [epi(j, True) for j in range(3)]
        p.add(e[0][0] + e[1][0] + e[2][0] + e[0][1] + e[1][1] + e[2][1] + e[0][2] + e[1][2] + e[2][2])
        p("s_waitcnt lgkmcnt(0)")
        p("s_barrier")

    qkv_epilogue()
    stamp(p, 1, "C")
    p.add(stream(NA, NA + 56, None, rs, len(seq)))
    stamp(p, 2, "C")
    fc = plan([3, 4], 1, HSPAN)
    fc.setdefault(0, []).append(I("s_barrier"))
    fc.setdefault(HSPAN + 3, []).extend([I("@wait stg"), I("s_barrier")])
    fc.setdefault(PPOS, []).append(I(f"buffer_load_dword v{vT1}, v{vPL}, s[{sWS}:{sWS+3}], 0 offen sc1"))
    ds = (lambda i: [I(f"s_memtime s[{66+4*i}:{67+4*i}]"), I("s_waitcnt lgkmcnt(0)")]) if STAMP and E("DIAG") == "C" else (lambda i: [])
    fc.setdefault(CPOS, []).extend(ds(3) + poll_opt("K_PQ1", E("SLQ", "12")) + ds(4))
    if STAMP and E("DIAG") == "D":
        dd = lambda i: [I(f"s_memtime s[{66+4*i}:{67+4*i}]"), I("s_waitcnt lgkmcnt(0)")]
        fc.setdefault(0, [])[:0] = dd(1)
        fc.setdefault(16, []).extend(dd(2))
        fc.setdefault(HSPAN + 1, []).extend(dd(3))
        fc.setdefault(HSPAN + 3, []).extend(dd(4))
        fc.setdefault(CPOS - 1, []).extend(dd(5))
        fc.setdefault(CPOS, []).extend(dd(6))
    al = att_loads()
    for i, x in enumerate(al):
        fc.setdefault(CPOS + (i * (min(55, CPOS + int(E("LSPAN", "13"))) - CPOS)) // len(al), []).append(x)
    e = [epi(j) for j in (5, 6)]
    fc.setdefault(52, []).extend(e[0][0] + e[1][0])
    p.add(stream(NA + 56, NA + 112, fc, rs, len(seq)))
    stamp(p, 3)
    stamp(p, 5, "C")
    RD = [64, 80, 96, 112]

    def refmm():
        o = []
        for u in range(4):
            d = RD[u]
            o.append(I(f"{MF} {vr(d,16)}, {vr(KR,4)}, {ar(Q+8*u,4)}, 0"))
            o.append(I(f"{MF} {vr(d,16)}, {vr(KR+4,4)}, {ar(Q+8*u+4,4)}, {vr(d,16)}"))
        return o

    p.add(e[0][1] + e[1][1])
    p.add(interleave(refmm(), e[0][2] + e[1][2]))
    p("""
    s_waitcnt lgkmcnt(0)
    s_barrier
    s_branch K_ATT
    """)
    p.flush()
    tr_att = p.tr.copy()

    p.tr = tr_s
    p("K_SHORT:")
    p.add(stream(NA - 3, NA, None, rs_s, NA))
    p("s_waitcnt lgkmcnt(0)")
    p("s_barrier")
    stamp(p, 2)
    qkv_epilogue()
    p("s_barrier")
    stamp(p, 3)
    seq2 = add_waits(p.cur, p.tr)
    p.out += pad_hazards(seq2, hist_s)
    p.cur = []
    poll(p, "K_PQ2", vT1, vPL, sWS, "0", sEP, sCNT, E("SLS", "10"))
    p.add(att_loads())
    p.add(refmm())
    p("s_nop 7")
    p.flush()

    p.tr = tr_att

    def Oacc(u):
        return vr(O0, 16) if u == 3 else ar(OA + 16 * u, 16)

    vA1, vA2, vA3, vRA, vEP = 2, 3, 4, 5, 6
    vAs = [None, vA1, vA2, vA3]
    p(f"""
    K_ATT:
    s_setprio {E("AP", "2")}
    s_mov_b32 s{sKVR}, s{sWS}
    s_mov_b32 s{sKVR+1}, s{sWS+1}
    s_add_u32 s{sKVR+2}, s{sKV}, 65536
    s_mov_b32 s{sKVR+3}, 0x00020000
    v_mov_b32 v{vEP}, s{sEP}
    """)
    for u in range(1, 4):
        p(f"""
        s_xor_b32 s{sTMP}, s{sWAVE}, {u}
        s_mul_i32 s{sTMP}, s{sTMP}, 3
        s_add_u32 s{sTMP}, s{sTMP}, {u-1}
        s_lshl_b32 s{sTMP}, s{sTMP}, 12
        v_add_u32 v{vAs[u]}, s{sTMP}, v{vL16}
        """)
    p(f"""
    s_mul_i32 s{sTMP}, s{sWAVE}, {3*4096}
    v_add_u32 v{vRA}, s{sTMP}, v{vL16}
    s_mov_b32 s{sCNT}, 8
    """)
    M, M2, PC = 24, 28, 40

    def rowmax(m, d):
        p(f"v_max3_f32 v{m}, v{d}, v{d+1}, v{d+2}")
        for r in range(3, 15, 2):
            p(f"v_max3_f32 v{m}, v{m}, v{d+r}, v{d+r+1}")
        p(f"v_max_f32 v{m}, v{m}, v{d+15}")

    def put_ref(units, add):
        for u in units:
            p(f"v_mov_b32 v{M2+u}, v{M+u}")
        for u in units:
            p(f"v_permlane32_swap_b32 v{M+u}, v{M2+u}")
        for u in units:
            m, a, b, cc = M + u, M2 + u, PC + u, PC + 4 + u
            p(f"""
            v_max_f32 v{m}, v{m}, v{a}
            v_sub_f32 v{a}, {f32bits(-add):#x}, v{m}
            v_and_b32 v{b}, 0xffff0000, v{a}
            v_sub_f32 v{a}, v{a}, v{b}
            v_and_b32 v{cc}, 0xffff0000, v{a}
            v_sub_f32 v{a}, v{a}, v{cc}
            v_lshrrev_b32 v{b}, 16, v{b}
            v_or_b32 v{b}, v{b}, v{cc}
            v_lshrrev_b32 v{a}, 16, v{a}
            """)
        p("s_mov_b32 exec_lo, 0")
        for u in units:
            p(f"v_mov_b32 v{128+(Q+8*u+6)}, v{PC+u}")
            p(f"v_mov_b32 v{128+(Q+8*u+7)}, v{M2+u}")
        p("s_mov_b32 exec_lo, -1")

    for u in range(4):
        rowmax(M + u, RD[u])
    put_ref(range(4), REF_OFF)

    def qk(n_u, kb, sbuf):
        k = KV[kb]
        return [I(f"{MF} {vr(S[sbuf],16)}, {ar(k,4)}, {ar(Q+8*n_u,4)}, 0"),
                I(f"{MF} {vr(S[sbuf],16)}, {ar(k+4,4)}, {ar(Q+8*n_u+4,4)}, {vr(S[sbuf],16)}")]

    def pv(u, vb, pbuf):
        v = KV[vb] + 8
        return [I(f"{MF} {Oacc(u)}, {ar(v,4)}, {vr(P[pbuf],4)}, {Oacc(u)}"),
                I(f"{MF} {Oacc(u)}, {ar(v+4,4)}, {vr(P[pbuf]+4,4)}, {Oacc(u)}")]

    def softmax(sb):
        s, pp = S[sb], P[sb]
        v = []
        for i in range(8):
            v.append(I(f"v_exp_f32 v{s+2*i}, v{s+2*i}"))
            v.append(I(f"v_exp_f32 v{s+2*i+1}, v{s+2*i+1}"))
            if i >= 1:
                v.append(I(f"v_cvt_pk_bf16_f32 v{pp+i-1}, v{s+2*i-2}, v{s+2*i-1}"))
        v.append(I(f"v_cvt_pk_bf16_f32 v{pp+7}, v{s+14}, v{s+15}"))
        return v

    def cost(i):
        return 8 if i.is_trans() else 4

    def slot(tb, u):
        nu = (u + 1) & 3
        pu = (u - 1) & 3
        mf = qk(nu, tb if u < 3 else 1 - tb, (u + 1) & 1) + pv(pu, tb if u > 0 else 1 - tb, (u - 1) & 1)
        ld = []
        if u == 0:
            so = sKV2 if tb == 0 else sKV
            ld += [I(f"buffer_load_dwordx4 {ar(KV[1-tb]+8+4*j,4)}, v{vL16}, s[{sKVR}:{sKVR+3}], s{so} offen offset:{2048+1024*j} sc1") for j in range(2)]
        if u == 2:
            so = sKV if tb == 0 else sKV2
            ld += [I(f"buffer_load_dwordx4 {ar(KV[tb]+4*j,4)}, v{vL16}, s[{sKVR}:{sKVR+3}], s{so} offen offset:{1024*j} sc1") for j in range(2)]
        va = softmax(u & 1)
        total = sum(cost(i) for i in va)
        out = []
        k = 0
        acc = 0
        for j, m in enumerate(mf):
            out.append(m)
            tgt = total * (j + 1) / len(mf)
            while k < len(va) and acc + cost(va[k]) / 2 <= tgt:
                out.append(va[k]); acc += cost(va[k]); k += 1
        out += va[k:]
        idx = max(i for i, x in enumerate(out) if x.kind == "mfma")
        if ld:
            out = out[:idx + 1] + interleave(out[idx + 1:], ld)
        return out

    stamp(p, 4)
    spin(p, "att", sEP)
    p.add(qk(0, 0, 0))
    for i in range(0, 48, 2):
        p(f"v_mov_b64 {ar(OA+i,2)}, 0")
    for i in range(0, 8, 2):
        p(f"v_mov_b64 {ar(KV[1]+8+i,2)}, 0")
    for i in range(0, 16, 2):
        p(f"v_mov_b64 {vr(O0+i,2)}, 0")
    for i in range(0, 8, 2):
        p(f"v_mov_b64 {vr(P[1]+i,2)}, 0")
    body = [I(".p2align 6"), I("K_LOOP:")]
    for tb in range(2):
        for u in range(4):
            if u == 1:
                so = sKV if tb == 0 else sKV2
                body.append(I(f"s_add_u32 s{so}, s{so}, 8192"))
            if tb == 1 and u == 3:
                body.append(I(f"s_sub_u32 s{sCNT}, s{sCNT}, 1"))
                body.append(I(f"s_cmp_lg_u32 s{sCNT}, 0"))
            body += slot(tb, u)
    body += [I("s_cbranch_scc1 K_LOOP")]
    p.loop(body)
    stamp(p, 5)
    spin(p, "tail", sEP)
    p.add(pv(3, 1, 1))
    for u in range(1, 4):
        for q in range(4):
            p(f"ds_write_b128 v{vAs[u]}, {ar(OA+16*(u-1)+4*q,4)} offset:{1024*q}")
    p(f"""
    s_lshl_b32 s{sTMP2}, s{sQB}, 2
    s_add_u32 s{sTMP2}, s{sTMP2}, s{sWAVE}
    s_lshl_b32 s{sTMP}, s{sTMP2}, 15
    s_lshl_b32 s{sTMP3}, s{sHEAD}, 11
    s_add_u32 s{sTMP}, s{sTMP}, s{sTMP3}
    s_add_u32 s{sTMP}, s{sTMP}, {OF}
    s_lshl_b32 s{sTMP3}, s{sTMP2}, 4
    s_add_u32 s{sTMP3}, s{sTMP3}, s{sHEAD}
    s_lshl_b32 s{sTMP3}, s{sTMP3}, 2
    s_add_u32 s{sTMP3}, s{sTMP3}, {FO}
    s_lshl_b32 s{sTMP2}, s{sWAVE}, 2
    s_add_u32 s{sTMP2}, s{sTMP2}, {EPA+16}
    v_mov_b32 v16, s{sTMP2}
    v_and_b32 v17, 3, v0
    v_lshlrev_b32 v17, 2, v17
    v_add_u32 v17, {EPA+16}, v17
    ds_write_b32 v16, v{vEP}
    s_mov_b32 s{sKV}, {POLL_MAX*16}
    """)
    p.flush()
    p(f"""
    K_AW:
    ds_read_b32 v18, v17
    s_sub_u32 s{sKV}, s{sKV}, 1
    s_cmp_eq_u32 s{sKV}, 0
    s_waitcnt lgkmcnt(0)
    s_cbranch_scc1 K_AWX
    v_cmp_ne_u32 vcc, s{sEP}, v18
    s_nop 1
    s_cbranch_vccnz K_AW
    K_AWX:
    """)
    p.flush()
    stamp(p, 6)
    R = 48
    for i in range(3):
        for q in range(4):
            p(f"ds_read_b128 {vr(R+16*i+4*q,4)}, v{vRA} offset:{4096*i+1024*q}")
    for i in range(3):
        for r in range(0, 16, 2):
            p(f"v_pk_add_f32 {vr(O0+r,2)}, {vr(O0+r,2)}, {vr(R+16*i+r,2)}")
    p("K_NORM:")
    l, l2, ri, mx, PK = 16, 17, 18, 20, 32
    p(f"""
    v_mov_b32 v{l}, v{O0+12}
    v_mov_b32 v{l2}, v{O0+12}
    v_permlane32_swap_b32 v{l}, v{l2}
    v_rcp_f32 v{ri}, v{l2}
    """)
    for r in range(0, 16, 2):
        p(f"v_pk_mul_f32 {vr(O0+r,2)}, {vr(O0+r,2)}, {vr(ri,2)} op_sel_hi:[1,0]")
    for i in range(8):
        p(f"v_cvt_pk_bf16_f32 v{PK+i}, v{O0+2*i}, v{O0+2*i+1}")
    p(f"""
    buffer_store_dwordx4 {vr(PK,4)}, v{vL16}, s[{sWS}:{sWS+3}], s{sTMP} offen sc1
    buffer_store_dwordx4 {vr(PK+4,4)}, v{vL16}, s[{sWS}:{sWS+3}], s{sTMP} offen offset:1024 sc1
    """)
    for r in range(0, 16, 2):
        p(f"v_pk_add_f32 {vr(O0+r,2)}, {vr(O0+r,2)}, {vr(O0+r,2)} neg_lo:[0,1] neg_hi:[0,1]")
    for r in (8, 4, 2):
        for k in range(0, r, 2):
            p(f"v_pk_add_f32 {vr(O0+k,2)}, {vr(O0+k,2)}, {vr(O0+r+k,2)}")
    p(f"""
    v_add_f32 v{mx}, v{O0}, v{O0+1}
    v_add_f32 v{mx}, v{mx}, v{l2}
    v_cmp_ngt_f32 vcc, {f32bits(L_LIMIT):#x}, v{mx}
    s_cmp_eq_u32 s{sCNT}, 0
    s_cselect_b64 vcc, vcc, 0
    s_cbranch_vccnz K_SLOW
    s_mov_b64 exec, 1
    s_waitcnt vmcnt(0)
    buffer_store_dword v{vEP}, v{vL16}, s[{sWS}:{sWS+3}], s{sTMP3} offen sc1
    s_mov_b64 exec, -1
    """)
    stamp_out(p, 7, sWS, sWAVE, 2, 3)
    p("s_endpgm")
    p.flush()
    p.tr = Tracker()
    p(f"""
    K_SLOW:
    s_waitcnt vmcnt(0) lgkmcnt(0)
    s_mov_b32 exec_lo, 0
    v_mov_b32 v{128+(Q+30)}, 0
    v_mov_b32 v{128+(Q+31)}, 0
    s_mov_b32 exec_lo, -1
    v_mov_b32 v{M+3}, 0xff800000
    s_mov_b32 s{sKV}, s{sKV0}
    s_mov_b32 s{sCNT}, 64
    """)
    body = [I("K_S1:")]
    body += [I(f"buffer_load_dwordx4 {ar(KV[0]+4*j,4)}, v{vL16}, s[{sWS}:{sWS+3}], s{sKV} offen offset:{1024*j} sc1") for j in range(2)]
    body += qk(3, 0, 0)
    body += [I(f"v_max3_f32 v{M+3}, v{M+3}, v{S[0]+r}, v{S[0]+r+1}") for r in range(0, 16, 2)]
    body += [I(f"s_add_u32 s{sKV}, s{sKV}, 4096"), I(f"s_sub_u32 s{sCNT}, s{sCNT}, 1"), I(f"s_cmp_lg_u32 s{sCNT}, 0"), I("s_cbranch_scc1 K_S1")]
    p.loop(body)
    put_ref([3], 0.0)
    for i in range(16):
        p(f"v_mov_b32 v{O0+i}, 0")
    p(f"""
    s_mov_b32 s{sKV}, s{sKV0}
    s_mov_b32 s{sCNT}, 64
    """)
    body = [I("K_S2:")]
    body += [I(f"buffer_load_dwordx4 {ar(KV[0]+4*j,4)}, v{vL16}, s[{sWS}:{sWS+3}], s{sKV} offen offset:{1024*j} sc1") for j in range(4)]
    body += qk(3, 0, 0) + softmax(0) + pv(3, 0, 0)
    body += [I(f"s_add_u32 s{sKV}, s{sKV}, 4096"), I(f"s_sub_u32 s{sCNT}, s{sCNT}, 1"), I(f"s_cmp_lg_u32 s{sCNT}, 0"), I("s_cbranch_scc1 K_S2")]
    p.loop(body)
    p(f"""
    s_mov_b32 s{sCNT}, 1
    s_nop 7
    s_nop 7
    s_branch K_NORM
    """)
    p.flush()

    p.tr = Tracker()
    vOA3, vX, vOB, hLA, hLB, hCW, ONE, CS, F = 8, 12, 14, 16, 17, 19, 20, 24, 40
    hL16 = 1
    cut2 = len(p.out)
    p("K_HELPER:")
    p("s_waitcnt lgkmcnt(0)")
    stamp(p, 0)
    srd(p, sX, 40, XB)
    srd(p, sW, 42, WQKVB)
    p(f"""
    s_sub_u32 s{sWAVE}, s{sWAVE}, 4
    s_add_u32 s{sXO}, s{sMT}, s{sWAVE}
    s_mul_i32 s{sXO}, s{sXO}, 28672
    v_lshrrev_b32 v4, 3, v0
    v_mul_u32_u24 v7, 896, v4
    v_lshrrev_b32 v5, 4, v0
    v_and_b32 v6, 7, v0
    v_xor_b32 v6, v5, v6
    v_lshl_add_u32 v{vX}, v6, 4, v7
    v_xor_b32 v6, 4, v6
    v_lshl_add_u32 v{vX+1}, v6, 4, v7
    s_mul_i32 s{sOA}, s{sG}, 168
    s_mul_i32 s{sTMP}, s{sWAVE}, {16*2688}
    s_add_u32 s{sOA}, s{sOA}, s{sTMP}
    s_lshl_b32 s{sM0}, s{sWAVE}, 12
    s_mul_i32 s{sTMP3}, s{sWAVE}, 3072
    """)

    def dma(st):
        base = (st % 5) * SLOT
        o = []
        if st < 7:
            for g in range(4):
                o.append([f"s_add_u32 m0, s{sM0}, {base+WAB+1024*g}",
                          f"s_add_u32 s{sTMP}, s{sXO}, {8*896*g+128*st}",
                          f"buffer_load_dwordx4 v{vX+(g&1)}, s[{sX}:{sX+3}], s{sTMP} offen lds"])
            for d in range(3):
                o.append([f"s_add_u32 m0, s{sTMP3}, {base+1024*d}",
                          f"s_add_u32 s{sTMP}, s{sOA}, {64*2688*st}",
                          f"buffer_load_dwordx4 v{vOA3+d}, s[{sW}:{sW+3}], s{sTMP} offen lds"])
        else:
            ph, hs = divmod(st - 7, 2)
            for d in range(7):
                o.append([f"s_add_u32 m0, s{sT}, {base+1024*d}",
                          f"s_add_u32 s{sTMP}, s{sOB}, {(224*hs+8*d)*3584+128*ph}",
                          f"buffer_load_dwordx4 v{vOB}, s[{sW2}:{sW2+3}], s{sTMP} offen lds"])
        return [(st, g) for g in o]

    dq = [g for st in range(11) for g in dma(st)]

    def issue(n, maxst=10):
        for _ in range(n):
            if dq and dq[0][0] <= maxst:
                st, g = dq.pop(0)
                p("\n".join(g), tag=f"st{st}")

    issue(4)
    for d in range(3):
        p(f"""
        v_add_u32 v1, {64*d}, v0
        v_mul_u32_u24 v2, 5462, v1
        v_lshrrev_b32 v2, 16, v2
        v_mul_u32_u24 v3, 12, v2
        v_sub_u32 v1, v1, v3
        v_lshrrev_b32 v3, 2, v1
        v_and_b32 v1, 3, v1
        v_lshlrev_b32 v1, 4, v1
        v_mad_u32_u24 v1, v3, 56, v1
        v_mul_u32_u24 v2, 2688, v2
        v_add_u32 v{vOA3+d}, v1, v2
        """)
    issue(10)
    srd(p, sWS, 46, WS_BYTES)
    srd(p, sW2, 48, W1B)
    tr_lane(hLA, hLB, hLB + 1, 1, 2)
    p(f"""
    s_mul_i32 s{sTMP}, s{sWAVE}, {16*192}
    v_add_u32 v{hLA}, s{sTMP}, v{hLA}
    v_bfe_u32 v1, v0, 2, 1
    v_bfe_u32 v2, v0, 4, 1
    v_xor_b32 v1, v1, v2
    v_and_b32 v3, 3, v0
    v_lshlrev_b32 v3, 4, v3
    v_lshl_add_u32 v3, v1, 6, v3
    v_mul_u32_u24 v4, 3584, v4
    v_add_u32 v{vOB}, v4, v3
    v_and_b32 v1, 15, v0
    v_mov_b32 v3, 0x3f803f80
    v_cmp_eq_u32 vcc, v1, v2
    v_cndmask_b32 v{ONE}, 0, v3, vcc
    v_mov_b32 v{ONE+1}, v{ONE}
    v_mov_b32 v{ONE+2}, v{ONE}
    v_mov_b32 v{ONE+3}, v{ONE}
    s_lshl_b32 s{sOB}, s{sG}, 8
    s_mul_i32 s{sTMP}, s{sWAVE}, {56*3584}
    s_add_u32 s{sOB}, s{sOB}, s{sTMP}
    s_mul_i32 s{sT}, s{sWAVE}, 7168
    s_lshr_b32 s{sTMP}, s{sWAVE}, 1
    s_lshl_b32 s{sTMP}, s{sTMP}, 9
    s_and_b32 s{sTMP2}, s{sWAVE}, 1
    s_lshl_b32 s{sTMP2}, s{sTMP2}, 3
    s_add_u32 s{sTMP}, s{sTMP}, s{sTMP2}
    s_add_u32 s{sTMP}, s{sTMP}, {CFA}
    v_lshl_add_u32 v{hCW}, v0, 4, s{sTMP}
    v_lshlrev_b32 v{hL16}, 4, v0
    s_setprio {E("HP", "2")}
    s_add_u32 s{sTMP}, s2, s{sWAVE}
    s_cmp_lg_u32 s{sTMP}, 0
    s_cbranch_scc1 K_NOEP
    """)
    p.add(opt([f"s_memrealtime s[60:61]",
               "s_waitcnt lgkmcnt(0)",
               "s_or_b32 s60, s60, 1",
               "v_mov_b32 v2, 0",
               "v_mov_b32 v3, s60",
               "s_mov_b64 exec, 1",
               "global_store_dword v2, v3, s[54:55] sc0 sc1",
               "s_mov_b64 exec, -1"]))
    p("K_NOEP:")

    def publish(tiles, j0):
        for t in range(tiles):
            for r in range(2):
                c0 = CS + 4 * t + r
                a, b2, c2 = F + 8 * t + 4 * r, F + 8 * t + 4 * r + 1, F + 8 * t + 4 * r + 2
                p(f"""
                v_and_b32 v{a}, 0xffff0000, v{c0}
                v_sub_f32 v{b2}, v{c0}, v{a}
                v_and_b32 v{c2}, 0xffff0000, v{b2}
                v_sub_f32 v{b2}, v{b2}, v{c2}
                v_lshrrev_b32 v{a}, 16, v{a}
                v_or_b32 v{a}, v{a}, v{c2}
                v_lshrrev_b32 v{b2}, 16, v{b2}
                """)
        p("s_mov_b64 exec, 0xffff")
        for t in range(tiles):
            for r in range(2):
                p(f"ds_write_b64 v{hCW}, {vr(F+8*t+4*r,2)} offset:{1024*(j0+t)+256*r}")
        p("s_mov_b64 exec, -1")

    def colsum_a(st, between=None):
        if E("NOCS") and st < 6:
            if between:
                between()
            return
        p(f"v_add_u32 v2, {(st % 5) * SLOT}, v{hLA}")
        for j in range(3):
            p(f"ds_read_b64_tr_b16 {vr(F+4*j,2)}, v2 offset:{64*j}")
            p(f"ds_read_b64_tr_b16 {vr(F+4*j+2,2)}, v2 offset:{64*j+4*192}")
        if between:
            between()
        for j in range(3):
            p(f"{M16} {vr(CS+4*j,4)}, {vr(ONE,4)}, {vr(F+4*j,4)}, {'0' if st == 0 else vr(CS+4*j,4)}")
        if st == 6:
            publish(3, 0)

    def colsum_b(ph):
        s0, s1 = ((7 + 2 * ph) % 5) * SLOT, ((8 + 2 * ph) % 5) * SLOT
        p(f"""
        s_mul_i32 s{sTMP}, s{sWAVE}, {7*2048}
        s_cmp_lt_u32 s{sWAVE}, 2
        s_mov_b32 s{sTMP2}, {(s1 - SLOT) & 0xffffffff}
        s_cselect_b32 s{sTMP2}, {s0}, s{sTMP2}
        s_add_u32 s{sTMP}, s{sTMP}, s{sTMP2}
        v_add_u32 v2, s{sTMP}, v{hLB}
        v_add_u32 v3, s{sTMP}, v{hLB+1}
        """)
        mm = []
        for i in range(7):
            for t in range(2):
                b = F + 8 * i + 4 * t
                p(f"ds_read_b64_tr_b16 {vr(b,2)}, v{2+t} offset:{2048*i}")
                p(f"ds_read_b64_tr_b16 {vr(b+2,2)}, v{2+t} offset:{2048*i+512}")
                mm.append(f"{M16} {vr(CS+4*t,4)}, {vr(ONE,4)}, {vr(b,4)}, {'0' if i == 0 else vr(CS+4*t,4)}")
                if len(mm) > 6:
                    p(mm.pop(0))
        for m in mm:
            p(m)
        publish(2, 3 + 2 * ph)

    def bar(*sts):
        if sts:
            p("@wait " + " ".join(f"st{x}" for x in sts))
        p("s_waitcnt lgkmcnt(0)")
        p("s_barrier")

    D = 100
    hSR, hVR, hMA, hOA, hEP = 124, 125, 126, 127, 15

    def out_setup():
        p(f"""
        s_lshl_b32 s{sTMP}, s{sWAVE}, 11
        s_add_u32 s{sTMP}, s{sTMP}, {STQ}
        v_add_u32 v{hSR}, s{sTMP}, v{hL16}
        v_bfe_u32 v2, v0, 4, 1
        v_lshl_add_u32 v{hVR}, v2, 10, s{sTMP}
        v_lshrrev_b32 v2, 5, v0
        v_lshl_add_u32 v{hVR}, v2, 6, v{hVR}
        v_bfe_u32 v2, v0, 2, 2
        v_lshl_add_u32 v{hVR}, v2, 4, v{hVR}
        v_and_b32 v2, 1, v0
        v_lshl_add_u32 v{hVR}, v2, 9, v{hVR}
        v_bfe_u32 v2, v0, 1, 1
        v_lshl_add_u32 v{hVR}, v2, 3, v{hVR}
        v_and_b32 v2, 31, v0
        v_cmp_gt_u32 vcc, 28, v2
        v_cndmask_b32 v{hMA}, 0, -1, vcc
        v_mov_b32 v3, 0x3f803f80
        v_cmp_eq_u32 vcc, 28, v2
        v_cndmask_b32 v{hOA}, 0, v3, vcc
        s_add_u32 s{sCNT}, s{sMT}, s{sWAVE}
        """)

    def out_qkv(tag):
        p(f"""
        v_mov_b32 v2, {EPA}
        ds_read_b32 v{hEP}, v2
        s_mul_i32 s{sTY}, s{sG}, 3
        """)
        for j in range(3):
            d = D + 8 * j
            p(f"""
            s_cmp_ge_u32 s{sTY}, {32-j}
            s_cbranch_scc1 K_RV{j}{tag}
            """)
            p.add(opt([f"ds_read_b128 {vr(d,4)}, v{hSR} offset:{8192*j}",
                       f"ds_read_b128 {vr(d+4,4)}, v{hSR} offset:{8192*j+1024}",
                       f"s_branch K_RW{j}{tag}"]))
            p(f"K_RV{j}{tag}:")
            p.add(opt([f"ds_read_b64_tr_b16 {vr(d+2*k,2)}, v{hVR} offset:{8192*j+128*k}" for k in range(4)]))
            p(f"K_RW{j}{tag}:")
        p("s_waitcnt lgkmcnt(0)")
        for j in range(3):
            d = D + 8 * j
            p(f"""
            s_add_u32 s{sTMP}, s{sTY}, {j}
            s_lshr_b32 s{sTMP2}, s{sTMP}, 4
            s_and_b32 s{sTMP}, s{sTMP}, 15
            s_lshl_b32 s{sTMP}, s{sTMP}, 6
            s_add_u32 s{sTMP}, s{sTMP}, s{sCNT}
            s_lshl_b32 s{sST}, s{sTMP}, 11
            s_lshl_b32 s{sTMP}, s{sTMP}, 12
            s_add_u32 s{sTMP}, s{sTMP}, {KVF}
            s_cmp_eq_u32 s{sTMP2}, 0
            s_cselect_b32 s{sST}, s{sST}, s{sTMP}
            s_cselect_b32 s{sTMP}, 0, 0x3f803f80
            s_cselect_b32 s{sEP}, 0, 0x3f80
            s_cmp_eq_u32 s{sTMP2}, 2
            s_cbranch_scc1 K_FV{j}{tag}
            """)
            p.add(opt(["s_mov_b32 exec_lo, 0",
                       f"v_mov_b32 v{d+6}, s{sTMP}",
                       f"v_mov_b32 v{d+7}, s{sEP}",
                       "s_mov_b32 exec_lo, -1",
                       f"s_branch K_FW{j}{tag}"]))
            p(f"K_FV{j}{tag}:")
            p.add(opt([f"v_and_or_b32 v{d+i}, v{d+i}, v{hMA}, v{hOA}" for i in range(8)] + [f"s_add_u32 s{sST}, s{sST}, 2048"]))
            p(f"""
            K_FW{j}{tag}:
            buffer_store_dwordx4 {vr(d,4)}, v{hL16}, s[{sWS}:{sWS+3}], s{sST} offen sc1
            buffer_store_dwordx4 {vr(d+4,4)}, v{hL16}, s[{sWS}:{sWS+3}], s{sST} offen offset:1024 sc1
            """)

    def hflag(instrs, younger=0):
        p(instrs)
        p(f"""
        s_mov_b64 exec, 1
        s_waitcnt vmcnt({younger})
        buffer_store_dword v{hEP}, v{hL16}, s[{sWS}:{sWS+3}], s{sTMP} offen sc1
        s_mov_b64 exec, -1
        """)

    fq = f"""
        s_lshl_b32 s{sTMP}, s{sG}, 6
        s_add_u32 s{sTMP}, s{sTMP}, s{sCNT}
        s_lshl_b32 s{sTMP}, s{sTMP}, 2
        s_add_u32 s{sTMP}, s{sTMP}, {FQ}
        """

    fh = f"""
        s_lshl_b32 s{sTMP}, s{sCNT}, 4
        s_add_u32 s{sTMP}, s{sTMP}, s{sG}
        s_lshl_b32 s{sTMP}, s{sTMP}, 2
        s_add_u32 s{sTMP}, s{sTMP}, {FH}
        """

    def out_h(k):
        base = (STH1 if k == 0 else STH2) - STQ
        p(f"v_add_u32 v2, {base}, v{hSR}")
        for t in range(2):
            for i in range(2):
                p(f"ds_read_b128 {vr(D+8*t+4*i,4)}, v2 offset:{8192*t+1024*i}")
        p(f"""
        s_mul_i32 s{sST}, s{sCNT}, 114688
        s_lshl_b32 s{sTMP}, s{sG}, 13
        s_add_u32 s{sST}, s{sST}, s{sTMP}
        s_add_u32 s{sST}, s{sST}, {HF + 4096*k}
        """)
        for q in range(4):
            for i in range(4):
                p(f"v_pk_max_i16 v{D+4*q+i}, v{D+4*q+i}, 0")
            p(f"buffer_store_dwordx4 {vr(D+4*q,4)}, v{hL16}, s[{sWS}:{sWS+3}], s{sST} offen offset:{1024*q} sc1")

    NI = [int(x) for x in E("NI", "9,9,9,9,10,10,10").split(",")]
    bar(0)
    KSPLIT = 0
    while dq[0][0] < 7:
        k = KSPLIT
        colsum_a(k, lambda: issue(NI[k], min(6, k + 4)))
        bar(k + 1)
        KSPLIT += 1
    p(f"""
    s_cmp_ge_u32 s{sG}, 14
    s_cbranch_scc1 K_HTR
    """)
    p.flush()
    tr_h, hist_h = p.tr.copy(), list(p.out[-60:])
    for k in range(KSPLIT, 7):
        colsum_a(k, lambda: issue(NI[k], k + 4))
        if k < 6:
            bar(k + 1)
    assert dq == [] or dq[0][0] > 8
    bar(7, 8)
    issue(14)
    out_setup()
    stamp(p, 1, "C")
    bar(9, 10)
    stamp(p, 2, "C")
    out_qkv("")
    stamp(p, 3, "C")
    colsum_b(0)
    if E("FO", "1") == "1":
        hflag(fq)
        bar()
    else:
        bar()
        hflag(fq)
    stamp(p, 5, "C")
    colsum_b(1)
    bar()
    out_h(0)
    stamp(p, 6, "C")
    bar()
    out_h(1)
    hflag(fh)
    p("s_branch K_GEMM")
    p.flush()

    sU, sSL = sOA, sT

    def relayout_load(src_off_reg):
        for d in range(14):
            if d % 4 == 0:
                p(f"s_add_u32 m0, s{sSL}, {1024*d}")
                p(f"s_add_u32 s{sTMP}, s{src_off_reg}, {1024*d}")
            p(f"buffer_load_dwordx4 v{hL16}, s[{sW}:{sW+3}], s{sTMP} offen offset:{1024*(d%4)} lds", tag="rl")

    def relayout_store(dst_reg, stride, zero_reg=None):
        p(f"""
        v_lshrrev_b32 v2, 5, v0
        v_lshlrev_b32 v3, 2, v2
        v_bfe_u32 v2, v0, 2, 2
        v_add_u32 v3, v3, v2
        v_mul_u32_u24 v3, 896, v3
        v_bfe_u32 v2, v0, 4, 1
        v_lshl_add_u32 v3, v2, 5, v3
        v_and_b32 v2, 3, v0
        v_lshl_add_u32 v3, v2, 3, v3
        v_add_u32 v3, s{sSL}, v3
        v_mov_b32 v2, {EPA}
        s_waitcnt vmcnt(0)
        ds_read_b32 v4, v2
        """)
        for t in range(14):
            p(f"ds_read_b64_tr_b16 {vr(F+4*t,2)}, v3 offset:{64*t}")
            p(f"ds_read_b64_tr_b16 {vr(F+4*t+2,2)}, v3 offset:{64*t+8*896}")
        if zero_reg is not None:
            p("s_waitcnt lgkmcnt(0)")
            p("s_mov_b32 exec_lo, 0")
            p(f"s_mov_b32 exec_hi, s{zero_reg}")
            for t in range(14):
                p(f"v_mov_b32 v{F+4*t+2}, 0")
                p(f"v_mov_b32 v{F+4*t+3}, 0")
            p("s_mov_b64 exec, -1")
        for t in range(14):
            p(f"buffer_store_dwordx4 {vr(F+4*t,4)}, v{hL16}, s[{sWS}:{sWS+3}], s{dst_reg} offen sc1")
            p(f"s_add_u32 s{dst_reg}, s{dst_reg}, {stride}")
        p(f"""
        s_lshl_b32 s{sTMP}, s{sU}, 2
        s_add_u32 s{sTMP}, s{sTMP}, {FW}
        s_mov_b64 exec, 1
        s_waitcnt vmcnt(0) lgkmcnt(0)
        buffer_store_dword v4, v{hL16}, s[{sWS}:{sWS+3}], s{sTMP} offen sc1
        s_mov_b64 exec, -1
        """)

    p.tr = tr_h
    p("K_HTR:")
    for k in range(KSPLIT, 4):
        colsum_a(k)
        bar(k + 1)
    srd(p, sW, 50, W2B)
    p(f"""
    s_sub_u32 s{sU}, s{sG}, 14
    s_lshl_b32 s{sU}, s{sU}, 6
    s_add_u32 s{sU}, s{sU}, s{sMT}
    s_add_u32 s{sU}, s{sU}, s{sWAVE}
    s_mul_i32 s{sSL}, s{sWAVE}, 14336
    s_add_u32 s{sSL}, s{sSL}, {2*SLOT}
    s_mul_i32 s{sTMP3}, s{sU}, {16*896}
    """)
    relayout_load(sTMP3)
    for k in range(max(4, KSPLIT), 7):
        colsum_a(k)
        if k < 6:
            bar(k + 1)
    bar()
    out_setup()
    bar()
    out_qkv("s")
    hflag(fq)
    hflag(fh)
    p("s_barrier")
    p(f"""
    s_cmp_ge_u32 s{sU}, 112
    s_cbranch_scc1 K_GEMM
    s_lshl_b32 s{sTMP3}, s{sU}, 10
    s_add_u32 s{sTMP3}, s{sTMP3}, {W2F}
    """)
    seq2 = add_waits(p.cur, p.tr)
    p.out += pad_hazards(seq2, hist_h)
    p.cur = []
    relayout_store(sTMP3, 114688)
    p("s_branch K_GEMM")
    p.flush()
    p.tr = Tracker()
    p(f"""
    K_HWO:
    s_cmp_lg_u32 s{sG}, 7
    s_cbranch_scc1 K_END
    s_cmp_ge_u32 s{sWAVE}, 2
    s_cbranch_scc1 K_END
    """)
    srd(p, sW, 44, WOB)
    p(f"""
    s_lshr_b32 s{sU}, s{sMT}, 1
    s_add_u32 s{sU}, s{sU}, s{sWAVE}
    s_lshr_b32 s{sTMP3}, s{sMT}, 2
    s_mul_i32 s{sTMP3}, s{sTMP3}, {28*896}
    s_mul_i32 s{sTMP}, s{sWAVE}, {16*896}
    s_add_u32 s{sTMP3}, s{sTMP3}, s{sTMP}
    s_mul_i32 s{sSL}, s{sWAVE}, 14336
    s_add_u32 s{sSL}, s{sSL}, {2*SLOT}
    """)
    relayout_load(sTMP3)
    p(f"""
    s_lshl_b32 s{sTMP3}, s{sU}, 10
    s_add_u32 s{sTMP3}, s{sTMP3}, {WOF}
    s_add_u32 s{sU}, s{sU}, 128
    s_sub_u32 s{sTMP2}, 0, s{sWAVE}
    """)
    relayout_store(sTMP3, 32768, sTMP2)
    p("s_endpgm")
    p.flush()

    p.tr = Tracker()
    sOUT = sW2
    sA0, sA1, sB0, sB1, sNT, sMP, sNP = sXO, sOA, sOB, sT, sTY, sHEAD, sQB
    AC0 = 8
    Gv = [24, 40, 56, 72, 88, 104]
    Ga = [112]
    WO = 48
    XR = 120
    NBUF = int(E('NBUF', '2'))

    def Gbuf(b, off, n):
        return vr(Gv[b] + off, n) if b < 6 else ar(Ga[b - 6] + off, n)

    def Gacc(u):
        return vr(AC0, 16) if u == 0 else ar(16 * (u - 1), 16)

    vXO, vA1, vA2, vA3, vRA, vF = 2, 3, 4, 5, 6, 7
    p(f"""
    K_GEMM:
    s_setprio {E("GP", "0")}
    s_lshr_b32 s{sNP}, s{sI}, 2
    s_cmp_ge_u32 s{sNP}, 7
    s_cbranch_scc1 K_HWO
    """)
    stamp(p, 1)
    p(f"""
    v_mov_b32 v2, {EPA}
    ds_read_b32 v3, v2
    s_lshl_b32 s{sMP}, s{sJ}, 2
    s_and_b32 s{sTMP}, s{sI}, 3
    s_add_u32 s{sMP}, s{sMP}, s{sTMP}
    s_lshr_b32 s{sTMP}, s{sWAVE}, 1
    s_lshl_b32 s{sMT}, s{sMP}, 1
    s_add_u32 s{sMT}, s{sMT}, s{sTMP}
    s_and_b32 s{sTMP}, s{sWAVE}, 1
    s_lshl_b32 s{sNT}, s{sNP}, 1
    s_add_u32 s{sNT}, s{sNT}, s{sTMP}
    s_mul_i32 s{sTMP}, s{sWAVE}, {28*1024}
    s_mul_i32 s{sA0}, s{sNT}, 114688
    s_xor_b32 s{sTMP2}, s{sNT}, 1
    s_mul_i32 s{sA1}, s{sTMP2}, 114688
    s_mul_i32 s{sB0}, s{sMT}, 114688
    s_xor_b32 s{sTMP2}, s{sMT}, 1
    s_mul_i32 s{sB1}, s{sTMP2}, 114688
    s_add_u32 s{sTMP2}, s{sTMP}, {W2F}
    s_add_u32 s{sA0}, s{sA0}, s{sTMP2}
    s_add_u32 s{sA1}, s{sA1}, s{sTMP2}
    s_add_u32 s{sTMP2}, s{sTMP}, {HF}
    s_add_u32 s{sB0}, s{sB0}, s{sTMP2}
    s_add_u32 s{sB1}, s{sB1}, s{sTMP2}
    v_readfirstlane_b32 s{sEP}, v3
    """)
    p(f"""
    v_and_b32 v{vF}, 31, v0
    v_mul_u32_u24 v{vF}, 896, v{vF}
    v_lshrrev_b32 v{vRA}, 5, v0
    v_lshl_add_u32 v{vA1}, v{vRA}, 3, v{vF}
    s_mul_i32 s{sTMP3}, s{sMT}, 28672
    s_lshl_b32 s{sTMP2}, s{sNT}, 6
    s_add_u32 s{sTMP3}, s{sTMP3}, s{sTMP2}
    """)
    for q in range(4):
        p(f"buffer_load_dwordx2 {vr(XR+2*q,2)}, v{vA1}, s[{sX}:{sX+3}], s{sTMP3} offen offset:{16*q}")
    p(f"v_lshl_add_u32 v{vXO}, v{vRA}, 4, v{vF}")
    for i in range(0, 48, 2):
        p(f"v_mov_b64 {ar(i,2)}, 0")
    vAs = [None, vA1, vA2, vA3]
    for u in range(1, 4):
        p(f"""
        s_xor_b32 s{sTMP2}, s{sWAVE}, {u}
        s_mul_i32 s{sTMP2}, s{sTMP2}, 3
        s_add_u32 s{sTMP2}, s{sTMP2}, {u-1+12}
        s_lshl_b32 s{sTMP2}, s{sTMP2}, 12
        v_add_u32 v{vAs[u]}, s{sTMP2}, v{hL16}
        """)
    p(f"""
    s_mul_i32 s{sTMP2}, s{sWAVE}, {3*4096}
    s_add_u32 s{sTMP2}, s{sTMP2}, {48*1024}
    v_add_u32 v{vRA}, s{sTMP2}, v{hL16}
    """)
    for i in range(8):
        p(f"v_lshlrev_b32 v{AC0+2*i}, 16, v{XR+i}")
        p(f"v_and_b32 v{AC0+2*i+1}, 0xffff0000, v{XR+i}")
    srd(p, sOUT, 52, XB)
    G0 = Gv[0]
    p(f"""
    v_mov_b32 v{G0}, {EPA+4}
    v_mov_b32 v{G0+1}, s{sEP}
    s_cmp_lg_u32 s{sWAVE}, 0
    s_cbranch_scc1 K_PL
    v_and_b32 v{vF}, 7, v0
    s_lshl_b32 s{sTMP}, s{sMP}, 7
    s_add_u32 s{sTMP}, s{sTMP}, {FH}
    v_lshl_add_u32 v{vF}, v{vF}, 4, s{sTMP}
    s_mov_b64 exec, 0xfffffff
    v_add_u32 v{vF}, {FW}, v{hL16}
    s_mov_b64 exec, -1
    s_mov_b32 s{sCNT}, {POLL_MAX}
    """)
    p.flush()
    p(f"""
    K_PH:
    buffer_load_dwordx4 {vr(XR,4)}, v{vF}, s[{sWS}:{sWS+3}], 0 offen sc1
    s_sub_u32 s{sCNT}, s{sCNT}, 1
    s_cmp_eq_u32 s{sCNT}, 0
    s_waitcnt vmcnt(0)
    s_cbranch_scc1 K_PHX
    v_xor_b32 v{XR}, s{sEP}, v{XR}
    v_xor_b32 v{XR+1}, s{sEP}, v{XR+1}
    v_xor_b32 v{XR+2}, s{sEP}, v{XR+2}
    v_xor_b32 v{XR+3}, s{sEP}, v{XR+3}
    v_or3_b32 v{XR}, v{XR}, v{XR+1}, v{XR+2}
    v_or_b32 v{XR}, v{XR}, v{XR+3}
    v_cmp_ne_u32 vcc, 0, v{XR}
    s_nop 1
    s_cbranch_vccz K_PHX
    s_sleep {E("SLH", "8")}
    s_branch K_PH
    K_PHX:
    ds_write_b32 v{G0}, v{G0+1}
    s_branch K_PLX
    K_PL:
    s_mov_b32 s{sCNT}, {POLL_MAX*4}
    K_PL1:
    s_sleep {E('LSL', '8')}
    ds_read_b32 v{G0+2}, v{G0}
    s_sub_u32 s{sCNT}, s{sCNT}, 1
    s_cmp_eq_u32 s{sCNT}, 0
    s_waitcnt lgkmcnt(0)
    s_cbranch_scc1 K_PLX
    v_cmp_ne_u32 vcc, s{sEP}, v{G0+2}
    s_nop 1
    s_cbranch_vccnz K_PL1
    K_PLX:
    s_waitcnt lgkmcnt(0)
    """)
    p.flush()
    stamp(p, 2)
    spin(p, "att", sEP)
    so = [sA0, sA1, sB0, sB1]

    def gload(k):
        b = k % NBUF
        o = [I(f"buffer_load_dwordx4 {Gbuf(b,4*j,4)}, v{hL16}, s[{sWS}:{sWS+3}], s{so[j]} offen offset:{1024*(b%4)} sc1") for j in range(4)]
        if b == 3 or b == NBUF - 1:
            o += [I(f"s_add_u32 s{r}, s{r}, {1024 * (b % 4 + 1)}") for r in so]
        return o

    def gmm(b):
        return [I(f"{MF} {Gacc(u)}, {Gbuf(b,4*(u&1),4)}, {Gbuf(b,8+4*(u>>1),4)}, {Gacc(u)}") for u in (1, 2, 3, 0)]

    for k in range(NBUF - (1 if E("GX") == "il" else 0)):
        p.add(gload(k))
    p(f"s_mov_b32 s{sCNT}, {28 // NBUF - 1}")
    body = [I("K_GL:")]
    for b in range(NBUF):
        if E("GX") == "il":
            m, l = gmm(b), gload((b - 1) % NBUF)
            for i in range(4):
                body += [m[i], l[i]]
            body += l[4:]
        else:
            body += gmm(b) + gload(b)
        if E("GSL"):
            body.append(I(f"s_sleep {E('GSL')}"))
    body += [I(f"s_sub_u32 s{sCNT}, s{sCNT}, 1"), I(f"s_cmp_lg_u32 s{sCNT}, 0"), I("s_cbranch_scc1 K_GL")]
    p.loop(body)
    if E("GX") == "il":
        p.add(gload(NBUF - 1))
    p(f"""
    s_lshl_b32 s{sTMP}, s{sWAVE}, 13
    s_lshl_b32 s{sA0}, s{sNT}, 15
    s_add_u32 s{sA0}, s{sA0}, s{sTMP}
    s_add_u32 s{sA0}, s{sA0}, {WOF}
    s_xor_b32 s{sA1}, s{sA0}, 0x8000
    s_lshl_b32 s{sB0}, s{sMT}, 15
    s_add_u32 s{sB0}, s{sB0}, s{sTMP}
    s_add_u32 s{sB0}, s{sB0}, {OF}
    s_xor_b32 s{sB1}, s{sB0}, 0x8000
    """)
    p(f"""
    v_and_b32 v{vF}, 7, v0
    s_lshl_b32 s{sTMP}, s{sWAVE}, 5
    s_add_u32 s{sTMP}, s{sTMP}, {FW + 128*4}
    v_lshl_add_u32 v{vF}, v{vF}, 2, s{sTMP}
    buffer_load_dword v{XR}, v{vF}, s[{sWS}:{sWS+3}], 0 offen sc1
    """)
    for b in range(NBUF):
        p.add(gmm(b))
    p(f"""
    v_cmp_ne_u32 vcc, s{sEP}, v{XR}
    s_nop 1
    s_cbranch_vccz K_PWOX
    """)
    poll(p, "K_PWO", XR, vF, sWS, "0", sEP, sCNT, 24)
    for s in range(8):
        if s == 4:
            for r in (sA0, sA1):
                p(f"s_add_u32 s{r}, s{r}, 4096")
        for j in range(2):
            p(f"buffer_load_dwordx4 {ar(WO+8*s+4*j,4)}, v{hL16}, s[{sWS}:{sWS+3}], s{so[j]} offen offset:{1024*(s%4)} sc1")
    stamp(p, 3)
    p(f"""
    s_cmp_lg_u32 s{sWAVE}, 0
    s_cbranch_scc1 K_POX
    v_and_b32 v{vF}, 3, v0
    v_lshlrev_b32 v{vF}, 2, v{vF}
    v_add_u32 v{vF}, {EPA+16}, v{vF}
    s_mov_b32 s{sCNT}, {POLL_MAX*4}
    """)
    p.flush()
    keep = p.tr.copy()
    p(f"""
    K_PA:
    s_sleep {E('LSL', '8')}
    ds_read_b32 v{XR}, v{vF}
    s_sub_u32 s{sCNT}, s{sCNT}, 1
    s_cmp_eq_u32 s{sCNT}, 0
    s_waitcnt lgkmcnt(0)
    s_cbranch_scc1 K_PAX
    v_cmp_ne_u32 vcc, s{sEP}, v{XR}
    s_nop 1
    s_cbranch_vccnz K_PA
    K_PAX:
    v_and_b32 v{vF}, 31, v0
    v_lshlrev_b32 v{vF}, 2, v{vF}
    s_lshl_b32 s{sTMP}, s{sMP}, 7
    s_add_u32 s{sTMP}, s{sTMP}, {FO}
    """)
    stamp(p, 4)
    poll(p, "K_PO", XR, vF, sWS, f"s{sTMP}", sEP, sCNT, E("SL1", "8"))
    p.tr = keep
    p("s_barrier")
    stamp(p, 5)
    OFv = Gv[0]
    for s in range(8):
        if s == 4:
            for r in (sB0, sB1):
                p(f"s_add_u32 s{r}, s{r}, 4096")
        for j in range(2):
            p(f"buffer_load_dwordx4 {vr(OFv+8*s+4*j,4)}, v{hL16}, s[{sWS}:{sWS+3}], s{so[2+j]} offen offset:{1024*(s%4)} sc1")
    for s in range(8):
        for u in (1, 2, 3, 0):
            p(f"{MF} {Gacc(u)}, {ar(WO+8*s+4*(u&1),4)}, {vr(OFv+8*s+4*(u>>1),4)}, {Gacc(u)}")
    stamp(p, 6)
    for u in range(1, 4):
        for q in range(4):
            p(f"ds_write_b128 v{vAs[u]}, {ar(16*(u-1)+4*q,4)} offset:{1024*q}")
    p("s_waitcnt lgkmcnt(0)")
    p("s_barrier")
    R = Gv[0]
    for i in range(3):
        for q in range(4):
            p(f"ds_read_b128 {vr(R+16*i+4*q,4)}, v{vRA} offset:{4096*i+1024*q}")
    for i in range(3):
        for r in range(0, 16, 2):
            p(f"v_pk_add_f32 {vr(AC0+r,2)}, {vr(AC0+r,2)}, {vr(R+16*i+r,2)}")
    PK = XR
    for i in range(8):
        p(f"v_cvt_pk_bf16_f32 v{PK+i}, v{AC0+2*i}, v{AC0+2*i+1}")
    for qq in range(2):
        p(f"v_permlane32_swap_b32 v{PK+4*qq}, v{PK+4*qq+2}")
        p(f"v_permlane32_swap_b32 v{PK+4*qq+1}, v{PK+4*qq+3}")
    for qq in range(2):
        p(f"buffer_store_dwordx4 {vr(PK+4*qq,4)}, v{vXO}, s[{sOUT}:{sOUT+3}], s{sTMP3} offen offset:{32*qq}")
    spin(p, "end", sEP)
    stamp_out(p, 7, sWS, sWAVE, 2, 3, wave_add=4)
    p("K_END:")
    p("s_endpgm")
    p.flush()
    p.out = p.out[:cut1] + p.out[cut2:] + p.out[cut1:cut2] + [I("K_LAST:")]
    return p.text()


HEADER = f"""; Kernarg layout for this problem (72 bytes, ptrs only, base s[0:1]):
; @launch grid=(256,1,1) block=(512,1,1) lds={LDS_BYTES}
.amdgcn_target "amdgcn-amd-amdhsa--gfx950"
.text
.globl {NAME}_kernel
.p2align 8
.type {NAME}_kernel,@function
{NAME}_kernel:
"""

KD = f"""
.section .rodata,"a"
.p2align 6
.amdhsa_kernel {NAME}_kernel
  .amdhsa_next_free_vgpr 256
  .amdhsa_next_free_sgpr {{ns}}
  .amdhsa_accum_offset 256
  .amdhsa_group_segment_fixed_size 0
  .amdhsa_kernarg_size 72
  .amdhsa_user_sgpr_count 2
  .amdhsa_user_sgpr_kernarg_segment_ptr 1
  .amdhsa_system_sgpr_workgroup_id_x 1
.end_amdhsa_kernel
"""


def main():
    global STAMP
    STAMP = len(sys.argv) > 2 and sys.argv[2] == "stamp"
    txt = HEADER + gen() + KD.format(ns=100 if STAMP else 64)
    out = sys.argv[1] if len(sys.argv) > 1 else f"cdna_kernels/{NAME}.s"
    open(out, "w").write(txt)
    print("wrote", out, len(txt), "bytes")


if __name__ == "__main__":
    main()
```

```python
import sys, struct, os
from asmgen import *

NAME = "parallel_sum__mha_block__dense_activation_relu__prompt"
E = os.environ.get

QF = 0
KVF = 2 << 20
HF = 6 << 20
W2F = 13 << 20
WOF = 15 << 20
OF = 16 << 20
FLG = 18 << 20
FQ = FLG
FH = FLG + 4096
FW = FLG + 8192
FO = FLG + 12288
WS_BYTES = 19 << 20

XB = 2048 * 448 * 2
WQKVB = 448 * 1344 * 2
WOB = 448 * 448 * 2
W1B = 448 * 1792 * 2
W2B = 1792 * 448 * 2

MF = "v_mfma_f32_32x32x16_bf16"
M16 = "v_mfma_f32_16x16x32_bf16"

SLOT = 28672
WAB = 64 * 192
CFA = 5 * SLOT
VSC = CFA + 7168
EPA = VSC + 4096
STQ, STH1, STH2 = 1 * SLOT, 2 * SLOT, 3 * SLOT
LDS_BYTES = EPA + 64
REF_OFF = 90.0
L_LIMIT = 2.0 ** 110
POLL_MAX = 0x40000


def f32bits(x):
    return struct.unpack("<I", struct.pack("<f", x))[0]


def vr(b, n):
    return f"v[{b}:{b+n-1}]"


def ar(b, n):
    return f"v[{128+b}:{128+b+n-1}]"


def srd(p, d, base, nbytes):
    p(f"""
    s_mov_b32 s{d}, s{base}
    s_and_b32 s{d+1}, s{base+1}, 0xffff
    s_mov_b32 s{d+2}, {nbytes}
    s_mov_b32 s{d+3}, 0x00020000
    """)


STAMP = False
STAMP_BASE = 32 << 20


def stamp(p, i, diag=None):
    if E("DIAG") and i > 0 and i < 7 and diag != E("DIAG"):
        return
    if not E("DIAG") and diag:
        return
    if STAMP:
        p(f"s_memrealtime s[{64+4*i}:{65+4*i}]")
        p(f"s_memtime s[{66+4*i}:{67+4*i}]")
        p("s_waitcnt lgkmcnt(0)")


def stamp_out(p, n, sWS, sWAVE, vtmp=1, vtmp2=2, wave_add=0):
    if not STAMP:
        return
    p("s_waitcnt vmcnt(0) lgkmcnt(0)")
    stamp(p, n)
    p(f"v_mov_b32 v{vtmp}, 0")
    for i in range(n + 1):
        p(f"v_writelane_b32 v{vtmp}, s{64+4*i}, {i}")
        p(f"v_writelane_b32 v{vtmp}, s{66+4*i}, {16+i}")
    p(f"""
    s_lshl_b32 s62, s2, 3
    s_add_u32 s62, s62, s{sWAVE}
    s_add_u32 s62, s62, {wave_add}
    s_lshl_b32 s62, s62, 8
    s_add_u32 s62, s62, {STAMP_BASE}
    v_lshlrev_b32 v{vtmp2}, 2, v0
    s_mov_b32 s{sWS+2}, {64 << 20}
    buffer_store_dword v{vtmp}, v{vtmp2}, s[{sWS}:{sWS+3}], s62 offen
    """)


def spin(p, where, sEP):
    if E("SPIN") != where:
        return
    uid = spin.n = getattr(spin, "n", 0) + 1
    p.flush()
    p(f"""
    SPB{uid}:
    s_sleep 1
    s_memrealtime s[60:61]
    s_waitcnt lgkmcnt(0)
    s_sub_u32 s60, s60, s{sEP}
    s_cmp_lt_u32 s60, {E("SPINX", "6000")}
    s_cbranch_scc1 SPB{uid}
    """)
    p.flush()


def poll(p, name, vdst, vaddr, sWS, soff, sEP, sCNT, sleep):
    p.flush()
    p(f"""
    s_mov_b32 s{sCNT}, {POLL_MAX}
    {name}:
    s_sleep {sleep}
    buffer_load_dword v{vdst}, v{vaddr}, s[{sWS}:{sWS+3}], {soff} offen sc1
    s_sub_u32 s{sCNT}, s{sCNT}, 1
    s_cmp_eq_u32 s{sCNT}, 0
    s_waitcnt vmcnt(0)
    s_cbranch_scc1 {name}X
    v_cmp_ne_u32 vcc, s{sEP}, v{vdst}
    s_nop 1
    s_cbranch_vccnz {name}
    {name}X:
    """)
    p.flush()


def gen():
    p = Prog()
    sX, sW, sW2, sWS, sKVR = 4, 8, 12, 16, 56
    (sWAVE, sMT, sG, sTMP, sTMP2, sTMP3, sST, sTY, sM0, sXO, sT, sONE, sOA, sOB, sEP, sCNT,
     sJ, sI, sHEAD, sQB) = range(20, 40)
    sKV, sKV2, sKV0 = sXO, sOA, sOB
    sVS, sVT = sM0, sONE
    p(f"""
    s_cmp_ge_u32 s2, 256
    s_cbranch_scc1 K_END
    s_load_dwordx4 s[40:43], s[0:1], 0
    s_load_dwordx2 s[44:45], s[0:1], 16
    s_load_dwordx8 s[48:55], s[0:1], 32
    s_load_dwordx2 s[46:47], s[0:1], 64
    v_lshrrev_b32 v1, 6, v0
    v_and_b32 v0, 63, v0
    v_readfirstlane_b32 s{sWAVE}, v1
    s_and_b32 s{sJ}, s2, 7
    s_lshr_b32 s{sI}, s2, 3
    s_lshr_b32 s{sMT}, s{sJ}, 1
    s_lshl_b32 s{sMT}, s{sMT}, 2
    s_and_b32 s{sTMP}, s{sI}, 3
    s_add_u32 s{sMT}, s{sMT}, s{sTMP}
    s_lshl_b32 s{sMT}, s{sMT}, 2
    s_and_b32 s{sG}, s{sJ}, 1
    s_lshl_b32 s{sG}, s{sG}, 3
    s_lshr_b32 s{sTMP}, s{sI}, 2
    s_add_u32 s{sG}, s{sG}, s{sTMP}
    s_cmp_ge_u32 s{sWAVE}, 4
    s_cbranch_scc1 K_HELPER
    s_and_b32 s{sTMP}, s{sI}, {E("CPFM", "7")}
    s_cmp_lg_u32 s{sTMP}, 0
    s_cbranch_scc1 K_COMP
    s_getpc_b64 s[60:61]
    K_PC:
    s_sub_u32 s60, s60, K_PC-{NAME}_kernel
    s_subb_u32 s61, s61, 0
    s_lshl_b32 s{sTMP}, s{sWAVE}, 7
    v_lshl_add_u32 v2, v0, 9, s{sTMP}
    v_min_u32 v2, K_LAST-{NAME}_kernel-4, v2
    global_load_dword v12, v2, s[60:61]
    s_branch K_COMP
    """)
    p.flush()
    p.tr.vm = []
    cut1 = len(p.out)
    p("K_COMP:")
    p("s_waitcnt lgkmcnt(0)")
    stamp(p, 0)
    srd(p, sWS, 46, WS_BYTES)

    def tr_lane(dstA, dstB0, dstB1, t0, t1):
        p(f"""
        v_lshrrev_b32 v{t0}, 5, v0
        v_lshlrev_b32 v{t0}, 3, v{t0}
        v_bfe_u32 v{t1}, v0, 2, 2
        v_add_u32 v{t0}, v{t0}, v{t1}
        v_bfe_u32 v{t1}, v0, 4, 1
        v_lshlrev_b32 v{dstB0}, 5, v{t1}
        v_and_b32 v{t1}, 3, v0
        v_lshl_add_u32 v{dstB0}, v{t1}, 3, v{dstB0}
        v_mul_u32_u24 v{dstA}, 192, v{t0}
        v_add_u32 v{dstA}, v{dstA}, v{dstB0}
        v_lshl_add_u32 v{dstB0}, v{t0}, 7, v{dstB0}
        v_bfe_u32 v{t1}, v0, 3, 1
        v_lshl_add_u32 v{dstB0}, v{t1}, 6, v{dstB0}
        v_xor_b32 v{dstB1}, 64, v{dstB0}
        """)

    X = 0
    CFt, XM = 112, 116
    accs = [16, 32, 48, 64, 80, 16, 32]
    NW = int(E('NW', '8'))
    WF = 96
    GR, SX, ONEc, vXA, vLA, vXC, vSW, vSR = 64, 80, 84, 88, 92, 93, 94, 95
    ST = 72
    vL16, vLB0, vLB1, vC0, vC1, vCF, vA, vRINV, vVW, vVR, vMA, vOA, vT0, vT1, vPL = range(1, 16)
    p(f"s_add_u32 s{sMT}, s{sMT}, s{sWAVE}")
    tr_lane(vLA, vLB0, vLB1, vA, vRINV)
    p(f"""
    v_lshrrev_b32 v{vT1}, 5, v0
    v_and_b32 v{vT0}, 31, v0
    v_bfe_u32 v{vA}, v0, 1, 3
    v_xor_b32 v{vA}, v{vT1}, v{vA}
    s_lshl_b32 s{sTMP}, s{sWAVE}, 12
    s_add_u32 s{sTMP}, s{sTMP}, {WAB}
    v_lshl_add_u32 v{vRINV}, v{vT0}, 7, s{sTMP}
    v_lshlrev_b32 v{vL16}, 4, v0
    """)
    for sp in range(4):
        p(f"v_xor_b32 v{vXA+sp}, {2*sp}, v{vA}")
        p(f"v_lshl_add_u32 v{vXA+sp}, v{vXA+sp}, 4, v{vRINV}")
    p(f"""
    v_and_b32 v{vA}, 15, v0
    v_bfe_u32 v{vRINV}, v0, 4, 1
    v_mov_b32 v{vCF}, 0x3f803f80
    v_cmp_eq_u32 vcc, v{vA}, v{vRINV}
    v_cndmask_b32 v{ONEc}, 0, v{vCF}, vcc
    v_mov_b32 v{ONEc+1}, v{ONEc}
    v_mov_b32 v{ONEc+2}, v{ONEc}
    v_mov_b32 v{ONEc+3}, v{ONEc}
    v_add_u32 v{vCF}, {CFA}, v{vL16}
    v_mov_b64 {vr(GR,2)}, 0
    v_mov_b64 {vr(GR+2,2)}, 0
    v_mov_b64 {vr(GR+4,2)}, 0
    v_mov_b64 {vr(GR+6,2)}, 0
    s_mov_b32 s{sONE}, 0x3f803f80
    s_mul_i32 s{sT}, s{sG}, 3
    s_lshl_b32 s{sTMP}, s{sWAVE}, 10
    s_add_u32 s{sTMP}, s{sTMP}, {VSC}
    v_lshl_add_u32 v{vSW}, v{vT0}, 4, s{sTMP}
    v_and_b32 v{vA}, 3, v0
    v_lshl_add_u32 v{vSR}, v{vA}, 2, v{vSW}
    s_lshl_b32 s{sTMP}, s{sWAVE}, 11
    s_add_u32 s{sTMP}, s{sTMP}, {STQ}
    v_add_u32 v{vVW}, s{sTMP}, v{vL16}
    s_lshl_b32 s{sHEAD}, s{sJ}, 1
    s_and_b32 s{sTMP}, s{sI}, 1
    s_add_u32 s{sHEAD}, s{sHEAD}, s{sTMP}
    s_lshr_b32 s{sQB}, s{sI}, 1
    """)
    p(f"""
    s_add_u32 s{sTMP}, s{sHEAD}, 16
    s_mul_i32 s{sTMP}, s{sTMP}, 43
    s_lshr_b32 s{sTMP}, s{sTMP}, 7
    s_lshl_b32 s{sTMP}, s{sTMP}, 8
    v_mov_b32 v{vPL}, s{sTMP}
    s_lshl_b32 s{sTMP2}, s{sWAVE}, 6
    s_add_u32 s{sTMP}, s{sTMP}, s{sTMP2}
    v_and_b32 v{vA}, 15, v0
    s_mov_b64 exec, 0xffff
    v_lshl_add_u32 v{vPL}, v{vA}, 2, s{sTMP}
    s_add_u32 s{sTMP}, s{sHEAD}, 32
    s_mul_i32 s{sTMP}, s{sTMP}, 43
    s_lshr_b32 s{sTMP}, s{sTMP}, 7
    s_lshl_b32 s{sTMP}, s{sTMP}, 8
    s_add_u32 s{sTMP}, s{sTMP}, s{sTMP2}
    s_mov_b32 exec_lo, 0xffff0000
    v_lshl_add_u32 v{vPL}, v{vA}, 2, s{sTMP}
    s_mul_i32 s{sTMP}, s{sHEAD}, 43
    s_lshr_b32 s{sTMP}, s{sTMP}, 7
    s_lshl_b32 s{sTMP}, s{sTMP}, 8
    s_lshl_b32 s{sTMP2}, s{sQB}, 4
    s_add_u32 s{sTMP}, s{sTMP}, s{sTMP2}
    s_mov_b32 exec_lo, 0
    s_mov_b32 exec_hi, 15
    v_lshl_add_u32 v{vPL}, v{vA}, 2, s{sTMP}
    s_mov_b64 exec, -1
    v_add_u32 v{vPL}, {FQ}, v{vPL}
    """)

    seq = []
    for st in range(7):
        for sp in range(4):
            for j in range(3):
                seq.append((st, 4 * st + sp, j))
    for ph in range(2):
        for hs in range(2):
            for sp in range(14):
                for j in range(2):
                    seq.append((7 + 2 * ph + hs, 14 * hs + sp, 3 + 2 * ph + j))
    NA = 84

    def rdw(n):
        st, s, j = seq[n]
        b = WF + 4 * (n % NW)
        if st < 7:
            va, off, d = vC0, (s & 3) * 16 * 192 + 64 * j, 4 * 192
        else:
            va, off, d = (vC0 if (j - 3) % 2 == 0 else vC1), (s % 14) * 16 * 128, 4 * 128
        return [I(f"ds_read_b64_tr_b16 {vr(b,2)}, v{va} offset:{off}"),
                I(f"ds_read_b64_tr_b16 {vr(b+2,2)}, v{va} offset:{off+d}")]

    def mfma(n):
        st, s, j = seq[n]
        acc = vr(accs[j], 16)
        return I(f"{MF} {acc}, {vr(WF+4*(n%NW),4)}, {ar(X+4*s,4)}, {'0' if s == 0 else acc}")

    def enter(st):
        base = (st % 5) * SLOT
        o = [I("s_waitcnt lgkmcnt(0)"), I("s_barrier")] if st <= 7 or (st == 9 and E("MODE") == "2") else []
        if st < 7:
            o.append(I(f"v_add_u32 v{vC0}, {base}, v{vLA}"))
            for sp in range(4):
                o.append(I(f"v_add_u32 v{vXC}, {base}, v{vXA+sp}"))
                o.append(I(f"ds_read_b128 {ar(X+4*(4*st+sp),4)}, v{vXC}"))
        elif st < 11:
            o.append(I(f"v_add_u32 v{vC0}, {base}, v{vLB0}"))
            o.append(I(f"v_add_u32 v{vC1}, {base}, v{vLB1}"))
        return o

    def stats(st):
        mm, va = [], []
        for sp in range(4):
            s_ = 4 * st + sp
            mm.append(I(f"{M16} {vr(SX,4)}, {vr(ONEc,4)}, {ar(X+4*s_,4)}, {'0' if s_ == 0 else vr(SX,4)}"))
            for d in range(4):
                x, e = 128 + X + 4 * s_ + d, GR + 4 + 2 * (d & 1)
                va += [I(f"v_lshlrev_b32 v{e}, 16, v{x}"),
                       I(f"v_and_b32 v{e+1}, 0xffff0000, v{x}"),
                       I(f"v_fmac_f32 v{GR+2*(d&1)}, v{e}, v{e}"),
                       I(f"v_fmac_f32 v{GR+2*(d&1)+1}, v{e+1}, v{e+1}")]
        return mm, va

    AH = NW - 1

    def stream(n0, n1, fill, rs, limit):
        out = []
        q = rs.setdefault("q", [])
        RL = int(E("RL", "4"))

        def refill(n):
            while rs["next"] <= min(n + AH, limit - 1):
                m = rs["next"]
                if seq[m][0] != rs["stage"]:
                    en = enter(seq[m][0])
                    if en[0].kind == "valu":
                        q.extend(("rd", m, [x]) for x in en)
                    else:
                        q.append(("bar", m, en))
                    rs["stage"] = seq[m][0]
                for x in rdw(m):
                    q.append(("rd", m, [x]))
                rs["next"] = m + 1

        def drain(n, budget):
            rs["slot"] = rs.get("slot", 0) + 1
            while q:
                kind, m, ins = q[0]
                must = m <= n + 2
                if kind == "bar":
                    if rs["slot"] < rs["last_at"] + 2 and not must:
                        break
                    q.pop(0)
                    k = [i for i, x in enumerate(ins) if x.op == "s_barrier"][0] + 1
                    while k < len(ins) and ins[k].kind != "valu":
                        k += 1
                    out.extend(ins[:k])
                    rest = ins[k:]
                    q[:0] = [("rd", m, [x]) for x in rest]
                    budget -= 1
                    continue
                if budget <= 0 and not must:
                    break
                q.pop(0)
                out.extend(ins)
                if ins[0].kind == "ds":
                    budget -= 2 if "b128" in ins[0].op else 1
                    rs["last_at"] = rs["slot"]

        for n in range(n0, n1):
            out.append(mfma(n))
            refill(n)
            drain(n, RL)
            if fill and (n - n0) in fill:
                for x in fill[n - n0]:
                    out.append(x)
                    if x.kind == "mfma":
                        drain(n, RL if x.passes == 8 else 1)
        return out

    rs = {"next": 0, "stage": 0, "last_at": -9}
    p.add(enter(0))
    stamp(p, 1)
    for m in range(AH):
        p.add(rdw(m))
    rs["next"] = AH
    for st in range(7):
        if st == 4:
            p(f"v_mov_b32 v{vT0}, 0")
            p(f"global_load_dword v{vT1}, v{vT0}, s[54:55] sc0 sc1")
        n = 12 if st < 6 else 9
        dots = []
        for r in range(16):
            x = 128 + X + 16 * st + r
            dots.append(I(f"v_dot2c_f32_bf16 v{GR+(r&3)}, s{sONE}, v{x}"))
            dots.append(I(f"v_dot2c_f32_bf16 v{GR+4+(r&3)}, v{x}, v{x}"))
        p.add(stream(12 * st, 12 * st + n, {n - 1: dots}, rs, NA))
    T = ST
    fin = [I(x.strip()) for x in f"""
    v_add_f32 v{GR}, v{GR}, v{GR+1}
    v_add_f32 v{GR+4}, v{GR+4}, v{GR+5}
    v_add_f32 v{GR+2}, v{GR+2}, v{GR+3}
    v_add_f32 v{GR+6}, v{GR+6}, v{GR+7}
    v_add_f32 v{T}, v{GR}, v{GR+2}
    v_add_f32 v{T+4}, v{GR+4}, v{GR+6}
    v_mov_b32 v{T+1}, v{T}
    v_mov_b32 v{T+5}, v{T+4}
    v_permlane32_swap_b32 v{T}, v{T+1}
    v_permlane32_swap_b32 v{T+4}, v{T+5}
    v_add_f32 v{T}, v{T}, v{T+1}
    v_add_f32 v{T+4}, v{T+4}, v{T+5}
    v_mul_f32 v{T}, {f32bits(1.0/448.0):#x}, v{T}
    v_mul_f32 v{T+4}, {f32bits(1.0/448.0):#x}, v{T+4}
    v_fma_f32 v{T+4}, -v{T}, v{T}, v{T+4}
    v_cvt_pk_bf16_f32 v{T+1}, -v{T}, -v{T}
    v_max_f32 v{T+4}, 0, v{T+4}
    v_and_b32 v{T+2}, 0xffff, v{T+1}
    v_cvt_pk_bf16_f32 v{T+4}, v{T+4}, v{T+4}
    v_mov_b32 v{128+(XM)}, v{T+1}
    v_and_b32 v{T+4}, 0xffff0000, v{T+4}
    v_mov_b32 v{128+(XM+1)}, v{T+2}
    v_add_f32 v{T+4}, {f32bits(1e-5):#x}, v{T+4}
    v_mov_b32 v{128+(XM+2)}, v{T+1}
    v_cvt_pk_bf16_f32 v{T+4}, v{T+4}, v{T+4}
    v_mov_b32 v{128+(XM+3)}, v{T+2}
    v_and_b32 v{T+4}, 0xffff0000, v{T+4}
    v_sqrt_f32 v{T+4}, v{T+4}
    v_mov_b32 v{T}, {EPA}
    v_cvt_pk_bf16_f32 v{T+4}, v{T+4}, v{T+4}
    v_and_b32 v{T+4}, 0xffff0000, v{T+4}
    v_rcp_f32 v{vRINV}, v{T+4}
    v_readfirstlane_b32 s{sEP}, v{vT1}
    """.strip().split("\n")]
    p.add(fin)
    p(f"""
    s_cmp_lg_u32 s{sEP}, 0
    s_cbranch_scc1 K_GEX
    """)
    p.add(opt([f"s_mov_b32 s{sCNT}, {POLL_MAX}",
               "K_GE:",
               f"global_load_dword v{vT1}, v{vT0}, s[54:55] sc0 sc1",
               f"s_sub_u32 s{sCNT}, s{sCNT}, 1",
               f"s_cmp_eq_u32 s{sCNT}, 0",
               "s_waitcnt vmcnt(0)",
               "s_cbranch_scc1 K_GEX",
               f"v_readfirstlane_b32 s{sEP}, v{vT1}",
               "s_sleep 4",
               f"s_cmp_eq_u32 s{sEP}, 0",
               "s_cbranch_scc1 K_GE"]))
    p(f"""
    K_GEX:
    ds_write_b32 v{T}, v{vT1}
    """)
    spin(p, "a", sEP)
    p(f"""
    s_cmp_ge_u32 s{sG}, 14
    s_cbranch_scc1 K_SHORT
    """)
    p.flush()
    tr_s, rs_s, hist_s = p.tr.copy(), dict(rs, q=list(rs["q"])), list(p.out[-60:])
    p.add(stream(NA - 3, NA, None, rs, len(seq)))
    stamp(p, 2)
    stamp(p, 1, "B")
    c = (28 ** -0.5) * 1.4426950408889634

    def epi(j, packed=False):
        qkv = j < 3
        acc = accs[j]
        cf = [CFt, 120, 124][j % 3]
        g0 = [I(f"ds_read_b128 {ar(cf,4)}, v{vCF} offset:{1024*j}")]
        g1 = [I(f"{MF} {vr(acc,16)}, {ar(cf,4)}, {ar(XM,4)}, {vr(acc,16)}")]
        g2 = []
        sc = vRINV
        if qkv:
            sc = vA
            g2 += [I(x) for x in [
                f"s_cmp_lt_u32 s{sT}, {16-j}",
                f"s_cselect_b32 s{sTMP}, {f32bits(c):#x}, 1.0",
                f"v_mul_f32 v{vA}, s{sTMP}, v{vRINV}"]]
        off = 8192 * j if qkv else (STH1 - STQ if j < 5 else STH2 - STQ) + 8192 * ((j - 3) & 1)
        for i in range(8):
            if packed:
                e2 = sc & ~1
                sel = "op_sel_hi:[1,0]" if sc == e2 else "op_sel:[0,1]"
                g2.append(I(f"v_pk_mul_f32 {vr(acc+2*i,2)}, {vr(acc+2*i,2)}, {vr(e2,2)} {sel}"))
            else:
                g2.append(I(f"v_mul_f32 v{acc+2*i}, v{sc}, v{acc+2*i}"))
                g2.append(I(f"v_mul_f32 v{acc+2*i+1}, v{sc}, v{acc+2*i+1}"))
            g2.append(I(f"v_cvt_pk_bf16_f32 v{acc+i}, v{acc+2*i}, v{acc+2*i+1}"))
            if i & 3 == 3:
                o = off + 1024 * (i >> 2)
                va = vVW if o < 65536 else vVR
                g2.append(I(f"ds_write_b128 v{va}, {vr(acc+i-3,4)} offset:{o if o < 65536 else o - 32768}", tag="stg"))
        return g0, g1, g2

    def plan(tiles, start, span):
        fill = {}

        def put(i, l):
            fill.setdefault(i, []).extend(l)
        e = [epi(j) for j in tiles]
        put(start, e[0][0] + e[1][0])
        put(start + 2, e[0][1])
        put(start + 3, e[1][1])
        if len(e) > 2:
            put(start + 3, e[2][0])
            put(start + 6, e[2][1])
        allv = [x for g in e for x in g[2]]
        b2 = start + 4
        for i, x in enumerate(allv):
            put(b2 + (i * (span - 4)) // len(allv), [x])
        return fill

    S = [48, 64]
    P = [80, 88]
    O0 = 96
    KR = 48
    Q = 0
    KV = [32, 48]
    OA = 64

    def att_loads():
        o = [f"s_lshl_b32 s{sKV0}, s{sHEAD}, 18",
             f"s_add_u32 s{sKV0}, s{sKV0}, {KVF}",
             f"buffer_load_dwordx4 {vr(KR,4)}, v{vL16}, s[{sWS}:{sWS+3}], s{sKV0} offen sc1",
             f"buffer_load_dwordx4 {vr(KR+4,4)}, v{vL16}, s[{sWS}:{sWS+3}], s{sKV0} offen offset:1024 sc1",
             f"s_lshl_b32 s{sTMP}, s{sHEAD}, 6",
             f"s_lshl_b32 s{sTMP2}, s{sQB}, 2",
             f"s_add_u32 s{sTMP}, s{sTMP}, s{sTMP2}"]
        for u in range(4):
            o += [f"s_xor_b32 s{sTMP2}, s{sWAVE}, {(u+1)&3}",
                  f"s_add_u32 s{sTMP2}, s{sTMP2}, s{sTMP}",
                  f"s_lshl_b32 s{sTMP2}, s{sTMP2}, 11",
                  f"buffer_load_dwordx4 {ar(Q+8*u,4)}, v{vL16}, s[{sWS}:{sWS+3}], s{sTMP2} offen sc1",
                  f"buffer_load_dwordx4 {ar(Q+8*u+4,4)}, v{vL16}, s[{sWS}:{sWS+3}], s{sTMP2} offen offset:1024 sc1"]
        o += [f"s_lshl_b32 s{sTMP}, s{sWAVE}, 16",
              f"s_add_u32 s{sKV}, s{sKV0}, s{sTMP}",
              f"s_add_u32 s{sKV2}, s{sKV}, 4096"]
        for j in range(4):
            o.append(f"buffer_load_dwordx4 {ar(KV[0]+4*j,4)}, v{vL16}, s[{sWS}:{sWS+3}], s{sKV} offen offset:{1024*j} sc1")
        for j in range(2):
            o.append(f"buffer_load_dwordx4 {ar(KV[1]+4*j,4)}, v{vL16}, s[{sWS}:{sWS+3}], s{sKV2} offen offset:{1024*j} sc1")
        return [I(x) for x in o]

    def poll_opt(name, sleep):
        o = [I(f"v_cmp_ne_u32 vcc, s{sEP}, v{vT1}"), I("s_nop 1"), I(f"s_cbranch_vccz {name}X")]
        o += opt([f"s_mov_b32 s{sCNT}, {POLL_MAX}",
                  f"{name}:",
                  f"s_sleep {sleep}",
                  f"buffer_load_dword v{vT1}, v{vPL}, s[{sWS}:{sWS+3}], 0 offen sc1",
                  f"s_sub_u32 s{sCNT}, s{sCNT}, 1",
                  f"s_cmp_eq_u32 s{sCNT}, 0",
                  "s_waitcnt vmcnt(0)",
                  f"s_cbranch_scc1 {name}X",
                  f"v_cmp_ne_u32 vcc, s{sEP}, v{vT1}",
                  "s_nop 1",
                  f"s_cbranch_vccnz {name}"])
        o += [I(f"{name}X:")]
        return o

    HSPAN, PPOS, CPOS = int(E("HSPAN", "30")), int(E("PPOS", "30")), int(E("CPOS", "42"))
    p(f"v_add_u32 v{vVR}, 32768, v{vVW}")

    def qkv_epilogue():
        e = [epi(j, True) for j in range(3)]
        p.add(e[0][0] + e[1][0] + e[2][0] + e[0][1] + e[1][1] + e[2][1] + e[0][2] + e[1][2] + e[2][2])
        p("s_waitcnt lgkmcnt(0)")
        p("s_barrier")

    qkv_epilogue()
    stamp(p, 1, "C")
    p.add(stream(NA, NA + 56, None, rs, len(seq)))
    stamp(p, 2, "C")
    fc = plan([3, 4], 1, HSPAN)
    if E("MODE") != "2":
        fc.setdefault(0, []).append(I("s_barrier"))
    fc.setdefault(HSPAN + 3, []).extend([I("@wait stg"), I("s_barrier")])
    fc.setdefault(PPOS, []).append(I(f"buffer_load_dword v{vT1}, v{vPL}, s[{sWS}:{sWS+3}], 0 offen sc1"))
    ds = (lambda i: [I(f"s_memtime s[{66+4*i}:{67+4*i}]"), I("s_waitcnt lgkmcnt(0)")]) if STAMP and E("DIAG") == "C" else (lambda i: [])
    fc.setdefault(CPOS, []).extend(ds(3) + poll_opt("K_PQ1", E("SLQ", "12")) + ds(4))
    if STAMP and E("DIAG") == "D":
        dd = lambda i: [I(f"s_memtime s[{66+4*i}:{67+4*i}]"), I("s_waitcnt lgkmcnt(0)")]
        fc.setdefault(0, [])[:0] = dd(1)
        fc.setdefault(16, []).extend(dd(2))
        fc.setdefault(HSPAN + 1, []).extend(dd(3))
        fc.setdefault(HSPAN + 3, []).extend(dd(4))
        fc.setdefault(CPOS - 1, []).extend(dd(5))
        fc.setdefault(CPOS, []).extend(dd(6))
    al = att_loads()
    for i, x in enumerate(al):
        fc.setdefault(CPOS + (i * (min(55, CPOS + int(E("LSPAN", "13"))) - CPOS)) // len(al), []).append(x)
    e = [epi(j) for j in (5, 6)]
    fc.setdefault(52, []).extend(e[0][0] + e[1][0])
    p.add(stream(NA + 56, NA + 112, fc, rs, len(seq)))
    stamp(p, 3)
    stamp(p, 5, "C")
    RD = [64, 80, 96, 112]

    def refmm():
        o = []
        for u in range(4):
            d = RD[u]
            o.append(I(f"{MF} {vr(d,16)}, {vr(KR,4)}, {ar(Q+8*u,4)}, 0"))
            o.append(I(f"{MF} {vr(d,16)}, {vr(KR+4,4)}, {ar(Q+8*u+4,4)}, {vr(d,16)}"))
        return o

    p.add(e[0][1] + e[1][1])
    p.add(interleave(refmm(), e[0][2] + e[1][2]))
    p("""
    s_waitcnt lgkmcnt(0)
    s_barrier
    s_branch K_ATT
    """)
    p.flush()
    tr_att = p.tr.copy()

    p.tr = tr_s
    p("K_SHORT:")
    p.add(stream(NA - 3, NA, None, rs_s, NA))
    p("s_waitcnt lgkmcnt(0)")
    p("s_barrier")
    stamp(p, 2)
    qkv_epilogue()
    p("s_barrier")
    stamp(p, 3)
    seq2 = add_waits(p.cur, p.tr)
    p.out += pad_hazards(seq2, hist_s)
    p.cur = []
    poll(p, "K_PQ2", vT1, vPL, sWS, "0", sEP, sCNT, E("SLS", "10"))
    p.add(att_loads())
    p.add(refmm())
    p("s_nop 7")
    p.flush()

    p.tr = tr_att

    def Oacc(u):
        return vr(O0, 16) if u == 3 else ar(OA + 16 * u, 16)

    vA1, vA2, vA3, vRA, vEP = 2, 3, 4, 5, 6
    vAs = [None, vA1, vA2, vA3]
    p(f"""
    K_ATT:
    s_setprio {E("AP", "2")}
    s_mov_b32 s{sKVR}, s{sWS}
    s_mov_b32 s{sKVR+1}, s{sWS+1}
    s_add_u32 s{sKVR+2}, s{sKV}, 65536
    s_mov_b32 s{sKVR+3}, 0x00020000
    v_mov_b32 v{vEP}, s{sEP}
    """)
    for u in range(1, 4):
        p(f"""
        s_xor_b32 s{sTMP}, s{sWAVE}, {u}
        s_mul_i32 s{sTMP}, s{sTMP}, 3
        s_add_u32 s{sTMP}, s{sTMP}, {u-1}
        s_lshl_b32 s{sTMP}, s{sTMP}, 12
        v_add_u32 v{vAs[u]}, s{sTMP}, v{vL16}
        """)
    p(f"""
    s_mul_i32 s{sTMP}, s{sWAVE}, {3*4096}
    v_add_u32 v{vRA}, s{sTMP}, v{vL16}
    s_mov_b32 s{sCNT}, 8
    """)
    M, M2, PC = 24, 28, 40

    def rowmax(m, d):
        p(f"v_max3_f32 v{m}, v{d}, v{d+1}, v{d+2}")
        for r in range(3, 15, 2):
            p(f"v_max3_f32 v{m}, v{m}, v{d+r}, v{d+r+1}")
        p(f"v_max_f32 v{m}, v{m}, v{d+15}")

    def put_ref(units, add):
        for u in units:
            p(f"v_mov_b32 v{M2+u}, v{M+u}")
        for u in units:
            p(f"v_permlane32_swap_b32 v{M+u}, v{M2+u}")
        for u in units:
            m, a, b, cc = M + u, M2 + u, PC + u, PC + 4 + u
            p(f"""
            v_max_f32 v{m}, v{m}, v{a}
            v_sub_f32 v{a}, {f32bits(-add):#x}, v{m}
            v_and_b32 v{b}, 0xffff0000, v{a}
            v_sub_f32 v{a}, v{a}, v{b}
            v_and_b32 v{cc}, 0xffff0000, v{a}
            v_sub_f32 v{a}, v{a}, v{cc}
            v_lshrrev_b32 v{b}, 16, v{b}
            v_or_b32 v{b}, v{b}, v{cc}
            v_lshrrev_b32 v{a}, 16, v{a}
            """)
        p("s_mov_b32 exec_lo, 0")
        for u in units:
            p(f"v_mov_b32 v{128+(Q+8*u+6)}, v{PC+u}")
            p(f"v_mov_b32 v{128+(Q+8*u+7)}, v{M2+u}")
        p("s_mov_b32 exec_lo, -1")

    for u in range(4):
        rowmax(M + u, RD[u])
    put_ref(range(4), REF_OFF)

    def qk(n_u, kb, sbuf):
        k = KV[kb]
        return [I(f"{MF} {vr(S[sbuf],16)}, {ar(k,4)}, {ar(Q+8*n_u,4)}, 0"),
                I(f"{MF} {vr(S[sbuf],16)}, {ar(k+4,4)}, {ar(Q+8*n_u+4,4)}, {vr(S[sbuf],16)}")]

    def pv(u, vb, pbuf):
        v = KV[vb] + 8
        return [I(f"{MF} {Oacc(u)}, {ar(v,4)}, {vr(P[pbuf],4)}, {Oacc(u)}"),
                I(f"{MF} {Oacc(u)}, {ar(v+4,4)}, {vr(P[pbuf]+4,4)}, {Oacc(u)}")]

    def softmax(sb):
        s, pp = S[sb], P[sb]
        v = []
        for i in range(8):
            v.append(I(f"v_exp_f32 v{s+2*i}, v{s+2*i}"))
            v.append(I(f"v_exp_f32 v{s+2*i+1}, v{s+2*i+1}"))
            if i >= 1:
                v.append(I(f"v_cvt_pk_bf16_f32 v{pp+i-1}, v{s+2*i-2}, v{s+2*i-1}"))
        v.append(I(f"v_cvt_pk_bf16_f32 v{pp+7}, v{s+14}, v{s+15}"))
        return v

    def cost(i):
        return 8 if i.is_trans() else 4

    def slot(tb, u):
        nu = (u + 1) & 3
        pu = (u - 1) & 3
        mf = qk(nu, tb if u < 3 else 1 - tb, (u + 1) & 1) + pv(pu, tb if u > 0 else 1 - tb, (u - 1) & 1)
        ld = []
        if u == 0:
            so = sKV2 if tb == 0 else sKV
            ld += [I(f"buffer_load_dwordx4 {ar(KV[1-tb]+8+4*j,4)}, v{vL16}, s[{sKVR}:{sKVR+3}], s{so} offen offset:{2048+1024*j} sc1") for j in range(2)]
        if u == 2:
            so = sKV if tb == 0 else sKV2
            ld += [I(f"buffer_load_dwordx4 {ar(KV[tb]+4*j,4)}, v{vL16}, s[{sKVR}:{sKVR+3}], s{so} offen offset:{1024*j} sc1") for j in range(2)]
        va = softmax(u & 1)
        total = sum(cost(i) for i in va)
        out = []
        k = 0
        acc = 0
        for j, m in enumerate(mf):
            out.append(m)
            tgt = total * (j + 1) / len(mf)
            while k < len(va) and acc + cost(va[k]) / 2 <= tgt:
                out.append(va[k]); acc += cost(va[k]); k += 1
        out += va[k:]
        idx = max(i for i, x in enumerate(out) if x.kind == "mfma")
        if ld:
            out = out[:idx + 1] + interleave(out[idx + 1:], ld)
        return out

    stamp(p, 4)
    spin(p, "att", sEP)
    p.add(qk(0, 0, 0))
    for i in range(0, 48, 2):
        p(f"v_mov_b64 {ar(OA+i,2)}, 0")
    for i in range(0, 8, 2):
        p(f"v_mov_b64 {ar(KV[1]+8+i,2)}, 0")
    for i in range(0, 16, 2):
        p(f"v_mov_b64 {vr(O0+i,2)}, 0")
    for i in range(0, 8, 2):
        p(f"v_mov_b64 {vr(P[1]+i,2)}, 0")
    body = [I(".p2align 6"), I("K_LOOP:")]
    for tb in range(2):
        for u in range(4):
            if u == 1:
                so = sKV if tb == 0 else sKV2
                body.append(I(f"s_add_u32 s{so}, s{so}, 8192"))
            if tb == 1 and u == 3:
                body.append(I(f"s_sub_u32 s{sCNT}, s{sCNT}, 1"))
                body.append(I(f"s_cmp_lg_u32 s{sCNT}, 0"))
            body += slot(tb, u)
    body += [I("s_cbranch_scc1 K_LOOP")]
    p.loop(body)
    stamp(p, 5)
    spin(p, "tail", sEP)
    p.add(pv(3, 1, 1))
    for u in range(1, 4):
        for q in range(4):
            p(f"ds_write_b128 v{vAs[u]}, {ar(OA+16*(u-1)+4*q,4)} offset:{1024*q}")
    p(f"""
    s_lshl_b32 s{sTMP2}, s{sQB}, 2
    s_add_u32 s{sTMP2}, s{sTMP2}, s{sWAVE}
    s_lshl_b32 s{sTMP}, s{sTMP2}, 15
    s_lshl_b32 s{sTMP3}, s{sHEAD}, 11
    s_add_u32 s{sTMP}, s{sTMP}, s{sTMP3}
    s_add_u32 s{sTMP}, s{sTMP}, {OF}
    s_lshl_b32 s{sTMP3}, s{sTMP2}, 4
    s_add_u32 s{sTMP3}, s{sTMP3}, s{sHEAD}
    s_lshl_b32 s{sTMP3}, s{sTMP3}, 2
    s_add_u32 s{sTMP3}, s{sTMP3}, {FO}
    s_lshl_b32 s{sTMP2}, s{sWAVE}, 2
    s_add_u32 s{sTMP2}, s{sTMP2}, {EPA+16}
    v_mov_b32 v16, s{sTMP2}
    v_and_b32 v17, 3, v0
    v_lshlrev_b32 v17, 2, v17
    v_add_u32 v17, {EPA+16}, v17
    ds_write_b32 v16, v{vEP}
    s_mov_b32 s{sKV}, {POLL_MAX*16}
    """)
    p.flush()
    p(f"""
    K_AW:
    ds_read_b32 v18, v17
    s_sub_u32 s{sKV}, s{sKV}, 1
    s_cmp_eq_u32 s{sKV}, 0
    s_waitcnt lgkmcnt(0)
    s_cbranch_scc1 K_AWX
    v_cmp_ne_u32 vcc, s{sEP}, v18
    s_nop 1
    s_cbranch_vccnz K_AW
    K_AWX:
    """)
    p.flush()
    stamp(p, 6)
    R = 48
    for i in range(3):
        for q in range(4):
            p(f"ds_read_b128 {vr(R+16*i+4*q,4)}, v{vRA} offset:{4096*i+1024*q}")
    for i in range(3):
        for r in range(0, 16, 2):
            p(f"v_pk_add_f32 {vr(O0+r,2)}, {vr(O0+r,2)}, {vr(R+16*i+r,2)}")
    p("K_NORM:")
    l, l2, ri, mx, PK = 16, 17, 18, 20, 32
    p(f"""
    v_mov_b32 v{l}, v{O0+12}
    v_mov_b32 v{l2}, v{O0+12}
    v_permlane32_swap_b32 v{l}, v{l2}
    v_rcp_f32 v{ri}, v{l2}
    """)
    for r in range(0, 16, 2):
        p(f"v_pk_mul_f32 {vr(O0+r,2)}, {vr(O0+r,2)}, {vr(ri,2)} op_sel_hi:[1,0]")
    for i in range(8):
        p(f"v_cvt_pk_bf16_f32 v{PK+i}, v{O0+2*i}, v{O0+2*i+1}")
    p(f"""
    buffer_store_dwordx4 {vr(PK,4)}, v{vL16}, s[{sWS}:{sWS+3}], s{sTMP} offen sc1
    buffer_store_dwordx4 {vr(PK+4,4)}, v{vL16}, s[{sWS}:{sWS+3}], s{sTMP} offen offset:1024 sc1
    """)
    for r in range(0, 16, 2):
        p(f"v_pk_add_f32 {vr(O0+r,2)}, {vr(O0+r,2)}, {vr(O0+r,2)} neg_lo:[0,1] neg_hi:[0,1]")
    for r in (8, 4, 2):
        for k in range(0, r, 2):
            p(f"v_pk_add_f32 {vr(O0+k,2)}, {vr(O0+k,2)}, {vr(O0+r+k,2)}")
    p(f"""
    v_add_f32 v{mx}, v{O0}, v{O0+1}
    v_add_f32 v{mx}, v{mx}, v{l2}
    v_cmp_ngt_f32 vcc, {f32bits(L_LIMIT):#x}, v{mx}
    s_cmp_eq_u32 s{sCNT}, 0
    s_cselect_b64 vcc, vcc, 0
    s_cbranch_vccnz K_SLOW
    s_mov_b64 exec, 1
    s_waitcnt vmcnt(0)
    buffer_store_dword v{vEP}, v{vL16}, s[{sWS}:{sWS+3}], s{sTMP3} offen sc1
    s_mov_b64 exec, -1
    """)
    stamp_out(p, 7, sWS, sWAVE, 2, 3)
    p("s_endpgm")
    p.flush()
    p.tr = Tracker()
    p(f"""
    K_SLOW:
    s_waitcnt vmcnt(0) lgkmcnt(0)
    s_mov_b32 exec_lo, 0
    v_mov_b32 v{128+(Q+30)}, 0
    v_mov_b32 v{128+(Q+31)}, 0
    s_mov_b32 exec_lo, -1
    v_mov_b32 v{M+3}, 0xff800000
    s_mov_b32 s{sKV}, s{sKV0}
    s_mov_b32 s{sCNT}, 64
    """)
    body = [I("K_S1:")]
    body += [I(f"buffer_load_dwordx4 {ar(KV[0]+4*j,4)}, v{vL16}, s[{sWS}:{sWS+3}], s{sKV} offen offset:{1024*j} sc1") for j in range(2)]
    body += qk(3, 0, 0)
    body += [I(f"v_max3_f32 v{M+3}, v{M+3}, v{S[0]+r}, v{S[0]+r+1}") for r in range(0, 16, 2)]
    body += [I(f"s_add_u32 s{sKV}, s{sKV}, 4096"), I(f"s_sub_u32 s{sCNT}, s{sCNT}, 1"), I(f"s_cmp_lg_u32 s{sCNT}, 0"), I("s_cbranch_scc1 K_S1")]
    p.loop(body)
    put_ref([3], 0.0)
    for i in range(16):
        p(f"v_mov_b32 v{O0+i}, 0")
    p(f"""
    s_mov_b32 s{sKV}, s{sKV0}
    s_mov_b32 s{sCNT}, 64
    """)
    body = [I("K_S2:")]
    body += [I(f"buffer_load_dwordx4 {ar(KV[0]+4*j,4)}, v{vL16}, s[{sWS}:{sWS+3}], s{sKV} offen offset:{1024*j} sc1") for j in range(4)]
    body += qk(3, 0, 0) + softmax(0) + pv(3, 0, 0)
    body += [I(f"s_add_u32 s{sKV}, s{sKV}, 4096"), I(f"s_sub_u32 s{sCNT}, s{sCNT}, 1"), I(f"s_cmp_lg_u32 s{sCNT}, 0"), I("s_cbranch_scc1 K_S2")]
    p.loop(body)
    p(f"""
    s_mov_b32 s{sCNT}, 1
    s_nop 7
    s_nop 7
    s_branch K_NORM
    """)
    p.flush()

    p.tr = Tracker()
    vOA3, vX, vOB, hLA, hLB, hCW, ONE, CS, F = 8, 12, 14, 16, 17, 19, 20, 24, 40
    hL16 = 1
    cut2 = len(p.out)
    p("K_HELPER:")
    p("s_waitcnt lgkmcnt(0)")
    stamp(p, 0)
    srd(p, sX, 40, XB)
    srd(p, sW, 42, WQKVB)
    p(f"""
    s_sub_u32 s{sWAVE}, s{sWAVE}, 4
    s_add_u32 s{sXO}, s{sMT}, s{sWAVE}
    s_mul_i32 s{sXO}, s{sXO}, 28672
    v_lshrrev_b32 v4, 3, v0
    v_mul_u32_u24 v7, 896, v4
    v_lshrrev_b32 v5, 4, v0
    v_and_b32 v6, 7, v0
    v_xor_b32 v6, v5, v6
    v_lshl_add_u32 v{vX}, v6, 4, v7
    v_xor_b32 v6, 4, v6
    v_lshl_add_u32 v{vX+1}, v6, 4, v7
    s_mul_i32 s{sOA}, s{sG}, 168
    s_mul_i32 s{sTMP}, s{sWAVE}, {16*2688}
    s_add_u32 s{sOA}, s{sOA}, s{sTMP}
    s_lshl_b32 s{sM0}, s{sWAVE}, 12
    s_mul_i32 s{sTMP3}, s{sWAVE}, 3072
    """)

    def dma(st):
        base = (st % 5) * SLOT
        o = []
        if st < 7:
            for g in range(4):
                o.append([f"s_add_u32 m0, s{sM0}, {base+WAB+1024*g}",
                          f"s_add_u32 s{sTMP}, s{sXO}, {8*896*g+128*st}",
                          f"buffer_load_dwordx4 v{vX+(g&1)}, s[{sX}:{sX+3}], s{sTMP} offen lds"])
            for d in range(3):
                o.append([f"s_add_u32 m0, s{sTMP3}, {base+1024*d}",
                          f"s_add_u32 s{sTMP}, s{sOA}, {64*2688*st}",
                          f"buffer_load_dwordx4 v{vOA3+d}, s[{sW}:{sW+3}], s{sTMP} offen lds"])
        else:
            ph, hs = divmod(st - 7, 2)
            for d in range(7):
                o.append([f"s_add_u32 m0, s{sT}, {base+1024*d}",
                          f"s_add_u32 s{sTMP}, s{sOB}, {(224*hs+8*d)*3584+128*ph}",
                          f"buffer_load_dwordx4 v{vOB}, s[{sW2}:{sW2+3}], s{sTMP} offen lds"])
        return [(st, g) for g in o]

    dq = [g for st in range(11) for g in dma(st)]

    def issue(n, maxst=10):
        for _ in range(n):
            if dq and dq[0][0] <= maxst:
                st, g = dq.pop(0)
                p("\n".join(g), tag=f"st{st}")

    issue(4)
    for d in range(3):
        p(f"""
        v_add_u32 v1, {64*d}, v0
        v_mul_u32_u24 v2, 5462, v1
        v_lshrrev_b32 v2, 16, v2
        v_mul_u32_u24 v3, 12, v2
        v_sub_u32 v1, v1, v3
        v_lshrrev_b32 v3, 2, v1
        v_and_b32 v1, 3, v1
        v_lshlrev_b32 v1, 4, v1
        v_mad_u32_u24 v1, v3, 56, v1
        v_mul_u32_u24 v2, 2688, v2
        v_add_u32 v{vOA3+d}, v1, v2
        """)
    issue(10)
    srd(p, sWS, 46, WS_BYTES)
    srd(p, sW2, 48, W1B)
    tr_lane(hLA, hLB, hLB + 1, 1, 2)
    p(f"""
    s_mul_i32 s{sTMP}, s{sWAVE}, {16*192}
    v_add_u32 v{hLA}, s{sTMP}, v{hLA}
    v_bfe_u32 v1, v0, 2, 1
    v_bfe_u32 v2, v0, 4, 1
    v_xor_b32 v1, v1, v2
    v_and_b32 v3, 3, v0
    v_lshlrev_b32 v3, 4, v3
    v_lshl_add_u32 v3, v1, 6, v3
    v_mul_u32_u24 v4, 3584, v4
    v_add_u32 v{vOB}, v4, v3
    v_and_b32 v1, 15, v0
    v_mov_b32 v3, 0x3f803f80
    v_cmp_eq_u32 vcc, v1, v2
    v_cndmask_b32 v{ONE}, 0, v3, vcc
    v_mov_b32 v{ONE+1}, v{ONE}
    v_mov_b32 v{ONE+2}, v{ONE}
    v_mov_b32 v{ONE+3}, v{ONE}
    s_lshl_b32 s{sOB}, s{sG}, 8
    s_mul_i32 s{sTMP}, s{sWAVE}, {56*3584}
    s_add_u32 s{sOB}, s{sOB}, s{sTMP}
    s_mul_i32 s{sT}, s{sWAVE}, 7168
    s_lshr_b32 s{sTMP}, s{sWAVE}, 1
    s_lshl_b32 s{sTMP}, s{sTMP}, 9
    s_and_b32 s{sTMP2}, s{sWAVE}, 1
    s_lshl_b32 s{sTMP2}, s{sTMP2}, 3
    s_add_u32 s{sTMP}, s{sTMP}, s{sTMP2}
    s_add_u32 s{sTMP}, s{sTMP}, {CFA}
    v_lshl_add_u32 v{hCW}, v0, 4, s{sTMP}
    v_lshlrev_b32 v{hL16}, 4, v0
    s_setprio {E("HP", "2")}
    s_add_u32 s{sTMP}, s2, s{sWAVE}
    s_cmp_lg_u32 s{sTMP}, 0
    s_cbranch_scc1 K_NOEP
    """)
    p.add(opt([f"s_memrealtime s[60:61]",
               "s_waitcnt lgkmcnt(0)",
               "s_or_b32 s60, s60, 1",
               "v_mov_b32 v2, 0",
               "v_mov_b32 v3, s60",
               "s_mov_b64 exec, 1",
               "global_store_dword v2, v3, s[54:55] sc0 sc1",
               "s_mov_b64 exec, -1"]))
    p("K_NOEP:")

    def publish(tiles, j0):
        for t in range(tiles):
            for r in range(2):
                c0 = CS + 4 * t + r
                a, b2, c2 = F + 8 * t + 4 * r, F + 8 * t + 4 * r + 1, F + 8 * t + 4 * r + 2
                p(f"""
                v_and_b32 v{a}, 0xffff0000, v{c0}
                v_sub_f32 v{b2}, v{c0}, v{a}
                v_and_b32 v{c2}, 0xffff0000, v{b2}
                v_sub_f32 v{b2}, v{b2}, v{c2}
                v_lshrrev_b32 v{a}, 16, v{a}
                v_or_b32 v{a}, v{a}, v{c2}
                v_lshrrev_b32 v{b2}, 16, v{b2}
                """)
        p("s_mov_b64 exec, 0xffff")
        for t in range(tiles):
            for r in range(2):
                p(f"ds_write_b64 v{hCW}, {vr(F+8*t+4*r,2)} offset:{1024*(j0+t)+256*r}")
        p("s_mov_b64 exec, -1")

    def colsum_a(st, between=None):
        if E("NOCS") and st < 6:
            if between:
                between()
            return
        p(f"v_add_u32 v2, {(st % 5) * SLOT}, v{hLA}")
        for j in range(3):
            p(f"ds_read_b64_tr_b16 {vr(F+4*j,2)}, v2 offset:{64*j}")
            p(f"ds_read_b64_tr_b16 {vr(F+4*j+2,2)}, v2 offset:{64*j+4*192}")
        if between:
            between()
        for j in range(3):
            p(f"{M16} {vr(CS+4*j,4)}, {vr(ONE,4)}, {vr(F+4*j,4)}, {'0' if st == 0 else vr(CS+4*j,4)}")
        if st == 6:
            publish(3, 0)

    def colsum_b(ph):
        s0, s1 = ((7 + 2 * ph) % 5) * SLOT, ((8 + 2 * ph) % 5) * SLOT
        p(f"""
        s_mul_i32 s{sTMP}, s{sWAVE}, {7*2048}
        s_cmp_lt_u32 s{sWAVE}, 2
        s_mov_b32 s{sTMP2}, {(s1 - SLOT) & 0xffffffff}
        s_cselect_b32 s{sTMP2}, {s0}, s{sTMP2}
        s_add_u32 s{sTMP}, s{sTMP}, s{sTMP2}
        v_add_u32 v2, s{sTMP}, v{hLB}
        v_add_u32 v3, s{sTMP}, v{hLB+1}
        """)
        mm = []
        for i in range(7):
            for t in range(2):
                b = F + 8 * i + 4 * t
                p(f"ds_read_b64_tr_b16 {vr(b,2)}, v{2+t} offset:{2048*i}")
                p(f"ds_read_b64_tr_b16 {vr(b+2,2)}, v{2+t} offset:{2048*i+512}")
                mm.append(f"{M16} {vr(CS+4*t,4)}, {vr(ONE,4)}, {vr(b,4)}, {'0' if i == 0 else vr(CS+4*t,4)}")
                if len(mm) > 6:
                    p(mm.pop(0))
        for m in mm:
            p(m)
        publish(2, 3 + 2 * ph)

    def bar(*sts):
        if sts:
            p("@wait " + " ".join(f"st{x}" for x in sts))
        p("s_waitcnt lgkmcnt(0)")
        p("s_barrier")

    D = 100
    hSR, hVR, hMA, hOA, hEP = 124, 125, 126, 127, 15

    def out_setup():
        p(f"""
        s_lshl_b32 s{sTMP}, s{sWAVE}, 11
        s_add_u32 s{sTMP}, s{sTMP}, {STQ}
        v_add_u32 v{hSR}, s{sTMP}, v{hL16}
        v_bfe_u32 v2, v0, 4, 1
        v_lshl_add_u32 v{hVR}, v2, 10, s{sTMP}
        v_lshrrev_b32 v2, 5, v0
        v_lshl_add_u32 v{hVR}, v2, 6, v{hVR}
        v_bfe_u32 v2, v0, 2, 2
        v_lshl_add_u32 v{hVR}, v2, 4, v{hVR}
        v_and_b32 v2, 1, v0
        v_lshl_add_u32 v{hVR}, v2, 9, v{hVR}
        v_bfe_u32 v2, v0, 1, 1
        v_lshl_add_u32 v{hVR}, v2, 3, v{hVR}
        v_and_b32 v2, 31, v0
        v_cmp_gt_u32 vcc, 28, v2
        v_cndmask_b32 v{hMA}, 0, -1, vcc
        v_mov_b32 v3, 0x3f803f80
        v_cmp_eq_u32 vcc, 28, v2
        v_cndmask_b32 v{hOA}, 0, v3, vcc
        s_add_u32 s{sCNT}, s{sMT}, s{sWAVE}
        """)

    def out_qkv(tag):
        p(f"""
        v_mov_b32 v2, {EPA}
        ds_read_b32 v{hEP}, v2
        s_mul_i32 s{sTY}, s{sG}, 3
        """)
        for j in range(3):
            d = D + 8 * j
            p(f"""
            s_cmp_ge_u32 s{sTY}, {32-j}
            s_cbranch_scc1 K_RV{j}{tag}
            """)
            p.add(opt([f"ds_read_b128 {vr(d,4)}, v{hSR} offset:{8192*j}",
                       f"ds_read_b128 {vr(d+4,4)}, v{hSR} offset:{8192*j+1024}",
                       f"s_branch K_RW{j}{tag}"]))
            p(f"K_RV{j}{tag}:")
            p.add(opt([f"ds_read_b64_tr_b16 {vr(d+2*k,2)}, v{hVR} offset:{8192*j+128*k}" for k in range(4)]))
            p(f"K_RW{j}{tag}:")
        p("s_waitcnt lgkmcnt(0)")
        for j in range(3):
            d = D + 8 * j
            p(f"""
            s_add_u32 s{sTMP}, s{sTY}, {j}
            s_lshr_b32 s{sTMP2}, s{sTMP}, 4
            s_and_b32 s{sTMP}, s{sTMP}, 15
            s_lshl_b32 s{sTMP}, s{sTMP}, 6
            s_add_u32 s{sTMP}, s{sTMP}, s{sCNT}
            s_lshl_b32 s{sST}, s{sTMP}, 11
            s_lshl_b32 s{sTMP}, s{sTMP}, 12
            s_add_u32 s{sTMP}, s{sTMP}, {KVF}
            s_cmp_eq_u32 s{sTMP2}, 0
            s_cselect_b32 s{sST}, s{sST}, s{sTMP}
            s_cselect_b32 s{sTMP}, 0, 0x3f803f80
            s_cselect_b32 s{sEP}, 0, 0x3f80
            s_cmp_eq_u32 s{sTMP2}, 2
            s_cbranch_scc1 K_FV{j}{tag}
            """)
            p.add(opt(["s_mov_b32 exec_lo, 0",
                       f"v_mov_b32 v{d+6}, s{sTMP}",
                       f"v_mov_b32 v{d+7}, s{sEP}",
                       "s_mov_b32 exec_lo, -1",
                       f"s_branch K_FW{j}{tag}"]))
            p(f"K_FV{j}{tag}:")
            p.add(opt([f"v_and_or_b32 v{d+i}, v{d+i}, v{hMA}, v{hOA}" for i in range(8)] + [f"s_add_u32 s{sST}, s{sST}, 2048"]))
            p(f"""
            K_FW{j}{tag}:
            buffer_store_dwordx4 {vr(d,4)}, v{hL16}, s[{sWS}:{sWS+3}], s{sST} offen sc1
            buffer_store_dwordx4 {vr(d+4,4)}, v{hL16}, s[{sWS}:{sWS+3}], s{sST} offen offset:1024 sc1
            """)

    def hflag(instrs, younger=0):
        p(instrs)
        p(f"""
        s_mov_b64 exec, 1
        s_waitcnt vmcnt({younger})
        buffer_store_dword v{hEP}, v{hL16}, s[{sWS}:{sWS+3}], s{sTMP} offen sc1
        s_mov_b64 exec, -1
        """)

    fq = f"""
        s_lshl_b32 s{sTMP}, s{sG}, 6
        s_add_u32 s{sTMP}, s{sTMP}, s{sCNT}
        s_lshl_b32 s{sTMP}, s{sTMP}, 2
        s_add_u32 s{sTMP}, s{sTMP}, {FQ}
        """

    fh = f"""
        s_lshl_b32 s{sTMP}, s{sCNT}, 4
        s_add_u32 s{sTMP}, s{sTMP}, s{sG}
        s_lshl_b32 s{sTMP}, s{sTMP}, 2
        s_add_u32 s{sTMP}, s{sTMP}, {FH}
        """

    def out_h(k):
        base = (STH1 if k == 0 else STH2) - STQ
        p(f"v_add_u32 v2, {base}, v{hSR}")
        for t in range(2):
            for i in range(2):
                p(f"ds_read_b128 {vr(D+8*t+4*i,4)}, v2 offset:{8192*t+1024*i}")
        p(f"""
        s_mul_i32 s{sST}, s{sCNT}, 114688
        s_lshl_b32 s{sTMP}, s{sG}, 13
        s_add_u32 s{sST}, s{sST}, s{sTMP}
        s_add_u32 s{sST}, s{sST}, {HF + 4096*k}
        """)
        for q in range(4):
            for i in range(4):
                p(f"v_pk_max_i16 v{D+4*q+i}, v{D+4*q+i}, 0")
            p(f"buffer_store_dwordx4 {vr(D+4*q,4)}, v{hL16}, s[{sWS}:{sWS+3}], s{sST} offen offset:{1024*q} sc1")

    NI = [int(x) for x in E("NI", "9,9,9,9,10,10,10").split(",")]
    bar(0)
    KSPLIT = 0
    while dq[0][0] < 7:
        k = KSPLIT
        colsum_a(k, lambda: issue(NI[k], min(6, k + 4)))
        bar(k + 1)
        KSPLIT += 1
    p(f"""
    s_cmp_ge_u32 s{sG}, 14
    s_cbranch_scc1 K_HTR
    """)
    p.flush()
    tr_h, hist_h = p.tr.copy(), list(p.out[-60:])
    for k in range(KSPLIT, 7):
        colsum_a(k, lambda: issue(NI[k], k + 4))
        if k < 6:
            bar(k + 1)
    assert dq == [] or dq[0][0] > 8
    if E("MODE") == "2":
        bar(7, 8)
        issue(int(E("NI7", "5")))
        out_setup()
        stamp(p, 1, "C")
        bar()
        stamp(p, 2, "C")
        out_qkv("")
        stamp(p, 3, "C")
        nlate = len(dq)
        issue(14)
        colsum_b(0)
        stamp(p, 4, "C")
        bar(9, 10)
        hflag(fq)
    else:
        bar(7, 8)
        issue(14)
        out_setup()
        stamp(p, 1, "C")
        bar(9, 10)
        stamp(p, 2, "C")
        out_qkv("")
        stamp(p, 3, "C")
        colsum_b(0)
        if E("FO", "1") == "1":
            hflag(fq)
            bar()
        else:
            bar()
            hflag(fq)
    stamp(p, 5, "C")
    colsum_b(1)
    bar()
    out_h(0)
    stamp(p, 6, "C")
    bar()
    out_h(1)
    hflag(fh)
    p("s_branch K_GEMM")
    p.flush()

    sU, sSL = sOA, sT

    def relayout_load(src_off_reg):
        for d in range(14):
            if d % 4 == 0:
                p(f"s_add_u32 m0, s{sSL}, {1024*d}")
                p(f"s_add_u32 s{sTMP}, s{src_off_reg}, {1024*d}")
            p(f"buffer_load_dwordx4 v{hL16}, s[{sW}:{sW+3}], s{sTMP} offen offset:{1024*(d%4)} lds", tag="rl")

    def relayout_store(dst_reg, stride, zero_reg=None):
        p(f"""
        v_lshrrev_b32 v2, 5, v0
        v_lshlrev_b32 v3, 2, v2
        v_bfe_u32 v2, v0, 2, 2
        v_add_u32 v3, v3, v2
        v_mul_u32_u24 v3, 896, v3
        v_bfe_u32 v2, v0, 4, 1
        v_lshl_add_u32 v3, v2, 5, v3
        v_and_b32 v2, 3, v0
        v_lshl_add_u32 v3, v2, 3, v3
        v_add_u32 v3, s{sSL}, v3
        v_mov_b32 v2, {EPA}
        s_waitcnt vmcnt(0)
        ds_read_b32 v4, v2
        """)
        for t in range(14):
            p(f"ds_read_b64_tr_b16 {vr(F+4*t,2)}, v3 offset:{64*t}")
            p(f"ds_read_b64_tr_b16 {vr(F+4*t+2,2)}, v3 offset:{64*t+8*896}")
        if zero_reg is not None:
            p("s_waitcnt lgkmcnt(0)")
            p("s_mov_b32 exec_lo, 0")
            p(f"s_mov_b32 exec_hi, s{zero_reg}")
            for t in range(14):
                p(f"v_mov_b32 v{F+4*t+2}, 0")
                p(f"v_mov_b32 v{F+4*t+3}, 0")
            p("s_mov_b64 exec, -1")
        for t in range(14):
            p(f"buffer_store_dwordx4 {vr(F+4*t,4)}, v{hL16}, s[{sWS}:{sWS+3}], s{dst_reg} offen sc1")
            p(f"s_add_u32 s{dst_reg}, s{dst_reg}, {stride}")
        p(f"""
        s_lshl_b32 s{sTMP}, s{sU}, 2
        s_add_u32 s{sTMP}, s{sTMP}, {FW}
        s_mov_b64 exec, 1
        s_waitcnt vmcnt(0) lgkmcnt(0)
        buffer_store_dword v4, v{hL16}, s[{sWS}:{sWS+3}], s{sTMP} offen sc1
        s_mov_b64 exec, -1
        """)

    p.tr = tr_h
    p("K_HTR:")
    for k in range(KSPLIT, 4):
        colsum_a(k)
        bar(k + 1)
    srd(p, sW, 50, W2B)
    p(f"""
    s_sub_u32 s{sU}, s{sG}, 14
    s_lshl_b32 s{sU}, s{sU}, 6
    s_add_u32 s{sU}, s{sU}, s{sMT}
    s_add_u32 s{sU}, s{sU}, s{sWAVE}
    s_mul_i32 s{sSL}, s{sWAVE}, 14336
    s_add_u32 s{sSL}, s{sSL}, {2*SLOT}
    s_mul_i32 s{sTMP3}, s{sU}, {16*896}
    """)
    relayout_load(sTMP3)
    for k in range(max(4, KSPLIT), 7):
        colsum_a(k)
        if k < 6:
            bar(k + 1)
    bar()
    out_setup()
    bar()
    out_qkv("s")
    hflag(fq)
    hflag(fh)
    p("s_barrier")
    p(f"""
    s_cmp_ge_u32 s{sU}, 112
    s_cbranch_scc1 K_GEMM
    s_lshl_b32 s{sTMP3}, s{sU}, 10
    s_add_u32 s{sTMP3}, s{sTMP3}, {W2F}
    """)
    seq2 = add_waits(p.cur, p.tr)
    p.out += pad_hazards(seq2, hist_h)
    p.cur = []
    relayout_store(sTMP3, 114688)
    p("s_branch K_GEMM")
    p.flush()
    p.tr = Tracker()
    p(f"""
    K_HWO:
    s_cmp_lg_u32 s{sG}, 7
    s_cbranch_scc1 K_END
    s_cmp_ge_u32 s{sWAVE}, 2
    s_cbranch_scc1 K_END
    """)
    srd(p, sW, 44, WOB)
    p(f"""
    s_lshr_b32 s{sU}, s{sMT}, 1
    s_add_u32 s{sU}, s{sU}, s{sWAVE}
    s_lshr_b32 s{sTMP3}, s{sMT}, 2
    s_mul_i32 s{sTMP3}, s{sTMP3}, {28*896}
    s_mul_i32 s{sTMP}, s{sWAVE}, {16*896}
    s_add_u32 s{sTMP3}, s{sTMP3}, s{sTMP}
    s_mul_i32 s{sSL}, s{sWAVE}, 14336
    s_add_u32 s{sSL}, s{sSL}, {2*SLOT}
    """)
    relayout_load(sTMP3)
    p(f"""
    s_lshl_b32 s{sTMP3}, s{sU}, 10
    s_add_u32 s{sTMP3}, s{sTMP3}, {WOF}
    s_add_u32 s{sU}, s{sU}, 128
    s_sub_u32 s{sTMP2}, 0, s{sWAVE}
    """)
    relayout_store(sTMP3, 32768, sTMP2)
    p("s_endpgm")
    p.flush()

    p.tr = Tracker()
    sOUT = sW2
    sA0, sA1, sB0, sB1, sNT, sMP, sNP = sXO, sOA, sOB, sT, sTY, sHEAD, sQB
    AC0 = 8
    Gv = [24, 40, 56, 72, 88, 104]
    Ga = [112]
    WO = 48
    XR = 120
    NBUF = int(E('NBUF', '2'))

    def Gbuf(b, off, n):
        return vr(Gv[b] + off, n) if b < 6 else ar(Ga[b - 6] + off, n)

    def Gacc(u):
        return vr(AC0, 16) if u == 0 else ar(16 * (u - 1), 16)

    vXO, vA1, vA2, vA3, vRA, vF = 2, 3, 4, 5, 6, 7
    p(f"""
    K_GEMM:
    s_setprio {E("GP", "0")}
    s_lshr_b32 s{sNP}, s{sI}, 2
    s_cmp_ge_u32 s{sNP}, 7
    s_cbranch_scc1 K_HWO
    """)
    stamp(p, 1)
    p(f"""
    v_mov_b32 v2, {EPA}
    ds_read_b32 v3, v2
    s_lshl_b32 s{sMP}, s{sJ}, 2
    s_and_b32 s{sTMP}, s{sI}, 3
    s_add_u32 s{sMP}, s{sMP}, s{sTMP}
    s_lshr_b32 s{sTMP}, s{sWAVE}, 1
    s_lshl_b32 s{sMT}, s{sMP}, 1
    s_add_u32 s{sMT}, s{sMT}, s{sTMP}
    s_and_b32 s{sTMP}, s{sWAVE}, 1
    s_lshl_b32 s{sNT}, s{sNP}, 1
    s_add_u32 s{sNT}, s{sNT}, s{sTMP}
    s_mul_i32 s{sTMP}, s{sWAVE}, {28*1024}
    s_mul_i32 s{sA0}, s{sNT}, 114688
    s_xor_b32 s{sTMP2}, s{sNT}, 1
    s_mul_i32 s{sA1}, s{sTMP2}, 114688
    s_mul_i32 s{sB0}, s{sMT}, 114688
    s_xor_b32 s{sTMP2}, s{sMT}, 1
    s_mul_i32 s{sB1}, s{sTMP2}, 114688
    s_add_u32 s{sTMP2}, s{sTMP}, {W2F}
    s_add_u32 s{sA0}, s{sA0}, s{sTMP2}
    s_add_u32 s{sA1}, s{sA1}, s{sTMP2}
    s_add_u32 s{sTMP2}, s{sTMP}, {HF}
    s_add_u32 s{sB0}, s{sB0}, s{sTMP2}
    s_add_u32 s{sB1}, s{sB1}, s{sTMP2}
    v_readfirstlane_b32 s{sEP}, v3
    """)
    p(f"""
    v_and_b32 v{vF}, 31, v0
    v_mul_u32_u24 v{vF}, 896, v{vF}
    v_lshrrev_b32 v{vRA}, 5, v0
    v_lshl_add_u32 v{vA1}, v{vRA}, 3, v{vF}
    s_mul_i32 s{sTMP3}, s{sMT}, 28672
    s_lshl_b32 s{sTMP2}, s{sNT}, 6
    s_add_u32 s{sTMP3}, s{sTMP3}, s{sTMP2}
    """)
    for q in range(4):
        p(f"buffer_load_dwordx2 {vr(XR+2*q,2)}, v{vA1}, s[{sX}:{sX+3}], s{sTMP3} offen offset:{16*q}")
    p(f"v_lshl_add_u32 v{vXO}, v{vRA}, 4, v{vF}")
    for i in range(0, 48, 2):
        p(f"v_mov_b64 {ar(i,2)}, 0")
    vAs = [None, vA1, vA2, vA3]
    for u in range(1, 4):
        p(f"""
        s_xor_b32 s{sTMP2}, s{sWAVE}, {u}
        s_mul_i32 s{sTMP2}, s{sTMP2}, 3
        s_add_u32 s{sTMP2}, s{sTMP2}, {u-1+12}
        s_lshl_b32 s{sTMP2}, s{sTMP2}, 12
        v_add_u32 v{vAs[u]}, s{sTMP2}, v{hL16}
        """)
    p(f"""
    s_mul_i32 s{sTMP2}, s{sWAVE}, {3*4096}
    s_add_u32 s{sTMP2}, s{sTMP2}, {48*1024}
    v_add_u32 v{vRA}, s{sTMP2}, v{hL16}
    """)
    for i in range(8):
        p(f"v_lshlrev_b32 v{AC0+2*i}, 16, v{XR+i}")
        p(f"v_and_b32 v{AC0+2*i+1}, 0xffff0000, v{XR+i}")
    srd(p, sOUT, 52, XB)
    G0 = Gv[0]
    p(f"""
    v_mov_b32 v{G0}, {EPA+4}
    v_mov_b32 v{G0+1}, s{sEP}
    s_cmp_lg_u32 s{sWAVE}, 0
    s_cbranch_scc1 K_PL
    v_and_b32 v{vF}, 7, v0
    s_lshl_b32 s{sTMP}, s{sMP}, 7
    s_add_u32 s{sTMP}, s{sTMP}, {FH}
    v_lshl_add_u32 v{vF}, v{vF}, 4, s{sTMP}
    s_mov_b64 exec, 0xfffffff
    v_add_u32 v{vF}, {FW}, v{hL16}
    s_mov_b64 exec, -1
    s_mov_b32 s{sCNT}, {POLL_MAX}
    """)
    p.flush()
    p(f"""
    K_PH:
    buffer_load_dwordx4 {vr(XR,4)}, v{vF}, s[{sWS}:{sWS+3}], 0 offen sc1
    s_sub_u32 s{sCNT}, s{sCNT}, 1
    s_cmp_eq_u32 s{sCNT}, 0
    s_waitcnt vmcnt(0)
    s_cbranch_scc1 K_PHX
    v_xor_b32 v{XR}, s{sEP}, v{XR}
    v_xor_b32 v{XR+1}, s{sEP}, v{XR+1}
    v_xor_b32 v{XR+2}, s{sEP}, v{XR+2}
    v_xor_b32 v{XR+3}, s{sEP}, v{XR+3}
    v_or3_b32 v{XR}, v{XR}, v{XR+1}, v{XR+2}
    v_or_b32 v{XR}, v{XR}, v{XR+3}
    v_cmp_ne_u32 vcc, 0, v{XR}
    s_nop 1
    s_cbranch_vccz K_PHX
    s_sleep {E("SLH", "8")}
    s_branch K_PH
    K_PHX:
    ds_write_b32 v{G0}, v{G0+1}
    s_branch K_PLX
    K_PL:
    s_mov_b32 s{sCNT}, {POLL_MAX*4}
    K_PL1:
    s_sleep {E('LSL', '8')}
    ds_read_b32 v{G0+2}, v{G0}
    s_sub_u32 s{sCNT}, s{sCNT}, 1
    s_cmp_eq_u32 s{sCNT}, 0
    s_waitcnt lgkmcnt(0)
    s_cbranch_scc1 K_PLX
    v_cmp_ne_u32 vcc, s{sEP}, v{G0+2}
    s_nop 1
    s_cbranch_vccnz K_PL1
    K_PLX:
    s_waitcnt lgkmcnt(0)
    """)
    p.flush()
    stamp(p, 2)
    spin(p, "att", sEP)
    so = [sA0, sA1, sB0, sB1]

    def gload(k):
        b = k % NBUF
        o = [I(f"buffer_load_dwordx4 {Gbuf(b,4*j,4)}, v{hL16}, s[{sWS}:{sWS+3}], s{so[j]} offen offset:{1024*(b%4)} sc1") for j in range(4)]
        if b == 3 or b == NBUF - 1:
            o += [I(f"s_add_u32 s{r}, s{r}, {1024 * (b % 4 + 1)}") for r in so]
        return o

    def gmm(b):
        return [I(f"{MF} {Gacc(u)}, {Gbuf(b,4*(u&1),4)}, {Gbuf(b,8+4*(u>>1),4)}, {Gacc(u)}") for u in (1, 2, 3, 0)]

    for k in range(NBUF - (1 if E("GX") == "il" else 0)):
        p.add(gload(k))
    p(f"s_mov_b32 s{sCNT}, {28 // NBUF - 1}")
    body = [I("K_GL:")]
    for b in range(NBUF):
        if E("GX") == "il":
            m, l = gmm(b), gload((b - 1) % NBUF)
            for i in range(4):
                body += [m[i], l[i]]
            body += l[4:]
        else:
            body += gmm(b) + gload(b)
        if E("GSL"):
            body.append(I(f"s_sleep {E('GSL')}"))
    body += [I(f"s_sub_u32 s{sCNT}, s{sCNT}, 1"), I(f"s_cmp_lg_u32 s{sCNT}, 0"), I("s_cbranch_scc1 K_GL")]
    p.loop(body)
    if E("GX") == "il":
        p.add(gload(NBUF - 1))
    p(f"""
    s_lshl_b32 s{sTMP}, s{sWAVE}, 13
    s_lshl_b32 s{sA0}, s{sNT}, 15
    s_add_u32 s{sA0}, s{sA0}, s{sTMP}
    s_add_u32 s{sA0}, s{sA0}, {WOF}
    s_xor_b32 s{sA1}, s{sA0}, 0x8000
    s_lshl_b32 s{sB0}, s{sMT}, 15
    s_add_u32 s{sB0}, s{sB0}, s{sTMP}
    s_add_u32 s{sB0}, s{sB0}, {OF}
    s_xor_b32 s{sB1}, s{sB0}, 0x8000
    """)
    p(f"""
    v_and_b32 v{vF}, 7, v0
    s_lshl_b32 s{sTMP}, s{sWAVE}, 5
    s_add_u32 s{sTMP}, s{sTMP}, {FW + 128*4}
    v_lshl_add_u32 v{vF}, v{vF}, 2, s{sTMP}
    buffer_load_dword v{XR}, v{vF}, s[{sWS}:{sWS+3}], 0 offen sc1
    """)
    for b in range(NBUF):
        p.add(gmm(b))
    p(f"""
    v_cmp_ne_u32 vcc, s{sEP}, v{XR}
    s_nop 1
    s_cbranch_vccz K_PWOX
    """)
    poll(p, "K_PWO", XR, vF, sWS, "0", sEP, sCNT, 24)
    for s in range(8):
        if s == 4:
            for r in (sA0, sA1):
                p(f"s_add_u32 s{r}, s{r}, 4096")
        for j in range(2):
            p(f"buffer_load_dwordx4 {ar(WO+8*s+4*j,4)}, v{hL16}, s[{sWS}:{sWS+3}], s{so[j]} offen offset:{1024*(s%4)} sc1")
    stamp(p, 3)
    p(f"""
    s_cmp_lg_u32 s{sWAVE}, 0
    s_cbranch_scc1 K_POX
    v_and_b32 v{vF}, 3, v0
    v_lshlrev_b32 v{vF}, 2, v{vF}
    v_add_u32 v{vF}, {EPA+16}, v{vF}
    s_mov_b32 s{sCNT}, {POLL_MAX*4}
    """)
    p.flush()
    keep = p.tr.copy()
    p(f"""
    K_PA:
    s_sleep {E('LSL', '8')}
    ds_read_b32 v{XR}, v{vF}
    s_sub_u32 s{sCNT}, s{sCNT}, 1
    s_cmp_eq_u32 s{sCNT}, 0
    s_waitcnt lgkmcnt(0)
    s_cbranch_scc1 K_PAX
    v_cmp_ne_u32 vcc, s{sEP}, v{XR}
    s_nop 1
    s_cbranch_vccnz K_PA
    K_PAX:
    v_and_b32 v{vF}, 31, v0
    v_lshlrev_b32 v{vF}, 2, v{vF}
    s_lshl_b32 s{sTMP}, s{sMP}, 7
    s_add_u32 s{sTMP}, s{sTMP}, {FO}
    """)
    stamp(p, 4)
    poll(p, "K_PO", XR, vF, sWS, f"s{sTMP}", sEP, sCNT, E("SL1", "8"))
    p.tr = keep
    p("s_barrier")
    stamp(p, 5)
    OFv = Gv[0]
    for s in range(8):
        if s == 4:
            for r in (sB0, sB1):
                p(f"s_add_u32 s{r}, s{r}, 4096")
        for j in range(2):
            p(f"buffer_load_dwordx4 {vr(OFv+8*s+4*j,4)}, v{hL16}, s[{sWS}:{sWS+3}], s{so[2+j]} offen offset:{1024*(s%4)} sc1")
    for s in range(8):
        for u in (1, 2, 3, 0):
            p(f"{MF} {Gacc(u)}, {ar(WO+8*s+4*(u&1),4)}, {vr(OFv+8*s+4*(u>>1),4)}, {Gacc(u)}")
    stamp(p, 6)
    for u in range(1, 4):
        for q in range(4):
            p(f"ds_write_b128 v{vAs[u]}, {ar(16*(u-1)+4*q,4)} offset:{1024*q}")
    p("s_waitcnt lgkmcnt(0)")
    p("s_barrier")
    R = Gv[0]
    for i in range(3):
        for q in range(4):
            p(f"ds_read_b128 {vr(R+16*i+4*q,4)}, v{vRA} offset:{4096*i+1024*q}")
    for i in range(3):
        for r in range(0, 16, 2):
            p(f"v_pk_add_f32 {vr(AC0+r,2)}, {vr(AC0+r,2)}, {vr(R+16*i+r,2)}")
    PK = XR
    for i in range(8):
        p(f"v_cvt_pk_bf16_f32 v{PK+i}, v{AC0+2*i}, v{AC0+2*i+1}")
    for qq in range(2):
        p(f"v_permlane32_swap_b32 v{PK+4*qq}, v{PK+4*qq+2}")
        p(f"v_permlane32_swap_b32 v{PK+4*qq+1}, v{PK+4*qq+3}")
    for qq in range(2):
        p(f"buffer_store_dwordx4 {vr(PK+4*qq,4)}, v{vXO}, s[{sOUT}:{sOUT+3}], s{sTMP3} offen offset:{32*qq}")
    spin(p, "end", sEP)
    stamp_out(p, 7, sWS, sWAVE, 2, 3, wave_add=4)
    p("K_END:")
    p("s_endpgm")
    p.flush()
    p.out = p.out[:cut1] + p.out[cut2:] + p.out[cut1:cut2] + [I("K_LAST:")]
    return p.text()


HEADER = f"""; Kernarg layout for this problem (72 bytes, ptrs only, base s[0:1]):
; @launch grid=(256,1,1) block=(512,1,1) lds={LDS_BYTES}
;
; workgroup per CU, all co-resident.  (Generated by a hand-written Python emitter; no compiler output.)
;  phase 1  waves 0-3 (K_COMP): 128 tokens x (3 QKV + 4 FFN) column tiles of raw x @ [Wqkv | W1];
;  phase 2  waves 0-3 (K_ATT): attention, 4 q-tiles x a quarter of the keys per wave.  Softmax shift =
;           max over the first key tile + 90 (exact shift invariance, folded into spare k slots of the
;           unsafe recomputes its tile with the true row maximum (K_SLOW).
;           waves 4-7 (K_GEMM): 64x64 output tile  x + relu(..) W2 + O Wo.
;  epoch (published through d_debug) -> sc1 polls / sc1 loads; valid under any placement; polls are bounded.
.amdgcn_target "amdgcn-amd-amdhsa--gfx950"
.text
.globl {NAME}_kernel
.p2align 8
.type {NAME}_kernel,@function
{NAME}_kernel:
"""

KD = f"""
.section .rodata,"a"
.p2align 6
.amdhsa_kernel {NAME}_kernel
  .amdhsa_next_free_vgpr 256
  .amdhsa_next_free_sgpr {{ns}}
  .amdhsa_accum_offset 256
  .amdhsa_group_segment_fixed_size 0
  .amdhsa_kernarg_size 72
  .amdhsa_user_sgpr_count 2
  .amdhsa_user_sgpr_kernarg_segment_ptr 1
  .amdhsa_system_sgpr_workgroup_id_x 1
.end_amdhsa_kernel
"""


def main():
    global STAMP
    STAMP = len(sys.argv) > 2 and sys.argv[2] == "stamp"
    txt = HEADER + gen() + KD.format(ns=100 if STAMP else 64)
    out = sys.argv[1] if len(sys.argv) > 1 else f"cdna_kernels/{NAME}.s"
    open(out, "w").write(txt)
    print("wrote", out, len(txt), "bytes")


if __name__ == "__main__":
    main()
```
